```python
import torch

def _softmax(x, axis=-1):
    return torch.softmax(x, dim=axis)
def _gelu(x):
    return torch.nn.functional.gelu(x, approximate="tanh")
def _silu(x):
    return torch.nn.functional.silu(x)
def _sigmoid(x):
    return torch.sigmoid(x)
def _layernorm(x, axis=-1, eps=1e-5):
    m = x.mean(dim=axis, keepdim=True)
    v = x.var(dim=axis, keepdim=True, unbiased=False)
    return (x - m) / torch.sqrt(v + eps)
def _scatter_add(tgt, idx, src, axis=0):
    return tgt.clone().index_add_(axis, idx, src)
def _segment_sum(src, seg, n):
    out = torch.zeros((n,) + src.shape[1:], dtype=src.dtype)
    return out.index_add_(0, seg, src)
def _pad(x, pw):
    flat = tuple(v for pair in reversed(pw) for v in pair)
    return torch.nn.functional.pad(x, flat)

kernel_name = 'parallel_sum__mha_block_cached__glu_gated_bilinear__decode'

def setup_inputs():

    _w = (lambda a: (lambda t: t.to(torch.bfloat16) if t.is_floating_point() else t)(torch.as_tensor(a)))
    def _A_setup():
        B, Sq, D = 1, 1, 576
        H, Sk, Dh = 32, 16384, 128
        return {
            "x": _w((lambda *s: torch.randn(*s, dtype=torch.bfloat16) * 0.05)(B, Sq, D)),
            "k_cache": _w((lambda *s: torch.randn(*s, dtype=torch.bfloat16) * 3.2)(B, H, Sk, Dh)),
            "v_cache": _w((lambda *s: torch.randn(*s, dtype=torch.bfloat16) * 1.6)(B, H, Sk, Dh)),
            "wq": _w((lambda *s: torch.randn(*s, dtype=torch.bfloat16) * 3.2)(D, H * Dh) * (D ** -0.5)),
            "wo": _w((lambda *s: torch.randn(*s, dtype=torch.bfloat16) * 1.6)(H * Dh, D) * ((H * Dh) ** -0.5)),
        }
    _A_in = _A_setup()

    def _B_setup():
        B, S, D, F = 1, 1, 576, 4608
        return {
            "x": _w((lambda *s: torch.randn(*s, dtype=torch.bfloat16) * 0.05)(B, S, D)),
            "w_gate": _w((lambda *s: torch.randn(*s, dtype=torch.bfloat16) * 1.6)(D, F) * (D ** -0.5)),
            "w_up": _w((lambda *s: torch.randn(*s, dtype=torch.bfloat16) * 1.6)(D, F) * (D ** -0.5)),
            "w_down": _w((lambda *s: torch.randn(*s, dtype=torch.bfloat16) * 1.6)(F, D) * (F ** -0.5)),
        }
    _B_in = _B_setup()

    return {
        "A_x": _A_in["x"],
        "A_k_cache": _A_in["k_cache"],
        "A_v_cache": _A_in["v_cache"],
        "A_wq": _A_in["wq"],
        "A_wo": _A_in["wo"],
        "B_x": _B_in["x"],
        "B_w_gate": _B_in["w_gate"],
        "B_w_up": _B_in["w_up"],
        "B_w_down": _B_in["w_down"],
    }

def reference(A_x, A_k_cache, A_v_cache, A_wq, A_wo, B_x, B_w_gate, B_w_up, B_w_down):
    def _A_ref(x, k_cache, v_cache, wq, wo):
        B, Sq, D = x.shape
        H, Dh = 32, 128
        q = (lambda x, *d: x.permute(*d))((x @ wq).reshape(B, Sq, H, Dh), 0, 2, 1, 3)
        scores = torch.einsum("bhqd,bhkd->bhqk", q, k_cache) * (Dh ** -0.5)
        p = _softmax(scores, axis=-1)
        o = torch.einsum("bhqk,bhkd->bhqd", p, v_cache)
        return (lambda x, *d: x.permute(*d))(o, 0, 2, 1, 3).reshape(B, Sq, H * Dh) @ wo

    def _B_ref(x, w_gate, w_up, w_down):
        g = torch.einsum("bsd,df->bsf", x, w_gate)
        u = torch.einsum("bsd,df->bsf", x, w_up)
        h = g * u
        return torch.einsum("bsf,fd->bsd", h, w_down)

    x = A_x
    xn = _layernorm(x, axis=-1)
    return x + _A_ref(xn, A_k_cache, A_v_cache, A_wq, A_wo) + _B_ref(xn, B_w_gate, B_w_up, B_w_down)
```

```python
import sys, struct

KNAME = "parallel_sum__mha_block_cached__glu_gated_bilinear__decode_kernel"

HEADER = """; Kernarg layout for this problem (96 bytes, ptrs only, base s[0:1]):
"""

def f2u(x):
    return struct.unpack("<I", struct.pack("<f", x))[0]

BLK = 8192
OFF_FA, OFF_FB, OFF_O, OFF_ML = 0, 2304, 4608, 6656
GU_BASE = 256 * BLK
STAMP_BASE = 3 << 20
WS_SIZE = 4 << 20
OOB = 0x40000000

class G:
    def __init__(self):
        self.L = []
    def __call__(self, s):
        self.L.append("  " + s if not s.endswith(":") else s)
    def c(self, s):
        self.L.append("  ; " + s)

def gen(D=5, INIT=8, DH=36, wq_flags="nt", stamps=False, bar2=True, DG=3, spin=1 << 18):
    A = G()
    sID = "s2"
    pX, pK, pV, pWQ, pWO, pWG, pWU, pWD, pOUT, pDBG, pWS = 16, 18, 20, 22, 24, 28, 30, 32, 34, 36, 38
    rX, rST, rW, rWS, rO = 40, 44, 48, 52, 56
    sWV, sH, sS, sB, sHW = "s3", "s4", "s5", "s6", "s7"
    sOFF, sCNT, sT0, sT1, sT2, sM = "s8", "s9", "s10", "s11", "s12", "s13"
    sSPIN = "s14"
    mU = ["s[60:61]", "s[62:63]", "s[64:65]", "s[66:67]"]
    mT = ["s[68:69]", "s[70:71]", "s[72:73]", "s[74:75]"]
    def srd(r): return f"s[{r}:{r+3}]"
    def mk_srd(r, p, size):
        A(f"s_mov_b32 s{r}, s{p}"); A(f"s_mov_b32 s{r+1}, s{p+1}"); A(f"s_mov_b32 s{r+2}, {size}"); A(f"s_mov_b32 s{r+3}, 0x20000")
    nstamp = [0]
    def stamp(idx):
        if not stamps: return
        A("s_memrealtime s[80:81]")
        A("s_waitcnt lgkmcnt(0)")
        A(f"v_mov_b32 v{vST}, s80")
        A(f"buffer_store_dword v{vST}, v{vSTO}, {srd(84)}, 0 offen offset:{idx*4}")
    vLANE, vG, vN = 1, 2, 3
    vMK = [4, 5, 6, 7]
    vT = [8, 9, 10, 11, 12, 13, 14, 15]
    vAop = [16, 20]
    vACC = 24
    vST, vSTO = 44, 45
    vOFFC, vOFFV = 46, 47
    vBQ = 48
    vDK = 64
    vS = 68
    vSN, vP, vL = 76, 77, 78
    vX4 = 80
    RING = 128
    vXA = 48
    vXC = 56
    vOA, vOB = 60, 61
    vSA, vSB = 62, 63
    vCO = 64
    WBUF = 96

    def dpp_reduce(regs, op):
        seq = ["row_shr:1", "row_shr:2", "row_shr:4", "row_shr:8"]
        for d in seq:
            A("s_nop 1")
            for r in regs: A(f"{op}_dpp v{r}, v{r}, v{r} {d} row_mask:0xf bank_mask:0xf")
        A("s_nop 1")
        for r in regs: A(f"{op}_dpp v{r}, v{r}, v{r} row_bcast:15 row_mask:0xa bank_mask:0xf")
        A("s_nop 1")
        for r in regs: A(f"{op}_dpp v{r}, v{r}, v{r} row_bcast:31 row_mask:0xc bank_mask:0xf")
        A("s_nop 1")

    aop_flip = [0]
    def sel(coef, idx):
        a = vAop[aop_flip[0]]; aop_flip[0] ^= 1
        for i in range(4):
            A(f"v_and_b32_dpp v{a+i}, v{coef}, v{vMK[i]} row_newbcast:{idx} row_mask:0xf bank_mask:0xf")
        return a
    def mfma(d, a, b, first=False):
        c = "0" if first else f"v[{d}:{d+3}]"
        A(f"v_mfma_f32_16x16x32_bf16 v[{d}:{d+3}], v[{a}:{a+3}], v[{b}:{b+3}], {c}")
    def bf16_round(dst, src):
        A(f"v_cvt_pk_bf16_f32 v{dst}, v{src}, v{src}")
        A(f"v_lshlrev_b32 v{dst}, 16, v{dst}")

    A.L.append(f"{KNAME}:")
    A(f"s_cmp_ge_u32 {sID}, 256")
    A("s_cbranch_scc1 L_end")
    A("s_load_dwordx16 s[16:31], s[0:1], 0")
    A("s_load_dwordx8 s[32:39], s[0:1], 64")
    A("v_lshrrev_b32 v8, 6, v0")
    A(f"v_and_b32 v{vLANE}, 63, v0")
    A(f"v_readfirstlane_b32 {sWV}, v8")
    A(f"v_lshrrev_b32 v{vG}, 4, v{vLANE}")
    A(f"v_and_b32 v{vN}, 15, v{vLANE}")
    A(f"s_and_b32 {sT0}, {sID}, 7")
    A(f"s_lshr_b32 {sT1}, {sID}, 3")
    A(f"s_and_b32 {sH}, {sT1}, 3")
    A(f"s_lshl_b32 {sT0}, {sT0}, 2")
    A(f"s_add_u32 {sH}, {sH}, {sT0}")
    A(f"s_lshr_b32 {sS}, {sT1}, 2")
    A(f"s_lshl_b32 {sB}, {sH}, 3")
    A(f"s_add_u32 {sB}, {sB}, {sS}")
    A(f"v_and_b32 v8, 1, v{vN}")
    A("v_lshlrev_b32 v8, 4, v8")
    A("s_mov_b32 s10, 0xffff")
    A("v_lshlrev_b32 v8, v8, s10")
    A(f"v_lshrrev_b32 v9, 1, v{vN}")
    for i in range(4):
        A(f"v_cmp_eq_u32 vcc, {i}, v9")
        A("s_nop 1")
        A(f"v_cndmask_b32 v{vMK[i]}, 0, v8, vcc")
    if stamps:
        A(f"s_lshl_b32 s82, {sID}, 3")
        A(f"s_add_u32 s82, s82, {sWV}")
        A("s_lshl_b32 s82, s82, 6")
        A(f"s_add_u32 s82, s82, {STAMP_BASE}")
        A(f"v_mov_b32 v{vSTO}, {OOB}")
        A(f"v_mov_b32 v9, s82")
        A(f"v_cmp_eq_u32 vcc, 0, v{vLANE}")
        A("s_nop 1")
        A(f"v_cndmask_b32 v{vSTO}, v{vSTO}, v9, vcc")
    A("s_waitcnt lgkmcnt(0)")
    mk_srd(rX, pX, 1152)
    mk_srd(rWS, pWS, WS_SIZE)
    if stamps:
        mk_srd(84, pWS, WS_SIZE)
    A(f"s_cmp_ge_u32 {sWV}, 4")
    A("s_cbranch_scc1 L_helper")

    A.c("---- streamer waves 0..3")
    mk_srd(rST, pK, 0x8000000)
    nst = 1 if stamps else 0
    stamp(0)
    A(f"s_lshl_b32 {sT0}, {sID}, 3")
    A(f"v_mov_b32 v8, {sT0}")
    A(f"buffer_load_dwordx2 v[{vX4}:{vX4+1}], v8, {srd(rX)}, 0 offen")
    A(f"s_lshl_b32 {sT0}, {sB}, 19")
    A(f"s_lshl_b32 {sT1}, {sWV}, 10")
    A(f"s_add_u32 {sT0}, {sT0}, {sT1}")
    A(f"v_lshrrev_b32 v8, 2, v{vN}")
    A("v_lshlrev_b32 v8, 8, v8")
    A(f"v_and_b32 v9, 3, v{vN}")
    A("v_lshlrev_b32 v9, 4, v9")
    A(f"v_lshlrev_b32 v10, 6, v{vG}")
    A("v_add3_u32 v8, v8, v9, v10")
    A(f"v_add_u32 v{vOFFC}, {sT0}, v8")
    A(f"v_lshlrev_b32 v8, 4, v{vLANE}")
    A(f"v_add_u32 v{vOFFV}, {sT0}, v8")
    A(f"s_mov_b32 {sOFF}, 0")
    def issue(slot):
        r = RING + 4 * slot
        A(f"buffer_load_dwordx4 v[{r}:{r+3}], v{vOFFC}, {srd(rST)}, {sOFF} offen nt")
        A(f"s_add_u32 {sOFF}, {sOFF}, 4096")
    for n in range(32):
        if n >= INIT:
            A(f"s_waitcnt vmcnt({D-1})")
        issue(n)
    A(f"v_and_b32 v8, 3, v{vN}")
    A(f"v_lshrrev_b32 v9, 2, v{vN}")
    for u in range(4):
        A(f"v_cmp_eq_u32 {mU[u]}, {u}, v8")
        A(f"v_cmp_eq_u32 {mT[u]}, {u}, v9")
    stamp(1) if False else None
    A("s_barrier")
    A(f"v_lshlrev_b32 v9, 2, v{vG}")
    A("v_add_u32 v8, v8, v9")
    A("v_lshlrev_b32 v8, 5, v8")
    QT = 84
    for w in range(4):
        A(f"ds_read_b128 v[{QT+8*w}:{QT+8*w+3}], v8 offset:{w*512}")
        A(f"ds_read_b128 v[{QT+8*w+4}:{QT+8*w+7}], v8 offset:{w*512+16}")
    A("s_waitcnt lgkmcnt(0)")
    for j in range(8):
        A(f"v_add_f32 v{QT+j}, v{QT+j}, v{QT+8+j}")
        A(f"v_add_f32 v{QT+16+j}, v{QT+16+j}, v{QT+24+j}")
    for j in range(8):
        A(f"v_add_f32 v{QT+j}, v{QT+j}, v{QT+16+j}")
    for i in range(4):
        A(f"v_cvt_pk_bf16_f32 v{QT+8+i}, v{QT+2*i}, v{QT+2*i+1}")
    for t in range(4):
        for i in range(4):
            A(f"v_cndmask_b32 v{vBQ+4*t+i}, 0, v{QT+8+i}, {mT[t]}")
    A(f"s_mov_b32 {sT2}, {f2u(128 ** -0.5)}")
    A(f"s_mov_b32 {sCNT}, 0")
    A("s_nop 1")
    A.L.append("L_kloop:")
    A(f"s_cmp_eq_u32 {sCNT}, 3")
    A("s_cbranch_scc0 L_kbody")
    A(f"s_mov_b32 s{rST}, s{pV}")
    A(f"s_mov_b32 s{rST+1}, s{pV+1}")
    A(f"s_mov_b32 {sOFF}, 0")
    A(f"v_mov_b32 v{vOFFC}, v{vOFFV}")
    A.L.append("L_kbody:")
    for n in range(32):
        t, u = n % 4, (n // 4) % 4
        mfma(vDK, RING + 4 * n, vBQ + 4 * t, first=(t == 0))
        A(f"s_waitcnt vmcnt({D-1})")
        issue(n)
        if t == 3:
            A("s_nop 5")
            A(f"v_mov_b32_dpp v8, v{vDK} quad_perm:[0,0,0,0] row_mask:0xf bank_mask:0xf")
            for cidx in range(1, 4):
                A(f"v_add_f32_dpp v8, v{vDK+cidx}, v8 quad_perm:[{cidx},{cidx},{cidx},{cidx}] row_mask:0xf bank_mask:0xf")
            if u == 0:
                A(f"v_mov_b32 v{vSN}, v8")
            else:
                A(f"v_cndmask_b32 v{vSN}, v{vSN}, v8, {mU[u]}")
            if u == 3:
                bf16_round(vSN, vSN)
                A(f"v_mul_f32 v{vSN}, {sT2}, v{vSN}")
                bf16_round(vSN, vSN)
                for k in range(7):
                    A(f"v_mov_b32 v{vS+k}, v{vS+k+1}")
                A(f"v_mov_b32 v{vS+7}, v{vSN}")
    A(f"s_add_u32 {sCNT}, {sCNT}, 1")
    A(f"s_cmp_lt_u32 {sCNT}, 4")
    A("s_cbranch_scc1 L_kloop")
    A(f"v_max3_f32 v8, v{vS}, v{vS+1}, v{vS+2}")
    A(f"v_max3_f32 v8, v8, v{vS+3}, v{vS+4}")
    A(f"v_max3_f32 v8, v8, v{vS+5}, v{vS+6}")
    A(f"v_max_f32 v8, v8, v{vS+7}")
    dpp_reduce([8], "v_max_f32")
    A(f"v_readlane_b32 {sM}, v8, 63")
    A(f"s_mov_b32 {sT2}, {f2u(1.4426950408889634)}")
    A(f"v_mov_b32 v{vL}, 0")
    for i in range(4): A(f"v_mov_b32 v{vACC+i}, 0")
    A(f"s_mov_b32 {sCNT}, 0")
    def ptile():
        A(f"v_subrev_f32 v8, {sM}, v{vS}")
        A(f"v_mul_f32 v8, {sT2}, v8")
        A("v_exp_f32 v8, v8")
        for k in range(7):
            A(f"v_mov_b32 v{vS+k}, v{vS+k+1}")
        A(f"v_add_f32 v{vL}, v{vL}, v8")
        A(f"v_cvt_pk_bf16_f32 v{vP}, v8, v8")
        A("s_nop 1")
    def vstep(n, last):
        if n % 16 == 0: ptile()
        L = n % 16; t, u = L % 4, L // 4
        a = sel(vP, 4 * t + u)
        if last and n >= 32 - D:
            A(f"s_waitcnt vmcnt({31-n})")
            A("s_nop 0")
        else:
            A("s_nop 1")
        mfma(vACC, a, RING + 4 * n)
        if not last:
            A(f"s_waitcnt vmcnt({D-1})")
            issue(n)
    A.L.append("L_vloop:")
    for n in range(32): vstep(n, False)
    A(f"s_add_u32 {sCNT}, {sCNT}, 1")
    A(f"s_cmp_lt_u32 {sCNT}, 3")
    A("s_cbranch_scc1 L_vloop")
    if bar2: A("s_barrier")
    for n in range(32): vstep(n, True)
    dpp_reduce([vL], "v_add_f32")
    A(f"s_lshl_b32 {sT0}, {sB}, 13")
    A(f"s_lshl_b32 {sT1}, {sWV}, 9")
    A(f"s_add_u32 {sT1}, {sT1}, {sT0}")
    A(f"s_add_u32 {sT1}, {sT1}, {OFF_O}")
    A(f"v_lshlrev_b32 v8, 5, v{vN}")
    A(f"v_lshl_add_u32 v8, v{vG}, 4, v8")
    A(f"v_add_u32 v8, {sT1}, v8")
    A(f"v_mov_b32 v9, {OOB}")
    A(f"v_cmp_gt_u32 vcc, 32, v{vLANE}")
    A(f"s_lshl_b32 {sT1}, {sWV}, 3")
    A(f"s_add_u32 {sT1}, {sT1}, {sT0}")
    A(f"v_cndmask_b32 v8, v9, v8, vcc")
    A(f"buffer_store_dwordx4 v[{vACC}:{vACC+3}], v8, {srd(rWS)}, 0 offen sc1")
    A(f"s_add_u32 {sT1}, {sT1}, {OFF_ML}")
    A(f"v_mov_b32 v10, {sT1}")
    A(f"v_cmp_eq_u32 vcc, 63, v{vLANE}")
    A(f"v_mov_b32 v12, {sM}")
    A(f"v_mov_b32 v13, v{vL}")
    A(f"v_cndmask_b32 v10, v9, v10, vcc")
    A(f"buffer_store_dwordx2 v[12:13], v10, {srd(rWS)}, 0 offen sc1")
    stamp(2)
    A("s_barrier")
    A(f"s_cmp_lg_u32 {sWV}, 0")
    A("s_cbranch_scc1 L_end")
    A(f"s_cmp_ge_u32 {sID}, 144")
    A("s_cbranch_scc1 L_end")
    A.c("---- final reduction for columns 4*id .. 4*id+3")
    mk_srd(rO, pOUT, 1152)
    A(f"s_lshl_b32 {sT0}, {sID}, 4")
    A(f"v_lshlrev_b32 v8, 13, v{vLANE}")
    A(f"v_add_u32 v8, {sT0}, v8")
    FT = RING
    def gather_final(label, off, dst):
        A(f"s_mov_b32 {sSPIN}, 0")
        A.L.append(f"{label}:")
        for k in range(4):
            A(f"s_mov_b32 {sT1}, {k*64*BLK}")
            A(f"buffer_load_dwordx4 v[{FT+4*k}:{FT+4*k+3}], v8, {srd(rWS)}, {sT1} offen offset:{off} sc1")
        A("s_waitcnt vmcnt(0)")
        A(f"v_max3_u32 v9, v{FT}, v{FT+1}, v{FT+2}")
        for k in range(3, 15, 2):
            A(f"v_max3_u32 v9, v9, v{FT+k}, v{FT+k+1}")
        A(f"v_max_u32 v9, v9, v{FT+15}")
        A("v_cmp_eq_u32 vcc, -1, v9")
        A(f"s_add_u32 {sSPIN}, {sSPIN}, 1")
        A(f"s_cmp_ge_u32 {sSPIN}, {spin}")
        A(f"s_cbranch_scc1 {label}_done")
        A(f"s_cbranch_vccnz {label}")
        A.L.append(f"{label}_done:")
        for i in range(4):
            A(f"v_add_f32 v{FT+i}, v{FT+i}, v{FT+4+i}")
            A(f"v_add_f32 v{FT+8+i}, v{FT+8+i}, v{FT+12+i}")
        for i in range(4):
            A(f"v_add_f32 v{dst+i}, v{FT+i}, v{FT+8+i}")
        dpp_reduce([dst + i for i in range(4)], "v_add_f32")
    gather_final("L_fb", OFF_FB, 84)
    for i in range(4): bf16_round(84 + i, 84 + i)
    A(f"v_lshlrev_b32 v92, 16, v{vX4}")
    A(f"v_and_b32 v93, 0xffff0000, v{vX4}")
    A(f"v_lshlrev_b32 v94, 16, v{vX4+1}")
    A(f"v_and_b32 v95, 0xffff0000, v{vX4+1}")
    A(f"s_lshl_b32 {sT0}, {sID}, 3")
    A(f"v_mov_b32 v10, {sT0}")
    A(f"v_mov_b32 v11, {OOB}")
    A(f"v_cmp_eq_u32 vcc, 63, v{vLANE}")
    A("s_nop 1")
    A("v_cndmask_b32 v96, v11, v10, vcc")
    gather_final("L_fa", OFF_FA, 88)
    for i in range(4):
        bf16_round(88 + i, 88 + i)
        A(f"v_add_f32 v{88+i}, v{92+i}, v{88+i}")
        bf16_round(88 + i, 88 + i)
        A(f"v_add_f32 v{88+i}, v{88+i}, v{84+i}")
    A("v_cvt_pk_bf16_f32 v12, v88, v89")
    A("v_cvt_pk_bf16_f32 v13, v90, v91")
    A(f"buffer_store_dwordx2 v[12:13], v96, {srd(rO)}, 0 offen")
    stamp(3)
    A("s_endpgm")

    A.L.append("L_helper:")
    A.c("---- helper waves 4..7")
    A(f"s_sub_u32 {sHW}, {sWV}, 4")
    mk_srd(rW, pWQ, 576 * 4096 * 2)
    stamp(0)
    for i in range(4): A(f"v_mov_b32 v{12+i}, -1")
    A(f"s_lshl_b32 {sT0}, {sB}, 13")
    A(f"s_lshl_b32 {sT1}, {sHW}, 11")
    A(f"s_add_u32 {sT0}, {sT0}, {sT1}")
    A(f"v_lshlrev_b32 v8, 4, v{vLANE}")
    A(f"buffer_store_dwordx4 v[12:15], v8, {srd(rWS)}, {sT0} offen sc1")
    A(f"buffer_store_dwordx4 v[12:15], v8, {srd(rWS)}, {sT0} offen offset:1024 sc1")
    A(f"v_lshlrev_b32 v8, 2, v{vLANE}")
    for k in range(5):
        A(f"buffer_load_dword v{vXA+k}, v8, {srd(rX)}, 0 offen offset:{k*256}")
    A(f"v_lshl_add_u32 v9, v{vN}, 2, v{vG}")
    A("v_and_b32 v9, -2, v9")
    A("v_lshlrev_b32 v9, 1, v9")
    A(f"s_mul_i32 {sT0}, {sHW}, 288")
    for T in range(3):
        A(f"buffer_load_dword v{vXC+T}, v9, {srd(rX)}, {sT0} offen offset:{T*128}")
    A(f"s_lshr_b32 {sT1}, {sID}, 1")
    A(f"s_and_b32 {sT1}, {sT1}, 15")
    A(f"s_mul_i32 {sT0}, {sT1}, 72")
    A(f"buffer_load_dword v{vXC+3}, v9, {srd(rX)}, {sT0} offen")
    A(f"s_mul_i32 {sT0}, {sHW}, {144*8192}")
    A(f"s_lshl_b32 {sT1}, {sH}, 8")
    A(f"s_add_u32 {sOFF}, {sT0}, {sT1}")
    A(f"v_lshlrev_b32 v8, 13, v{vG}")
    A(f"v_lshl_add_u32 v{vOA}, v{vN}, 4, v8")
    def wq_issue(t):
        r = WBUF + 4 * t
        A(f"buffer_load_dwordx4 v[{r}:{r+3}], v{vOA}, {srd(rW)}, {sOFF} offen {wq_flags}")
        A(f"s_add_u32 {sOFF}, {sOFF}, 32768")
    npre = min(DH, 36)
    for t in range(npre): wq_issue(t)
    A(f"s_waitcnt vmcnt({npre})")
    XF = 68
    for k in range(5):
        A(f"v_lshlrev_b32 v{XF+2*k}, 16, v{vXA+k}")
        A(f"v_and_b32 v{XF+2*k+1}, 0xffff0000, v{vXA+k}")
    A(f"v_add_f32 v8, v{XF}, v{XF+1}")
    for k in range(2, 10): A(f"v_add_f32 v8, v8, v{XF+k}")
    dpp_reduce([8], "v_add_f32")
    A(f"v_mul_f32 v8, {f2u(1.0/576)}, v8")
    A("s_nop 0")
    A(f"v_readlane_b32 {sT0}, v8, 63")
    A(f"v_cmp_gt_u32 vcc, 32, v{vLANE}")
    A("s_nop 1")
    for k in range(10): A(f"v_subrev_f32 v{XF+k}, {sT0}, v{XF+k}")
    A(f"v_cndmask_b32 v{XF+8}, 0, v{XF+8}, vcc")
    A(f"v_cndmask_b32 v{XF+9}, 0, v{XF+9}, vcc")
    A(f"v_mul_f32 v9, v{XF}, v{XF}")
    for k in range(1, 10): A(f"v_fmac_f32 v9, v{XF+k}, v{XF+k}")
    dpp_reduce([9], "v_add_f32")
    A(f"v_mul_f32 v9, {f2u(1.0/576)}, v9")
    bf16_round(9, 9)
    A(f"v_add_f32 v9, {f2u(1e-5)}, v9")
    bf16_round(9, 9)
    A("v_sqrt_f32 v9, v9")
    A("s_nop 0")
    bf16_round(9, 9)
    A("v_rcp_f32 v9, v9")
    bf16_round(8, 8)
    A("s_nop 0")
    A(f"v_readlane_b32 {sT0}, v8, 63")
    A(f"v_readlane_b32 {sT1}, v9, 63")
    A(f"v_and_b32 v10, 1, v{vG}")
    A("v_lshlrev_b32 v10, 4, v10")
    for k in range(4):
        r = vXC + k
        A(f"v_lshrrev_b32 v{r}, v10, v{r}")
        A(f"v_lshlrev_b32 v{r}, 16, v{r}")
        A(f"v_subrev_f32 v{r}, {sT0}, v{r}")
        bf16_round(r, r)
        A(f"v_mul_f32 v{r}, {sT1}, v{r}")
        A(f"v_cvt_pk_bf16_f32 v{r}, v{r}, v{r}")
    A("s_nop 1")
    stamp(1)
    nst_h = 1 if stamps else 0
    for t in range(36):
        a = sel(vXC + t // 16, t % 16)
        outstanding_after = min(npre + t, 36) - (t + 1)
        A(f"s_waitcnt vmcnt({outstanding_after})")
        A("s_nop 0")
        mfma(vACC, a, WBUF + 4 * t, first=(t == 0))
        if npre + t < 36: wq_issue(npre + t)
    A("s_waitcnt vmcnt(0)")
    A(f"v_lshlrev_b32 v8, 5, v{vN}")
    A(f"v_lshl_add_u32 v8, v{vG}, 4, v8")
    A(f"s_lshl_b32 {sT0}, {sHW}, 9")
    A(f"v_add_u32 v8, {sT0}, v8")
    A("v_mov_b32 v9, 2048")
    A("v_mov_b32 v10, 0")
    A("s_nop 4")
    A("ds_write_b32 v9, v10")
    A("s_mov_b32 exec_hi, 0")
    A(f"ds_write_b128 v8, v[{vACC}:{vACC+3}]")
    A("s_mov_b32 exec_hi, -1")
    A("s_waitcnt lgkmcnt(0)")
    stamp(2)
    A("s_barrier")
    A(f"s_and_b32 {sT0}, {sID}, 1")
    A(f"s_cmp_eq_u32 {sT0}, 0")
    A(f"s_cselect_b32 s{rW}, s{pWG}, s{pWU}")
    A(f"s_cselect_b32 s{rW+1}, s{pWG+1}, s{pWU+1}")
    A(f"s_mov_b32 s{rW+2}, {576*4608*2}")
    def two_group_offsets(rowstride):
        A(f"s_mul_i32 {sT2}, {sHW}, 288")
        A(f"v_mul_u32_u24 v8, {rowstride}, v{vG}")
        A(f"v_lshl_add_u32 v8, v{vN}, 4, v8")
        A(f"v_add_u32 v{vOA}, {sT2}, v8")
        A(f"v_add_u32 v8, 256, v{vOA}")
        A(f"v_mov_b32 v9, {OOB}")
        A(f"v_cmp_gt_u32 vcc, 2, v{vN}")
        A("s_nop 1")
        A(f"v_cndmask_b32 v{vOB}, v9, v8, vcc")
    def two_group_store_offsets():
        A(f"s_mul_i32 {sT2}, {sHW}, 576")
        A(f"v_lshlrev_b32 v8, 5, v{vN}")
        A(f"v_lshl_add_u32 v8, v{vG}, 4, v8")
        A(f"v_add_u32 v8, {sT2}, v8")
        A(f"v_mov_b32 v9, {OOB}")
        A(f"v_cmp_gt_u32 vcc, 32, v{vLANE}")
        A("s_nop 1")
        A(f"v_cndmask_b32 v{vSA}, v9, v8, vcc")
        A(f"v_add_u32 v8, 512, v{vSA}")
        A(f"v_cmp_gt_u32 vcc, 2, v{vN}")
        A("s_nop 1")
        A(f"v_cndmask_b32 v{vSB}, v9, v8, vcc")
    two_group_offsets(9216)
    two_group_store_offsets()
    A(f"s_lshr_b32 {sT1}, {sID}, 1")
    A(f"s_and_b32 {sT1}, {sT1}, 15")
    A(f"s_lshr_b32 {sT2}, {sID}, 5")
    A(f"s_mul_i32 {sOFF}, {sT1}, {36*9216}")
    A(f"s_mul_i32 {sT0}, {sT2}, 1152")
    A(f"s_add_u32 {sOFF}, {sOFF}, {sT0}")
    def gu_issue(t):
        r = WBUF + 8 * t
        A(f"buffer_load_dwordx4 v[{r}:{r+3}], v{vOA}, {srd(rW)}, {sOFF} offen nt")
        A(f"buffer_load_dwordx4 v[{r+4}:{r+7}], v{vOB}, {srd(rW)}, {sOFF} offen nt")
        A(f"s_add_u32 {sOFF}, {sOFF}, {4*9216}")
    for t in range(DG): gu_issue(t)
    for t in range(9):
        a = sel(vXC + 3, t)
        A(f"s_waitcnt vmcnt({2*(min(DG + t, 9) - (t + 1))})")
        A("s_nop 0")
        mfma(vACC, a, WBUF + 8 * t, first=(t == 0))
        mfma(vACC + 4, a, WBUF + 8 * t + 4, first=(t == 0))
        if DG + t < 9: gu_issue(DG + t)
    A(f"s_and_b32 {sT0}, {sID}, 1")
    A(f"s_lshl_b32 {sT0}, {sT0}, 4")
    A(f"s_add_u32 {sT0}, {sT0}, {sT1}")
    A(f"s_mul_i32 {sT0}, {sT0}, 18432")
    A(f"s_lshr_b32 {sT2}, {sID}, 5")
    A(f"s_mul_i32 {sT2}, {sT2}, 2304")
    A(f"s_add_u32 {sT0}, {sT0}, {sT2}")
    A(f"s_add_u32 {sT0}, {sT0}, {GU_BASE}")
    A("s_nop 4")
    A(f"buffer_store_dwordx4 v[{vACC}:{vACC+3}], v{vSA}, {srd(rWS)}, {sT0} offen sc1")
    A(f"buffer_store_dwordx4 v[{vACC+4}:{vACC+7}], v{vSB}, {srd(rWS)}, {sT0} offen sc1")
    A("s_waitcnt vmcnt(0)")
    mk_srd(rO, pDBG, 256)
    A("v_mov_b32 v8, 2048")
    A("v_mov_b32 v9, 1")
    A("s_mov_b64 exec, 1")
    A("ds_add_rtn_u32 v10, v8, v9")
    A("s_waitcnt lgkmcnt(0)")
    A(f"v_readfirstlane_b32 {sT0}, v10")
    A("v_mov_b32 v8, 0")
    A(f"s_cmp_eq_u32 {sT0}, 3")
    A("s_cbranch_scc0 L_nosig")
    A(f"buffer_atomic_add v9, v8, {srd(rO)}, 0 offen sc1")
    A.L.append("L_nosig:")
    A("s_mov_b64 exec, -1")
    stamp(3)
    A(f"s_cmp_lg_u32 {sHW}, 1")
    A("s_cbranch_scc1 L_nodown")
    A(f"s_mov_b32 {sSPIN}, 0")
    A("v_mov_b32 v8, 0")
    A.L.append("L_cpoll:")
    A(f"buffer_load_dword v9, v8, {srd(rO)}, 0 offen sc1")
    A("s_waitcnt vmcnt(0)")
    A(f"v_readfirstlane_b32 {sT0}, v9")
    A(f"s_add_u32 {sSPIN}, {sSPIN}, 1")
    A(f"s_cmp_ge_u32 {sT0}, 256")
    A("s_cbranch_scc1 L_cdone")
    A("s_sleep 8")
    A(f"s_cmp_lt_u32 {sSPIN}, {spin}")
    A("s_cbranch_scc1 L_cpoll")
    A.L.append("L_cdone:")
    A(f"v_lshl_add_u32 v8, v{vN}, 2, v{vG}")
    A("v_cmp_gt_u32 vcc, 18, v8")
    A("v_lshlrev_b32 v8, 2, v8")
    A(f"v_mov_b32 v9, {OOB}")
    A("v_cndmask_b32 v8, v9, v8, vcc")
    A(f"s_mul_i32 {sT0}, {sID}, 72")
    A(f"s_add_u32 {sT0}, {sT0}, {GU_BASE}")
    for r in range(32):
        A(f"buffer_load_dword v{WBUF+r}, v8, {srd(rWS)}, {sT0} offen sc1")
        A(f"s_add_u32 {sT0}, {sT0}, 18432")
    A(f"s_mov_b32 s{rW}, s{pWD}")
    A(f"s_mov_b32 s{rW+1}, s{pWD+1}")
    A(f"v_mul_u32_u24 v10, 1152, v{vG}")
    A(f"v_lshl_add_u32 v10, v{vN}, 4, v10")
    A(f"v_cmp_gt_u32 vcc, 8, v{vN}")
    A("s_nop 1")
    A("v_cndmask_b32 v11, v9, v10, vcc")
    A(f"v_cmp_gt_u32 vcc, 32, v{vLANE}")
    A("s_nop 1")
    A("v_cndmask_b32 v12, v9, v10, vcc")
    A("v_cndmask_b32 v13, v9, v11, vcc")
    A(f"s_mul_i32 {sOFF}, {sID}, {18*1152}")
    WD = WBUF + 32
    def wd_issue(t):
        for cgrp in range(5):
            r = WD + 20 * t + 4 * cgrp
            vo = (10 if cgrp < 4 else 11) + (2 if t == 4 else 0)
            A(f"buffer_load_dwordx4 v[{r}:{r+3}], v{vo}, {srd(rW)}, {sOFF} offen offset:{cgrp*256} nt")
        A(f"s_add_u32 {sOFF}, {sOFF}, {4*1152}")
    wd_issue(0)
    A("s_waitcnt vmcnt(5)")
    for m in range(2):
        b = WBUF + 16 * m
        for r in range(1, 16): A(f"v_add_f32 v{b}, v{b}, v{b+r}")
        bf16_round(b, b)
    A(f"v_mul_f32 v{vCO}, v{WBUF}, v{WBUF+16}")
    A(f"v_cvt_pk_bf16_f32 v{vCO}, v{vCO}, v{vCO}")
    A("s_nop 1")
    for t in range(5):
        if t + 1 < 5: wd_issue(t + 1)
        a = sel(vCO, t)
        A(f"s_waitcnt vmcnt({5 if t + 1 < 5 else 0})")
        A("s_nop 0")
        for cgrp in range(5):
            mfma(vACC + 4 * cgrp, a, WD + 20 * t + 4 * cgrp, first=(t == 0))
    A(f"v_lshlrev_b32 v8, 5, v{vN}")
    A(f"v_lshl_add_u32 v8, v{vG}, 4, v8")
    A(f"v_cmp_gt_u32 vcc, 32, v{vLANE}")
    A(f"s_lshl_b32 {sT0}, {sB}, 13")
    A(f"s_add_u32 {sT0}, {sT0}, {OFF_FB}")
    A("v_cndmask_b32 v8, v9, v8, vcc")
    A(f"v_cmp_gt_u32 vcc, 8, v{vN}")
    A("s_nop 1")
    A("v_cndmask_b32 v10, v9, v8, vcc")
    A("s_nop 4")
    for cgrp in range(5):
        vo = 8 if cgrp < 4 else 10
        A(f"buffer_store_dwordx4 v[{vACC+4*cgrp}:{vACC+4*cgrp+3}], v{vo}, {srd(rWS)}, {sT0} offen offset:{cgrp*512} sc1")
    stamp(4)
    A.L.append("L_nodown:")
    A(f"s_mov_b32 s{rW}, s{pWO}")
    A(f"s_mov_b32 s{rW+1}, s{pWO+1}")
    A(f"s_mov_b32 s{rW+2}, {4096*576*2}")
    two_group_offsets(1152)
    A(f"s_mul_i32 {sOFF}, {sB}, {16*1152}")
    A(f"v_lshrrev_b32 v8, 2, v{vN}")
    A("v_lshlrev_b32 v8, 14, v8")
    A(f"s_lshl_b32 {sT0}, {sH}, 16")
    A(f"v_add_u32 v70, {sT0}, v8")
    A(f"v_and_b32 v9, 3, v{vN}")
    A(f"v_lshl_add_u32 v9, v9, 2, v{vG}")
    A("v_lshlrev_b32 v9, 2, v9")
    A(f"s_lshl_b32 {sT1}, {sS}, 6")
    A(f"v_add3_u32 v71, v70, v9, {sT1}")
    if bar2: A("s_barrier")
    for t in range(4):
        r = WBUF + 8 * t
        A(f"buffer_load_dwordx4 v[{r}:{r+3}], v{vOA}, {srd(rW)}, {sOFF} offen nt")
        A(f"buffer_load_dwordx4 v[{r+4}:{r+7}], v{vOB}, {srd(rW)}, {sOFF} offen nt")
        A(f"s_add_u32 {sOFF}, {sOFF}, {4*1152}")
    A("s_barrier")
    OG, ML = 160, 176
    A(f"s_mov_b32 {sSPIN}, 0")
    A(f"s_mov_b32 {sT0}, {OFF_O}")
    A(f"s_mov_b32 {sT1}, {OFF_O + BLK}")
    A(f"s_mov_b32 {sT2}, {OFF_ML}")
    A(f"s_mov_b32 {sM}, {OFF_ML + BLK}")
    A.L.append("L_opoll:")
    for k in range(8):
        so = sT0 if k < 4 else sT1
        A(f"buffer_load_dword v{OG+k}, v71, {srd(rWS)}, {so} offen offset:{(k%4)*512} sc1")
    for k in range(4):
        so = sT2 if k < 2 else sM
        A(f"buffer_load_dwordx4 v[{ML+4*k}:{ML+4*k+3}], v70, {srd(rWS)}, {so} offen offset:{(k%2)*16} sc1")
    A("s_waitcnt vmcnt(0)")
    A(f"v_max3_u32 v9, v{OG}, v{OG+1}, v{OG+2}")
    A(f"v_max3_u32 v9, v9, v{OG+3}, v{OG+4}")
    A(f"v_max3_u32 v9, v9, v{OG+5}, v{OG+6}")
    A(f"v_max3_u32 v9, v9, v{OG+7}, v{ML}")
    for k in range(1, 15, 2):
        A(f"v_max3_u32 v9, v9, v{ML+k}, v{ML+k+1}")
    A(f"v_max_u32 v9, v9, v{ML+15}")
    A("v_cmp_eq_u32 vcc, -1, v9")
    A(f"s_add_u32 {sSPIN}, {sSPIN}, 1")
    A(f"s_cmp_ge_u32 {sSPIN}, {spin}")
    A("s_cbranch_scc1 L_odone")
    A("s_cbranch_vccnz L_opoll")
    A.L.append("L_odone:")
    stamp(5)
    A(f"v_max3_f32 v8, v{ML}, v{ML+2}, v{ML+4}")
    A(f"v_max3_f32 v8, v8, v{ML+6}, v{ML+8}")
    A(f"v_max3_f32 v8, v8, v{ML+10}, v{ML+12}")
    A(f"v_max_f32 v8, v8, v{ML+14}")
    A("s_nop 1")
    A("v_max_f32_dpp v8, v8, v8 row_ror:8 row_mask:0xf bank_mask:0xf")
    A("s_nop 1")
    A("v_max_f32_dpp v8, v8, v8 row_ror:4 row_mask:0xf bank_mask:0xf")
    A(f"s_mov_b32 {sT2}, {f2u(1.4426950408889634)}")
    for k in range(8):
        A(f"v_sub_f32 v{ML+2*k}, v{ML+2*k}, v8")
    for k in range(8):
        A(f"v_mul_f32 v{ML+2*k}, {sT2}, v{ML+2*k}")
    for k in range(8):
        A(f"v_exp_f32 v{ML+2*k}, v{ML+2*k}")
    A("s_nop 0")
    A(f"v_mul_f32 v9, v{ML}, v{ML+1}")
    A(f"v_mul_f32 v10, v{ML}, v{OG}")
    for k in range(1, 8):
        A(f"v_fmac_f32 v9, v{ML+2*k}, v{ML+2*k+1}")
        A(f"v_fmac_f32 v10, v{ML+2*k}, v{OG+k}")
    for d in ("row_ror:8", "row_ror:4"):
        A("s_nop 1")
        A(f"v_add_f32_dpp v9, v9, v9 {d} row_mask:0xf bank_mask:0xf")
        A(f"v_add_f32_dpp v10, v10, v10 {d} row_mask:0xf bank_mask:0xf")
    A("v_rcp_f32 v9, v9")
    A("s_nop 0")
    A("v_mul_f32 v10, v10, v9")
    A(f"v_cvt_pk_bf16_f32 v{vCO}, v10, v10")
    A("s_nop 1")
    for t in range(4):
        a = sel(vCO, t)
        A("s_nop 1")
        mfma(vACC, a, WBUF + 8 * t, first=(t == 0))
        mfma(vACC + 4, a, WBUF + 8 * t + 4, first=(t == 0))
    A(f"s_lshl_b32 {sT0}, {sB}, 13")
    A("s_nop 7")
    A(f"buffer_store_dwordx4 v[{vACC}:{vACC+3}], v{vSA}, {srd(rWS)}, {sT0} offen sc1")
    A(f"buffer_store_dwordx4 v[{vACC+4}:{vACC+7}], v{vSB}, {srd(rWS)}, {sT0} offen sc1")
    stamp(6)
    A.L.append("L_end:")
    A("s_endpgm")

    out = HEADER
    out += "; @launch grid=(256,1,1) block=(512,1,1) lds=4096\n"
    out += '.amdgcn_target "amdgcn-amd-amdhsa--gfx950"\n.text\n'
    out += f".globl {KNAME}\n.p2align 8\n.type {KNAME},@function\n"
    out += "\n".join(A.L) + "\n"
    out += '.section .rodata,"a"\n.p2align 6\n'
    out += f""".amdhsa_kernel {KNAME}
  .amdhsa_next_free_vgpr 256
  .amdhsa_next_free_sgpr 96
  .amdhsa_accum_offset 256
  .amdhsa_group_segment_fixed_size 0
  .amdhsa_kernarg_size 96
  .amdhsa_user_sgpr_count 2
  .amdhsa_user_sgpr_kernarg_segment_ptr 1
  .amdhsa_system_sgpr_workgroup_id_x 1
.end_amdhsa_kernel
"""
    return out

if __name__ == "__main__":
    import json
    kw = json.loads(sys.argv[1]) if len(sys.argv) > 1 else {}
    sys.stdout.write(gen(**kw))
```

```python
import sys, struct

KNAME = "parallel_sum__mha_block_cached__glu_gated_bilinear__decode_kernel"

HEADER = """; Kernarg layout for this problem (96 bytes, ptrs only, base s[0:1]):
"""

def f2u(x):
    return struct.unpack("<I", struct.pack("<f", x))[0]

BLK = 16384
OFF_FA, OFF_FB, OFF_Q, OFF_ML = 0, 4608, 9216, 10240
GU_BASE = 256 * BLK
GU_ROW = 4608 * 8
EPOCH_OFF = GU_BASE + 32 * GU_ROW
STAMP_BASE = 6 << 20
WS_SIZE = 7 << 20
OOB = 0x40000000
TAG_STEP = 0x9E3779B9
LDS_Q = 0
LDS_CNT = 512
LDS_H = 768
LDS_ML = 1024
LDS_O = 1280
LDS_T = 3328
LDS_A = 8192
LDS_BYTES = 8192 + 4 * 2304 + 512

class G:
    def __init__(self):
        self.L = []
    def __call__(self, s):
        self.L.append("  " + s)
    def lab(self, s):
        self.L.append(s + ":")
    def c(self, s):
        self.L.append("  ; " + s)

def gen(D=5, INIT=8, stamps=False, DG=2, DW=2, spin=1 << 18, hmap=0, codepf=True, fsleep=0, qdelay=32, abl="",
        wo_flags="nt", hsleep=40, cwait=1, DK=None, DP=None):
    DK = DK or D; DP = DP or D
    A = G()
    sID = "s2"
    pX, pK, pV, pWQ, pWO, pWG, pWU, pWD, pOUT, pDBG, pWS = 16, 18, 20, 22, 24, 28, 30, 32, 34, 36, 38
    rX, rST, rW, rWS, rO = 40, 44, 48, 52, 56
    sWV, sH, sS, sB, sHW = "s3", "s4", "s5", "s6", "s7"
    sOFF, sCNT, sT0, sT1, sT2, sM = "s8", "s9", "s10", "s11", "s12", "s13"
    sSPIN, sTAG = "s14", "s15"
    mU = ["s[60:61]", "s[62:63]", "s[64:65]", "s[66:67]"]
    mT = ["s[68:69]", "s[70:71]", "s[72:73]", "s[74:75]"]
    def srd(r): return f"s[{r}:{r+3}]"
    def mk_srd(r, p, size):
        A(f"s_mov_b32 s{r}, s{p}"); A(f"s_mov_b32 s{r+1}, s{p+1}"); A(f"s_mov_b32 s{r+2}, {size}"); A(f"s_mov_b32 s{r+3}, 0x20000")
    SB = 80
    def stamp(idx):
        if not stamps: return
        assert idx < 11
        A(f"s_memrealtime s[{SB+2*idx}:{SB+2*idx+1}]")
    def stampval(idx, sreg):
        if not stamps: return
        A(f"s_mov_b32 s{SB+2*idx}, {sreg}")
    def stamp_flush():
        if not stamps: return
        A("s_waitcnt vmcnt(0) lgkmcnt(0)")
        A("s_mov_b64 exec, -1")
        A(f"s_lshl_b32 s8, {sID}, 3")
        A(f"s_add_u32 s8, s8, {sWV}")
        A("s_lshl_b32 s8, s8, 6")
        A(f"s_add_u32 s8, s8, {STAMP_BASE}")
        A("v_mov_b32 v8, 0")
        for i in range(11):
            A(f"v_writelane_b32 v8, s{SB+2*i}, {i}")
        A(f"v_lshlrev_b32 v9, 2, v{vLANE}")
        A(f"v_mov_b32 v10, {OOB}")
        A(f"v_cmp_gt_u32 vcc, 16, v{vLANE}")
        A("s_nop 1")
        A("v_cndmask_b32 v9, v10, v9, vcc")
        A(f"buffer_store_dword v8, v9, {srd(rWS)}, s8 offen")
    vLANE, vG, vN = 1, 2, 3
    vMK = [4, 5, 6, 7]
    vAop = [16, 20]
    vACC = 24
    vOFFC, vOFFV = 46, 47
    vBQ = 48
    vDK = 64
    vS = 68
    vSN, vP, vL = 76, 77, 78
    vX4 = 80
    WDB = 84
    RING = 128
    vXA = 48
    vXC = 56
    vOA, vOB = 60, 61
    vCO = 64
    WBUF = 96

    def dpp_reduce(regs, op):
        pad = "s_nop 1" if len(regs) == 1 else ("s_nop 0" if len(regs) == 2 else None)
        A("s_nop 1")
        for d, rm in (("row_shr:1", "0xf"), ("row_shr:2", "0xf"), ("row_shr:4", "0xf"), ("row_shr:8", "0xf"), ("row_bcast:15", "0xa"), ("row_bcast:31", "0xc")):
            for r in regs: A(f"{op}_dpp v{r}, v{r}, v{r} {d} row_mask:{rm} bank_mask:0xf")
            if pad: A(pad)
        if not pad: A("s_nop 0")
    aop_flip = [0]
    def sel(coef, idx):
        a = vAop[aop_flip[0]]; aop_flip[0] ^= 1
        for i in range(4):
            A(f"v_and_b32_dpp v{a+i}, v{coef}, v{vMK[i]} row_newbcast:{idx} row_mask:0xf bank_mask:0xf")
        return a
    def mfma(d, a, b, first=False):
        c = "0" if first else f"v[{d}:{d+3}]"
        A(f"v_mfma_f32_16x16x32_bf16 v[{d}:{d+3}], v[{a}:{a+3}], v[{b}:{b+3}], {c}")
    def bf16_round(dst, src):
        A(f"v_cvt_pk_bf16_f32 v{dst}, v{src}, v{src}")
        A(f"v_lshlrev_b32 v{dst}, 16, v{dst}")
    def tagcheck(dst, tmp, regs):
        regs = list(regs)
        assert len(regs) % 2 == 0
        lv = []
        for i in range(0, len(regs), 2):
            d = tmp if i == 0 else None
            lv.append((regs[i], regs[i+1]))
        A(f"v_bitop3_b32 v{dst}, v{lv[0][0]}, v{lv[0][1]}, {sTAG} bitop3:0x7e")
        rest = lv[1:]
        k = 0
        while k < len(rest):
            A(f"v_bitop3_b32 v{tmp}, v{rest[k][0]}, v{rest[k][1]}, {sTAG} bitop3:0x7e")
            if k + 1 < len(rest):
                A(f"v_bitop3_b32 v{tmp2}, v{rest[k+1][0]}, v{rest[k+1][1]}, {sTAG} bitop3:0x7e")
                A(f"v_or3_b32 v{dst}, v{dst}, v{tmp}, v{tmp2}")
            else:
                A(f"v_or_b32 v{dst}, v{dst}, v{tmp}")
            k += 2
    tmp2 = 15
    def poll(label, loads, tagregs, slp):
        A(f"s_mov_b32 {sSPIN}, 0")
        A.lab(label)
        loads()
        A("s_waitcnt vmcnt(0)")
        tagcheck(9, 10, tagregs)
        A(f"s_add_u32 {sSPIN}, {sSPIN}, 1")
        A("v_cmp_ne_u32 vcc, 0, v9")
        A(f"s_cmp_ge_u32 {sSPIN}, {spin}")
        A(f"s_cbranch_scc1 {label}_done")
        A("s_and_b64 exec, exec, vcc")
        if slp:
            A(f"s_cbranch_execz {label}_done")
            A(f"s_sleep {slp}")
            A(f"s_branch {label}")
        else:
            A(f"s_cbranch_execnz {label}")
        A.lab(f"{label}_done")
        A("s_mov_b64 exec, -1")
    def two_group_offsets(rowstride, sw, oa, ob):
        A(f"s_mul_i32 {sT2}, {sw}, 288")
        A(f"v_mul_u32_u24 v8, {rowstride}, v{vG}")
        A(f"v_lshl_add_u32 v8, v{vN}, 4, v8")
        A(f"v_add_u32 v{oa}, {sT2}, v8")
        A(f"v_add_u32 v8, 256, v{oa}")
        A(f"v_mov_b32 v9, {OOB}")
        A(f"v_cmp_gt_u32 vcc, 2, v{vN}")
        A("s_nop 1")
        A(f"v_cndmask_b32 v{ob}, v9, v8, vcc")
    def two_group_publish(accA, accB, sbase):
        A(f"s_mul_i32 {sT2}, {sWV}, 576")
        A(f"s_add_u32 {sT2}, {sT2}, {LDS_T}")
        A(f"v_lshlrev_b32 v8, 5, v{vN}")
        A(f"v_lshl_add_u32 v8, v{vG}, 4, v8")
        A(f"v_add_u32 v8, {sT2}, v8")
        A(f"v_lshlrev_b32 v9, 3, v{vLANE}")
        A(f"v_add_u32 v9, {sT2}, v9")
        A(f"v_lshlrev_b32 v10, 4, v{vLANE}")
        A(f"v_mov_b32 v13, {sTAG}")
        A(f"v_mov_b32 v15, {sTAG}")
        A(f"v_mov_b32 v41, {sTAG}")
        A(f"v_mov_b32 v43, {sTAG}")
        A("s_mov_b32 exec_hi, 0")
        A(f"ds_write_b128 v8, v[{accA}:{accA+3}]")
        A("s_mov_b32 exec_lo, 0x00030003")
        A(f"ds_write_b128 v8, v[{accB}:{accB+3}] offset:512")
        A("s_mov_b64 exec, -1")
        A("s_waitcnt lgkmcnt(0)")
        A("ds_read_b64 v[36:37], v9")
        A("ds_read_b64 v[38:39], v9 offset:512")
        A("s_waitcnt lgkmcnt(0)")
        A("v_mov_b32 v12, v36")
        A("v_mov_b32 v14, v37")
        A("v_mov_b32 v40, v38")
        A("v_mov_b32 v42, v39")
        A(f"buffer_store_dwordx4 v[12:15], v10, {srd(rWS)}, {sbase} offen sc1")
        A("s_mov_b64 exec, 0xff")
        A(f"buffer_store_dwordx4 v[40:43], v10, {srd(rWS)}, {sbase} offen offset:1024 sc1")
        A("s_mov_b64 exec, -1")

    A.lab(KNAME)
    A(f"s_cmp_ge_u32 {sID}, 256")
    A("s_cbranch_scc1 L_end")
    A("s_load_dwordx16 s[16:31], s[0:1], 0")
    A("s_load_dwordx8 s[32:39], s[0:1], 64")
    A("v_lshrrev_b32 v8, 6, v0")
    A(f"v_and_b32 v{vLANE}, 63, v0")
    A(f"v_readfirstlane_b32 {sWV}, v8")
    A(f"v_lshrrev_b32 v{vG}, 4, v{vLANE}")
    A(f"v_and_b32 v{vN}, 15, v{vLANE}")
    A(f"s_and_b32 {sT0}, {sID}, 7")
    A(f"s_lshr_b32 {sT1}, {sID}, 3")
    if hmap == 0:
        A(f"s_and_b32 {sH}, {sT1}, 3")
        A(f"s_lshr_b32 {sS}, {sT1}, 2")
    else:
        A(f"s_lshr_b32 {sH}, {sT1}, 3")
        A(f"s_and_b32 {sS}, {sT1}, 7")
    A(f"s_lshl_b32 {sT0}, {sT0}, 2")
    A(f"s_add_u32 {sH}, {sH}, {sT0}")
    A(f"s_lshl_b32 {sB}, {sH}, 3")
    A(f"s_add_u32 {sB}, {sB}, {sS}")
    if codepf:
        A(f"s_cmp_lg_u32 {sWV}, 1")
        A("s_cbranch_scc1 L_nopf")
        A("s_getpc_b64 s[76:77]")
        A.lab("L_pfbase")
        A(f"v_lshlrev_b32 v8, 7, v{vLANE}")
        A("global_load_dword v9, v8, s[76:77]")
        A("v_add_u32 v8, 0x2000, v8")
        A(f"v_cmp_gt_u32 vcc, (L_codeend-L_pfbase-8192)/128, v{vLANE}")
        A("s_and_saveexec_b64 s[78:79], vcc")
        A("s_cbranch_execz L_pf2")
        A("global_load_dword v10, v8, s[76:77]")
        A.lab("L_pf2")
        A("s_mov_b64 exec, -1")
        A.lab("L_nopf")
    A(f"v_and_b32 v8, 1, v{vN}")
    A("v_lshlrev_b32 v8, 4, v8")
    A("s_mov_b32 s10, 0xffff")
    A("v_lshlrev_b32 v8, v8, s10")
    A(f"v_lshrrev_b32 v11, 1, v{vN}")
    for i in range(4):
        A(f"v_cmp_eq_u32 vcc, {i}, v11")
        A("s_nop 1")
        A(f"v_cndmask_b32 v{vMK[i]}, 0, v8, vcc")
    if stamps:
        for i in range(11): A(f"s_mov_b32 s{SB+2*i}, 0")
    A(f"s_mov_b32 {sT0}, {EPOCH_OFF}")
    A("s_waitcnt lgkmcnt(0)")
    A(f"s_load_dword {sTAG}, s[{pWS}:{pWS+1}], {sT0}")
    mk_srd(rX, pX, 1152)
    mk_srd(rWS, pWS, WS_SIZE)
    A(f"s_cmp_ge_u32 {sWV}, 4")
    A("s_cbranch_scc1 L_helper")

    A.c("---- streamer waves 0..3")
    mk_srd(rST, pK, 0x8000000)
    stamp(0)
    A(f"s_lshl_b32 {sT0}, {sID}, 3")
    A(f"v_mov_b32 v8, {sT0}")
    A(f"buffer_load_dwordx2 v[{vX4}:{vX4+1}], v8, {srd(rX)}, 0 offen")
    A(f"s_lshl_b32 {sT0}, {sB}, 19")
    A(f"s_lshl_b32 {sT1}, {sWV}, 10")
    A(f"s_add_u32 {sT0}, {sT0}, {sT1}")
    A(f"v_lshrrev_b32 v8, 2, v{vN}")
    A("v_lshlrev_b32 v8, 8, v8")
    A(f"v_and_b32 v11, 3, v{vN}")
    A("v_lshlrev_b32 v11, 4, v11")
    A(f"v_lshlrev_b32 v12, 6, v{vG}")
    A("v_add3_u32 v8, v8, v11, v12")
    A(f"v_add_u32 v{vOFFC}, {sT0}, v8")
    A(f"v_lshlrev_b32 v8, 4, v{vLANE}")
    A(f"v_add_u32 v{vOFFV}, {sT0}, v8")
    A(f"s_mov_b32 {sOFF}, 0")
    def issue(slot):
        r = RING + 4 * slot
        A(f"buffer_load_dwordx4 v[{r}:{r+3}], v{vOFFC}, {srd(rST)}, {sOFF} offen nt")
        A(f"s_add_u32 {sOFF}, {sOFF}, 4096")
    for n in range(32):
        if n >= INIT:
            A(f"s_waitcnt vmcnt({DP-1})")
        issue(n)
    mk_srd(rW, pWD, 4608 * 576 * 2)
    two_group_offsets(1152, sWV, 32, 33)
    A(f"v_cmp_gt_u32 vcc, 32, v{vLANE}")
    A("s_waitcnt lgkmcnt(0)")
    A(f"s_add_u32 {sTAG}, {sTAG}, {TAG_STEP}")
    A("v_cndmask_b32 v34, v9, v32, vcc")
    A("v_cndmask_b32 v35, v9, v33, vcc")
    A(f"v_and_b32 v8, 3, v{vN}")
    A(f"v_lshrrev_b32 v9, 2, v{vN}")
    for u in range(4):
        A(f"v_cmp_eq_u32 {mU[u]}, {u}, v8")
        A(f"v_cmp_eq_u32 {mT[u]}, {u}, v9")
    A(f"v_lshlrev_b32 v9, 2, v{vG}")
    A("v_add_u32 v8, v8, v9")
    A("v_lshlrev_b32 v8, 5, v8")
    stamp(4)
    A("s_barrier")
    stamp(5)
    QT = 84
    A(f"ds_read_b128 v[{QT}:{QT+3}], v8 offset:{LDS_Q}")
    A(f"ds_read_b128 v[{QT+4}:{QT+7}], v8 offset:{LDS_Q+16}")
    A("s_waitcnt lgkmcnt(0)")
    for i in range(4):
        A(f"v_cvt_pk_bf16_f32 v{QT+8+i}, v{QT+2*i}, v{QT+2*i+1}")
    for t in range(4):
        for i in range(4):
            A(f"v_cndmask_b32 v{vBQ+4*t+i}, 0, v{QT+8+i}, {mT[t]}")
    A(f"s_mov_b32 {sT2}, {f2u(128 ** -0.5)}")
    A(f"s_mov_b32 {sCNT}, 0")
    A("s_nop 1")
    A.lab("L_kloop")
    A(f"s_cmp_eq_u32 {sCNT}, 3")
    A("s_cbranch_scc0 L_kbody")
    A(f"s_mov_b32 s{rST}, s{pV}")
    A(f"s_mov_b32 s{rST+1}, s{pV+1}")
    A(f"s_mov_b32 {sOFF}, 0")
    A(f"v_mov_b32 v{vOFFC}, v{vOFFV}")
    A.lab("L_kbody")
    for n in range(32):
        t, u = n % 4, (n // 4) % 4
        mfma(vDK, RING + 4 * n, vBQ + 4 * t, first=(t == 0))
        A(f"s_waitcnt vmcnt({DK-1})")
        issue(n)
        if t == 3:
            A("s_nop 5")
            A(f"v_mov_b32_dpp v8, v{vDK} quad_perm:[0,0,0,0] row_mask:0xf bank_mask:0xf")
            for cidx in range(1, 4):
                A(f"v_add_f32_dpp v8, v{vDK+cidx}, v8 quad_perm:[{cidx},{cidx},{cidx},{cidx}] row_mask:0xf bank_mask:0xf")
            if u == 0:
                A(f"v_mov_b32 v{vSN}, v8")
            else:
                A(f"v_cndmask_b32 v{vSN}, v{vSN}, v8, {mU[u]}")
            if u == 3:
                bf16_round(vSN, vSN)
                A(f"v_mul_f32 v{vSN}, {sT2}, v{vSN}")
                bf16_round(vSN, vSN)
                for k in range(7):
                    A(f"v_mov_b32 v{vS+k}, v{vS+k+1}")
                A(f"v_mov_b32 v{vS+7}, v{vSN}")
    A(f"s_add_u32 {sCNT}, {sCNT}, 1")
    A(f"s_cmp_lt_u32 {sCNT}, 4")
    A("s_cbranch_scc1 L_kloop")
    stamp(6)
    A(f"v_max3_f32 v8, v{vS}, v{vS+1}, v{vS+2}")
    A(f"v_max3_f32 v8, v8, v{vS+3}, v{vS+4}")
    A(f"v_max3_f32 v8, v8, v{vS+5}, v{vS+6}")
    A(f"v_max_f32 v8, v8, v{vS+7}")
    dpp_reduce([8], "v_max_f32")
    A(f"v_readlane_b32 {sM}, v8, 63")
    A(f"s_mov_b32 {sT2}, {f2u(1.4426950408889634)}")
    A(f"v_mov_b32 v{vL}, 0")
    for i in range(4): A(f"v_mov_b32 v{vACC+i}, 0")
    A(f"s_lshl_b32 {sT0}, {sWV}, 9")
    A(f"v_lshlrev_b32 v8, 5, v{vN}")
    A(f"v_lshl_add_u32 v8, v{vG}, 4, v8")
    A(f"v_add_u32 v82, {sT0}, v8")
    A(f"s_lshl_b32 {sT0}, {sWV}, 3")
    A(f"v_mov_b32 v83, {sT0}")
    A(f"v_mov_b32 v44, {sM}")
    A(f"s_mov_b32 {sCNT}, 0")
    def ptile():
        A(f"v_subrev_f32 v8, {sM}, v{vS}")
        A(f"v_mul_f32 v8, {sT2}, v8")
        A("v_exp_f32 v8, v8")
        for k in range(7):
            A(f"v_mov_b32 v{vS+k}, v{vS+k+1}")
        A(f"v_add_f32 v{vL}, v{vL}, v8")
        A(f"v_cvt_pk_bf16_f32 v{vP}, v8, v8")
        A("s_nop 1")
    NWD = 10
    def vstep(n, last):
        if n % 16 == 0: ptile()
        if last and n == 17:
            dpp_reduce([vL], "v_add_f32")
            A(f"v_mov_b32 v45, v{vL}")
            A("s_mov_b32 exec_lo, 0")
            A("s_mov_b32 exec_hi, 0x80000000")
            A(f"ds_write_b64 v83, v[44:45] offset:{LDS_ML}")
            A("s_mov_b64 exec, -1")
        L = n % 16; t, u = L % 4, L // 4
        a = sel(vP, 4 * t + u)
        if last and n >= 32 - D - 1:
            A(f"s_waitcnt vmcnt({NWD + 31 - n})")
            A("s_nop 0")
        else:
            A("s_nop 1")
        mfma(vACC, a, RING + 4 * n)
        if not last:
            A(f"s_waitcnt vmcnt({D-1})")
            issue(n)
    A.lab("L_vloop")
    for n in range(32):
        vstep(n, False)
    A(f"s_add_u32 {sCNT}, {sCNT}, 1")
    A(f"s_cmp_lt_u32 {sCNT}, 3")
    A("s_cbranch_scc1 L_vloop")
    stamp(7)
    A(f"s_mul_i32 {sOFF}, {sID}, {18*1152}")
    for t in range(5):
        r = WDB + 8 * t
        oa, ob = (32, 33) if t < 4 else (34, 35)
        A(f"buffer_load_dwordx4 v[{r}:{r+3}], v{oa}, {srd(rW)}, {sOFF} offen nt")
        A(f"buffer_load_dwordx4 v[{r+4}:{r+7}], v{ob}, {srd(rW)}, {sOFF} offen nt")
        A(f"s_add_u32 {sOFF}, {sOFF}, {4*1152}")
    for n in range(32): vstep(n, True)
    A(f"v_lshlrev_b32 v8, 2, v{vLANE}")
    A("s_nop 6")
    A("s_mov_b32 exec_hi, 0")
    A(f"ds_write_b128 v82, v[{vACC}:{vACC+3}] offset:{LDS_O}")
    A("s_mov_b32 exec_hi, -1")
    A("s_waitcnt lgkmcnt(0)")
    stamp(2)
    A("s_barrier")
    A(f"ds_read_b32 v{vP}, v8 offset:{LDS_H}")
    A("s_waitcnt lgkmcnt(0)")
    for t in range(5):
        a = sel(vP, t)
        A(f"s_waitcnt vmcnt({2*(4 - t)})")
        A("s_nop 0")
        mfma(vACC, a, WDB + 8 * t, first=(t == 0))
        mfma(vACC + 4, a, WDB + 8 * t + 4, first=(t == 0))
    A(f"s_lshl_b32 {sT0}, {sB}, 14")
    A(f"s_mul_i32 {sT1}, {sWV}, 1152")
    A(f"s_add_u32 {sT0}, {sT0}, {sT1}")
    A(f"s_add_u32 {sT0}, {sT0}, {OFF_FB}")
    two_group_publish(vACC, vACC + 4, sT0)
    stamp(8)
    A(f"s_cmp_lg_u32 {sWV}, 3")
    A("s_cbranch_scc1 L_fin")
    A(f"s_cmp_ge_u32 {sID}, 144")
    A("s_cbranch_scc1 L_fin")
    A.c("---- wave 3: final reduction for columns 4*id .. 4*id+3 ; lane -> (producer 32k + l/2, half l&1)")
    mk_srd(rO, pOUT, 1152)
    A(f"v_lshrrev_b32 v8, 1, v{vLANE}")
    A("v_lshlrev_b32 v8, 14, v8")
    A(f"v_and_b32 v11, 1, v{vLANE}")
    A(f"s_lshl_b32 {sT0}, {sID}, 5")
    A("v_lshl_add_u32 v12, v11, 4, v8")
    A(f"v_add_u32 v12, {sT0}, v12")
    for k in range(8):
        A(f"s_mov_b32 s{60+k}, {k*32*BLK + OFF_ML}")
        A(f"s_mov_b32 s{68+k}, {k*32*BLK}")
    GM, GB, GA = RING, RING + 32, RING + 64
    A(f"v_add_u32 v13, {OFF_FB}, v12")
    A(f"v_cmp_eq_u32 vcc, 1, v11")
    A(f"s_lshl_b32 {sT0}, {sID}, 3")
    A(f"v_lshl_add_u32 v10, v11, 2, {sT0}")
    A(f"v_cndmask_b32 v92, v{vX4}, v{vX4+1}, vcc")
    A("v_and_b32 v93, 0xffff0000, v92")
    A("v_lshlrev_b32 v92, 16, v92")
    A(f"v_mov_b32 v9, {OOB}")
    A(f"v_cmp_gt_u32 vcc, 2, v{vLANE}")
    A(f"s_mov_b32 {sT2}, {f2u(1.4426950408889634)}")
    A(f"s_mov_b32 {sSPIN}, 0")
    A("v_cndmask_b32 v96, v9, v10, vcc")
    mM, mB, mA = "s[44:45]", "s[46:47]", "s[48:49]"
    for m in (mM, mB, mA): A(f"s_mov_b64 {m}, -1")
    def par_reduce(r0, r1):
        A("s_nop 1")
        for d in ("row_ror:2", "row_ror:4", "row_ror:8"):
            A(f"v_add_f32_dpp v{r0}, v{r0}, v{r0} {d} row_mask:0xf bank_mask:0xf")
            A(f"v_add_f32_dpp v{r1}, v{r1}, v{r1} {d} row_mask:0xf bank_mask:0xf")
            A("s_nop 0")
        for op in ("v_permlane16_swap_b32", "v_permlane32_swap_b32"):
            A(f"v_mov_b32 v14, v{r0}")
            A(f"v_mov_b32 v15, v{r1}")
            A("s_nop 1")
            A(f"{op} v14, v{r0}")
            A(f"{op} v15, v{r1}")
            A(f"v_add_f32 v{r0}, v{r0}, v14")
            A(f"v_add_f32 v{r1}, v{r1}, v15")
    if cwait:
        A(f"v_mov_b32 v14, {LDS_CNT}")
        A.lab("L_cw")
        A("ds_read_b32 v9, v14")
        A("s_waitcnt lgkmcnt(0)")
        A(f"v_readfirstlane_b32 {sT0}, v9")
        A(f"s_cmp_lt_u32 {sT0}, 8")
        A("s_cbranch_scc1 L_cw")
    A.lab("L_fp")
    for nm, m, base, vo, so in (("m", mM, GM, 8, 60), ("b", mB, GB, 13, 68), ("a", mA, GA, 12, 68)):
        A(f"s_mov_b64 exec, {m}")
        A(f"s_cbranch_execz L_fp_l{nm}")
        for k in range(8):
            A(f"buffer_load_dwordx4 v[{base+4*k}:{base+4*k+3}], v{vo}, {srd(rWS)}, s{so+k} offen sc1")
        A.lab(f"L_fp_l{nm}")
    A(f"s_add_u32 {sSPIN}, {sSPIN}, 1")
    A(f"s_mov_b64 exec, {mM}")
    A("s_cbranch_execz L_fp_cm")
    A("s_waitcnt vmcnt(0)")
    tagcheck(9, 10, [GM + 2 * k + 1 for k in range(16)])
    A(f"v_cmp_ne_u32 {mM}, 0, v9")
    A("s_nop 0")
    A(f"s_cmp_lg_u64 {mM}, 0")
    A("s_cbranch_scc1 L_fp_cm")
    A("s_mov_b64 exec, -1")
    stamp(1)
    for k in range(8): A(f"v_mov_b32 v{GM+4*k+1}, v{GM+4*k}")
    for d in ("row_ror:2", "row_ror:4", "row_ror:8"):
        for k in range(8): A(f"v_max_f32_dpp v{GM+4*k+1}, v{GM+4*k+1}, v{GM+4*k+1} {d} row_mask:0xf bank_mask:0xf")
    for k in range(8): A(f"v_sub_f32 v{GM+4*k}, v{GM+4*k}, v{GM+4*k+1}")
    for k in range(8): A(f"v_mul_f32 v{GM+4*k}, {sT2}, v{GM+4*k}")
    for k in range(8): A(f"v_exp_f32 v{GM+4*k}, v{GM+4*k}")
    for k in range(8): A(f"v_mul_f32 v{GM+4*k+2}, v{GM+4*k}, v{GM+4*k+2}")
    for d in ("row_ror:2", "row_ror:4", "row_ror:8"):
        for k in range(8): A(f"v_add_f32_dpp v{GM+4*k+2}, v{GM+4*k+2}, v{GM+4*k+2} {d} row_mask:0xf bank_mask:0xf")
    for k in range(8): A(f"v_rcp_f32 v{GM+4*k+2}, v{GM+4*k+2}")
    for k in range(8): A(f"v_mul_f32 v{GM+4*k}, v{GM+4*k}, v{GM+4*k+2}")
    A.lab("L_fp_cm")
    A(f"s_mov_b64 exec, {mB}")
    A("s_cbranch_execz L_fp_cb")
    A("s_waitcnt vmcnt(0)")
    tagcheck(9, 10, [GB + 2 * k + 1 for k in range(16)])
    A(f"v_cmp_ne_u32 {mB}, 0, v9")
    A("s_nop 0")
    A(f"s_cmp_lg_u64 {mB}, 0")
    A("s_cbranch_scc1 L_fp_cb")
    A("s_mov_b64 exec, -1")
    for i in range(2):
        A(f"v_add_f32 v{84+i}, v{GB+2*i}, v{GB+4+2*i}")
    for k in range(2, 8):
        for i in range(2): A(f"v_add_f32 v{84+i}, v{84+i}, v{GB+4*k+2*i}")
    par_reduce(84, 85)
    bf16_round(84, 84); bf16_round(85, 85)
    stamp(10)
    A.lab("L_fp_cb")
    A(f"s_mov_b64 exec, {mA}")
    A("s_cbranch_execz L_fp_ca")
    A("s_waitcnt vmcnt(0)")
    tagcheck(9, 10, [GA + 2 * k + 1 for k in range(16)])
    A(f"v_cmp_ne_u32 {mA}, 0, v9")
    A.lab("L_fp_ca")
    A("s_nop 0")
    A(f"s_or_b64 s[50:51], {mM}, {mB}")
    A(f"s_or_b64 s[50:51], s[50:51], {mA}")
    A("s_cbranch_scc0 L_fp_done")
    if fsleep: A(f"s_sleep {fsleep}")
    A(f"s_cmp_lt_u32 {sSPIN}, {spin}")
    A("s_cbranch_scc1 L_fp")
    A.lab("L_fp_done")
    A("s_mov_b64 exec, -1")
    for i in range(2):
        A(f"v_mul_f32 v{88+i}, v{GM}, v{GA+2*i}")
    for k in range(1, 8):
        for i in range(2): A(f"v_fmac_f32 v{88+i}, v{GM+4*k}, v{GA+4*k+2*i}")
    par_reduce(88, 89)
    for i in range(2): A(f"v_cvt_pk_bf16_f32 v{88+i}, v{88+i}, v{88+i}")
    for i in range(2): A(f"v_lshlrev_b32 v{88+i}, 16, v{88+i}")
    for i in range(2): A(f"v_add_f32 v{88+i}, v{92+i}, v{88+i}")
    for i in range(2): A(f"v_cvt_pk_bf16_f32 v{88+i}, v{88+i}, v{88+i}")
    for i in range(2): A(f"v_lshlrev_b32 v{88+i}, 16, v{88+i}")
    for i in range(2): A(f"v_add_f32 v{88+i}, v{88+i}, v{84+i}")
    A("v_cvt_pk_bf16_f32 v12, v88, v89")
    A(f"buffer_store_dword v12, v96, {srd(rO)}, 0 offen")
    stamp(3)
    stampval(9, sSPIN)
    A(f"s_cmp_lg_u32 {sID}, 0")
    A("s_cbranch_scc1 L_fin")
    A(f"v_mov_b32 v10, {sTAG}")
    A(f"v_mov_b32 v11, {EPOCH_OFF}")
    A("s_mov_b64 exec, 1")
    A(f"buffer_store_dword v10, v11, {srd(rWS)}, 0 offen")
    if stamps: A("s_branch L_fin")
    else: A("s_endpgm")

    A.lab("L_helper")
    A.c("---- helper waves 4..7")
    A(f"s_sub_u32 {sHW}, {sWV}, 4")
    mk_srd(rW, pWQ, 0 if "w" in abl else 576 * 4096 * 2)
    stamp(0)
    A(f"v_lshlrev_b32 v8, 2, v{vLANE}")
    for k in range(5):
        A(f"buffer_load_dword v{vXA+k}, v8, {srd(rX)}, 0 offen offset:{k*256}")
    A(f"v_lshl_add_u32 v9, v{vN}, 2, v{vG}")
    A("v_and_b32 v9, -2, v9")
    A("v_lshlrev_b32 v9, 1, v9")
    A(f"s_mul_i32 {sT0}, {sS}, 144")
    for T in range(2):
        A(f"buffer_load_dword v{vXC+T}, v9, {srd(rX)}, {sT0} offen offset:{T*128}")
    A(f"s_lshr_b32 {sT1}, {sID}, 1")
    A(f"s_and_b32 {sT1}, {sT1}, 15")
    A(f"s_mul_i32 {sT0}, {sT1}, 72")
    A(f"buffer_load_dword v{vXC+2}, v9, {srd(rX)}, {sT0} offen")
    A(f"s_cmp_lg_u32 {sHW}, 0")
    A("s_cbranch_scc1 L_x13")
    A(f"s_mul_i32 {sT0}, {sS}, {72*8192}")
    A(f"s_lshl_b32 {sT1}, {sH}, 8")
    A(f"s_add_u32 {sOFF}, {sT0}, {sT1}")
    A(f"v_lshlrev_b32 v8, 13, v{vG}")
    A(f"v_lshl_add_u32 v{vOA}, v{vN}, 4, v8")
    for t in range(18):
        r = WBUF + 4 * t
        A(f"buffer_load_dwordx4 v[{r}:{r+3}], v{vOA}, {srd(rW)}, {sOFF} offen nt")
        A(f"s_add_u32 {sOFF}, {sOFF}, 32768")
    A("s_waitcnt vmcnt(18)")
    A("s_branch L_ln")
    A.lab("L_x13")
    A("s_waitcnt vmcnt(0)")
    A.lab("L_ln")
    stamp(8)
    XF = 68
    for k in range(5):
        A(f"v_lshlrev_b32 v{XF+2*k}, 16, v{vXA+k}")
        A(f"v_and_b32 v{XF+2*k+1}, 0xffff0000, v{vXA+k}")
    A(f"v_add_f32 v8, v{XF}, v{XF+1}")
    for k in range(2, 10): A(f"v_add_f32 v8, v8, v{XF+k}")
    dpp_reduce([8], "v_add_f32")
    A(f"v_mul_f32 v8, {f2u(1.0/576)}, v8")
    A(f"v_cmp_gt_u32 vcc, 32, v{vLANE}")
    A(f"v_readlane_b32 {sT0}, v8, 63")
    A("s_nop 1")
    for k in range(10): A(f"v_subrev_f32 v{XF+k}, {sT0}, v{XF+k}")
    A(f"v_cndmask_b32 v{XF+8}, 0, v{XF+8}, vcc")
    A(f"v_cndmask_b32 v{XF+9}, 0, v{XF+9}, vcc")
    A(f"v_mul_f32 v9, v{XF}, v{XF}")
    for k in range(1, 10): A(f"v_fmac_f32 v9, v{XF+k}, v{XF+k}")
    dpp_reduce([9], "v_add_f32")
    A(f"v_mul_f32 v9, {f2u(1.0/576)}, v9")
    bf16_round(9, 9)
    A(f"v_add_f32 v9, {f2u(1e-5)}, v9")
    bf16_round(9, 9)
    A("v_sqrt_f32 v9, v9")
    A("s_nop 0")
    bf16_round(9, 9)
    A("v_rcp_f32 v9, v9")
    bf16_round(8, 8)
    A("s_nop 0")
    A(f"v_readlane_b32 {sT0}, v8, 63")
    A(f"v_readlane_b32 {sT1}, v9, 63")
    A(f"v_and_b32 v10, 1, v{vG}")
    A("v_lshlrev_b32 v10, 4, v10")
    for k in range(3):
        r = vXC + k
        A(f"v_lshrrev_b32 v{r}, v10, v{r}")
        A(f"v_lshlrev_b32 v{r}, 16, v{r}")
        A(f"v_subrev_f32 v{r}, {sT0}, v{r}")
        bf16_round(r, r)
        A(f"v_mul_f32 v{r}, {sT1}, v{r}")
        A(f"v_cvt_pk_bf16_f32 v{r}, v{r}, v{r}")
    A("s_waitcnt lgkmcnt(0)")
    A(f"s_add_u32 {sTAG}, {sTAG}, {TAG_STEP}")
    stamp(1)
    A(f"s_cmp_lg_u32 {sHW}, 0")
    A("s_cbranch_scc1 L_noq")
    for t in range(18):
        a = sel(vXC + t // 16, t % 16)
        A(f"s_waitcnt vmcnt({17 - t})")
        A("s_nop 0")
        mfma(vACC, a, WBUF + 4 * t, first=(t == 0))
    A(f"v_lshlrev_b32 v8, 4, v{vLANE}")
    A(f"s_lshl_b32 {sT0}, {sB}, 14")
    A(f"s_add_u32 {sT0}, {sT0}, {OFF_Q}")
    A(f"s_lshl_b32 {sT1}, {sH}, 17")
    A(f"s_add_u32 {sT1}, {sT1}, {OFF_Q}")
    for k in range(8):
        A(f"s_add_u32 s{60+k}, {sT1}, {k*BLK}")
    A(f"v_mov_b32 v29, {sTAG}")
    A(f"v_mov_b32 v31, {sTAG}")
    A(f"v_mov_b32 v28, v{vACC}")
    A(f"v_mov_b32 v30, v{vACC+1}")
    A("s_nop 1")
    A(f"v_permlane32_swap_b32 v28, v{vACC+2}")
    A(f"v_permlane32_swap_b32 v30, v{vACC+3}")
    A(f"buffer_store_dwordx4 v[28:31], v8, {srd(rWS)}, {sT0} offen sc1")
    stamp(9)
    if qdelay: A(f"s_sleep {qdelay}")
    QG = WBUF
    def ld_q():
        for k in range(8):
            A(f"buffer_load_dwordx4 v[{QG+4*k}:{QG+4*k+3}], v8, {srd(rWS)}, s{60+k} offen sc1")
    poll("L_qpoll", ld_q, [QG + 2 * k + 1 for k in range(16)], 16)
    for i in range(2):
        for k in range(4):
            A(f"v_add_f32 v{QG+8*k+2*i}, v{QG+8*k+2*i}, v{QG+8*k+4+2*i}")
        A(f"v_add_f32 v{QG+2*i}, v{QG+2*i}, v{QG+8+2*i}")
        A(f"v_add_f32 v{QG+16+2*i}, v{QG+16+2*i}, v{QG+24+2*i}")
        A(f"v_add_f32 v{28+i}, v{QG+2*i}, v{QG+16+2*i}")
    A(f"v_lshlrev_b32 v8, 5, v{vN}")
    A(f"v_and_b32 v9, 1, v{vG}")
    A("v_lshl_add_u32 v8, v9, 4, v8")
    A(f"v_lshrrev_b32 v9, 1, v{vG}")
    A("v_lshl_add_u32 v8, v9, 3, v8")
    A(f"ds_write_b64 v8, v[28:29] offset:{LDS_Q}")
    A(f"v_mov_b32 v9, {LDS_CNT}")
    A("v_mov_b32 v10, 0")
    A("ds_write_b32 v9, v10")
    stampval(10, sSPIN)
    A("s_waitcnt lgkmcnt(0)")
    A.lab("L_noq")
    stamp(2)
    A("s_barrier")
    A(f"s_and_b32 {sT0}, {sID}, 1")
    A(f"s_cmp_eq_u32 {sT0}, 0")
    A(f"s_cselect_b32 s{rW}, s{pWG}, s{pWU}")
    A(f"s_cselect_b32 s{rW+1}, s{pWG+1}, s{pWU+1}")
    A(f"s_mov_b32 s{rW+2}, {0 if 'g' in abl else 576*4608*2}")
    two_group_offsets(9216, sHW, vOA, vOB)
    A(f"s_lshr_b32 {sT1}, {sID}, 1")
    A(f"s_and_b32 {sT1}, {sT1}, 15")
    A(f"s_lshr_b32 {sT2}, {sID}, 5")
    A(f"s_mul_i32 {sOFF}, {sT1}, {36*9216}")
    A(f"s_mul_i32 {sT0}, {sT2}, 1152")
    A(f"s_add_u32 {sOFF}, {sOFF}, {sT0}")
    def gu_issue(t):
        r = WBUF + 8 * t
        A(f"buffer_load_dwordx4 v[{r}:{r+3}], v{vOA}, {srd(rW)}, {sOFF} offen nt")
        A(f"buffer_load_dwordx4 v[{r+4}:{r+7}], v{vOB}, {srd(rW)}, {sOFF} offen nt")
        A(f"s_add_u32 {sOFF}, {sOFF}, {4*9216}")
    for t in range(DG): gu_issue(t)
    for t in range(9):
        a = sel(vXC + 2, t)
        A(f"s_waitcnt vmcnt({2*(min(DG + t, 9) - (t + 1))})")
        A("s_nop 0")
        mfma(vACC, a, WBUF + 8 * t, first=(t == 0))
        mfma(vACC + 4, a, WBUF + 8 * t + 4, first=(t == 0))
        if DG + t < 9: gu_issue(DG + t)
    A(f"s_and_b32 {sT0}, {sID}, 1")
    A(f"s_lshl_b32 {sT0}, {sT0}, 4")
    A(f"s_add_u32 {sT0}, {sT0}, {sT1}")
    A(f"s_mul_i32 {sT0}, {sT0}, {GU_ROW}")
    A(f"s_lshr_b32 {sT1}, {sID}, 5")
    A(f"s_mul_i32 {sT1}, {sT1}, 4608")
    A(f"s_add_u32 {sT0}, {sT0}, {sT1}")
    A(f"s_mul_i32 {sT1}, {sHW}, 1152")
    A(f"s_add_u32 {sT0}, {sT0}, {sT1}")
    A(f"s_add_u32 {sT0}, {sT0}, {GU_BASE}")
    if "G" not in abl:
        two_group_publish(vACC, vACC + 4, sT0)
    stamp(3)
    mk_srd(rW, pWO, 0 if "O" in abl else 4096 * 576 * 2)
    A(f"v_mul_u32_u24 v8, 1152, v{vG}")
    A(f"v_lshl_add_u32 v{vOA}, v{vN}, 4, v8")
    A(f"v_mov_b32 v9, {OOB}")
    A(f"v_cmp_gt_u32 vcc, 8, v{vN}")
    A(f"s_lshl_b32 {sT0}, {sH}, 2")
    A(f"s_add_u32 {sT0}, {sT0}, {sHW}")
    A(f"v_cndmask_b32 v{vOB}, v9, v{vOA}, vcc")
    A(f"s_mul_i32 {sOFF}, {sT0}, {32*1152}")
    def wo_loads(t0, t1):
        for t in range(t0, t1):
            for cg in range(5):
                A(f"s_waitcnt vmcnt({DW-1})")
                r = WBUF + 20 * t + 4 * cg
                A(f"buffer_load_dwordx4 v[{r}:{r+3}], v{vOA if cg < 4 else vOB}, {srd(rW)}, {sOFF} offen offset:{cg*256} {wo_flags}")
            A(f"s_add_u32 {sOFF}, {sOFF}, {4*1152}")
    if "o" not in abl: wo_loads(0, 4)
    A(f"s_cmp_lg_u32 {sHW}, {99 if ('h' in abl or 'G' in abl) else 1}")
    A("s_cbranch_scc1 L_noh")
    A(f"v_lshl_add_u32 v8, v{vN}, 2, v{vG}")
    A("v_cmp_gt_u32 vcc, 18, v8")
    A("v_lshlrev_b32 v8, 3, v8")
    A(f"s_mul_i32 {sT0}, {sID}, 144")
    A(f"s_add_u32 {sT0}, {sT0}, {GU_BASE}")
    A(f"v_add_u32 v8, {sT0}, v8")
    A(f"s_mov_b64 s[60:61], vcc")
    HG = 176
    def ld_gu():
        A(f"s_mov_b32 {sT0}, 0")
        for r in range(32):
            A(f"buffer_load_dwordx2 v[{HG+2*r}:{HG+2*r+1}], v8, {srd(rWS)}, {sT0} offen sc1")
            if r < 31: A(f"s_add_u32 {sT0}, {sT0}, {GU_ROW}")
    A("s_mov_b64 exec, vcc")
    poll("L_hpoll", ld_gu, [HG + 2 * r + 1 for r in range(32)], hsleep)
    for m in range(2):
        b = HG + 32 * m
        for r in range(1, 16): A(f"v_add_f32 v{b}, v{b}, v{b+2*r}")
        bf16_round(b, b)
    A(f"v_mul_f32 v{vCO}, v{HG}, v{HG+32}")
    A(f"v_cvt_pk_bf16_f32 v{vCO}, v{vCO}, v{vCO}")
    A(f"v_cndmask_b32 v{vCO}, 0, v{vCO}, s[60:61]")
    A(f"v_lshlrev_b32 v8, 2, v{vLANE}")
    A(f"ds_write_b32 v8, v{vCO} offset:{LDS_H}")
    stamp(4)
    A.lab("L_noh")
    if "o" not in abl: wo_loads(4, 8)
    A(f"v_and_b32 v8, 7, v{vN}")
    A(f"v_lshl_add_u32 v8, v8, 2, v{vG}")
    A(f"s_lshl_b32 {sT0}, {sHW}, 7")
    A(f"v_lshl_add_u32 v66, v8, 2, {sT0}")
    A(f"v_lshlrev_b32 v8, 5, v{vN}")
    A(f"v_lshl_add_u32 v8, v{vG}, 4, v8")
    A(f"s_mul_i32 {sT0}, {sHW}, 2304")
    A(f"v_add_u32 v67, {sT0}, v8")
    A(f"s_mul_i32 {sT0}, {sHW}, 576")
    A(f"v_lshlrev_b32 v8, 3, v{vLANE}")
    A(f"v_add_u32 v68, {sT0}, v8")
    A(f"v_lshlrev_b32 v69, 4, v{vLANE}")
    A("v_mov_b32 v70, 0")
    A(f"v_mov_b32 v71, {LDS_CNT}")
    A("v_mov_b32 v72, 1")
    for r in (81, 83, 85, 87, 89, 91): A(f"v_mov_b32 v{r}, {sTAG}")
    A(f"s_lshl_b32 {sCNT}, {sB}, 14")
    A(f"s_mul_i32 {sT0}, {sHW}, 1152")
    A(f"s_add_u32 {sM}, {sCNT}, {sT0}")
    A(f"s_add_u32 {sCNT}, {sCNT}, {OFF_ML}")
    A(f"s_mov_b32 {sT2}, {f2u(1.4426950408889634)}")
    A("s_waitcnt vmcnt(0) lgkmcnt(0)")
    stamp(5)
    A("s_barrier")
    A(f"ds_read_b128 v[48:51], v70 offset:{LDS_ML}")
    A(f"ds_read_b128 v[52:55], v70 offset:{LDS_ML+16}")
    for w in range(4):
        A(f"ds_read_b32 v{56+w}, v66 offset:{LDS_O + w*512}")
    A("s_waitcnt lgkmcnt(4)")
    A("v_max3_f32 v80, v48, v50, v52")
    A("v_max_f32 v80, v80, v54")
    for w in range(4): A(f"v_sub_f32 v{48+2*w}, v{48+2*w}, v80")
    for w in range(4): A(f"v_mul_f32 v{48+2*w}, {sT2}, v{48+2*w}")
    for w in range(4): A(f"v_exp_f32 v{48+2*w}, v{48+2*w}")
    A("s_waitcnt lgkmcnt(0)")
    A("v_mul_f32 v10, v48, v56")
    A("v_mul_f32 v82, v48, v49")
    for w in range(1, 4):
        A(f"v_fmac_f32 v10, v{48+2*w}, v{56+w}")
        A(f"v_fmac_f32 v82, v{48+2*w}, v{49+2*w}")
    A(f"v_cvt_pk_bf16_f32 v{vCO}, v10, v10")
    A(f"s_cmp_lg_u32 {sHW}, 3")
    A("s_cbranch_scc1 L_noml")
    A("s_mov_b64 exec, 1")
    A(f"buffer_store_dwordx4 v[80:83], v70, {srd(rWS)}, {sCNT} offen sc1")
    A("s_mov_b64 exec, -1")
    A.lab("L_noml")
    for t in range(8):
        a = sel(vCO, t)
        A("s_nop 1")
        for cg in range(5):
            mfma(vACC + 4 * cg, a, WBUF + 20 * t + 4 * cg, first=(t == 0))
    A("s_nop 3")
    A("s_mov_b32 exec_hi, 0")
    for cg in range(4):
        A(f"ds_write_b128 v67, v[{vACC+4*cg}:{vACC+4*cg+3}] offset:{LDS_A + cg*512}")
    A("s_mov_b32 exec_lo, 0x00ff00ff")
    A(f"ds_write_b128 v67, v[{vACC+16}:{vACC+19}] offset:{LDS_A + 2048}")
    A("s_mov_b64 exec, 1")
    A("s_waitcnt lgkmcnt(0)")
    A("ds_add_u32 v71, v72")
    A("s_mov_b64 exec, -1")
    A(f"s_mov_b32 {sSPIN}, 0")
    A.lab("L_async")
    A("ds_read_b32 v9, v71")
    A(f"s_add_u32 {sSPIN}, {sSPIN}, 1")
    A("s_waitcnt lgkmcnt(0)")
    A(f"v_readfirstlane_b32 {sT0}, v9")
    A(f"s_cmp_ge_u32 {sSPIN}, {spin}")
    A("s_cbranch_scc1 L_async_done")
    A(f"s_cmp_lt_u32 {sT0}, 4")
    A("s_cbranch_scc1 L_async")
    A.lab("L_async_done")
    for w in range(4):
        A(f"ds_read_b64 v[{48+2*w}:{49+2*w}], v68 offset:{LDS_A + w*2304}")
    for w in range(4):
        A(f"ds_read_b64 v[{56+2*w}:{57+2*w}], v68 offset:{LDS_A + w*2304 + 512}")
    A("s_waitcnt lgkmcnt(4)")
    for i in range(2):
        A(f"v_add_f32 v{48+i}, v{48+i}, v{50+i}")
        A(f"v_add_f32 v{52+i}, v{52+i}, v{54+i}")
        A(f"v_add_f32 v{84+2*i}, v{48+i}, v{52+i}")
    A(f"buffer_store_dwordx4 v[84:87], v69, {srd(rWS)}, {sM} offen sc1")
    A("s_waitcnt lgkmcnt(0)")
    for i in range(2):
        A(f"v_add_f32 v{56+i}, v{56+i}, v{58+i}")
        A(f"v_add_f32 v{60+i}, v{60+i}, v{62+i}")
        A(f"v_add_f32 v{88+2*i}, v{56+i}, v{60+i}")
    A("s_mov_b64 exec, 0xff")
    A(f"buffer_store_dwordx4 v[88:91], v69, {srd(rWS)}, {sM} offen offset:1024 sc1")
    if cwait:
        A("s_mov_b64 exec, 1")
        A("ds_add_u32 v71, v72")
    stamp(6)
    A.lab("L_fin")
    stamp_flush()
    A.lab("L_end")
    A("s_endpgm")
    A.lab("L_codeend")

    out = HEADER
    out += f"; @launch grid=(256,1,1) block=(512,1,1) lds={LDS_BYTES}\n"
    out += '.amdgcn_target "amdgcn-amd-amdhsa--gfx950"\n.text\n'
    out += f".globl {KNAME}\n.p2align 8\n.type {KNAME},@function\n"
    out += "\n".join(A.L) + "\n"
    out += '.section .rodata,"a"\n.p2align 6\n'
    out += f""".amdhsa_kernel {KNAME}
  .amdhsa_next_free_vgpr 256
  .amdhsa_next_free_sgpr 102
  .amdhsa_accum_offset 256
  .amdhsa_group_segment_fixed_size 0
  .amdhsa_kernarg_size 96
  .amdhsa_user_sgpr_count 2
  .amdhsa_user_sgpr_kernarg_segment_ptr 1
  .amdhsa_system_sgpr_workgroup_id_x 1
.end_amdhsa_kernel
"""
    return out

if __name__ == "__main__":
    import json
    kw = json.loads(sys.argv[1]) if len(sys.argv) > 1 else {}
    sys.stdout.write(gen(**kw))
```

```python
import sys, struct

KNAME = "parallel_sum__mha_block_cached__glu_gated_bilinear__decode_kernel"

HEADER = """; Kernarg layout for this problem (96 bytes, ptrs only, base s[0:1]):
"""

def f2u(x):
    return struct.unpack("<I", struct.pack("<f", x))[0]

BLK = 16384
OFF_R, OFF_Q = 0, 9216
GU_BASE = 256 * BLK
GU_ROW = 4608 * 8
ML_BASE = GU_BASE + 32 * GU_ROW
EPOCH_OFF = ML_BASE + 4096
STAMP_BASE = 6 << 20
WS_SIZE = 7 << 20
OOB = 0x40000000
TAG_STEP = 0x9E3779B9
LOG2E = f2u(1.4426950408889634)
LDS_Q = 0
LDS_CNT = 512
LDS_H = 768
LDS_ML = 1024
LDS_O = 1280
LDS_B = 3328
LDS_W = 5632
LDS_A = 8192
LDS_BYTES = 8192 + 4 * 2304 + 512

class G:
    def __init__(self):
        self.L = []
    def __call__(self, s):
        self.L.append("  " + s)
    def lab(self, s):
        self.L.append(s + ":")
    def c(self, s):
        self.L.append("  ; " + s)

def gen(D=5, INIT=8, stamps=False, DG=2, DW=2, spin=1 << 18, codepf=16, fsleep=0, qdelay=32, abl="",
        hsleep=40, D2=6, T0=620, TK=255, TV=222, mlsleep=0, warm="", cdelay=32):
    A = G()
    sID = "s2"
    pX, pK, pV, pWQ, pWO, pWG, pWU, pWD, pOUT, pDBG, pWS = 16, 18, 20, 22, 24, 28, 30, 32, 34, 36, 38
    rX, rST, rW, rWS, rO = 40, 44, 48, 52, 56
    sWV, sH, sS, sB, sHW = "s3", "s4", "s5", "s6", "s7"
    sOFF, sCNT, sT0, sT1, sT2, sM = "s8", "s9", "s10", "s11", "s12", "s13"
    sSPIN, sTAG = "s14", "s15"
    mU = ["s[60:61]", "s[62:63]", "s[64:65]", "s[66:67]"]
    mT = ["s[68:69]", "s[70:71]", "s[72:73]", "s[74:75]"]
    def srd(r): return f"s[{r}:{r+3}]"
    def mk_srd(r, p, size):
        A(f"s_mov_b32 s{r}, s{p}"); A(f"s_mov_b32 s{r+1}, s{p+1}"); A(f"s_mov_b32 s{r+2}, {size}"); A(f"s_mov_b32 s{r+3}, 0x20000")
    SB = 80
    def stamp(idx):
        if not stamps: return
        assert idx < 11
        A(f"s_memrealtime s[{SB+2*idx}:{SB+2*idx+1}]")
    def stampval(idx, sreg):
        if not stamps: return
        A(f"s_mov_b32 s{SB+2*idx}, {sreg}")
    def stamp_init():
        if stamps:
            for i in range(1, 11): A(f"s_mov_b32 s{SB+2*i}, 0")
    def stamp_flush():
        if not stamps: return
        A("s_waitcnt vmcnt(0) lgkmcnt(0)")
        A("s_mov_b64 exec, -1")
        A(f"s_lshl_b32 s8, {sID}, 3")
        A(f"s_add_u32 s8, s8, {sWV}")
        A("s_lshl_b32 s8, s8, 6")
        A(f"s_add_u32 s8, s8, {STAMP_BASE}")
        A("v_mov_b32 v8, 0")
        for i in range(11):
            A(f"v_writelane_b32 v8, s{SB+2*i}, {i}")
        A(f"v_lshlrev_b32 v9, 2, v{vLANE}")
        A(f"v_mov_b32 v10, {OOB}")
        A(f"v_cmp_gt_u32 vcc, 16, v{vLANE}")
        A("s_nop 1")
        A("v_cndmask_b32 v9, v10, v9, vcc")
        A(f"buffer_store_dword v8, v9, {srd(rWS)}, s8 offen")
    vLANE, vG, vN = 1, 2, 3
    vMK = [4, 5, 6, 7]
    vAop = [16, 20]
    vACC = 24
    vOFFC, vOFFV = 46, 47
    vBQ = 48
    vDK = 64
    vS = 68
    vSN, vP, vL = 76, 77, 78
    vX4 = 80
    WDB = 84
    RING = 128
    vXA = 48
    vXC = 56
    vOA, vOB = 60, 61
    vCO = 64
    WBUF = 96
    uid = [0]
    def newlab(p):
        uid[0] += 1
        return f"L_{p}{uid[0]}"

    def dpp_reduce(regs, op):
        pad = "s_nop 1" if len(regs) == 1 else ("s_nop 0" if len(regs) == 2 else None)
        A("s_nop 1")
        for d, rm in (("row_shr:1", "0xf"), ("row_shr:2", "0xf"), ("row_shr:4", "0xf"), ("row_shr:8", "0xf"), ("row_bcast:15", "0xa"), ("row_bcast:31", "0xc")):
            for r in regs: A(f"{op}_dpp v{r}, v{r}, v{r} {d} row_mask:{rm} bank_mask:0xf")
            if pad: A(pad)
        if not pad: A("s_nop 0")
    aop_flip = [0]
    def sel(coef, idx):
        a = vAop[aop_flip[0]]; aop_flip[0] ^= 1
        for i in range(4):
            A(f"v_and_b32_dpp v{a+i}, v{coef}, v{vMK[i]} row_newbcast:{idx} row_mask:0xf bank_mask:0xf")
        return a
    def mfma(d, a, b, first=False):
        c = "0" if first else f"v[{d}:{d+3}]"
        A(f"v_mfma_f32_16x16x32_bf16 v[{d}:{d+3}], v[{a}:{a+3}], v[{b}:{b+3}], {c}")
    def bf16_round(dst, src):
        A(f"v_cvt_pk_bf16_f32 v{dst}, v{src}, v{src}")
        A(f"v_lshlrev_b32 v{dst}, 16, v{dst}")
    def tagcheck(regs, dst=9, tmp=10, tmp2=15):
        regs = list(regs)
        lv = [(regs[i], regs[i+1]) for i in range(0, len(regs), 2)]
        A(f"v_bitop3_b32 v{dst}, v{lv[0][0]}, v{lv[0][1]}, {sTAG} bitop3:0x7e")
        rest = lv[1:]; k = 0
        while k < len(rest):
            A(f"v_bitop3_b32 v{tmp}, v{rest[k][0]}, v{rest[k][1]}, {sTAG} bitop3:0x7e")
            if k + 1 < len(rest):
                A(f"v_bitop3_b32 v{tmp2}, v{rest[k+1][0]}, v{rest[k+1][1]}, {sTAG} bitop3:0x7e")
                A(f"v_or3_b32 v{dst}, v{dst}, v{tmp}, v{tmp2}")
            else:
                A(f"v_or_b32 v{dst}, v{dst}, v{tmp}")
            k += 2
    def poll(label, loads, tagregs, slp, check=None):
        A(f"s_mov_b32 {sSPIN}, 0")
        A.lab(label)
        loads()
        A("s_waitcnt vmcnt(0)")
        if check: check()
        else: tagcheck(tagregs)
        A(f"s_add_u32 {sSPIN}, {sSPIN}, 1")
        A("v_cmp_ne_u32 vcc, 0, v9")
        A(f"s_cmp_ge_u32 {sSPIN}, {spin}")
        A(f"s_cbranch_scc1 {label}_done")
        A("s_and_b64 exec, exec, vcc")
        if slp:
            A(f"s_cbranch_execz {label}_done")
            A(f"s_sleep {slp}")
            A(f"s_branch {label}")
        else:
            A(f"s_cbranch_execnz {label}")
        A.lab(f"{label}_done")
        A("s_mov_b64 exec, -1")
    def two_group_offsets(rowstride, sw, oa, ob):
        A(f"s_mul_i32 {sT2}, {sw}, 288")
        A(f"v_mul_u32_u24 v8, {rowstride}, v{vG}")
        A(f"v_lshl_add_u32 v8, v{vN}, 4, v8")
        A(f"v_add_u32 v{oa}, {sT2}, v8")
        A(f"v_add_u32 v8, 256, v{oa}")
        A(f"v_mov_b32 v9, {OOB}")
        A(f"v_cmp_gt_u32 vcc, 2, v{vN}")
        A("s_nop 1")
        A(f"v_cndmask_b32 v{ob}, v9, v8, vcc")
    def two_group_to_lds(accA, accB, vaddr):
        A("s_mov_b32 exec_hi, 0")
        A(f"ds_write_b128 v{vaddr}, v[{accA}:{accA+3}] offset:{LDS_B}")
        A("s_mov_b32 exec_lo, 0x00030003")
        A(f"ds_write_b128 v{vaddr}, v[{accB}:{accB+3}] offset:{LDS_B+512}")
        A("s_mov_b64 exec, -1")
    def masks():
        A(f"v_and_b32 v8, 1, v{vN}")
        A("v_lshlrev_b32 v8, 4, v8")
        A(f"s_mov_b32 {sT0}, 0xffff")
        A(f"v_lshlrev_b32 v8, v8, {sT0}")
        A(f"v_lshrrev_b32 v11, 1, v{vN}")
        for i in range(4):
            A(f"v_cmp_eq_u32 vcc, {i}, v11")
            A("s_nop 1")
            A(f"v_cndmask_b32 v{vMK[i]}, 0, v8, vcc")
    def tail_store_setup():
        pass
    def lds_wait(label, target):
        A(f"s_mov_b32 {sSPIN}, 0")
        A.lab(label)
        A("ds_read_b32 v9, v71")
        A(f"s_add_u32 {sSPIN}, {sSPIN}, 1")
        A("s_waitcnt lgkmcnt(0)")
        A(f"v_readfirstlane_b32 {sT0}, v9")
        A(f"s_cmp_ge_u32 {sSPIN}, {spin}")
        A(f"s_cbranch_scc1 {label}_done")
        A(f"s_cmp_lt_u32 {sT0}, {target}")
        A(f"s_cbranch_scc1 {label}")
        A.lab(f"{label}_done")
    def record_addr_setup():
        A(f"v_and_b32 v8, 1, v{vLANE}")
        A(f"v_lshrrev_b32 v9, 2, v{vLANE}")
        A("v_lshlrev_b32 v9, 4, v9")
        A("v_lshl_add_u32 v8, v8, 3, v9")
        A(f"s_lshl_b32 {sT0}, {sWV}, 8")
        A(f"v_add_u32 v68, {sT0}, v8")
        A(f"v_lshlrev_b32 v69, 4, v{vLANE}")
        A(f"v_and_b32 v8, 2, v{vLANE}")
        A("v_cmp_eq_u32 s[62:63], 0, v8")
        A(f"v_mov_b32 v71, {LDS_CNT}")
        A("v_mov_b32 v72, 1")
        A(f"v_mov_b32 v41, {sTAG}")
        A(f"v_mov_b32 v43, {sTAG}")
        A(f"s_lshl_b32 s60, {sB}, 14")
        A(f"s_lshl_b32 {sT0}, {sWV}, 10")
        A(f"s_add_u32 s60, s60, {sT0}")
    def record_store(extra=0, base=48):
        lo = 256 * extra
        for w in range(4):
            A(f"ds_read_b64 v[{base+2*w}:{base+2*w+1}], v68 offset:{LDS_A + w*2304 + lo}")
        A(f"ds_read_b64 v[{base+8}:{base+9}], v68 offset:{LDS_B + lo}")
        A("s_waitcnt lgkmcnt(1)")
        for i in range(2):
            A(f"v_add_f32 v{base+i}, v{base+i}, v{base+2+i}")
            A(f"v_add_f32 v{base+4+i}, v{base+4+i}, v{base+6+i}")
        for i in range(2):
            A(f"v_add_f32 v{base+i}, v{base+i}, v{base+4+i}")
        A("s_waitcnt lgkmcnt(0)")
        A(f"v_cndmask_b32 v40, v{base+8}, v{base}, s[62:63]")
        A(f"v_cndmask_b32 v42, v{base+9}, v{base+1}, s[62:63]")
        A(f"buffer_store_dwordx4 v[40:43], v69, {srd(rWS)}, s60 offen offset:{1024*extra} sc1")

    A.lab(KNAME)
    A(f"s_cmp_ge_u32 {sID}, 256")
    A("s_cbranch_scc1 L_end")
    A("s_load_dwordx16 s[16:31], s[0:1], 0")
    A("s_load_dwordx8 s[32:39], s[0:1], 64")
    A("s_memrealtime s[78:79]")
    stamp(0)
    A("v_lshrrev_b32 v8, 6, v0")
    A(f"v_and_b32 v{vLANE}, 63, v0")
    A(f"v_readfirstlane_b32 {sWV}, v8")
    A(f"v_lshrrev_b32 v{vG}, 4, v{vLANE}")
    A(f"v_and_b32 v{vN}, 15, v{vLANE}")
    A(f"s_and_b32 {sT0}, {sID}, 7")
    A(f"s_lshr_b32 {sT1}, {sID}, 3")
    A(f"s_and_b32 {sH}, {sT1}, 3")
    A(f"s_lshr_b32 {sS}, {sT1}, 2")
    A(f"s_lshl_b32 {sT0}, {sT0}, 2")
    A(f"s_add_u32 {sH}, {sH}, {sT0}")
    A(f"s_lshl_b32 {sB}, {sH}, 3")
    A(f"s_add_u32 {sB}, {sB}, {sS}")
    A(f"s_cmp_ge_u32 {sWV}, 4")
    A("s_cbranch_scc1 L_helper")

    A.c("---- streamer waves 0..3")
    A(f"s_lshl_b32 {sT0}, {sB}, 19")
    A(f"s_lshl_b32 {sT1}, {sWV}, 10")
    A(f"s_add_u32 {sT0}, {sT0}, {sT1}")
    A(f"v_lshrrev_b32 v8, 2, v{vN}")
    A("v_lshlrev_b32 v8, 8, v8")
    A(f"v_and_b32 v11, 3, v{vN}")
    A("v_lshlrev_b32 v11, 4, v11")
    A(f"v_lshlrev_b32 v12, 6, v{vG}")
    A("v_add3_u32 v8, v8, v11, v12")
    A(f"v_add_u32 v{vOFFC}, {sT0}, v8")
    A(f"s_mov_b32 {sOFF}, 0")
    A(f"s_mov_b32 s{rST+2}, 0x8000000")
    A(f"s_mov_b32 s{rST+3}, 0x20000")
    A("s_waitcnt lgkmcnt(0)")
    A(f"s_mov_b32 s{rST}, s{pK}")
    A(f"s_mov_b32 s{rST+1}, s{pK+1}")
    def pace(d):
        if T0:
            l = newlab("pc")
            A(f"s_cbranch_vccnz {l}")
            A(f"s_waitcnt vmcnt({d-1})")
            A.lab(l)
            A(f"s_waitcnt vmcnt({D2-1})")
        else:
            A(f"s_waitcnt vmcnt({d-1})")
    def control(n, step):
        if not T0: return
        if n % 16 == 0: A("s_memrealtime s[76:77]")
        if n % 16 == 2:
            A("s_waitcnt lgkmcnt(0)")
            A("s_sub_u32 s76, s76, s78")
            A("s_cmp_gt_i32 s76, 0")
            A("s_cselect_b64 vcc, -1, 0")
            A(f"s_add_u32 s78, s78, {step}")
    def issue(slot):
        r = RING + 4 * slot
        A(f"buffer_load_dwordx4 v[{r}:{r+3}], v{vOFFC}, {srd(rST)}, {sOFF} offen nt")
        A(f"s_add_u32 {sOFF}, {sOFF}, 4096")
    for n in range(INIT): issue(n)
    stamp_init()
    A(f"s_mov_b32 {sT1}, {EPOCH_OFF}")
    A(f"s_load_dword {sTAG}, s[{pWS}:{pWS+1}], {sT1}")
    A(f"v_lshlrev_b32 v8, 4, v{vLANE}")
    A(f"v_add_u32 v{vOFFV}, {sT0}, v8")
    mk_srd(rX, pX, 1152)
    mk_srd(rWS, pWS, WS_SIZE)
    mk_srd(rW, pWD, 4608 * 576 * 2)
    masks()
    two_group_offsets(1152, sWV, 32, 33)
    A(f"v_cmp_gt_u32 vcc, 32, v{vLANE}")
    A(f"s_lshl_b32 {sT0}, {sID}, 3")
    A(f"v_mov_b32 v10, {sT0}")
    A("v_cndmask_b32 v34, v9, v32, vcc")
    A("v_cndmask_b32 v35, v9, v33, vcc")
    A(f"v_and_b32 v8, 3, v{vN}")
    A(f"v_lshrrev_b32 v9, 2, v{vN}")
    for u in range(4):
        A(f"v_cmp_eq_u32 {mU[u]}, {u}, v8")
        A(f"v_cmp_eq_u32 {mT[u]}, {u}, v9")
    A(f"v_lshlrev_b32 v9, 2, v{vG}")
    A("v_add_u32 v8, v8, v9")
    A("v_lshlrev_b32 v8, 5, v8")
    A(f"buffer_load_dwordx2 v[{vX4}:{vX4+1}], v10, {srd(rX)}, 0 offen")
    for n in range(INIT, 32):
        A(f"s_waitcnt vmcnt({D-1})")
        issue(n)
    A("s_waitcnt lgkmcnt(0)")
    A(f"s_add_u32 {sTAG}, {sTAG}, {TAG_STEP}")
    stamp(4)
    A("s_barrier")
    stamp(5)
    QT = 84
    A(f"ds_read_b128 v[{QT}:{QT+3}], v8 offset:{LDS_Q}")
    A(f"ds_read_b128 v[{QT+4}:{QT+7}], v8 offset:{LDS_Q+16}")
    A("s_waitcnt lgkmcnt(0)")
    for i in range(4):
        A(f"v_cvt_pk_bf16_f32 v{QT+8+i}, v{QT+2*i}, v{QT+2*i+1}")
    for t in range(4):
        for i in range(4):
            A(f"v_cndmask_b32 v{vBQ+4*t+i}, 0, v{QT+8+i}, {mT[t]}")
    A(f"s_add_u32 s78, s78, {T0}")
    A("s_mov_b64 vcc, 0")
    A(f"s_mov_b32 {sT2}, {f2u(128 ** -0.5)}")
    A(f"s_mov_b32 {sCNT}, 0")
    A.lab("L_kloop")
    A(f"s_cmp_eq_u32 {sCNT}, 3")
    A("s_cbranch_scc0 L_kbody")
    A(f"s_mov_b32 s{rST}, s{pV}")
    A(f"s_mov_b32 s{rST+1}, s{pV+1}")
    A(f"s_mov_b32 {sOFF}, 0")
    A(f"v_mov_b32 v{vOFFC}, v{vOFFV}")
    A.lab("L_kbody")
    for n in range(32):
        t, u = n % 4, (n // 4) % 4
        mfma(vDK, RING + 4 * n, vBQ + 4 * t, first=(t == 0))
        pace(D)
        issue(n)
        control(n, TK)
        if t == 3:
            A("s_nop 5")
            A(f"v_mov_b32_dpp v8, v{vDK} quad_perm:[0,0,0,0] row_mask:0xf bank_mask:0xf")
            for cidx in range(1, 4):
                A(f"v_add_f32_dpp v8, v{vDK+cidx}, v8 quad_perm:[{cidx},{cidx},{cidx},{cidx}] row_mask:0xf bank_mask:0xf")
            if u == 0:
                A(f"v_mov_b32 v{vSN}, v8")
            else:
                A(f"v_cndmask_b32 v{vSN}, v{vSN}, v8, {mU[u]}")
            if u == 3:
                bf16_round(vSN, vSN)
                A(f"v_mul_f32 v{vSN}, {sT2}, v{vSN}")
                bf16_round(vSN, vSN)
                for k in range(7):
                    A(f"v_mov_b32 v{vS+k}, v{vS+k+1}")
                A(f"v_mov_b32 v{vS+7}, v{vSN}")
    A(f"s_add_u32 {sCNT}, {sCNT}, 1")
    A(f"s_cmp_lt_u32 {sCNT}, 4")
    A("s_cbranch_scc1 L_kloop")
    stamp(6)
    A(f"v_max3_f32 v8, v{vS}, v{vS+1}, v{vS+2}")
    A(f"v_max3_f32 v8, v8, v{vS+3}, v{vS+4}")
    A(f"v_max3_f32 v8, v8, v{vS+5}, v{vS+6}")
    A(f"v_max_f32 v8, v8, v{vS+7}")
    dpp_reduce([8], "v_max_f32")
    A(f"v_readlane_b32 {sM}, v8, 63")
    A(f"s_mov_b32 {sT2}, {LOG2E}")
    A(f"v_mov_b32 v{vL}, 0")
    for i in range(4): A(f"v_mov_b32 v{vACC+i}, 0")
    A(f"s_mov_b32 {sCNT}, 0")
    def ptile():
        A(f"v_subrev_f32 v8, {sM}, v{vS}")
        A(f"v_mul_f32 v8, {sT2}, v8")
        A("v_exp_f32 v8, v8")
        for k in range(7):
            A(f"v_mov_b32 v{vS+k}, v{vS+k+1}")
        A(f"v_add_f32 v{vL}, v{vL}, v8")
        A(f"v_cvt_pk_bf16_f32 v{vP}, v8, v8")
        A("s_nop 1")
    NWD = 10
    def vstep(n, last):
        if n % 16 == 0: ptile()
        if last and n == 17:
            dpp_reduce([vL], "v_add_f32")
            A(f"v_mov_b32 v45, v{vL}")
            A("s_mov_b32 exec_lo, 0")
            A("s_mov_b32 exec_hi, 0x80000000")
            A(f"ds_write_b64 v83, v[44:45] offset:{LDS_ML}")
            A("s_mov_b64 exec, -1")
            record_addr_setup()
        L = n % 16; t, u = L % 4, L // 4
        a = sel(vP, 4 * t + u)
        if last and n >= 32 - max(D, D2) - 1:
            A(f"s_waitcnt vmcnt({NWD + 31 - n})")
            A("s_nop 0")
        else:
            A("s_nop 1")
        mfma(vACC, a, RING + 4 * n)
        if not last:
            pace(D)
            issue(n)
            control(n, TV)
    A.lab("L_vloop")
    for n in range(32):
        vstep(n, False)
    A(f"s_add_u32 {sCNT}, {sCNT}, 1")
    A(f"s_cmp_lt_u32 {sCNT}, 3")
    A("s_cbranch_scc1 L_vloop")
    stamp(7)
    A(f"s_mul_i32 {sOFF}, {sID}, {18*1152}")
    for t in range(5):
        r = WDB + 8 * t
        oa, ob = (32, 33) if t < 4 else (34, 35)
        A(f"buffer_load_dwordx4 v[{r}:{r+3}], v{oa}, {srd(rW)}, {sOFF} offen nt")
        A(f"buffer_load_dwordx4 v[{r+4}:{r+7}], v{ob}, {srd(rW)}, {sOFF} offen nt")
        A(f"s_add_u32 {sOFF}, {sOFF}, {4*1152}")
    A(f"s_lshl_b32 {sT0}, {sWV}, 9")
    A(f"v_lshlrev_b32 v8, 5, v{vN}")
    A(f"v_lshl_add_u32 v8, v{vG}, 4, v8")
    A(f"v_add_u32 v82, {sT0}, v8")
    A(f"s_mul_i32 {sT0}, {sWV}, 576")
    A(f"v_add_u32 v36, {sT0}, v8")
    A(f"s_lshl_b32 {sT0}, {sWV}, 3")
    A(f"v_mov_b32 v83, {sT0}")
    A(f"v_mov_b32 v44, {sM}")
    A(f"v_lshlrev_b32 v37, 2, v{vLANE}")
    for n in range(32): vstep(n, True)
    A("s_nop 7")
    A("s_mov_b32 exec_hi, 0")
    A(f"ds_write_b128 v82, v[{vACC}:{vACC+3}] offset:{LDS_O}")
    A("s_mov_b32 exec_hi, -1")
    A("s_waitcnt lgkmcnt(0)")
    stamp(2)
    A("s_barrier")
    A(f"ds_read_b32 v{vP}, v37 offset:{LDS_H}")
    A("s_waitcnt lgkmcnt(0)")
    for t in range(5):
        a = sel(vP, t)
        A(f"s_waitcnt vmcnt({2*(4 - t)})")
        A("s_nop 0")
        mfma(vACC, a, WDB + 8 * t, first=(t == 0))
        mfma(vACC + 4, a, WDB + 8 * t + 4, first=(t == 0))
    A("s_nop 7")
    two_group_to_lds(vACC, vACC + 4, 36)
    A("s_mov_b64 exec, 1")
    A("s_waitcnt lgkmcnt(0)")
    A("ds_add_u32 v71, v72")
    A("s_mov_b64 exec, -1")
    A(f"s_cmp_lg_u32 {sWV}, 3")
    A("s_cbranch_scc1 L_nocs")
    mk_srd(rO, pOUT, 1152)
    A(f"v_lshrrev_b32 v8, 2, v{vLANE}")
    A(f"v_and_b32 v11, 3, v{vLANE}")
    A("v_lshlrev_b32 v12, 14, v8")
    A("v_lshl_add_u32 v12, v11, 4, v12")
    A(f"s_lshl_b32 {sT0}, {sID}, 6")
    A(f"v_add_u32 v12, {sT0}, v12")
    A("v_lshlrev_b32 v13, 2, v8")
    A(f"v_add_u32 v13, {LDS_W}, v13")
    A(f"v_and_b32 v14, 1, v{vLANE}")
    A("v_cmp_eq_u32 vcc, 1, v14")
    A(f"s_lshl_b32 {sT0}, {sID}, 3")
    A(f"v_lshl_add_u32 v10, v14, 2, {sT0}")
    A(f"v_cndmask_b32 v92, v{vX4}, v{vX4+1}, vcc")
    A("v_and_b32 v93, 0xffff0000, v92")
    A("v_lshlrev_b32 v92, 16, v92")
    A(f"v_mov_b32 v9, {OOB}")
    A(f"v_cmp_gt_u32 vcc, 2, v{vLANE}")
    A(f"s_mov_b32 {sT2}, {LOG2E}")
    A(f"s_mov_b32 s64, {ML_BASE}")
    A("v_cndmask_b32 v96, v9, v10, vcc")
    A.lab("L_nocs")
    lds_wait("L_sw", 8)
    record_store()
    stamp(8)
    A(f"s_cmp_lg_u32 {sWV}, 3")
    A("s_cbranch_scc1 L_fin")
    A(f"s_cmp_ge_u32 {sID}, 144")
    A("s_cbranch_scc1 L_fin")
    A.c("---- wave 3: final reduction for columns 4*id .. 4*id+3")
    GM, GW, GR = 100, RING, RING + 16
    mM, mR = "s[44:45]", "s[46:47]"
    if cdelay: A(f"s_sleep {cdelay}")
    for m in (mM, mR): A(f"s_mov_b64 {m}, -1")
    A(f"s_mov_b32 {sSPIN}, 0")
    A.lab("L_fp")
    A(f"s_mov_b64 exec, {mM}")
    A("s_cbranch_execz L_fp_lm")
    for k in range(4):
        A(f"buffer_load_dwordx4 v[{GM+4*k}:{GM+4*k+3}], v69, {srd(rWS)}, s64 offen offset:{k*1024} sc1")
    A.lab("L_fp_lm")
    A(f"s_mov_b64 exec, {mR}")
    A("s_cbranch_execz L_fp_lr")
    A(f"s_mov_b32 {sT0}, 0")
    for i in range(16):
        A(f"buffer_load_dwordx4 v[{GR+4*i}:{GR+4*i+3}], v12, {srd(rWS)}, {sT0} offen sc1")
        if i < 15: A(f"s_add_u32 {sT0}, {sT0}, {16*BLK}")
    A.lab("L_fp_lr")
    A(f"s_add_u32 {sSPIN}, {sSPIN}, 1")
    A(f"s_mov_b64 exec, {mM}")
    A("s_cbranch_execz L_fp_cm")
    A("s_waitcnt vmcnt(16)")
    A(f"s_cmp_eq_u64 {mR}, 0")
    A("s_cbranch_scc0 L_fp_w16")
    A("s_waitcnt vmcnt(0)")
    A.lab("L_fp_w16")
    tagcheck([GM + 2 * k + 1 for k in range(8)])
    A(f"v_cmp_ne_u32 {mM}, 0, v9")
    A("s_nop 0")
    A(f"s_cmp_lg_u64 {mM}, 0")
    A("s_cbranch_scc1 L_fp_cm")
    A("s_mov_b64 exec, -1")
    stamp(1)
    grp8 = ("quad_perm:[1,0,3,2]", "quad_perm:[2,3,0,1]", "row_half_mirror")
    for k in range(4): A(f"v_mov_b32 v{GM+4*k+1}, v{GM+4*k}")
    for d in grp8:
        for k in range(4): A(f"v_max_f32_dpp v{GM+4*k+1}, v{GM+4*k+1}, v{GM+4*k+1} {d} row_mask:0xf bank_mask:0xf")
    for k in range(4): A(f"v_sub_f32 v{GM+4*k}, v{GM+4*k}, v{GM+4*k+1}")
    for k in range(4): A(f"v_mul_f32 v{GM+4*k}, {sT2}, v{GM+4*k}")
    for k in range(4): A(f"v_exp_f32 v{GM+4*k}, v{GM+4*k}")
    for k in range(4): A(f"v_mul_f32 v{GM+4*k+2}, v{GM+4*k}, v{GM+4*k+2}")
    for d in grp8:
        for k in range(4): A(f"v_add_f32_dpp v{GM+4*k+2}, v{GM+4*k+2}, v{GM+4*k+2} {d} row_mask:0xf bank_mask:0xf")
    for k in range(4): A(f"v_rcp_f32 v{GM+4*k+2}, v{GM+4*k+2}")
    for k in range(4): A(f"v_mul_f32 v{GM+4*k}, v{GM+4*k}, v{GM+4*k+2}")
    for k in range(4): A(f"ds_write_b32 v37, v{GM+4*k} offset:{LDS_W + k*256}")
    A("s_waitcnt lgkmcnt(0)")
    for i in range(16): A(f"ds_read_b32 v{GW+i}, v13 offset:{i*64}")
    A("s_waitcnt lgkmcnt(0)")
    for i in range(16): A(f"v_cndmask_b32 v{GW+i}, 1.0, v{GW+i}, s[62:63]")
    A.lab("L_fp_cm")
    A(f"s_mov_b64 exec, {mR}")
    A("s_cbranch_execz L_fp_cr")
    A("s_waitcnt vmcnt(0)")
    tagcheck([GR + 2 * k + 1 for k in range(32)])
    A(f"v_cmp_ne_u32 {mR}, 0, v9")
    A.lab("L_fp_cr")
    A("s_nop 0")
    A(f"s_or_b64 s[50:51], {mM}, {mR}")
    A("s_cbranch_scc0 L_fp_done")
    if fsleep: A(f"s_sleep {fsleep}")
    A(f"s_cmp_lt_u32 {sSPIN}, {spin}")
    A("s_cbranch_scc1 L_fp")
    A.lab("L_fp_done")
    A("s_mov_b64 exec, -1")
    stamp(10)
    for c in range(2):
        for i in range(2): A(f"v_mul_f32 v{88+2*c+i}, v{GW+8*c}, v{GR+32*c+2*i}")
    for k in range(1, 8):
        for c in range(2):
            for i in range(2): A(f"v_fmac_f32 v{88+2*c+i}, v{GW+8*c+k}, v{GR+32*c+4*k+2*i}")
    A("v_add_f32 v88, v88, v90")
    A("v_add_f32 v89, v89, v91")
    A("s_nop 0")
    for d in ("row_ror:4", "row_ror:8"):
        A(f"v_add_f32_dpp v88, v88, v88 {d} row_mask:0xf bank_mask:0xf")
        A(f"v_add_f32_dpp v89, v89, v89 {d} row_mask:0xf bank_mask:0xf")
        A("s_nop 0")
    for op in ("v_permlane16_swap_b32", "v_permlane32_swap_b32"):
        A("v_mov_b32 v14, v88")
        A("v_mov_b32 v15, v89")
        A("s_nop 1")
        A(f"{op} v14, v88")
        A(f"{op} v15, v89")
        A("v_add_f32 v88, v88, v14")
        A("v_add_f32 v89, v89, v15")
    for i in range(2): A(f"v_cvt_pk_bf16_f32 v{88+i}, v{88+i}, v{88+i}")
    for i in range(2): A(f"v_lshlrev_b32 v{88+i}, 16, v{88+i}")
    for i in range(2): A(f"v_add_f32 v{90+i}, v{92+i}, v{88+i}")
    for i in range(2): A(f"v_cvt_pk_bf16_f32 v{90+i}, v{90+i}, v{90+i}")
    for i in range(2): A(f"v_lshlrev_b32 v{90+i}, 16, v{90+i}")
    for i in range(2): A(f"v_add_f32_dpp v{90+i}, v{88+i}, v{90+i} quad_perm:[2,3,2,3] row_mask:0xf bank_mask:0xf")
    A("v_cvt_pk_bf16_f32 v12, v90, v91")
    A(f"buffer_store_dword v12, v96, {srd(rO)}, 0 offen")
    stamp(3)
    stampval(9, sSPIN)
    A(f"s_cmp_lg_u32 {sID}, 0")
    A("s_cbranch_scc1 L_fin")
    A(f"v_mov_b32 v10, {sTAG}")
    A(f"v_mov_b32 v11, {EPOCH_OFF}")
    A("s_mov_b64 exec, 1")
    A(f"buffer_store_dword v10, v11, {srd(rWS)}, 0 offen")
    if stamps: A("s_branch L_fin")
    else: A("s_endpgm")

    A.lab("L_helper")
    A.c("---- helper waves 4..7")
    A(f"s_sub_u32 {sHW}, {sWV}, 4")
    A(f"v_lshlrev_b32 v8, 2, v{vLANE}")
    A(f"v_lshl_add_u32 v9, v{vN}, 2, v{vG}")
    A("v_and_b32 v9, -2, v9")
    A("v_lshlrev_b32 v9, 1, v9")
    A(f"s_mul_i32 {sT0}, {sS}, 144")
    A(f"s_lshr_b32 {sT1}, {sID}, 1")
    A(f"s_and_b32 {sT1}, {sT1}, 15")
    A(f"s_mul_i32 {sT1}, {sT1}, 72")
    A(f"s_mov_b32 {sT2}, {EPOCH_OFF}")
    A("s_waitcnt lgkmcnt(0)")
    A(f"s_load_dword {sTAG}, s[{pWS}:{pWS+1}], {sT2}")
    mk_srd(rX, pX, 1152)
    for k in range(5):
        A(f"buffer_load_dword v{vXA+k}, v8, {srd(rX)}, 0 offen offset:{k*256}")
    for T in range(2):
        A(f"buffer_load_dword v{vXC+T}, v9, {srd(rX)}, {sT0} offen offset:{T*128}")
    A(f"buffer_load_dword v{vXC+2}, v9, {srd(rX)}, {sT1} offen")
    A(f"s_cmp_lg_u32 {sHW}, 0")
    A("s_cbranch_scc1 L_x13")
    mk_srd(rW, pWQ, 0 if "w" in abl else 576 * 4096 * 2)
    A(f"s_mul_i32 {sT0}, {sS}, {72*8192}")
    A(f"s_lshl_b32 {sT1}, {sH}, 8")
    A(f"s_add_u32 {sOFF}, {sT0}, {sT1}")
    A(f"v_lshlrev_b32 v8, 13, v{vG}")
    A(f"v_lshl_add_u32 v{vOA}, v{vN}, 4, v8")
    for t in range(18):
        r = WBUF + 4 * t
        A(f"buffer_load_dwordx4 v[{r}:{r+3}], v{vOA}, {srd(rW)}, {sOFF} offen nt")
        A(f"s_add_u32 {sOFF}, {sOFF}, 32768")
    A.lab("L_x13")
    if codepf:
        A(f"s_cmp_lg_u32 {sHW}, 3")
        A("s_cbranch_scc1 L_nopf")
        A(f"s_cmp_ge_u32 {sID}, {codepf}")
        A("s_cbranch_scc1 L_nopf")
        A("s_getpc_b64 s[76:77]")
        A.lab("L_pfbase")
        A(f"s_sub_u32 s76, s76, L_pfbase-{KNAME}")
        A("s_subb_u32 s77, s77, 0")
        A(f"v_lshlrev_b32 v8, 7, v{vLANE}")
        A("global_load_dword v12, v8, s[76:77]")
        A("v_add_u32 v8, 0x2000, v8")
        A(f"v_cmp_gt_u32 vcc, (L_codeend-{KNAME}-8192)/128, v{vLANE}")
        A("s_and_saveexec_b64 s[78:79], vcc")
        A("s_cbranch_execz L_pf2")
        A("global_load_dword v13, v8, s[76:77]")
        A.lab("L_pf2")
        A("s_mov_b64 exec, -1")
        A.lab("L_nopf")
    stamp_init()
    mk_srd(rWS, pWS, WS_SIZE)
    masks()
    A(f"s_cmp_lg_u32 {sHW}, 0")
    A("s_cbranch_scc1 L_x13b")
    A("s_waitcnt vmcnt(18)")
    A("s_branch L_ln")
    A.lab("L_x13b")
    A("s_waitcnt vmcnt(0)")
    A.lab("L_ln")
    stamp(8)
    XF = 68
    for k in range(5):
        A(f"v_lshlrev_b32 v{XF+2*k}, 16, v{vXA+k}")
        A(f"v_and_b32 v{XF+2*k+1}, 0xffff0000, v{vXA+k}")
    A(f"v_add_f32 v8, v{XF}, v{XF+1}")
    for k in range(2, 10): A(f"v_add_f32 v8, v8, v{XF+k}")
    dpp_reduce([8], "v_add_f32")
    A(f"v_mul_f32 v8, {f2u(1.0/576)}, v8")
    A(f"v_cmp_gt_u32 vcc, 32, v{vLANE}")
    A(f"v_readlane_b32 {sT0}, v8, 63")
    A("s_nop 1")
    for k in range(10): A(f"v_subrev_f32 v{XF+k}, {sT0}, v{XF+k}")
    A(f"v_cndmask_b32 v{XF+8}, 0, v{XF+8}, vcc")
    A(f"v_cndmask_b32 v{XF+9}, 0, v{XF+9}, vcc")
    A(f"v_mul_f32 v9, v{XF}, v{XF}")
    for k in range(1, 10): A(f"v_fmac_f32 v9, v{XF+k}, v{XF+k}")
    dpp_reduce([9], "v_add_f32")
    A(f"v_mul_f32 v9, {f2u(1.0/576)}, v9")
    bf16_round(9, 9)
    A(f"v_add_f32 v9, {f2u(1e-5)}, v9")
    bf16_round(9, 9)
    A("v_sqrt_f32 v9, v9")
    A("s_nop 0")
    bf16_round(9, 9)
    A("v_rcp_f32 v9, v9")
    bf16_round(8, 8)
    A("s_nop 0")
    A(f"v_readlane_b32 {sT0}, v8, 63")
    A(f"v_readlane_b32 {sT1}, v9, 63")
    A(f"v_and_b32 v10, 1, v{vG}")
    A("v_lshlrev_b32 v10, 4, v10")
    for k in range(3):
        r = vXC + k
        A(f"v_lshrrev_b32 v{r}, v10, v{r}")
        A(f"v_lshlrev_b32 v{r}, 16, v{r}")
        A(f"v_subrev_f32 v{r}, {sT0}, v{r}")
        bf16_round(r, r)
        A(f"v_mul_f32 v{r}, {sT1}, v{r}")
        A(f"v_cvt_pk_bf16_f32 v{r}, v{r}, v{r}")
    A("s_waitcnt lgkmcnt(0)")
    A(f"s_add_u32 {sTAG}, {sTAG}, {TAG_STEP}")
    stamp(1)
    A(f"s_cmp_lg_u32 {sHW}, 0")
    A("s_cbranch_scc1 L_noq")
    for t in range(18):
        a = sel(vXC + t // 16, t % 16)
        A(f"s_waitcnt vmcnt({17 - t})")
        A("s_nop 0")
        mfma(vACC, a, WBUF + 4 * t, first=(t == 0))
    A(f"v_lshlrev_b32 v8, 4, v{vLANE}")
    A(f"s_lshl_b32 {sT0}, {sB}, 14")
    A(f"s_add_u32 {sT0}, {sT0}, {OFF_Q}")
    A(f"s_lshl_b32 {sT1}, {sH}, 17")
    A(f"s_add_u32 {sT1}, {sT1}, {OFF_Q}")
    for k in range(8):
        A(f"s_add_u32 s{60+k}, {sT1}, {k*BLK}")
    A(f"v_mov_b32 v29, {sTAG}")
    A(f"v_mov_b32 v31, {sTAG}")
    A(f"v_mov_b32 v28, v{vACC}")
    A(f"v_mov_b32 v30, v{vACC+1}")
    A("s_nop 1")
    A(f"v_permlane32_swap_b32 v28, v{vACC+2}")
    A(f"v_permlane32_swap_b32 v30, v{vACC+3}")
    A(f"buffer_store_dwordx4 v[28:31], v8, {srd(rWS)}, {sT0} offen sc1")
    stamp(9)
    if qdelay: A(f"s_sleep {qdelay}")
    QG = WBUF
    def ld_q():
        for k in range(8):
            A(f"buffer_load_dwordx4 v[{QG+4*k}:{QG+4*k+3}], v8, {srd(rWS)}, s{60+k} offen sc1")
    poll("L_qpoll", ld_q, [QG + 2 * k + 1 for k in range(16)], 16)
    for i in range(2):
        for k in range(4):
            A(f"v_add_f32 v{QG+8*k+2*i}, v{QG+8*k+2*i}, v{QG+8*k+4+2*i}")
        A(f"v_add_f32 v{QG+2*i}, v{QG+2*i}, v{QG+8+2*i}")
        A(f"v_add_f32 v{QG+16+2*i}, v{QG+16+2*i}, v{QG+24+2*i}")
        A(f"v_add_f32 v{28+i}, v{QG+2*i}, v{QG+16+2*i}")
    A(f"v_lshlrev_b32 v8, 5, v{vN}")
    A(f"v_and_b32 v9, 1, v{vG}")
    A("v_lshl_add_u32 v8, v9, 4, v8")
    A(f"v_lshrrev_b32 v9, 1, v{vG}")
    A("v_lshl_add_u32 v8, v9, 3, v8")
    A(f"ds_write_b64 v8, v[28:29] offset:{LDS_Q}")
    A(f"v_mov_b32 v9, {LDS_CNT}")
    A("v_mov_b32 v10, 0")
    A("v_mov_b32 v11, 0")
    A("ds_write_b64 v9, v[10:11]")
    stampval(10, sSPIN)
    A("s_waitcnt lgkmcnt(0)")
    A.lab("L_noq")
    stamp(2)
    A("s_barrier")
    A(f"s_and_b32 {sT0}, {sID}, 1")
    A(f"s_cmp_eq_u32 {sT0}, 0")
    A(f"s_cselect_b32 s{rW}, s{pWG}, s{pWU}")
    A(f"s_cselect_b32 s{rW+1}, s{pWG+1}, s{pWU+1}")
    A(f"s_mov_b32 s{rW+2}, {0 if 'g' in abl else 576*4608*2}")
    A(f"s_mov_b32 s{rW+3}, 0x20000")
    two_group_offsets(9216, sHW, vOA, vOB)
    A(f"s_lshr_b32 {sT1}, {sID}, 1")
    A(f"s_and_b32 {sT1}, {sT1}, 15")
    A(f"s_lshr_b32 {sT2}, {sID}, 5")
    A(f"s_mul_i32 {sOFF}, {sT1}, {36*9216}")
    A(f"s_mul_i32 {sT0}, {sT2}, 1152")
    A(f"s_add_u32 {sOFF}, {sOFF}, {sT0}")
    def gu_issue(t):
        r = WBUF + 8 * t
        A(f"buffer_load_dwordx4 v[{r}:{r+3}], v{vOA}, {srd(rW)}, {sOFF} offen nt")
        A(f"buffer_load_dwordx4 v[{r+4}:{r+7}], v{vOB}, {srd(rW)}, {sOFF} offen nt")
        A(f"s_add_u32 {sOFF}, {sOFF}, {4*9216}")
    for t in range(DG): gu_issue(t)
    A(f"v_lshlrev_b32 v8, 5, v{vN}")
    A(f"v_lshl_add_u32 v8, v{vG}, 4, v8")
    A(f"s_mul_i32 {sT0}, {sHW}, 576")
    A(f"v_add_u32 v66, {sT0}, v8")
    A(f"s_mul_i32 {sT0}, {sHW}, 2304")
    A(f"v_add_u32 v67, {sT0}, v8")
    for t in range(9):
        a = sel(vXC + 2, t)
        A(f"s_waitcnt vmcnt({2*(min(DG + t, 9) - (t + 1))})")
        A("s_nop 0")
        mfma(vACC, a, WBUF + 8 * t, first=(t == 0))
        mfma(vACC + 4, a, WBUF + 8 * t + 4, first=(t == 0))
        if DG + t < 9: gu_issue(DG + t)
    A(f"s_and_b32 {sT0}, {sID}, 1")
    A(f"s_lshl_b32 {sT0}, {sT0}, 4")
    A(f"s_add_u32 {sT0}, {sT0}, {sT1}")
    A(f"s_mul_i32 {sT0}, {sT0}, {GU_ROW}")
    A(f"s_lshr_b32 {sT1}, {sID}, 5")
    A(f"s_mul_i32 {sT1}, {sT1}, 4608")
    A(f"s_add_u32 {sT0}, {sT0}, {sT1}")
    A(f"s_add_u32 {sCNT}, {sT0}, {GU_BASE}")
    A(f"v_mov_b32 v8, {LDS_CNT+4}")
    A("v_mov_b32 v9, 1")
    two_group_to_lds(vACC, vACC + 4, 66)
    A("s_mov_b64 exec, 1")
    A("s_waitcnt lgkmcnt(0)")
    A("ds_add_rtn_u32 v10, v8, v9")
    A("s_mov_b64 exec, -1")
    A("s_waitcnt lgkmcnt(0)")
    A(f"v_readfirstlane_b32 {sT0}, v10")
    A(f"s_cmp_lg_u32 {sT0}, 3")
    A("s_cbranch_scc1 L_nogu")
    A(f"v_lshlrev_b32 v8, 3, v{vLANE}")
    A(f"v_lshlrev_b32 v9, 4, v{vLANE}")
    for k in range(5):
        A(f"ds_read_b64 v[{68+2*k}:{69+2*k}], v8 offset:{LDS_B + k*512}")
    for k in range(5):
        A(f"v_mov_b32 v{WBUF+4*k+1}, {sTAG}")
        A(f"v_mov_b32 v{WBUF+4*k+3}, {sTAG}")
    A("s_waitcnt lgkmcnt(0)")
    for k in range(5):
        A(f"v_mov_b32 v{WBUF+4*k}, v{68+2*k}")
        A(f"v_mov_b32 v{WBUF+4*k+2}, v{69+2*k}")
    if "G" not in abl:
        for k in range(4):
            A(f"buffer_store_dwordx4 v[{WBUF+4*k}:{WBUF+4*k+3}], v9, {srd(rWS)}, {sCNT} offen offset:{k*1024} sc1")
        A(f"s_add_u32 {sCNT}, {sCNT}, 4096")
        A("s_mov_b32 exec_hi, 0")
        A(f"buffer_store_dwordx4 v[{WBUF+16}:{WBUF+19}], v9, {srd(rWS)}, {sCNT} offen sc1")
        A("s_mov_b32 exec_hi, -1")
        A("s_waitcnt vmcnt(0)")
    A.lab("L_nogu")
    stamp(3)
    mk_srd(rW, pWO, 0 if "O" in abl else 4096 * 576 * 2)
    A(f"v_mul_u32_u24 v8, 1152, v{vG}")
    A(f"v_lshl_add_u32 v{vOA}, v{vN}, 4, v8")
    A(f"v_mov_b32 v9, {OOB}")
    A(f"v_cmp_gt_u32 vcc, 8, v{vN}")
    A(f"s_lshl_b32 {sT0}, {sH}, 2")
    A(f"s_add_u32 {sT0}, {sT0}, {sHW}")
    A(f"v_cndmask_b32 v{vOB}, v9, v{vOA}, vcc")
    A(f"s_mul_i32 {sOFF}, {sT0}, {32*1152}")
    for t in range(8):
        for cg in range(5):
            A(f"s_waitcnt vmcnt({DW-1})")
            r = WBUF + 20 * t + 4 * cg
            A(f"buffer_load_dwordx4 v[{r}:{r+3}], v{vOA if cg < 4 else vOB}, {srd(rW)}, {sOFF} offen offset:{cg*256} nt")
        A(f"s_add_u32 {sOFF}, {sOFF}, {4*1152}")
    A(f"s_cmp_lg_u32 {sHW}, {99 if ('h' in abl or 'G' in abl) else 1}")
    A("s_cbranch_scc1 L_noh")
    HG = 68
    A(f"v_mul_u32_u24 v8, 57, v{vLANE}")
    A("v_lshrrev_b32 v8, 9, v8")
    A("v_mul_u32_u24 v9, 9, v8")
    A(f"v_sub_u32 v9, v{vLANE}, v9")
    A(f"v_mul_u32_u24 v11, {GU_ROW}, v8")
    A("v_lshl_add_u32 v11, v9, 4, v11")
    A(f"s_mul_i32 {sT0}, {sID}, 144")
    A(f"s_add_u32 {sT0}, {sT0}, {GU_BASE}")
    A(f"v_add_u32 v11, {sT0}, v11")
    A("v_mul_u32_u24 v12, 72, v8")
    A("v_lshl_add_u32 v12, v9, 3, v12")
    A(f"v_add_u32 v12, {LDS_W}, v12")
    A(f"v_mov_b32 v13, {OOB}")
    A("v_cmp_gt_u32 vcc, 4, v8")
    A("s_mov_b32 exec_hi, 0x7fffffff")
    A("v_cndmask_b32 v13, v13, v11, vcc")
    A("s_mov_b64 s[60:61], vcc")
    def ld_gu():
        A(f"s_mov_b32 {sT0}, 0")
        for i in range(5):
            A(f"buffer_load_dwordx4 v[{HG+4*i}:{HG+4*i+3}], v{11 if i < 4 else 13}, {srd(rWS)}, {sT0} offen sc1")
            if i < 4: A(f"s_add_u32 {sT0}, {sT0}, {7*GU_ROW}")
    def ck_gu():
        A(f"v_mov_b32 v14, {sTAG}")
        A(f"v_cndmask_b32 v{HG+17}, v14, v{HG+17}, s[60:61]")
        A(f"v_cndmask_b32 v{HG+19}, v14, v{HG+19}, s[60:61]")
        tagcheck([HG + 2 * k + 1 for k in range(10)])
    poll("L_hpoll", ld_gu, None, hsleep, check=ck_gu)
    A("s_mov_b32 exec_hi, 0x7fffffff")
    for i in range(4):
        A(f"ds_write2_b32 v12, v{HG+4*i}, v{HG+4*i+2} offset0:0 offset1:1")
        A(f"v_add_u32 v12, {7*72}, v12")
    A("s_mov_b64 exec, s[60:61]")
    A(f"ds_write2_b32 v12, v{HG+16}, v{HG+18} offset0:0 offset1:1")
    A("s_mov_b64 exec, -1")
    A(f"v_lshl_add_u32 v8, v{vN}, 2, v{vG}")
    A("v_cmp_gt_u32 vcc, 18, v8")
    A("v_lshlrev_b32 v8, 2, v8")
    A("s_waitcnt lgkmcnt(0)")
    for m in range(2):
        for half in range(2):
            for r in range(8):
                A(f"ds_read_b32 v{HG+r}, v8 offset:{LDS_W + (m*16 + half*8 + r)*72}")
            A("s_waitcnt lgkmcnt(0)")
            if half == 0: A(f"v_add_f32 v{88+m}, v{HG}, v{HG+1}")
            for r in range(2 if half == 0 else 0, 8): A(f"v_add_f32 v{88+m}, v{88+m}, v{HG+r}")
        bf16_round(88 + m, 88 + m)
    A(f"v_mul_f32 v{vCO}, v88, v89")
    A(f"v_cvt_pk_bf16_f32 v{vCO}, v{vCO}, v{vCO}")
    A(f"v_cndmask_b32 v{vCO}, 0, v{vCO}, vcc")
    A(f"v_lshlrev_b32 v8, 2, v{vLANE}")
    A(f"ds_write_b32 v8, v{vCO} offset:{LDS_H}")
    stamp(4)
    A.lab("L_noh")
    if warm:
        A(f"s_cmp_lg_u32 {sHW}, 2")
        A("s_cbranch_scc1 L_nowarm")
        A(f"v_lshlrev_b32 v8, 7, v{vLANE}")
        A(f"s_lshl_b32 {sT0}, {sB}, 14")
        A(f"buffer_load_dword v68, v8, {srd(rWS)}, {sT0} offen {warm.replace('-','')}")
        A(f"s_add_u32 {sT0}, {sT0}, 8192")
        A("s_mov_b64 exec, 0xff")
        A(f"buffer_load_dword v69, v8, {srd(rWS)}, {sT0} offen {warm.replace('-','')}")
        A(f"s_lshl_b32 {sT0}, {sB}, 4")
        A(f"s_add_u32 {sT0}, {sT0}, {ML_BASE}")
        A("s_mov_b64 exec, 1")
        A(f"buffer_load_dword v70, v8, {srd(rWS)}, {sT0} offen {warm.replace('-','')}")
        A("s_mov_b64 exec, -1")
        A("s_waitcnt vmcnt(0)")
        A.lab("L_nowarm")
    A(f"v_and_b32 v8, 7, v{vN}")
    A(f"v_lshl_add_u32 v8, v8, 2, v{vG}")
    A(f"s_lshl_b32 {sT0}, {sHW}, 7")
    A(f"v_lshl_add_u32 v66, v8, 2, {sT0}")
    record_addr_setup()
    A("v_mov_b32 v70, 0")
    for r in (81, 83): A(f"v_mov_b32 v{r}, {sTAG}")
    A(f"s_lshl_b32 {sCNT}, {sB}, 4")
    A(f"s_add_u32 {sCNT}, {sCNT}, {ML_BASE}")
    A(f"s_mov_b32 {sT2}, {LOG2E}")
    A("s_waitcnt vmcnt(0) lgkmcnt(0)")
    stamp(5)
    A("s_barrier")
    A(f"ds_read_b128 v[48:51], v70 offset:{LDS_ML}")
    A(f"ds_read_b128 v[52:55], v70 offset:{LDS_ML+16}")
    for w in range(4):
        A(f"ds_read_b32 v{56+w}, v66 offset:{LDS_O + w*512}")
    A("s_waitcnt lgkmcnt(4)")
    A("v_max3_f32 v80, v48, v50, v52")
    A("v_max_f32 v80, v80, v54")
    for w in range(4): A(f"v_sub_f32 v{48+2*w}, v{48+2*w}, v80")
    for w in range(4): A(f"v_mul_f32 v{48+2*w}, {sT2}, v{48+2*w}")
    for w in range(4): A(f"v_exp_f32 v{48+2*w}, v{48+2*w}")
    A("s_waitcnt lgkmcnt(0)")
    A("v_mul_f32 v10, v48, v56")
    A("v_mul_f32 v82, v48, v49")
    for w in range(1, 4):
        A(f"v_fmac_f32 v10, v{48+2*w}, v{56+w}")
        A(f"v_fmac_f32 v82, v{48+2*w}, v{49+2*w}")
    A(f"v_cvt_pk_bf16_f32 v{vCO}, v10, v10")
    A(f"s_cmp_lg_u32 {sHW}, 2")
    A("s_cbranch_scc1 L_noml")
    A("s_mov_b64 exec, 1")
    A(f"buffer_store_dwordx4 v[80:83], v70, {srd(rWS)}, {sCNT} offen sc1")
    A("s_mov_b64 exec, -1")
    A.lab("L_noml")
    for t in range(8):
        a = sel(vCO, t)
        A("s_nop 1")
        for cg in range(5):
            mfma(vACC + 4 * cg if cg < 4 else 84, a, WBUF + 20 * t + 4 * cg, first=(t == 0))
    A("s_nop 3")
    A("s_mov_b32 exec_hi, 0")
    for cg in range(4):
        A(f"ds_write_b128 v67, v[{vACC+4*cg}:{vACC+4*cg+3}] offset:{LDS_A + cg*512}")
    A("s_mov_b32 exec_lo, 0x00ff00ff")
    A(f"ds_write_b128 v67, v[84:87] offset:{LDS_A + 2048}")
    A("s_mov_b64 exec, 1")
    A("s_waitcnt lgkmcnt(0)")
    A("ds_add_u32 v71, v72")
    A("s_mov_b64 exec, -1")
    lds_wait("L_hw", 8)
    record_store()
    A(f"s_cmp_lg_u32 {sHW}, 3")
    A("s_cbranch_scc1 L_nox")
    A("s_nop 1")
    record_store(extra=1)
    A.lab("L_nox")
    stamp(6)
    A.lab("L_fin")
    stamp_flush()
    A.lab("L_end")
    A("s_endpgm")
    A.lab("L_codeend")

    out = HEADER
    out += f"; @launch grid=(256,1,1) block=(512,1,1) lds={LDS_BYTES}\n"
    out += '.amdgcn_target "amdgcn-amd-amdhsa--gfx950"\n.text\n'
    out += f".globl {KNAME}\n.p2align 8\n.type {KNAME},@function\n"
    out += "\n".join(A.L) + "\n"
    out += '.section .rodata,"a"\n.p2align 6\n'
    out += f""".amdhsa_kernel {KNAME}
  .amdhsa_next_free_vgpr 256
  .amdhsa_next_free_sgpr 102
  .amdhsa_accum_offset 256
  .amdhsa_group_segment_fixed_size 0
  .amdhsa_kernarg_size 96
  .amdhsa_user_sgpr_count 2
  .amdhsa_user_sgpr_kernarg_segment_ptr 1
  .amdhsa_system_sgpr_workgroup_id_x 1
.end_amdhsa_kernel
"""
    return out

if __name__ == "__main__":
    import json
    kw = json.loads(sys.argv[1]) if len(sys.argv) > 1 else {}
    sys.stdout.write(gen(**kw))
```

```python
import sys, struct

KNAME = "parallel_sum__mha_block_cached__glu_gated_bilinear__decode_kernel"

HEADER = """; Kernarg layout for this problem (96 bytes, ptrs only, base s[0:1]):
"""

def f2u(x):
    return struct.unpack("<I", struct.pack("<f", x))[0]

BLK = 16384
OFF_R, OFF_Q = 0, 9216
GU_BASE = 256 * BLK
GU_ROW = 4608 * 8
ML_BASE = GU_BASE + 32 * GU_ROW
EPOCH_OFF = ML_BASE + 4096
TS_BASE = EPOCH_OFF + 4096
STAMP_BASE = 6 << 20
WS_SIZE = 7 << 20
OOB = 0x40000000
TAG_STEP = 0x9E3779B9
LOG2E = f2u(1.4426950408889634)
LDS_Q = 0
LDS_CNT = 512
LDS_H = 768
LDS_ML = 1024
LDS_O = 1280
LDS_B = 3328
LDS_W = 5632
LDS_A = 8192
LDS_G = 8192 + 4 * 2304 + 512
LDS_BYTES = LDS_G + 4 * 2304 + 256

class G:
    def __init__(self):
        self.L = []
    def __call__(self, s):
        self.L.append("  " + s)
    def lab(self, s):
        self.L.append(s + ":")
    def c(self, s):
        self.L.append("  ; " + s)

def gen(D=5, INIT=8, stamps=False, DG=3, DW=4, spin=1 << 18, codepf=16, fsleep=0, qdelay=32, abl="",
        hsleep=40, D2=6, T0=800, TK=236, TV=219, mlsleep=0, warm="", cdelay=32, dbg=0, ts=0, cal=1, MG=50, CP=(2, 4), NS=32, tbase=0, guearly=0, htail=2, hstep=16, wdstep=12, apipe=1, D3=8, L3=100, gumid=0, qsleep=16):
    if dbg: stamps = True
    A = G()
    sID = "s2"
    pX, pK, pV, pWQ, pWO, pWG, pWU, pWD, pOUT, pDBG, pWS = 16, 18, 20, 22, 24, 28, 30, 32, 34, 36, 38
    rX, rST, rW, rWS, rO = 40, 44, 48, 52, 56
    sWV, sH, sS, sB, sHW = "s3", "s4", "s5", "s6", "s7"
    sOFF, sCNT, sT0, sT1, sT2, sM = "s8", "s9", "s10", "s11", "s12", "s13"
    sSPIN, sTAG = "s14", "s15"
    mU = ["s[60:61]", "s[62:63]", "s[64:65]", "s[66:67]"]
    mT = ["s[68:69]", "s[70:71]", "s[72:73]", "s[74:75]"]
    def srd(r): return f"s[{r}:{r+3}]"
    def mk_srd(r, p, size):
        A(f"s_mov_b32 s{r}, s{p}"); A(f"s_mov_b32 s{r+1}, s{p+1}"); A(f"s_mov_b32 s{r+2}, {size}"); A(f"s_mov_b32 s{r+3}, 0x20000")
    SB = 80
    def stamp(idx):
        if not stamps: return
        assert idx < 11
        A(f"s_memrealtime s[{SB+2*idx}:{SB+2*idx+1}]")
    def stampval(idx, sreg):
        if not stamps: return
        A(f"s_mov_b32 s{SB+2*idx}, {sreg}")
    def stamp_init():
        if stamps:
            for i in range(1, 11): A(f"s_mov_b32 s{SB+2*i}, 0")
    def stamp_flush():
        if not stamps: return
        A("s_waitcnt vmcnt(0) lgkmcnt(0)")
        A("s_mov_b64 exec, -1")
        A(f"s_lshl_b32 s8, {sID}, 3")
        A(f"s_add_u32 s8, s8, {sWV}")
        A("s_lshl_b32 s8, s8, 6")
        A(f"s_add_u32 s8, s8, {STAMP_BASE}")
        A("v_mov_b32 v8, 0")
        for i in range(11):
            A(f"v_writelane_b32 v8, s{SB+2*i}, {i}")
        A(f"v_lshlrev_b32 v9, 2, v{vLANE}")
        A(f"v_mov_b32 v10, {OOB}")
        A(f"v_cmp_gt_u32 vcc, 16, v{vLANE}")
        A("s_nop 1")
        A("v_cndmask_b32 v9, v10, v9, vcc")
        A(f"buffer_store_dword v8, v9, {srd(rWS)}, s8 offen")
        if dbg:
            A(f"s_cmp_lg_u32 {sID}, {dbg-1}")
            A("s_cbranch_scc1 L_end")
            A(f"s_cmp_lg_u32 {sWV}, 3")
            A("s_cbranch_scc1 L_end")
            mk_srd(rO, pDBG, 256)
            A(f"v_subrev_u32 v8, s{SB}, v8")
            A(f"buffer_store_dword v8, v9, {srd(rO)}, 0 offen")
    vLANE, vG, vN = 1, 2, 3
    vMK = [4, 5, 6, 7]
    vAop = [16, 20]
    vACC = 24
    vOFFC, vOFFV = 46, 47
    vBQ = 48
    vDK = 64
    vS = 68
    vSN, vP, vL = 76, 77, 78
    vX4 = 80
    WDB = 84
    RING = 128
    vXA = 48
    vXC = 56
    vOA, vOB = 60, 61
    vCO = 64
    WBUF = 96
    uid = [0]
    def newlab(p):
        uid[0] += 1
        return f"L_{p}{uid[0]}"

    def dpp_reduce(regs, op):
        pad = "s_nop 1" if len(regs) == 1 else ("s_nop 0" if len(regs) == 2 else None)
        A("s_nop 1")
        for d, rm in (("row_shr:1", "0xf"), ("row_shr:2", "0xf"), ("row_shr:4", "0xf"), ("row_shr:8", "0xf"), ("row_bcast:15", "0xa"), ("row_bcast:31", "0xc")):
            for r in regs: A(f"{op}_dpp v{r}, v{r}, v{r} {d} row_mask:{rm} bank_mask:0xf")
            if pad: A(pad)
        if not pad: A("s_nop 0")
    aop_flip = [0]
    def sel(coef, idx):
        a = vAop[aop_flip[0]]; aop_flip[0] ^= 1
        for i in range(4):
            A(f"v_and_b32_dpp v{a+i}, v{coef}, v{vMK[i]} row_newbcast:{idx} row_mask:0xf bank_mask:0xf")
        return a
    def mfma(d, a, b, first=False):
        c = "0" if first else f"v[{d}:{d+3}]"
        A(f"v_mfma_f32_16x16x32_bf16 v[{d}:{d+3}], v[{a}:{a+3}], v[{b}:{b+3}], {c}")
    def bf16_round(dst, src):
        A(f"v_cvt_pk_bf16_f32 v{dst}, v{src}, v{src}")
        A(f"v_lshlrev_b32 v{dst}, 16, v{dst}")
    def tagcheck(regs, dst=9, tmp=10, tmp2=15):
        regs = list(regs)
        lv = [(regs[i], regs[i+1]) for i in range(0, len(regs), 2)]
        A(f"v_bitop3_b32 v{dst}, v{lv[0][0]}, v{lv[0][1]}, {sTAG} bitop3:0x7e")
        rest = lv[1:]; k = 0
        while k < len(rest):
            A(f"v_bitop3_b32 v{tmp}, v{rest[k][0]}, v{rest[k][1]}, {sTAG} bitop3:0x7e")
            if k + 1 < len(rest):
                A(f"v_bitop3_b32 v{tmp2}, v{rest[k+1][0]}, v{rest[k+1][1]}, {sTAG} bitop3:0x7e")
                A(f"v_or3_b32 v{dst}, v{dst}, v{tmp}, v{tmp2}")
            else:
                A(f"v_or_b32 v{dst}, v{dst}, v{tmp}")
            k += 2
    def poll(label, loads, tagregs, slp, check=None):
        A(f"s_mov_b32 {sSPIN}, 0")
        A.lab(label)
        loads()
        A("s_waitcnt vmcnt(0)")
        if check: check()
        else: tagcheck(tagregs)
        A(f"s_add_u32 {sSPIN}, {sSPIN}, 1")
        A("v_cmp_ne_u32 vcc, 0, v9")
        A(f"s_cmp_ge_u32 {sSPIN}, {spin}")
        A(f"s_cbranch_scc1 {label}_done")
        A("s_and_b64 exec, exec, vcc")
        if slp:
            A(f"s_cbranch_execz {label}_done")
            A(f"s_sleep {slp}")
            A(f"s_branch {label}")
        else:
            A(f"s_cbranch_execnz {label}")
        A.lab(f"{label}_done")
        A("s_mov_b64 exec, -1")
    def two_group_offsets(rowstride, sw, oa, ob):
        A(f"s_mul_i32 {sT2}, {sw}, 288")
        A(f"v_mul_u32_u24 v8, {rowstride}, v{vG}")
        A(f"v_lshl_add_u32 v8, v{vN}, 4, v8")
        A(f"v_add_u32 v{oa}, {sT2}, v8")
        A(f"v_add_u32 v8, 256, v{oa}")
        A(f"v_mov_b32 v9, {OOB}")
        A(f"v_cmp_gt_u32 vcc, 2, v{vN}")
        A("s_nop 1")
        A(f"v_cndmask_b32 v{ob}, v9, v8, vcc")
    def two_group_to_lds(accA, accB, vaddr):
        A("s_mov_b32 exec_hi, 0")
        A(f"ds_write_b128 v{vaddr}, v[{accA}:{accA+3}] offset:{LDS_B}")
        A("s_mov_b32 exec_lo, 0x00030003")
        A(f"ds_write_b128 v{vaddr}, v[{accB}:{accB+3}] offset:{LDS_B+512}")
        A("s_mov_b64 exec, -1")
    def masks():
        A(f"v_and_b32 v8, 1, v{vN}")
        A("v_lshlrev_b32 v8, 4, v8")
        A(f"s_mov_b32 {sT0}, 0xffff")
        A(f"v_lshlrev_b32 v8, v8, {sT0}")
        A(f"v_lshrrev_b32 v11, 1, v{vN}")
        for i in range(4):
            A(f"v_cmp_eq_u32 vcc, {i}, v11")
            A("s_nop 1")
            A(f"v_cndmask_b32 v{vMK[i]}, 0, v8, vcc")
    def tail_store_setup():
        pass
    def lds_wait(label, target):
        A(f"s_mov_b32 {sSPIN}, 0")
        A.lab(label)
        A("ds_read_b32 v9, v71")
        A(f"s_add_u32 {sSPIN}, {sSPIN}, 1")
        A("s_waitcnt lgkmcnt(0)")
        A(f"v_readfirstlane_b32 {sT0}, v9")
        A(f"s_cmp_ge_u32 {sSPIN}, {spin}")
        A(f"s_cbranch_scc1 {label}_done")
        A(f"s_cmp_lt_u32 {sT0}, {target}")
        A(f"s_cbranch_scc1 {label}")
        A.lab(f"{label}_done")
    def record_addr_setup():
        A(f"v_and_b32 v8, 1, v{vLANE}")
        A(f"v_lshrrev_b32 v9, 2, v{vLANE}")
        A("v_lshlrev_b32 v9, 4, v9")
        A("v_lshl_add_u32 v8, v8, 3, v9")
        A(f"s_lshl_b32 {sT0}, {sWV}, 8")
        A(f"v_add_u32 v68, {sT0}, v8")
        A(f"v_lshlrev_b32 v69, 4, v{vLANE}")
        A(f"v_and_b32 v8, 2, v{vLANE}")
        A("v_cmp_eq_u32 s[62:63], 0, v8")
        A(f"v_mov_b32 v71, {LDS_CNT}")
        A("v_mov_b32 v72, 1")
        A(f"v_mov_b32 v41, {sTAG}")
        A(f"v_mov_b32 v43, {sTAG}")
        A(f"s_lshl_b32 s60, {sB}, 14")
        A(f"s_lshl_b32 {sT0}, {sWV}, 10")
        A(f"s_add_u32 s60, s60, {sT0}")
    def record_store(extra=0, base=48):
        lo = 256 * extra
        for w in range(4):
            A(f"ds_read_b64 v[{base+2*w}:{base+2*w+1}], v68 offset:{LDS_A + w*2304 + lo}")
        A(f"ds_read_b64 v[{base+8}:{base+9}], v68 offset:{LDS_B + lo}")
        A("s_waitcnt lgkmcnt(1)")
        for i in range(2):
            A(f"v_add_f32 v{base+i}, v{base+i}, v{base+2+i}")
            A(f"v_add_f32 v{base+4+i}, v{base+4+i}, v{base+6+i}")
        for i in range(2):
            A(f"v_add_f32 v{base+i}, v{base+i}, v{base+4+i}")
        A("s_waitcnt lgkmcnt(0)")
        A(f"v_cndmask_b32 v40, v{base+8}, v{base}, s[62:63]")
        A(f"v_cndmask_b32 v42, v{base+9}, v{base+1}, s[62:63]")
        A(f"buffer_store_dwordx4 v[40:43], v69, {srd(rWS)}, s60 offen offset:{1024*extra} sc1")

    A.lab(KNAME)
    A(f"s_cmp_ge_u32 {sID}, 256")
    A("s_cbranch_scc1 L_end")
    A("s_load_dwordx16 s[16:31], s[0:1], 0")
    A("s_load_dwordx8 s[32:39], s[0:1], 64")
    A("s_memrealtime s[78:79]")
    stamp(0)
    A("v_lshrrev_b32 v8, 6, v0")
    A(f"v_and_b32 v{vLANE}, 63, v0")
    A(f"v_readfirstlane_b32 {sWV}, v8")
    A(f"v_lshrrev_b32 v{vG}, 4, v{vLANE}")
    A(f"v_and_b32 v{vN}, 15, v{vLANE}")
    A(f"s_and_b32 {sT0}, {sID}, 7")
    A(f"s_lshr_b32 {sT1}, {sID}, 3")
    A(f"s_and_b32 {sH}, {sT1}, 3")
    A(f"s_lshr_b32 {sS}, {sT1}, 2")
    A(f"s_lshl_b32 {sT0}, {sT0}, 2")
    A(f"s_add_u32 {sH}, {sH}, {sT0}")
    A(f"s_lshl_b32 {sB}, {sH}, 3")
    A(f"s_add_u32 {sB}, {sB}, {sS}")
    A(f"s_cmp_ge_u32 {sWV}, 4")
    A("s_cbranch_scc1 L_helper")

    A.c("---- streamer waves 0..3")
    A(f"s_lshl_b32 {sT0}, {sB}, 19")
    A(f"s_lshl_b32 {sT1}, {sWV}, 10")
    A(f"s_add_u32 {sT0}, {sT0}, {sT1}")
    A(f"v_lshrrev_b32 v8, 2, v{vN}")
    A("v_lshlrev_b32 v8, 8, v8")
    A(f"v_and_b32 v11, 3, v{vN}")
    A("v_lshlrev_b32 v11, 4, v11")
    A(f"v_lshlrev_b32 v12, 6, v{vG}")
    A("v_add3_u32 v8, v8, v11, v12")
    A(f"v_add_u32 v{vOFFC}, {sT0}, v8")
    A(f"s_mov_b32 {sOFF}, 0")
    A(f"s_mov_b32 s{rST+2}, 0x8000000")
    A(f"s_mov_b32 s{rST+3}, 0x20000")
    A("s_waitcnt lgkmcnt(0)")
    A(f"s_mov_b32 s{rST}, s{pK}")
    A(f"s_mov_b32 s{rST+1}, s{pK+1}")
    def pace(d):
        if T0:
            l = newlab("pc")
            if D3:
                A(f"s_cmp_gt_i32 s75, {L3}")
                A(f"s_cbranch_scc1 {l}b")
            A(f"s_cbranch_vccnz {l}")
            A(f"s_waitcnt vmcnt({d-1})")
            A.lab(l)
            A(f"s_waitcnt vmcnt({D2-1})")
            if D3:
                A.lab(l + "b")
                A(f"s_waitcnt vmcnt({D3-1})")
        else:
            A(f"s_waitcnt vmcnt({d-1})")
    def control(n, step):
        if not T0: return
        if n % 16 == 0:
            A("s_memrealtime s[76:77]")
            if cal: A("ds_read_b32 v123, v122 offset:8")
        if n % 16 == 2:
            A("s_waitcnt lgkmcnt(0)")
            if cal:
                A("v_readfirstlane_b32 s79, v123")
                A("s_and_b32 s76, s76, 0xfffff")
                if n == 2:
                    l = newlab("ck")
                    A(f"s_cmp_lg_u32 {sWV}, 0")
                    A(f"s_cbranch_scc1 {l}")
                    A("v_mov_b32 v120, s76")
                    A("v_add_u32 v121, 1, v121")
                    A("ds_write_b64 v122, v[120:121] offset:16")
                    A.lab(l)
                A("s_sub_u32 s76, s76, s79")
            A("s_sub_u32 s76, s76, s78")
            if D3: A("s_mov_b32 s75, s76")
            A("s_cmp_gt_i32 s76, 0")
            A("s_cselect_b64 vcc, -1, 0")
            A(f"s_add_u32 s78, s78, {step}")
    def issue(slot):
        r = RING + 4 * slot
        A(f"buffer_load_dwordx4 v[{r}:{r+3}], v{vOFFC}, {srd(rST)}, {sOFF} offen nt")
        A(f"s_add_u32 {sOFF}, {sOFF}, 4096")
    for n in range(INIT): issue(n)
    stamp_init()
    A(f"s_mov_b32 {sT1}, {EPOCH_OFF}")
    A(f"s_load_dword {sTAG}, s[{pWS}:{pWS+1}], {sT1}")
    A(f"v_lshlrev_b32 v8, 4, v{vLANE}")
    A(f"v_add_u32 v{vOFFV}, {sT0}, v8")
    mk_srd(rX, pX, 1152)
    mk_srd(rWS, pWS, WS_SIZE)
    mk_srd(rW, pWD, 4608 * 576 * 2)
    masks()
    two_group_offsets(1152, sWV, 32, 33)
    A(f"v_cmp_gt_u32 vcc, 32, v{vLANE}")
    A(f"s_lshl_b32 {sT0}, {sID}, 3")
    A(f"v_mov_b32 v10, {sT0}")
    A("v_cndmask_b32 v34, v9, v32, vcc")
    A("v_cndmask_b32 v35, v9, v33, vcc")
    A(f"v_and_b32 v8, 3, v{vN}")
    A(f"v_lshrrev_b32 v9, 2, v{vN}")
    for u in range(4):
        A(f"v_cmp_eq_u32 {mU[u]}, {u}, v8")
        A(f"v_cmp_eq_u32 {mT[u]}, {u}, v9")
    A(f"v_lshlrev_b32 v9, 2, v{vG}")
    A("v_add_u32 v8, v8, v9")
    A("v_lshlrev_b32 v8, 5, v8")
    A(f"buffer_load_dwordx2 v[{vX4}:{vX4+1}], v10, {srd(rX)}, 0 offen")
    if htail in (1, 3):
        A(f"v_mul_u32_u24 v10, 57, v{vLANE}")
        A("v_lshrrev_b32 v127, 9, v10")
        A("v_mul_u32_u24 v9, 9, v127")
        A(f"v_sub_u32 v9, v{vLANE}, v9")
        A(f"v_mul_u32_u24 v11, {GU_ROW}, v127")
        A("v_lshl_add_u32 v11, v9, 4, v11")
        A(f"s_mul_i32 {sT0}, {sID}, 144")
        A(f"s_add_u32 {sT0}, {sT0}, {GU_BASE}")
        A(f"v_add_u32 v124, {sT0}, v11")
        A("v_mul_u32_u24 v12, 72, v127")
        A("v_lshl_add_u32 v12, v9, 3, v12")
        A(f"s_mul_i32 {sT0}, {sWV}, 2304")
        A(f"s_add_u32 {sT0}, {sT0}, {LDS_G}")
        A(f"v_add_u32 v126, {sT0}, v12")
        A(f"v_mov_b32 v13, {OOB}")
        A("v_cmp_gt_u32 vcc, 4, v127")
        A("s_nop 1")
        A("v_cndmask_b32 v125, v13, v124, vcc")
        if htail == 3:
            A(f"s_cmp_eq_u32 {sWV}, 0")
            A("s_cselect_b64 vcc, -1, 0")
            A("v_cndmask_b32 v124, v13, v124, vcc")
            A("v_cndmask_b32 v125, v13, v125, vcc")
    for n in range(INIT, 32):
        A(f"s_waitcnt vmcnt({D-1})")
        issue(n)
    A("s_waitcnt lgkmcnt(0)")
    A(f"s_add_u32 {sTAG}, {sTAG}, {TAG_STEP}")
    if not ts: stamp(4)
    A("s_barrier")
    if not ts: stamp(5)
    QT = 84
    A(f"ds_read_b128 v[{QT}:{QT+3}], v8 offset:{LDS_Q}")
    A(f"ds_read_b128 v[{QT+4}:{QT+7}], v8 offset:{LDS_Q+16}")
    if tbase:
        A("v_mov_b32 v9, 0")
        A(f"ds_read_b32 v9, v9 offset:{LDS_CNT+8}")
    A("s_waitcnt lgkmcnt(0)")
    if tbase:
        A("v_readfirstlane_b32 s78, v9")
    for i in range(4):
        A(f"v_cvt_pk_bf16_f32 v{QT+8+i}, v{QT+2*i}, v{QT+2*i+1}")
    for t in range(4):
        for i in range(4):
            A(f"v_cndmask_b32 v{vBQ+4*t+i}, 0, v{QT+8+i}, {mT[t]}")
    if cal:
        A("s_mov_b32 s78, 0")
        A("v_mov_b32 v121, 0")
        A(f"v_mov_b32 v122, {LDS_CNT}")
    else:
        A(f"s_add_u32 s78, s78, {T0}")
    A("s_mov_b64 vcc, 0")
    A("s_mov_b32 s75, 0")
    A(f"s_mov_b32 {sT2}, {f2u(128 ** -0.5)}")
    A(f"s_mov_b32 {sCNT}, 0")
    A.lab("L_kloop")
    A(f"s_cmp_eq_u32 {sCNT}, 3")
    A("s_cbranch_scc0 L_kbody")
    A(f"s_mov_b32 s{rST}, s{pV}")
    A(f"s_mov_b32 s{rST+1}, s{pV+1}")
    A(f"s_mov_b32 {sOFF}, 0")
    A(f"v_mov_b32 v{vOFFC}, v{vOFFV}")
    A.lab("L_kbody")
    for n in range(32):
        t, u = n % 4, (n // 4) % 4
        mfma(vDK, RING + 4 * n, vBQ + 4 * t, first=(t == 0))
        pace(D)
        issue(n)
        control(n, TK)
        if t == 3:
            A("s_nop 5")
            A(f"v_mov_b32_dpp v8, v{vDK} quad_perm:[0,0,0,0] row_mask:0xf bank_mask:0xf")
            for cidx in range(1, 4):
                A(f"v_add_f32_dpp v8, v{vDK+cidx}, v8 quad_perm:[{cidx},{cidx},{cidx},{cidx}] row_mask:0xf bank_mask:0xf")
            if u == 0:
                A(f"v_mov_b32 v{vSN}, v8")
            else:
                A(f"v_cndmask_b32 v{vSN}, v{vSN}, v8, {mU[u]}")
            if u == 3:
                bf16_round(vSN, vSN)
                A(f"v_mul_f32 v{vSN}, {sT2}, v{vSN}")
                bf16_round(vSN, vSN)
                for k in range(7):
                    A(f"v_mov_b32 v{vS+k}, v{vS+k+1}")
                A(f"v_mov_b32 v{vS+7}, v{vSN}")
    A(f"s_add_u32 {sCNT}, {sCNT}, 1")
    A(f"s_cmp_lt_u32 {sCNT}, 4")
    A("s_cbranch_scc1 L_kloop")
    if not ts: stamp(6)
    A(f"v_max3_f32 v8, v{vS}, v{vS+1}, v{vS+2}")
    A(f"v_max3_f32 v8, v8, v{vS+3}, v{vS+4}")
    A(f"v_max3_f32 v8, v8, v{vS+5}, v{vS+6}")
    A(f"v_max_f32 v8, v8, v{vS+7}")
    dpp_reduce([8], "v_max_f32")
    A(f"v_readlane_b32 {sM}, v8, 63")
    A(f"s_mov_b32 {sT2}, {LOG2E}")
    A(f"v_mov_b32 v{vL}, 0")
    for i in range(4): A(f"v_mov_b32 v{vACC+i}, 0")
    A(f"s_mov_b32 {sCNT}, 0")
    def ptile():
        A(f"v_subrev_f32 v8, {sM}, v{vS}")
        A(f"v_mul_f32 v8, {sT2}, v8")
        A("v_exp_f32 v8, v8")
        for k in range(7):
            A(f"v_mov_b32 v{vS+k}, v{vS+k+1}")
        A(f"v_add_f32 v{vL}, v{vL}, v8")
        A(f"v_cvt_pk_bf16_f32 v{vP}, v8, v8")
        A("s_nop 1")
    NWD = 15 if htail in (1, 3) else 10
    def vstep(n, last):
        if n % 16 == 0: ptile()
        if last and n == 17:
            dpp_reduce([vL], "v_add_f32")
            A(f"v_mov_b32 v45, v{vL}")
            A("s_mov_b32 exec_lo, 0")
            A("s_mov_b32 exec_hi, 0x80000000")
            A(f"ds_write_b64 v83, v[44:45] offset:{LDS_ML}")
            A("s_mov_b64 exec, -1")
            record_addr_setup()
        L = n % 16; t, u = L % 4, L // 4
        a = sel(vP, 4 * t + u)
        if last and n >= 32 - max(D, D2) - 1:
            A(f"s_waitcnt vmcnt({NWD + 31 - n})")
            A("s_nop 0")
        else:
            A("s_nop 1")
        mfma(vACC, a, RING + 4 * n)
        if not last:
            pace(D)
            issue(n)
            control(n, TV)
    A.lab("L_vloop")
    for n in range(32):
        vstep(n, False)
        if htail == 2 and n == hstep:
            A(f"v_mov_b32 v9, {sCNT}")
            A("ds_write_b32 v122, v9 offset:4")
    A(f"s_add_u32 {sCNT}, {sCNT}, 1")
    A(f"s_cmp_lt_u32 {sCNT}, 3")
    A("s_cbranch_scc1 L_vloop")
    stamp(7)
    A(f"s_mul_i32 {sOFF}, {sID}, {18*1152}")
    def wd_issue(t):
        r = WDB + 8 * t
        oa, ob = (32, 33) if t < 4 else (34, 35)
        A(f"buffer_load_dwordx4 v[{r}:{r+3}], v{oa}, {srd(rW)}, {sOFF} offen nt")
        A(f"buffer_load_dwordx4 v[{r+4}:{r+7}], v{ob}, {srd(rW)}, {sOFF} offen nt")
        A(f"s_add_u32 {sOFF}, {sOFF}, {4*1152}")
    if wdstep < 0:
        for t in range(5): wd_issue(t)
    HG = 48
    def ld_gu():
        A(f"s_mov_b32 {sT0}, 0")
        for i in range(5):
            A(f"buffer_load_dwordx4 v[{HG+4*i}:{HG+4*i+3}], v{124 if i < 4 else 125}, {srd(rWS)}, {sT0} offen sc1")
            if i < 4: A(f"s_add_u32 {sT0}, {sT0}, {7*GU_ROW}")
    def ck_gu():
        A(f"v_mov_b32 v14, {sTAG}")
        A(f"v_cndmask_b32 v{HG+17}, v14, v{HG+17}, s[66:67]")
        A(f"v_cndmask_b32 v{HG+19}, v14, v{HG+19}, s[66:67]")
        tagcheck([HG + 2 * k + 1 for k in range(10)])
    if htail == 2 and hstep >= 32:
        A(f"v_mov_b32 v8, {LDS_CNT}")
        A("v_mov_b32 v9, 1")
        A("ds_write_b32 v8, v9 offset:4")
    if htail in (1, 3):
        A("s_mov_b32 exec_hi, 0x7fffffff")
        ld_gu()
        A("s_mov_b32 exec_hi, -1")
    A(f"s_lshl_b32 {sT0}, {sWV}, 9")
    A(f"v_lshlrev_b32 v8, 5, v{vN}")
    A(f"v_lshl_add_u32 v8, v{vG}, 4, v8")
    A(f"v_add_u32 v82, {sT0}, v8")
    A(f"s_mul_i32 {sT0}, {sWV}, 576")
    A(f"v_add_u32 v36, {sT0}, v8")
    A(f"s_lshl_b32 {sT0}, {sWV}, 3")
    A(f"v_mov_b32 v83, {sT0}")
    A(f"v_mov_b32 v44, {sM}")
    A(f"v_lshlrev_b32 v37, 2, v{vLANE}")
    def lidx(n):
        L = n % 16
        return 4 * (L % 4) + L // 4
    ptile()
    a = sel(vP, lidx(0))
    for n in range(32):
        if n + 1 == 16: ptile()
        if n + 1 < 32: a_next = sel(vP, lidx(n + 1))
        else: A("s_nop 0")
        nwd = NWD if wdstep < 0 else (NWD - 10) + 2 * max(0, min(5, n - wdstep))
        if n >= 32 - max(D, D2, D3) - 1:
            A(f"s_waitcnt vmcnt({nwd + 31 - n})")
        mfma(vACC, a, RING + 4 * n)
        if wdstep >= 0 and wdstep <= n < wdstep + 5: wd_issue(n - wdstep)
        a = a_next
        if n == 17:
            dpp_reduce([vL], "v_add_f32")
            A(f"v_mov_b32 v45, v{vL}")
            A("s_mov_b32 exec_lo, 0")
            A("s_mov_b32 exec_hi, 0x80000000")
            A(f"ds_write_b64 v83, v[44:45] offset:{LDS_ML}")
            A("s_mov_b64 exec, -1")
            record_addr_setup()
    if wdstep >= 0:
        for t in range(max(0, 32 - wdstep), 5): wd_issue(t)
    A("s_nop 7")
    A("s_mov_b32 exec_hi, 0")
    A(f"ds_write_b128 v82, v[{vACC}:{vACC+3}] offset:{LDS_O}")
    A("s_mov_b32 exec_hi, -1")
    A("s_waitcnt lgkmcnt(0)")
    stamp(2)
    A("s_barrier")
    if ts: stamp(4)
    if htail == 3:
        A(f"s_cmp_lg_u32 {sWV}, 0")
        A("s_cbranch_scc1 L_hothers")
    if htail in (1, 3):
        A("v_cmp_gt_u32 s[66:67], 4, v127")
        A("s_mov_b32 exec_hi, 0x7fffffff")
        A(f"s_mov_b32 {sSPIN}, 0")
        A("s_branch L_hchk")
        A.lab("L_hpoll")
        A(f"s_sleep {hsleep}")
        ld_gu()
        A.lab("L_hchk")
        A("s_waitcnt vmcnt(0)")
        ck_gu()
        A(f"s_add_u32 {sSPIN}, {sSPIN}, 1")
        A("v_cmp_ne_u32 vcc, 0, v9")
        A(f"s_cmp_ge_u32 {sSPIN}, {spin}")
        A("s_cbranch_scc1 L_hdone")
        A("s_and_b64 exec, exec, vcc")
        A("s_cbranch_execnz L_hpoll")
        A.lab("L_hdone")
        A("s_mov_b32 exec_lo, -1")
        A("s_mov_b32 exec_hi, 0x7fffffff")
        for i in range(4):
            A(f"ds_write2_b32 v126, v{HG+4*i}, v{HG+4*i+2} offset0:{i*126} offset1:{i*126+1}" if i * 126 + 1 < 256 else f"ds_write2_b32 v127, v{HG+4*i}, v{HG+4*i+2} offset0:{(i-2)*126} offset1:{(i-2)*126+1}")
            if i == 0: A(f"v_add_u32 v127, {2*504}, v126")
        A(f"v_add_u32 v126, {4*504}, v126")
        A("s_and_b64 exec, exec, s[66:67]")
        A(f"ds_write2_b32 v126, v{HG+16}, v{HG+18} offset0:0 offset1:1")
        A("s_mov_b64 exec, -1")
        A(f"v_lshl_add_u32 v8, v{vN}, 2, v{vG}")
        A("v_cmp_gt_u32 vcc, 18, v8")
        A(f"s_mul_i32 {sT0}, {sWV}, 2304")
        A(f"v_lshl_add_u32 v8, v8, 2, {sT0}")
        A("s_waitcnt lgkmcnt(0)")
        HR = RING
        for r in range(32):
            A(f"ds_read_b32 v{HR+r}, v8 offset:{LDS_G + r*72}")
            if r in (11, 22): A("s_waitcnt lgkmcnt(4)")
        for st in (8, 4, 2, 1):
            for r in range(st): A(f"v_add_f32 v{HR+r}, v{HR+r}, v{HR+r+st}")
        A("s_waitcnt lgkmcnt(0)")
        for st in (8, 4, 2, 1):
            for r in range(st): A(f"v_add_f32 v{HR+16+r}, v{HR+16+r}, v{HR+16+r+st}")
        bf16_round(HR, HR); bf16_round(HR + 16, HR + 16)
        A(f"v_mul_f32 v{vP}, v{HR}, v{HR+16}")
        A(f"v_cvt_pk_bf16_f32 v{vP}, v{vP}, v{vP}")
        A(f"v_cndmask_b32 v{vP}, 0, v{vP}, vcc")
        if htail == 3:
            A(f"ds_write_b32 v37, v{vP} offset:{LDS_H}")
            A("s_waitcnt lgkmcnt(0)")
            A("ds_write_b32 v71, v72 offset:4")
            A("s_branch L_hready")
            A.lab("L_hothers")
            A(f"s_mov_b32 {sSPIN}, 0")
            A.lab("L_hw2")
            A("ds_read_b32 v9, v71 offset:4")
            A(f"ds_read_b32 v{vP}, v37 offset:{LDS_H}")
            A(f"s_add_u32 {sSPIN}, {sSPIN}, 1")
            A("s_waitcnt lgkmcnt(0)")
            A(f"v_readfirstlane_b32 {sT0}, v9")
            A(f"s_cmp_ge_u32 {sSPIN}, {spin}")
            A("s_cbranch_scc1 L_hready")
            A(f"s_cmp_eq_u32 {sT0}, 0")
            A("s_cbranch_scc1 L_hw2")
            A.lab("L_hready")
            if ts: stamp(5)
        A("s_nop 1")
    else:
        A(f"ds_read_b32 v{vP}, v37 offset:{LDS_H}")
        A("s_waitcnt lgkmcnt(0)")
    for t in range(5):
        a = sel(vP, t)
        A(f"s_waitcnt vmcnt({2*(4 - t)})")
        A("s_nop 0")
        mfma(vACC, a, WDB + 8 * t, first=(t == 0))
        mfma(vACC + 4, a, WDB + 8 * t + 4, first=(t == 0))
    A("s_nop 7")
    two_group_to_lds(vACC, vACC + 4, 36)
    A("s_mov_b64 exec, 1")
    A("s_waitcnt lgkmcnt(0)")
    A("ds_add_u32 v71, v72")
    A("s_mov_b64 exec, -1")
    mk_srd(rO, pOUT, 1152)
    A(f"v_lshrrev_b32 v8, 2, v{vLANE}")
    A(f"v_and_b32 v11, 3, v{vLANE}")
    A("v_lshlrev_b32 v12, 14, v8")
    A("v_lshl_add_u32 v12, v11, 4, v12")
    A(f"s_lshl_b32 {sT0}, {sID}, 6")
    A(f"v_add_u32 v12, {sT0}, v12")
    A("v_lshlrev_b32 v13, 2, v8")
    A(f"v_add_u32 v13, {LDS_W}, v13")
    A(f"v_and_b32 v14, 1, v{vLANE}")
    A("v_cmp_eq_u32 vcc, 1, v14")
    A(f"s_lshl_b32 {sT0}, {sID}, 3")
    A(f"v_lshl_add_u32 v10, v14, 2, {sT0}")
    A(f"v_cndmask_b32 v92, v{vX4}, v{vX4+1}, vcc")
    A("v_and_b32 v93, 0xffff0000, v92")
    A("v_lshlrev_b32 v92, 16, v92")
    A(f"v_mov_b32 v9, {OOB}")
    A(f"v_cmp_gt_u32 vcc, 2, v{vLANE}")
    A(f"s_mov_b32 {sT2}, {LOG2E}")
    A(f"s_mov_b32 s64, {ML_BASE}")
    A("v_cndmask_b32 v96, v9, v10, vcc")
    if ts: stamp(6)
    lds_wait("L_sw", 8)
    record_store()
    stamp(8)
    A(f"s_cmp_lg_u32 {sWV}, 3")
    A("s_cbranch_scc1 L_fin")
    A(f"s_cmp_ge_u32 {sID}, 144")
    A("s_cbranch_scc1 L_fin")
    A.c("---- wave 3: final reduction for columns 4*id .. 4*id+3")
    GM, GW, GR = 100, RING, RING + 16
    mM, mR = "s[44:45]", "s[46:47]"
    if cdelay: A(f"s_sleep {cdelay}")
    for m in (mM, mR): A(f"s_mov_b64 {m}, -1")
    A(f"s_mov_b32 {sSPIN}, 0")
    def ld_ml():
        for k in range(4):
            A(f"buffer_load_dwordx4 v[{GM+4*k}:{GM+4*k+3}], v69, {srd(rWS)}, s64 offen offset:{k*1024} sc1")
    def ld_rec():
        A(f"s_mov_b32 {sT0}, 0")
        for i in range(16):
            A(f"buffer_load_dwordx4 v[{GR+4*i}:{GR+4*i+3}], v12, {srd(rWS)}, {sT0} offen sc1")
            if i < 15: A(f"s_add_u32 {sT0}, {sT0}, {16*BLK}")
    ld_ml()
    ld_rec()
    A("s_waitcnt vmcnt(16)")
    tagcheck([GM + 2 * k + 1 for k in range(8)])
    A(f"v_cmp_ne_u32 {mM}, 0, v9")
    A("s_nop 0")
    A(f"s_cmp_eq_u64 {mM}, 0")
    A("s_cbranch_scc1 L_fp_w")
    A("s_waitcnt vmcnt(0)")
    tagcheck([GR + 2 * k + 1 for k in range(32)])
    A(f"v_cmp_ne_u32 {mR}, 0, v9")
    A(f"s_mov_b64 exec, {mM}")
    A.lab("L_fp_m")
    if mlsleep: A(f"s_sleep {mlsleep}")
    ld_ml()
    A(f"s_add_u32 {sSPIN}, {sSPIN}, 1")
    A("s_waitcnt vmcnt(0)")
    tagcheck([GM + 2 * k + 1 for k in range(8)])
    A("v_cmp_ne_u32 vcc, 0, v9")
    A(f"s_cmp_ge_u32 {sSPIN}, {spin}")
    A("s_cbranch_scc1 L_fp_m2")
    A("s_and_b64 exec, exec, vcc")
    A("s_cbranch_execnz L_fp_m")
    A.lab("L_fp_m2")
    A(f"s_mov_b64 exec, {mR}")
    A("s_cbranch_execz L_fp_w")
    ld_rec()
    A.lab("L_fp_w")
    A("s_mov_b64 exec, -1")
    stamp(1)
    grp8 = ("quad_perm:[1,0,3,2]", "quad_perm:[2,3,0,1]", "row_half_mirror")
    for k in range(4): A(f"v_mov_b32 v{GM+4*k+1}, v{GM+4*k}")
    for d in grp8:
        for k in range(4): A(f"v_max_f32_dpp v{GM+4*k+1}, v{GM+4*k+1}, v{GM+4*k+1} {d} row_mask:0xf bank_mask:0xf")
    for k in range(4): A(f"v_sub_f32 v{GM+4*k}, v{GM+4*k}, v{GM+4*k+1}")
    for k in range(4): A(f"v_mul_f32 v{GM+4*k}, {sT2}, v{GM+4*k}")
    for k in range(4): A(f"v_exp_f32 v{GM+4*k}, v{GM+4*k}")
    for k in range(4): A(f"v_mul_f32 v{GM+4*k+2}, v{GM+4*k}, v{GM+4*k+2}")
    for d in grp8:
        for k in range(4): A(f"v_add_f32_dpp v{GM+4*k+2}, v{GM+4*k+2}, v{GM+4*k+2} {d} row_mask:0xf bank_mask:0xf")
    for k in range(4): A(f"v_rcp_f32 v{GM+4*k+2}, v{GM+4*k+2}")
    for k in range(4): A(f"v_mul_f32 v{GM+4*k}, v{GM+4*k}, v{GM+4*k+2}")
    for k in range(4): A(f"ds_write_b32 v37, v{GM+4*k} offset:{LDS_W + k*256}")
    A("s_waitcnt lgkmcnt(0)")
    for i in range(16):
        A(f"ds_read_b32 v{GW+i}, v13 offset:{i*64}")
        if i == 11: A("s_waitcnt lgkmcnt(8)")
    A("s_waitcnt lgkmcnt(0)")
    for i in range(16): A(f"v_cndmask_b32 v{GW+i}, 1.0, v{GW+i}, s[62:63]")
    A(f"s_mov_b64 exec, {mR}")
    A("s_cbranch_execz L_fp_done")
    A("s_branch L_fp_c")
    A.lab("L_fp_r")
    if fsleep: A(f"s_sleep {fsleep}")
    ld_rec()
    A.lab("L_fp_c")
    A(f"s_add_u32 {sSPIN}, {sSPIN}, 1")
    A("s_waitcnt vmcnt(0)")
    tagcheck([GR + 2 * k + 1 for k in range(32)])
    A("v_cmp_ne_u32 vcc, 0, v9")
    A(f"s_cmp_ge_u32 {sSPIN}, {spin}")
    A("s_cbranch_scc1 L_fp_done")
    A("s_and_b64 exec, exec, vcc")
    A("s_cbranch_execnz L_fp_r")
    A.lab("L_fp_done")
    A("s_mov_b64 exec, -1")
    stamp(10)
    for c in range(2):
        for i in range(2): A(f"v_mul_f32 v{88+2*c+i}, v{GW+8*c}, v{GR+32*c+2*i}")
    for k in range(1, 8):
        for c in range(2):
            for i in range(2): A(f"v_fmac_f32 v{88+2*c+i}, v{GW+8*c+k}, v{GR+32*c+4*k+2*i}")
    A("v_add_f32 v88, v88, v90")
    A("v_add_f32 v89, v89, v91")
    A("s_nop 0")
    for d in ("row_ror:4", "row_ror:8"):
        A(f"v_add_f32_dpp v88, v88, v88 {d} row_mask:0xf bank_mask:0xf")
        A(f"v_add_f32_dpp v89, v89, v89 {d} row_mask:0xf bank_mask:0xf")
        A("s_nop 0")
    for op in ("v_permlane16_swap_b32", "v_permlane32_swap_b32"):
        A("v_mov_b32 v14, v88")
        A("v_mov_b32 v15, v89")
        A("s_nop 1")
        A(f"{op} v14, v88")
        A(f"{op} v15, v89")
        A("v_add_f32 v88, v88, v14")
        A("v_add_f32 v89, v89, v15")
    for i in range(2): A(f"v_cvt_pk_bf16_f32 v{88+i}, v{88+i}, v{88+i}")
    for i in range(2): A(f"v_lshlrev_b32 v{88+i}, 16, v{88+i}")
    for i in range(2): A(f"v_add_f32 v{90+i}, v{92+i}, v{88+i}")
    for i in range(2): A(f"v_cvt_pk_bf16_f32 v{90+i}, v{90+i}, v{90+i}")
    for i in range(2): A(f"v_lshlrev_b32 v{90+i}, 16, v{90+i}")
    for i in range(2): A(f"v_add_f32_dpp v{90+i}, v{88+i}, v{90+i} quad_perm:[2,3,2,3] row_mask:0xf bank_mask:0xf")
    A("v_cvt_pk_bf16_f32 v12, v90, v91")
    A(f"buffer_store_dword v12, v96, {srd(rO)}, 0 offen")
    stamp(3)
    stampval(9, sSPIN)
    A(f"s_cmp_lg_u32 {sID}, 0")
    A("s_cbranch_scc1 L_fin")
    A(f"v_mov_b32 v10, {sTAG}")
    A(f"v_mov_b32 v11, {EPOCH_OFF}")
    A("s_mov_b64 exec, 1")
    A(f"buffer_store_dword v10, v11, {srd(rWS)}, 0 offen")
    if stamps: A("s_branch L_fin")
    else: A("s_endpgm")

    A.lab("L_helper")
    A.c("---- helper waves 4..7")
    A(f"s_sub_u32 {sHW}, {sWV}, 4")
    A(f"v_lshlrev_b32 v8, 2, v{vLANE}")
    A(f"v_lshl_add_u32 v9, v{vN}, 2, v{vG}")
    A("v_and_b32 v9, -2, v9")
    A("v_lshlrev_b32 v9, 1, v9")
    A(f"s_mul_i32 {sT0}, {sS}, 144")
    A(f"s_lshr_b32 {sT1}, {sID}, 1")
    A(f"s_and_b32 {sT1}, {sT1}, 15")
    A(f"s_mul_i32 {sT1}, {sT1}, 72")
    A(f"s_mov_b32 {sT2}, {EPOCH_OFF}")
    A("s_waitcnt lgkmcnt(0)")
    A(f"s_load_dword {sTAG}, s[{pWS}:{pWS+1}], {sT2}")
    mk_srd(rX, pX, 1152)
    for k in range(5):
        A(f"buffer_load_dword v{vXA+k}, v8, {srd(rX)}, 0 offen offset:{k*256}")
    for T in range(2):
        A(f"buffer_load_dword v{vXC+T}, v9, {srd(rX)}, {sT0} offen offset:{T*128}")
    A(f"buffer_load_dword v{vXC+2}, v9, {srd(rX)}, {sT1} offen")
    GUB = WBUF + 72
    A(f"s_cmp_lg_u32 {sHW}, 0")
    A("s_cbranch_scc1 L_x13")
    mk_srd(rW, pWQ, 0 if "w" in abl else 576 * 4096 * 2)
    A(f"s_mul_i32 {sT0}, {sS}, {72*8192}")
    A(f"s_lshl_b32 {sT1}, {sH}, 8")
    A(f"s_add_u32 {sOFF}, {sT0}, {sT1}")
    A(f"v_lshlrev_b32 v8, 13, v{vG}")
    A(f"v_lshl_add_u32 v10, v{vN}, 4, v8")
    for t in range(18):
        r = WBUF + 4 * t
        A(f"buffer_load_dwordx4 v[{r}:{r+3}], v10, {srd(rW)}, {sOFF} offen nt")
        A(f"s_add_u32 {sOFF}, {sOFF}, 32768")
    A.lab("L_x13")
    if codepf:
        A(f"s_cmp_lg_u32 {sHW}, 3")
        A("s_cbranch_scc1 L_nopf")
        A(f"s_cmp_ge_u32 {sID}, {codepf}")
        A("s_cbranch_scc1 L_nopf")
        A("s_getpc_b64 s[76:77]")
        A.lab("L_pfbase")
        A(f"s_sub_u32 s76, s76, L_pfbase-{KNAME}")
        A("s_subb_u32 s77, s77, 0")
        A(f"v_lshlrev_b32 v8, 7, v{vLANE}")
        A("global_load_dword v12, v8, s[76:77]")
        A("v_add_u32 v8, 0x2000, v8")
        A(f"v_cmp_gt_u32 vcc, (L_codeend-{KNAME}-8192)/128, v{vLANE}")
        A("s_and_saveexec_b64 s[74:75], vcc")
        A("s_cbranch_execz L_pf2")
        A("global_load_dword v13, v8, s[76:77]")
        A.lab("L_pf2")
        A("s_mov_b64 exec, -1")
        A("s_waitcnt vmcnt(0)")
        A.lab("L_nopf")
    A(f"s_and_b32 {sT0}, {sID}, 1")
    A(f"s_cmp_eq_u32 {sT0}, 0")
    A(f"s_cselect_b32 s{rO}, s{pWG}, s{pWU}")
    A(f"s_cselect_b32 s{rO+1}, s{pWG+1}, s{pWU+1}")
    A(f"s_mov_b32 s{rO+2}, {0 if 'g' in abl else 576*4608*2}")
    A(f"s_mov_b32 s{rO+3}, 0x20000")
    two_group_offsets(9216, sHW, vOA, vOB)
    A(f"s_lshr_b32 {sT1}, {sID}, 1")
    A(f"s_and_b32 {sT1}, {sT1}, 15")
    A(f"s_lshr_b32 {sT2}, {sID}, 5")
    A(f"s_mul_i32 {sOFF}, {sT1}, {36*9216}")
    A(f"s_mul_i32 {sT0}, {sT2}, 1152")
    A(f"s_add_u32 {sOFF}, {sOFF}, {sT0}")
    def gu_issue(t):
        r = GUB + 8 * t
        A(f"buffer_load_dwordx4 v[{r}:{r+3}], v{vOA}, {srd(rO)}, {sOFF} offen nt")
        A(f"buffer_load_dwordx4 v[{r+4}:{r+7}], v{vOB}, {srd(rO)}, {sOFF} offen nt")
        A(f"s_add_u32 {sOFF}, {sOFF}, {4*9216}")
    GE = guearly
    for t in range(GE): gu_issue(t)
    stamp_init()
    mk_srd(rWS, pWS, WS_SIZE)
    masks()
    A(f"s_cmp_lg_u32 {sHW}, 0")
    A("s_cbranch_scc1 L_x13b")
    A(f"s_waitcnt vmcnt({18 + 2*GE})")
    A("s_branch L_ln")
    A.lab("L_x13b")
    A(f"s_waitcnt vmcnt({2*GE})")
    A.lab("L_ln")
    GE0 = GE
    GE = max(GE, gumid)
    for t in range(GE0, GE): gu_issue(t)
    stamp(8)
    XF = 68
    for k in range(5):
        A(f"v_lshlrev_b32 v{XF+2*k}, 16, v{vXA+k}")
        A(f"v_and_b32 v{XF+2*k+1}, 0xffff0000, v{vXA+k}")
    A(f"v_add_f32 v8, v{XF}, v{XF+1}")
    for k in range(2, 10): A(f"v_add_f32 v8, v8, v{XF+k}")
    dpp_reduce([8], "v_add_f32")
    A(f"v_mul_f32 v8, {f2u(1.0/576)}, v8")
    A(f"v_cmp_gt_u32 vcc, 32, v{vLANE}")
    A(f"v_readlane_b32 {sT0}, v8, 63")
    A("s_nop 1")
    for k in range(10): A(f"v_subrev_f32 v{XF+k}, {sT0}, v{XF+k}")
    A(f"v_cndmask_b32 v{XF+8}, 0, v{XF+8}, vcc")
    A(f"v_cndmask_b32 v{XF+9}, 0, v{XF+9}, vcc")
    A(f"v_mul_f32 v9, v{XF}, v{XF}")
    for k in range(1, 10): A(f"v_fmac_f32 v9, v{XF+k}, v{XF+k}")
    dpp_reduce([9], "v_add_f32")
    A(f"v_mul_f32 v9, {f2u(1.0/576)}, v9")
    bf16_round(9, 9)
    A(f"v_add_f32 v9, {f2u(1e-5)}, v9")
    bf16_round(9, 9)
    A("v_sqrt_f32 v9, v9")
    A("s_nop 0")
    bf16_round(9, 9)
    A("v_rcp_f32 v9, v9")
    bf16_round(8, 8)
    A("s_nop 0")
    A(f"v_readlane_b32 {sT0}, v8, 63")
    A(f"v_readlane_b32 {sT1}, v9, 63")
    A(f"v_and_b32 v10, 1, v{vG}")
    A("v_lshlrev_b32 v10, 4, v10")
    for k in range(3):
        r = vXC + k
        A(f"v_lshrrev_b32 v{r}, v10, v{r}")
        A(f"v_lshlrev_b32 v{r}, 16, v{r}")
        A(f"v_subrev_f32 v{r}, {sT0}, v{r}")
        bf16_round(r, r)
        A(f"v_mul_f32 v{r}, {sT1}, v{r}")
        A(f"v_cvt_pk_bf16_f32 v{r}, v{r}, v{r}")
    A("s_waitcnt lgkmcnt(0)")
    A(f"s_add_u32 {sTAG}, {sTAG}, {TAG_STEP}")
    stamp(1)
    A(f"s_cmp_lg_u32 {sHW}, 0")
    A("s_cbranch_scc1 L_noq")
    for t in range(18):
        a = sel(vXC + t // 16, t % 16)
        A(f"s_waitcnt vmcnt({17 - t + 2*GE})")
        A("s_nop 0")
        mfma(vACC, a, WBUF + 4 * t, first=(t == 0))
    A(f"v_lshlrev_b32 v8, 4, v{vLANE}")
    A(f"s_lshl_b32 {sT0}, {sB}, 14")
    A(f"s_add_u32 {sT0}, {sT0}, {OFF_Q}")
    A(f"s_lshl_b32 {sT1}, {sH}, 17")
    A(f"s_add_u32 {sT1}, {sT1}, {OFF_Q}")
    for k in range(8):
        A(f"s_add_u32 s{60+k}, {sT1}, {k*BLK}")
    A(f"v_mov_b32 v29, {sTAG}")
    A(f"v_mov_b32 v31, {sTAG}")
    A(f"v_mov_b32 v28, v{vACC}")
    A(f"v_mov_b32 v30, v{vACC+1}")
    A("s_nop 1")
    A(f"v_permlane32_swap_b32 v28, v{vACC+2}")
    A(f"v_permlane32_swap_b32 v30, v{vACC+3}")
    A(f"buffer_store_dwordx4 v[28:31], v8, {srd(rWS)}, {sT0} offen sc1")
    if tbase:
        A("v_mov_b32 v32, s78")
        A(f"v_mov_b32 v33, {sTAG}")
        A("v_mov_b32 v34, s78")
        A(f"v_mov_b32 v35, {sTAG}")
        A("s_mov_b64 exec, 0xff")
        A(f"buffer_store_dwordx4 v[32:35], v8, {srd(rWS)}, {sT0} offen offset:1024 sc1")
        A("s_mov_b64 exec, -1")
        A(f"v_and_b32 v11, 7, v{vLANE}")
        A("v_lshlrev_b32 v11, 14, v11")
    stamp(9)
    if qdelay: A(f"s_sleep {qdelay}")
    QG = WBUF
    def ld_q():
        for k in range(8):
            A(f"buffer_load_dwordx4 v[{QG+4*k}:{QG+4*k+3}], v8, {srd(rWS)}, s{60+k} offen sc1")
        if tbase:
            A(f"buffer_load_dwordx4 v[{QG+32}:{QG+35}], v11, {srd(rWS)}, s60 offen offset:1024 sc1")
    poll("L_qpoll", ld_q, [QG + 2 * k + 1 for k in range(18 if tbase else 16)], qsleep)
    for i in range(2):
        for k in range(4):
            A(f"v_add_f32 v{QG+8*k+2*i}, v{QG+8*k+2*i}, v{QG+8*k+4+2*i}")
        A(f"v_add_f32 v{QG+2*i}, v{QG+2*i}, v{QG+8+2*i}")
        A(f"v_add_f32 v{QG+16+2*i}, v{QG+16+2*i}, v{QG+24+2*i}")
        A(f"v_add_f32 v{28+i}, v{QG+2*i}, v{QG+16+2*i}")
    A(f"v_lshlrev_b32 v8, 5, v{vN}")
    A(f"v_and_b32 v9, 1, v{vG}")
    A("v_lshl_add_u32 v8, v9, 4, v8")
    A(f"v_lshrrev_b32 v9, 1, v{vG}")
    A("v_lshl_add_u32 v8, v9, 3, v8")
    A(f"ds_write_b64 v8, v[28:29] offset:{LDS_Q}")
    if tbase:
        A(f"v_subrev_u32 v12, s78, v{QG+32}")
        for d in ("quad_perm:[1,0,3,2]", "quad_perm:[2,3,0,1]", "row_half_mirror"):
            A("s_nop 1")
            A(f"v_min_i32_dpp v12, v12, v12 {d} row_mask:0xf bank_mask:0xf")
        A("v_add_u32 v12, s78, v12")
    A(f"v_mov_b32 v9, {LDS_CNT}")
    A("v_mov_b32 v10, 0")
    A("ds_write_b32 v9, v10")
    A("ds_write_b32 v9, v10 offset:4")
    if tbase: A("ds_write_b32 v9, v12 offset:8")
    if cal:
        A("v_mov_b32 v11, 0x3fffffff")
        A("ds_write_b32 v9, v11 offset:8")
        A("ds_write_b32 v9, v10 offset:20")
    stampval(10, sSPIN)
    A("s_waitcnt lgkmcnt(0)")
    stamp(2)
    A("s_barrier")
    A.lab("L_noq")
    for t in range(GE, min(max(GE, DG), 9)): gu_issue(t)
    DGE = min(max(GE, DG), 9)
    A(f"v_lshlrev_b32 v8, 5, v{vN}")
    A(f"v_lshl_add_u32 v8, v{vG}, 4, v8")
    A(f"s_mul_i32 {sT0}, {sHW}, 576")
    A(f"v_add_u32 v66, {sT0}, v8")
    A(f"s_mul_i32 {sT0}, {sHW}, 2304")
    A(f"v_add_u32 v67, {sT0}, v8")
    for t in range(9):
        a = sel(vXC + 2, t)
        A(f"s_waitcnt vmcnt({2*(min(DGE + t, 9) - (t + 1))})")
        A("s_nop 0")
        mfma(vACC, a, GUB + 8 * t, first=(t == 0))
        mfma(vACC + 4, a, GUB + 8 * t + 4, first=(t == 0))
        if DGE + t < 9: gu_issue(DGE + t)
    A(f"s_lshr_b32 {sT1}, {sID}, 1")
    A(f"s_and_b32 {sT1}, {sT1}, 15")
    A(f"s_and_b32 {sT0}, {sID}, 1")
    A(f"s_lshl_b32 {sT0}, {sT0}, 4")
    A(f"s_add_u32 {sT0}, {sT0}, {sT1}")
    A(f"s_mul_i32 {sT0}, {sT0}, {GU_ROW}")
    A(f"s_lshr_b32 {sT1}, {sID}, 5")
    A(f"s_mul_i32 {sT1}, {sT1}, 4608")
    A(f"s_add_u32 {sT0}, {sT0}, {sT1}")
    A(f"s_mul_i32 {sT1}, {sHW}, 1152")
    A(f"s_add_u32 {sT0}, {sT0}, {sT1}")
    A(f"s_add_u32 {sCNT}, {sT0}, {GU_BASE}")
    two_group_to_lds(vACC, vACC + 4, 66)
    A(f"s_mul_i32 {sT0}, {sHW}, 576")
    A(f"v_lshl_add_u32 v8, v{vLANE}, 3, {sT0}")
    A(f"v_lshlrev_b32 v9, 4, v{vLANE}")
    for r in (73, 75, 77, 79): A(f"v_mov_b32 v{r}, {sTAG}")
    A("s_waitcnt lgkmcnt(0)")
    A(f"ds_read_b64 v[68:69], v8 offset:{LDS_B}")
    A(f"ds_read_b64 v[70:71], v8 offset:{LDS_B + 512}")
    A("s_waitcnt lgkmcnt(0)")
    A("v_mov_b32 v72, v68"); A("v_mov_b32 v74, v69"); A("v_mov_b32 v76, v70"); A("v_mov_b32 v78, v71")
    if "G" not in abl:
        A(f"buffer_store_dwordx4 v[72:75], v9, {srd(rWS)}, {sCNT} offen sc1")
        A("s_mov_b64 exec, 0xff")
        A(f"buffer_store_dwordx4 v[76:79], v9, {srd(rWS)}, {sCNT} offen offset:1024 sc1")
        A("s_mov_b64 exec, -1")
    stamp(3)
    A(f"s_cmp_eq_u32 {sHW}, 0")
    A("s_cbranch_scc1 L_b1done")
    A("s_barrier")
    A.lab("L_b1done")
    mk_srd(rW, pWO, 0 if "O" in abl else 4096 * 576 * 2)
    A(f"v_mul_u32_u24 v8, 1152, v{vG}")
    A(f"v_lshl_add_u32 v{vOA}, v{vN}, 4, v8")
    A(f"v_mov_b32 v9, {OOB}")
    A(f"v_cmp_gt_u32 vcc, 8, v{vN}")
    A(f"s_lshl_b32 {sT0}, {sH}, 2")
    A(f"s_add_u32 {sT0}, {sT0}, {sHW}")
    A(f"v_cndmask_b32 v{vOB}, v9, v{vOA}, vcc")
    A(f"s_mul_i32 {sOFF}, {sT0}, {32*1152}")
    for t in range(8):
        for cg in range(5):
            A(f"s_waitcnt vmcnt({DW-1})")
            r = WBUF + 20 * t + 4 * cg
            A(f"buffer_load_dwordx4 v[{r}:{r+3}], v{vOA if cg < 4 else vOB}, {srd(rW)}, {sOFF} offen offset:{cg*256} nt")
        A(f"s_add_u32 {sOFF}, {sOFF}, {4*1152}")
    A(f"v_and_b32 v8, 7, v{vN}")
    A(f"v_lshl_add_u32 v8, v8, 2, v{vG}")
    A(f"s_lshl_b32 {sT0}, {sHW}, 7")
    A(f"v_lshl_add_u32 v66, v8, 2, {sT0}")
    record_addr_setup()
    A("v_mov_b32 v70, 0")
    for r in (81, 83): A(f"v_mov_b32 v{r}, {sTAG}")
    A(f"s_lshl_b32 {sCNT}, {sB}, 4")
    A(f"s_add_u32 {sCNT}, {sCNT}, {ML_BASE}")
    A(f"s_mov_b32 {sT2}, {LOG2E}")
    if htail == 2:
        A(f"s_cmp_lg_u32 {sHW}, 1")
        A("s_cbranch_scc1 L_noh")
        HG = 24
        hreg = lambda i: (HG + 4 * i) if i < 4 else 84
        A(f"v_mul_u32_u24 v8, 57, v{vLANE}")
        A("v_lshrrev_b32 v8, 9, v8")
        A("v_mul_u32_u24 v9, 9, v8")
        A(f"v_sub_u32 v9, v{vLANE}, v9")
        A(f"v_mul_u32_u24 v11, {GU_ROW}, v8")
        A("v_lshl_add_u32 v11, v9, 4, v11")
        A(f"s_mul_i32 {sT0}, {sID}, 144")
        A(f"s_add_u32 {sT0}, {sT0}, {GU_BASE}")
        A(f"v_add_u32 v11, {sT0}, v11")
        A("v_mul_u32_u24 v12, 72, v8")
        A("v_lshl_add_u32 v12, v9, 3, v12")
        A(f"v_add_u32 v12, {LDS_G}, v12")
        A(f"v_add_u32 v44, {2*504}, v12")
        A(f"v_add_u32 v45, {4*504}, v12")
        A(f"v_mov_b32 v13, {OOB}")
        A("v_cmp_gt_u32 s[66:67], 4, v8")
        A(f"v_lshl_add_u32 v46, v{vN}, 2, v{vG}")
        A("v_cmp_gt_u32 s[64:65], 18, v46")
        A("v_lshlrev_b32 v46, 2, v46")
        A("v_cndmask_b32 v13, v13, v11, s[66:67]")
        A(f"v_lshlrev_b32 v47, 2, v{vLANE}")
        A(f"s_mov_b32 {sSPIN}, 0")
        A.lab("L_hwait")
        A("s_sleep 2")
        A("ds_read_b32 v9, v71 offset:4")
        A(f"s_add_u32 {sSPIN}, {sSPIN}, 1")
        A("s_waitcnt lgkmcnt(0)")
        A(f"v_readfirstlane_b32 {sT0}, v9")
        A(f"s_cmp_ge_u32 {sSPIN}, {spin}")
        A("s_cbranch_scc1 L_hgo")
        A(f"s_cmp_lt_u32 {sT0}, {2 if hstep < 32 else 1}")
        A("s_cbranch_scc1 L_hwait")
        A.lab("L_hgo")
        A("s_mov_b32 exec_hi, 0x7fffffff")
        def ld_gu2():
            A(f"s_mov_b32 {sT0}, 0")
            for i in range(5):
                A(f"buffer_load_dwordx4 v[{hreg(i)}:{hreg(i)+3}], v{11 if i < 4 else 13}, {srd(rWS)}, {sT0} offen sc1")
                if i < 4: A(f"s_add_u32 {sT0}, {sT0}, {7*GU_ROW}")
        def ck_gu2():
            A(f"v_mov_b32 v14, {sTAG}")
            A("v_cndmask_b32 v85, v14, v85, s[66:67]")
            A("v_cndmask_b32 v87, v14, v87, s[66:67]")
            tagcheck([HG + 2 * k + 1 for k in range(8)] + [85, 87])
        poll("L_hpoll2", ld_gu2, None, hsleep, check=ck_gu2)
        A("s_mov_b32 exec_hi, 0x7fffffff")
        for i in range(4):
            A(f"ds_write2_b32 v{12 if i < 2 else 44}, v{HG+4*i}, v{HG+4*i+2} offset0:{(i%2)*126} offset1:{(i%2)*126+1}")
        A("s_mov_b64 exec, s[66:67]")
        A("ds_write2_b32 v45, v84, v86 offset0:0 offset1:1")
        A("s_mov_b64 exec, -1")
        A("s_waitcnt lgkmcnt(0)")
        for m in range(2):
            hr = [24 + r for r in range(16)]
            for r in range(16):
                A(f"ds_read_b32 v{hr[r]}, v46 offset:{LDS_G + (16*m + r)*72}")
                if r == 11: A("s_waitcnt lgkmcnt(8)")
            A("s_waitcnt lgkmcnt(0)")
            for st in (8, 4, 2):
                for r in range(st): A(f"v_add_f32 v{hr[r]}, v{hr[r]}, v{hr[r+st]}")
            A(f"v_add_f32 v{88+m}, v{hr[0]}, v{hr[1]}")
        bf16_round(88, 88); bf16_round(89, 89)
        A(f"v_mul_f32 v{vCO}, v88, v89")
        A(f"v_cvt_pk_bf16_f32 v{vCO}, v{vCO}, v{vCO}")
        A(f"v_cndmask_b32 v{vCO}, 0, v{vCO}, s[64:65]")
        A(f"ds_write_b32 v47, v{vCO} offset:{LDS_H}")
        stamp(4)
        A.lab("L_noh")
    if cal:
        A(f"s_cmp_lg_u32 {sHW}, 3")
        A("s_cbranch_scc1 L_nocal")
        A(f"s_and_b32 s64, {sID}, {256 - NS}")
        A("s_lshl_b32 s64, s64, 7")
        A(f"v_lshlrev_b32 v44, 7, v{vLANE}")
        A(f"v_mov_b32 v25, {sTAG}")
        A(f"v_mov_b32 v27, {sTAG}")
        def wait_seq(seq):
            l = newlab("cw")
            A(f"s_mov_b32 {sSPIN}, 0")
            A.lab(l)
            A("s_sleep 4")
            A("ds_read_b64 v[8:9], v71 offset:16")
            A(f"s_add_u32 {sSPIN}, {sSPIN}, 1")
            A("s_waitcnt lgkmcnt(0)")
            A("v_readfirstlane_b32 s67, v9")
            A(f"s_cmp_ge_u32 {sSPIN}, {spin}")
            A("s_cbranch_scc1 L_nocal")
            A(f"s_cmp_lt_u32 s67, {seq}")
            A(f"s_cbranch_scc1 {l}")
        for k, c in enumerate(CP):
            nominal = sum(2 * (TK if i < 4 else TV) for i in range(c))
            wait_seq(c + 1)
            l2 = newlab("cs")
            A(f"s_cmp_lg_u32 s67, {c + 1}")
            A(f"s_cbranch_scc1 {l2}")
            A("v_mov_b32 v24, v8")
            A("v_mov_b32 v26, v8")
            A(f"s_lshl_b32 {sT0}, {sID}, 7")
            A(f"s_add_u32 {sT0}, {sT0}, {TS_BASE + k*32768}")
            A("s_mov_b64 exec, 0xff")
            A(f"buffer_store_dwordx4 v[24:27], v69, {srd(rWS)}, {sT0} offen sc1")
            A("s_mov_b64 exec, -1")
            A.lab(l2)
            wait_seq(c + 2)
            A(f"s_add_u32 {sT0}, s64, {TS_BASE + k*32768}")
            A("v_mov_b32 v29, 0")
            A("v_mov_b32 v28, 0")
            if NS == 32: A("s_mov_b32 exec_hi, 0")
            elif NS == 16: A("s_mov_b64 exec, 0xffff")
            A(f"buffer_load_dwordx2 v[28:29], v44, {srd(rWS)}, {sT0} offen sc1")
            A("s_mov_b64 exec, -1")
            A("s_waitcnt vmcnt(0)")
            A(f"v_cmp_eq_u32 vcc, {sTAG}, v29")
            A("v_cvt_f32_u32 v28, v28")
            A("s_bcnt1_i32_b64 s65, vcc")
            A("v_cndmask_b32 v28, 0, v28, vcc")
            dpp_reduce([28], "v_add_f32")
            l3 = newlab("cf")
            A(f"s_cmp_lt_u32 s65, {NS // 2}")
            A(f"s_cbranch_scc1 {l3}")
            A("v_cvt_f32_u32 v9, s65")
            A("v_rcp_f32 v9, v9")
            A("s_nop 0")
            A("v_mul_f32 v28, v28, v9")
            A("v_cvt_u32_f32 v28, v28")
            A(f"v_subrev_u32 v28, {(nominal - MG) & 0xffffffff}, v28")
            A("s_mov_b32 exec_lo, 0")
            A("s_mov_b32 exec_hi, 0x80000000")
            A("ds_write_b32 v71, v28 offset:8")
            A("s_mov_b64 exec, -1")
            A.lab(l3)
        A.lab("L_nocal")
    A("s_waitcnt vmcnt(0) lgkmcnt(0)")
    stamp(5)
    A("s_barrier")
    if ts: stamp(1)
    A(f"ds_read_b128 v[48:51], v70 offset:{LDS_ML}")
    A(f"ds_read_b128 v[52:55], v70 offset:{LDS_ML+16}")
    for w in range(4):
        A(f"ds_read_b32 v{56+w}, v66 offset:{LDS_O + w*512}")
    A("s_waitcnt lgkmcnt(4)")
    A("v_max3_f32 v80, v48, v50, v52")
    A("v_max_f32 v80, v80, v54")
    for w in range(4): A(f"v_sub_f32 v{48+2*w}, v{48+2*w}, v80")
    for w in range(4): A(f"v_mul_f32 v{48+2*w}, {sT2}, v{48+2*w}")
    for w in range(4): A(f"v_exp_f32 v{48+2*w}, v{48+2*w}")
    A("s_waitcnt lgkmcnt(0)")
    A("v_mul_f32 v10, v48, v56")
    A("v_mul_f32 v82, v48, v49")
    for w in range(1, 4):
        A(f"v_fmac_f32 v10, v{48+2*w}, v{56+w}")
        A(f"v_fmac_f32 v82, v{48+2*w}, v{49+2*w}")
    A(f"v_cvt_pk_bf16_f32 v{vCO}, v10, v10")
    A(f"s_cmp_lg_u32 {sHW}, 2")
    A("s_cbranch_scc1 L_noml")
    A("s_mov_b64 exec, 1")
    A(f"buffer_store_dwordx4 v[80:83], v70, {srd(rWS)}, {sCNT} offen sc1")
    A("s_mov_b64 exec, -1")
    A.lab("L_noml")
    if ts: stamp(2)
    if apipe:
        a = sel(vCO, 0)
        A("s_nop 1")
        for t in range(8):
            an = vAop[aop_flip[0]]; aop_flip[0] ^= 1
            for cg in range(5):
                mfma(vACC + 4 * cg if cg < 4 else 84, a, WBUF + 20 * t + 4 * cg, first=(t == 0))
                if t < 7 and cg < 2:
                    for i in (2 * cg, 2 * cg + 1):
                        A(f"v_and_b32_dpp v{an+i}, v{vCO}, v{vMK[i]} row_newbcast:{t+1} row_mask:0xf bank_mask:0xf")
            a = an
    else:
        for t in range(8):
            a = sel(vCO, t)
            A("s_nop 1")
            for cg in range(5):
                mfma(vACC + 4 * cg if cg < 4 else 84, a, WBUF + 20 * t + 4 * cg, first=(t == 0))
    A("s_nop 3")
    A("s_mov_b32 exec_hi, 0")
    for cg in range(4):
        A(f"ds_write_b128 v67, v[{vACC+4*cg}:{vACC+4*cg+3}] offset:{LDS_A + cg*512}")
    A("s_mov_b32 exec_lo, 0x00ff00ff")
    A(f"ds_write_b128 v67, v[84:87] offset:{LDS_A + 2048}")
    A("s_mov_b64 exec, 1")
    A("s_waitcnt lgkmcnt(0)")
    A("ds_add_u32 v71, v72")
    A("s_mov_b64 exec, -1")
    if ts: stamp(4)
    lds_wait("L_hw", 8)
    if ts: stamp(7)
    record_store()
    A(f"s_cmp_lg_u32 {sHW}, 3")
    A("s_cbranch_scc1 L_nox")
    A("s_nop 1")
    record_store(extra=1)
    A.lab("L_nox")
    stamp(6)
    A.lab("L_fin")
    stamp_flush()
    A.lab("L_end")
    A("s_endpgm")
    A.lab("L_codeend")

    out = HEADER
    out += f"; @launch grid=(256,1,1) block=(512,1,1) lds={LDS_BYTES}\n"
    out += '.amdgcn_target "amdgcn-amd-amdhsa--gfx950"\n.text\n'
    out += f".globl {KNAME}\n.p2align 8\n.type {KNAME},@function\n"
    out += "\n".join(A.L) + "\n"
    out += '.section .rodata,"a"\n.p2align 6\n'
    out += f""".amdhsa_kernel {KNAME}
  .amdhsa_next_free_vgpr 256
  .amdhsa_next_free_sgpr 102
  .amdhsa_accum_offset 256
  .amdhsa_group_segment_fixed_size 0
  .amdhsa_kernarg_size 96
  .amdhsa_user_sgpr_count 2
  .amdhsa_user_sgpr_kernarg_segment_ptr 1
  .amdhsa_system_sgpr_workgroup_id_x 1
.end_amdhsa_kernel
"""
    return out

if __name__ == "__main__":
    import json
    kw = json.loads(sys.argv[1]) if len(sys.argv) > 1 else {}
    sys.stdout.write(gen(**kw))
```

```python
import sys, struct

KNAME = "parallel_sum__mha_block_cached__glu_gated_bilinear__decode_kernel"

HEADER = """; Kernarg layout for this problem (96 bytes, ptrs only, base s[0:1]):
"""

def f2u(x):
    return struct.unpack("<I", struct.pack("<f", x))[0]

BLK = 16384
OFF_R, OFF_Q = 0, 9216
GU_BASE = 256 * BLK
GU_ROW = 4608 * 8
ML_BASE = GU_BASE + 32 * GU_ROW
EPOCH_OFF = ML_BASE + 4096
TS_BASE = EPOCH_OFF + 4096
STAMP_BASE = 6 << 20
WS_SIZE = 7 << 20
OOB = 0x40000000
TAG_STEP = 0x9E3779B9
LOG2E = f2u(1.4426950408889634)
LDS_Q = 0
LDS_CNT = 512
LDS_H = 768
LDS_ML = 1024
LDS_O = 1280
LDS_B = 3328
LDS_W = 5632
LDS_A = 8192
LDS_G = 8192 + 4 * 2304 + 512
LDS_BYTES = LDS_G + 4 * 2304 + 256

class G:
    def __init__(self):
        self.L = []
    def __call__(self, s):
        self.L.append("  " + s)
    def lab(self, s):
        self.L.append(s + ":")
    def c(self, s):
        self.L.append("  ; " + s)

def gen(D=5, INIT=8, stamps=False, DG=3, DW=4, spin=1 << 18, codepf=16, fsleep=0, qdelay=32, abl="",
        hsleep=40, D2=6, T0=800, TK=236, TV=219, mlsleep=0, warm="", cdelay=32, dbg=0, ts=0, cal=1, MG=50, CP=(2, 4), NS=32, tbase=0, guearly=0, htail=2, hstep=16, wdstep=12, apipe=1, D3=8, L3=100, pad_to=0, gumid=0, qsleep=16):
    if dbg: stamps = True
    A = G()
    sID = "s2"
    pX, pK, pV, pWQ, pWO, pWG, pWU, pWD, pOUT, pDBG, pWS = 16, 18, 20, 22, 24, 28, 30, 32, 34, 36, 38
    rX, rST, rW, rWS, rO = 40, 44, 48, 52, 56
    sWV, sH, sS, sB, sHW = "s3", "s4", "s5", "s6", "s7"
    sOFF, sCNT, sT0, sT1, sT2, sM = "s8", "s9", "s10", "s11", "s12", "s13"
    sSPIN, sTAG = "s14", "s15"
    mU = ["s[60:61]", "s[62:63]", "s[64:65]", "s[66:67]"]
    mT = ["s[68:69]", "s[70:71]", "s[72:73]", "s[74:75]"]
    def srd(r): return f"s[{r}:{r+3}]"
    def mk_srd(r, p, size):
        A(f"s_mov_b32 s{r}, s{p}"); A(f"s_mov_b32 s{r+1}, s{p+1}"); A(f"s_mov_b32 s{r+2}, {size}"); A(f"s_mov_b32 s{r+3}, 0x20000")
    SB = 80
    def stamp(idx):
        if not stamps: return
        assert idx < 11
        A(f"s_memrealtime s[{SB+2*idx}:{SB+2*idx+1}]")
    def stampval(idx, sreg):
        if not stamps: return
        A(f"s_mov_b32 s{SB+2*idx}, {sreg}")
    def stamp_init():
        if stamps:
            for i in range(1, 11): A(f"s_mov_b32 s{SB+2*i}, 0")
    def stamp_flush():
        if not stamps: return
        A("s_waitcnt vmcnt(0) lgkmcnt(0)")
        A("s_mov_b64 exec, -1")
        A(f"s_lshl_b32 s8, {sID}, 3")
        A(f"s_add_u32 s8, s8, {sWV}")
        A("s_lshl_b32 s8, s8, 6")
        A(f"s_add_u32 s8, s8, {STAMP_BASE}")
        A("v_mov_b32 v8, 0")
        for i in range(11):
            A(f"v_writelane_b32 v8, s{SB+2*i}, {i}")
        A(f"v_lshlrev_b32 v9, 2, v{vLANE}")
        A(f"v_mov_b32 v10, {OOB}")
        A(f"v_cmp_gt_u32 vcc, 16, v{vLANE}")
        A("s_nop 1")
        A("v_cndmask_b32 v9, v10, v9, vcc")
        A(f"buffer_store_dword v8, v9, {srd(rWS)}, s8 offen")
        if dbg:
            A(f"s_cmp_lg_u32 {sID}, {dbg-1}")
            A("s_cbranch_scc1 L_end")
            A(f"s_cmp_lg_u32 {sWV}, 3")
            A("s_cbranch_scc1 L_end")
            mk_srd(rO, pDBG, 256)
            A(f"v_subrev_u32 v8, s{SB}, v8")
            A(f"buffer_store_dword v8, v9, {srd(rO)}, 0 offen")
    vLANE, vG, vN = 1, 2, 3
    vMK = [4, 5, 6, 7]
    vAop = [16, 20]
    vACC = 24
    vOFFC, vOFFV = 46, 47
    vBQ = 48
    vDK = 64
    vS = 68
    vSN, vP, vL = 76, 77, 78
    vX4 = 80
    WDB = 84
    RING = 128
    vXA = 48
    vXC = 56
    vOA, vOB = 60, 61
    vCO = 64
    WBUF = 96
    uid = [0]
    def newlab(p):
        uid[0] += 1
        return f"L_{p}{uid[0]}"

    def dpp_reduce(regs, op):
        pad = "s_nop 1" if len(regs) == 1 else ("s_nop 0" if len(regs) == 2 else None)
        A("s_nop 1")
        for d, rm in (("row_shr:1", "0xf"), ("row_shr:2", "0xf"), ("row_shr:4", "0xf"), ("row_shr:8", "0xf"), ("row_bcast:15", "0xa"), ("row_bcast:31", "0xc")):
            for r in regs: A(f"{op}_dpp v{r}, v{r}, v{r} {d} row_mask:{rm} bank_mask:0xf")
            if pad: A(pad)
        if not pad: A("s_nop 0")
    aop_flip = [0]
    def sel(coef, idx):
        a = vAop[aop_flip[0]]; aop_flip[0] ^= 1
        for i in range(4):
            A(f"v_and_b32_dpp v{a+i}, v{coef}, v{vMK[i]} row_newbcast:{idx} row_mask:0xf bank_mask:0xf")
        return a
    def mfma(d, a, b, first=False):
        c = "0" if first else f"v[{d}:{d+3}]"
        A(f"v_mfma_f32_16x16x32_bf16 v[{d}:{d+3}], v[{a}:{a+3}], v[{b}:{b+3}], {c}")
    def bf16_round(dst, src):
        A(f"v_cvt_pk_bf16_f32 v{dst}, v{src}, v{src}")
        A(f"v_lshlrev_b32 v{dst}, 16, v{dst}")
    def tagcheck(regs, dst=9, tmp=10, tmp2=15):
        regs = list(regs)
        lv = [(regs[i], regs[i+1]) for i in range(0, len(regs), 2)]
        A(f"v_bitop3_b32 v{dst}, v{lv[0][0]}, v{lv[0][1]}, {sTAG} bitop3:0x7e")
        rest = lv[1:]; k = 0
        while k < len(rest):
            A(f"v_bitop3_b32 v{tmp}, v{rest[k][0]}, v{rest[k][1]}, {sTAG} bitop3:0x7e")
            if k + 1 < len(rest):
                A(f"v_bitop3_b32 v{tmp2}, v{rest[k+1][0]}, v{rest[k+1][1]}, {sTAG} bitop3:0x7e")
                A(f"v_or3_b32 v{dst}, v{dst}, v{tmp}, v{tmp2}")
            else:
                A(f"v_or_b32 v{dst}, v{dst}, v{tmp}")
            k += 2
    def poll(label, loads, tagregs, slp, check=None):
        A(f"s_mov_b32 {sSPIN}, 0")
        A.lab(label)
        loads()
        A("s_waitcnt vmcnt(0)")
        if check: check()
        else: tagcheck(tagregs)
        A(f"s_add_u32 {sSPIN}, {sSPIN}, 1")
        A("v_cmp_ne_u32 vcc, 0, v9")
        A(f"s_cmp_ge_u32 {sSPIN}, {spin}")
        A(f"s_cbranch_scc1 {label}_done")
        A("s_and_b64 exec, exec, vcc")
        if slp:
            A(f"s_cbranch_execz {label}_done")
            A(f"s_sleep {slp}")
            A(f"s_branch {label}")
        else:
            A(f"s_cbranch_execnz {label}")
        A.lab(f"{label}_done")
        A("s_mov_b64 exec, -1")
    def two_group_offsets(rowstride, sw, oa, ob):
        A(f"s_mul_i32 {sT2}, {sw}, 288")
        A(f"v_mul_u32_u24 v8, {rowstride}, v{vG}")
        A(f"v_lshl_add_u32 v8, v{vN}, 4, v8")
        A(f"v_add_u32 v{oa}, {sT2}, v8")
        A(f"v_add_u32 v8, 256, v{oa}")
        A(f"v_mov_b32 v9, {OOB}")
        A(f"v_cmp_gt_u32 vcc, 2, v{vN}")
        A("s_nop 1")
        A(f"v_cndmask_b32 v{ob}, v9, v8, vcc")
    def two_group_to_lds(accA, accB, vaddr):
        A("s_mov_b32 exec_hi, 0")
        A(f"ds_write_b128 v{vaddr}, v[{accA}:{accA+3}] offset:{LDS_B}")
        A("s_mov_b32 exec_lo, 0x00030003")
        A(f"ds_write_b128 v{vaddr}, v[{accB}:{accB+3}] offset:{LDS_B+512}")
        A("s_mov_b64 exec, -1")
    def masks():
        A(f"v_and_b32 v8, 1, v{vN}")
        A("v_lshlrev_b32 v8, 4, v8")
        A(f"s_mov_b32 {sT0}, 0xffff")
        A(f"v_lshlrev_b32 v8, v8, {sT0}")
        A(f"v_lshrrev_b32 v11, 1, v{vN}")
        for i in range(4):
            A(f"v_cmp_eq_u32 vcc, {i}, v11")
            A("s_nop 1")
            A(f"v_cndmask_b32 v{vMK[i]}, 0, v8, vcc")
    def tail_store_setup():
        pass
    def lds_wait(label, target):
        A(f"s_mov_b32 {sSPIN}, 0")
        A.lab(label)
        A("ds_read_b32 v9, v71")
        A(f"s_add_u32 {sSPIN}, {sSPIN}, 1")
        A("s_waitcnt lgkmcnt(0)")
        A(f"v_readfirstlane_b32 {sT0}, v9")
        A(f"s_cmp_ge_u32 {sSPIN}, {spin}")
        A(f"s_cbranch_scc1 {label}_done")
        A(f"s_cmp_lt_u32 {sT0}, {target}")
        A(f"s_cbranch_scc1 {label}")
        A.lab(f"{label}_done")
    def record_addr_setup():
        A(f"v_and_b32 v8, 1, v{vLANE}")
        A(f"v_lshrrev_b32 v9, 2, v{vLANE}")
        A("v_lshlrev_b32 v9, 4, v9")
        A("v_lshl_add_u32 v8, v8, 3, v9")
        A(f"s_lshl_b32 {sT0}, {sWV}, 8")
        A(f"v_add_u32 v68, {sT0}, v8")
        A(f"v_lshlrev_b32 v69, 4, v{vLANE}")
        A(f"v_and_b32 v8, 2, v{vLANE}")
        A("v_cmp_eq_u32 s[62:63], 0, v8")
        A(f"v_mov_b32 v71, {LDS_CNT}")
        A("v_mov_b32 v72, 1")
        A(f"v_mov_b32 v41, {sTAG}")
        A(f"v_mov_b32 v43, {sTAG}")
        A(f"s_lshl_b32 s60, {sB}, 14")
        A(f"s_lshl_b32 {sT0}, {sWV}, 10")
        A(f"s_add_u32 s60, s60, {sT0}")
    def record_store(extra=0, base=48):
        lo = 256 * extra
        for w in range(4):
            A(f"ds_read_b64 v[{base+2*w}:{base+2*w+1}], v68 offset:{LDS_A + w*2304 + lo}")
        A(f"ds_read_b64 v[{base+8}:{base+9}], v68 offset:{LDS_B + lo}")
        A("s_waitcnt lgkmcnt(1)")
        for i in range(2):
            A(f"v_add_f32 v{base+i}, v{base+i}, v{base+2+i}")
            A(f"v_add_f32 v{base+4+i}, v{base+4+i}, v{base+6+i}")
        for i in range(2):
            A(f"v_add_f32 v{base+i}, v{base+i}, v{base+4+i}")
        A("s_waitcnt lgkmcnt(0)")
        A(f"v_cndmask_b32 v40, v{base+8}, v{base}, s[62:63]")
        A(f"v_cndmask_b32 v42, v{base+9}, v{base+1}, s[62:63]")
        A(f"buffer_store_dwordx4 v[40:43], v69, {srd(rWS)}, s60 offen offset:{1024*extra} sc1")

    A.lab(KNAME)
    A(f"s_cmp_ge_u32 {sID}, 256")
    A("s_cbranch_scc1 L_end")
    A("s_load_dwordx16 s[16:31], s[0:1], 0")
    A("s_load_dwordx8 s[32:39], s[0:1], 64")
    A("s_memrealtime s[78:79]")
    if pad_to: A("s_memrealtime s[98:99]")
    stamp(0)
    A("v_lshrrev_b32 v8, 6, v0")
    A(f"v_and_b32 v{vLANE}, 63, v0")
    A(f"v_readfirstlane_b32 {sWV}, v8")
    A(f"v_lshrrev_b32 v{vG}, 4, v{vLANE}")
    A(f"v_and_b32 v{vN}, 15, v{vLANE}")
    A(f"s_and_b32 {sT0}, {sID}, 7")
    A(f"s_lshr_b32 {sT1}, {sID}, 3")
    A(f"s_and_b32 {sH}, {sT1}, 3")
    A(f"s_lshr_b32 {sS}, {sT1}, 2")
    A(f"s_lshl_b32 {sT0}, {sT0}, 2")
    A(f"s_add_u32 {sH}, {sH}, {sT0}")
    A(f"s_lshl_b32 {sB}, {sH}, 3")
    A(f"s_add_u32 {sB}, {sB}, {sS}")
    A(f"s_cmp_ge_u32 {sWV}, 4")
    A("s_cbranch_scc1 L_helper")

    A.c("---- streamer waves 0..3")
    A(f"s_lshl_b32 {sT0}, {sB}, 19")
    A(f"s_lshl_b32 {sT1}, {sWV}, 10")
    A(f"s_add_u32 {sT0}, {sT0}, {sT1}")
    A(f"v_lshrrev_b32 v8, 2, v{vN}")
    A("v_lshlrev_b32 v8, 8, v8")
    A(f"v_and_b32 v11, 3, v{vN}")
    A("v_lshlrev_b32 v11, 4, v11")
    A(f"v_lshlrev_b32 v12, 6, v{vG}")
    A("v_add3_u32 v8, v8, v11, v12")
    A(f"v_add_u32 v{vOFFC}, {sT0}, v8")
    A(f"s_mov_b32 {sOFF}, 0")
    A(f"s_mov_b32 s{rST+2}, 0x8000000")
    A(f"s_mov_b32 s{rST+3}, 0x20000")
    A("s_waitcnt lgkmcnt(0)")
    A(f"s_mov_b32 s{rST}, s{pK}")
    A(f"s_mov_b32 s{rST+1}, s{pK+1}")
    def pace(d):
        if T0:
            l = newlab("pc")
            if D3:
                A(f"s_cmp_gt_i32 s75, {L3}")
                A(f"s_cbranch_scc1 {l}b")
            A(f"s_cbranch_vccnz {l}")
            A(f"s_waitcnt vmcnt({d-1})")
            A.lab(l)
            A(f"s_waitcnt vmcnt({D2-1})")
            if D3:
                A.lab(l + "b")
                A(f"s_waitcnt vmcnt({D3-1})")
        else:
            A(f"s_waitcnt vmcnt({d-1})")
    def control(n, step):
        if not T0: return
        if n % 16 == 0:
            A("s_memrealtime s[76:77]")
            if cal: A("ds_read_b32 v123, v122 offset:8")
        if n % 16 == 2:
            A("s_waitcnt lgkmcnt(0)")
            if cal:
                A("v_readfirstlane_b32 s79, v123")
                A("s_and_b32 s76, s76, 0xfffff")
                if n == 2:
                    l = newlab("ck")
                    A(f"s_cmp_lg_u32 {sWV}, 0")
                    A(f"s_cbranch_scc1 {l}")
                    A("v_mov_b32 v120, s76")
                    A("v_add_u32 v121, 1, v121")
                    A("ds_write_b64 v122, v[120:121] offset:16")
                    A.lab(l)
                A("s_sub_u32 s76, s76, s79")
            A("s_sub_u32 s76, s76, s78")
            if D3: A("s_mov_b32 s75, s76")
            A("s_cmp_gt_i32 s76, 0")
            A("s_cselect_b64 vcc, -1, 0")
            A(f"s_add_u32 s78, s78, {step}")
    def issue(slot):
        r = RING + 4 * slot
        A(f"buffer_load_dwordx4 v[{r}:{r+3}], v{vOFFC}, {srd(rST)}, {sOFF} offen nt")
        A(f"s_add_u32 {sOFF}, {sOFF}, 4096")
    for n in range(INIT): issue(n)
    stamp_init()
    A(f"s_mov_b32 {sT1}, {EPOCH_OFF}")
    A(f"s_load_dword {sTAG}, s[{pWS}:{pWS+1}], {sT1}")
    A(f"v_lshlrev_b32 v8, 4, v{vLANE}")
    A(f"v_add_u32 v{vOFFV}, {sT0}, v8")
    mk_srd(rX, pX, 1152)
    mk_srd(rWS, pWS, WS_SIZE)
    mk_srd(rW, pWD, 4608 * 576 * 2)
    masks()
    two_group_offsets(1152, sWV, 32, 33)
    A(f"v_cmp_gt_u32 vcc, 32, v{vLANE}")
    A(f"s_lshl_b32 {sT0}, {sID}, 3")
    A(f"v_mov_b32 v10, {sT0}")
    A("v_cndmask_b32 v34, v9, v32, vcc")
    A("v_cndmask_b32 v35, v9, v33, vcc")
    A(f"v_and_b32 v8, 3, v{vN}")
    A(f"v_lshrrev_b32 v9, 2, v{vN}")
    for u in range(4):
        A(f"v_cmp_eq_u32 {mU[u]}, {u}, v8")
        A(f"v_cmp_eq_u32 {mT[u]}, {u}, v9")
    A(f"v_lshlrev_b32 v9, 2, v{vG}")
    A("v_add_u32 v8, v8, v9")
    A("v_lshlrev_b32 v8, 5, v8")
    A(f"buffer_load_dwordx2 v[{vX4}:{vX4+1}], v10, {srd(rX)}, 0 offen")
    if htail in (1, 3):
        A(f"v_mul_u32_u24 v10, 57, v{vLANE}")
        A("v_lshrrev_b32 v127, 9, v10")
        A("v_mul_u32_u24 v9, 9, v127")
        A(f"v_sub_u32 v9, v{vLANE}, v9")
        A(f"v_mul_u32_u24 v11, {GU_ROW}, v127")
        A("v_lshl_add_u32 v11, v9, 4, v11")
        A(f"s_mul_i32 {sT0}, {sID}, 144")
        A(f"s_add_u32 {sT0}, {sT0}, {GU_BASE}")
        A(f"v_add_u32 v124, {sT0}, v11")
        A("v_mul_u32_u24 v12, 72, v127")
        A("v_lshl_add_u32 v12, v9, 3, v12")
        A(f"s_mul_i32 {sT0}, {sWV}, 2304")
        A(f"s_add_u32 {sT0}, {sT0}, {LDS_G}")
        A(f"v_add_u32 v126, {sT0}, v12")
        A(f"v_mov_b32 v13, {OOB}")
        A("v_cmp_gt_u32 vcc, 4, v127")
        A("s_nop 1")
        A("v_cndmask_b32 v125, v13, v124, vcc")
        if htail == 3:
            A(f"s_cmp_eq_u32 {sWV}, 0")
            A("s_cselect_b64 vcc, -1, 0")
            A("v_cndmask_b32 v124, v13, v124, vcc")
            A("v_cndmask_b32 v125, v13, v125, vcc")
    for n in range(INIT, 32):
        A(f"s_waitcnt vmcnt({D-1})")
        issue(n)
    A("s_waitcnt lgkmcnt(0)")
    A(f"s_add_u32 {sTAG}, {sTAG}, {TAG_STEP}")
    if not ts: stamp(4)
    A("s_barrier")
    if not ts: stamp(5)
    QT = 84
    A(f"ds_read_b128 v[{QT}:{QT+3}], v8 offset:{LDS_Q}")
    A(f"ds_read_b128 v[{QT+4}:{QT+7}], v8 offset:{LDS_Q+16}")
    if tbase:
        A("v_mov_b32 v9, 0")
        A(f"ds_read_b32 v9, v9 offset:{LDS_CNT+8}")
    A("s_waitcnt lgkmcnt(0)")
    if tbase:
        A("v_readfirstlane_b32 s78, v9")
    for i in range(4):
        A(f"v_cvt_pk_bf16_f32 v{QT+8+i}, v{QT+2*i}, v{QT+2*i+1}")
    for t in range(4):
        for i in range(4):
            A(f"v_cndmask_b32 v{vBQ+4*t+i}, 0, v{QT+8+i}, {mT[t]}")
    if cal:
        A("s_mov_b32 s78, 0")
        A("v_mov_b32 v121, 0")
        A(f"v_mov_b32 v122, {LDS_CNT}")
    else:
        A(f"s_add_u32 s78, s78, {T0}")
    A("s_mov_b64 vcc, 0")
    A("s_mov_b32 s75, 0")
    A(f"s_mov_b32 {sT2}, {f2u(128 ** -0.5)}")
    A(f"s_mov_b32 {sCNT}, 0")
    A.lab("L_kloop")
    A(f"s_cmp_eq_u32 {sCNT}, 3")
    A("s_cbranch_scc0 L_kbody")
    A(f"s_mov_b32 s{rST}, s{pV}")
    A(f"s_mov_b32 s{rST+1}, s{pV+1}")
    A(f"s_mov_b32 {sOFF}, 0")
    A(f"v_mov_b32 v{vOFFC}, v{vOFFV}")
    A.lab("L_kbody")
    for n in range(32):
        t, u = n % 4, (n // 4) % 4
        mfma(vDK, RING + 4 * n, vBQ + 4 * t, first=(t == 0))
        pace(D)
        issue(n)
        control(n, TK)
        if t == 3:
            A("s_nop 5")
            A(f"v_mov_b32_dpp v8, v{vDK} quad_perm:[0,0,0,0] row_mask:0xf bank_mask:0xf")
            for cidx in range(1, 4):
                A(f"v_add_f32_dpp v8, v{vDK+cidx}, v8 quad_perm:[{cidx},{cidx},{cidx},{cidx}] row_mask:0xf bank_mask:0xf")
            if u == 0:
                A(f"v_mov_b32 v{vSN}, v8")
            else:
                A(f"v_cndmask_b32 v{vSN}, v{vSN}, v8, {mU[u]}")
            if u == 3:
                bf16_round(vSN, vSN)
                A(f"v_mul_f32 v{vSN}, {sT2}, v{vSN}")
                bf16_round(vSN, vSN)
                for k in range(7):
                    A(f"v_mov_b32 v{vS+k}, v{vS+k+1}")
                A(f"v_mov_b32 v{vS+7}, v{vSN}")
    A(f"s_add_u32 {sCNT}, {sCNT}, 1")
    A(f"s_cmp_lt_u32 {sCNT}, 4")
    A("s_cbranch_scc1 L_kloop")
    if not ts: stamp(6)
    A(f"v_max3_f32 v8, v{vS}, v{vS+1}, v{vS+2}")
    A(f"v_max3_f32 v8, v8, v{vS+3}, v{vS+4}")
    A(f"v_max3_f32 v8, v8, v{vS+5}, v{vS+6}")
    A(f"v_max_f32 v8, v8, v{vS+7}")
    dpp_reduce([8], "v_max_f32")
    A(f"v_readlane_b32 {sM}, v8, 63")
    A(f"s_mov_b32 {sT2}, {LOG2E}")
    A(f"v_mov_b32 v{vL}, 0")
    for i in range(4): A(f"v_mov_b32 v{vACC+i}, 0")
    A(f"s_mov_b32 {sCNT}, 0")
    def ptile():
        A(f"v_subrev_f32 v8, {sM}, v{vS}")
        A(f"v_mul_f32 v8, {sT2}, v8")
        A("v_exp_f32 v8, v8")
        for k in range(7):
            A(f"v_mov_b32 v{vS+k}, v{vS+k+1}")
        A(f"v_add_f32 v{vL}, v{vL}, v8")
        A(f"v_cvt_pk_bf16_f32 v{vP}, v8, v8")
        A("s_nop 1")
    NWD = 15 if htail in (1, 3) else 10
    def vstep(n, last):
        if n % 16 == 0: ptile()
        if last and n == 17:
            dpp_reduce([vL], "v_add_f32")
            A(f"v_mov_b32 v45, v{vL}")
            A("s_mov_b32 exec_lo, 0")
            A("s_mov_b32 exec_hi, 0x80000000")
            A(f"ds_write_b64 v83, v[44:45] offset:{LDS_ML}")
            A("s_mov_b64 exec, -1")
            record_addr_setup()
        L = n % 16; t, u = L % 4, L // 4
        a = sel(vP, 4 * t + u)
        if last and n >= 32 - max(D, D2) - 1:
            A(f"s_waitcnt vmcnt({NWD + 31 - n})")
            A("s_nop 0")
        else:
            A("s_nop 1")
        mfma(vACC, a, RING + 4 * n)
        if not last:
            pace(D)
            issue(n)
            control(n, TV)
    A.lab("L_vloop")
    for n in range(32):
        vstep(n, False)
        if htail == 2 and n == hstep:
            A(f"v_mov_b32 v9, {sCNT}")
            A("ds_write_b32 v122, v9 offset:4")
    A(f"s_add_u32 {sCNT}, {sCNT}, 1")
    A(f"s_cmp_lt_u32 {sCNT}, 3")
    A("s_cbranch_scc1 L_vloop")
    stamp(7)
    A(f"s_mul_i32 {sOFF}, {sID}, {18*1152}")
    def wd_issue(t):
        r = WDB + 8 * t
        oa, ob = (32, 33) if t < 4 else (34, 35)
        A(f"buffer_load_dwordx4 v[{r}:{r+3}], v{oa}, {srd(rW)}, {sOFF} offen nt")
        A(f"buffer_load_dwordx4 v[{r+4}:{r+7}], v{ob}, {srd(rW)}, {sOFF} offen nt")
        A(f"s_add_u32 {sOFF}, {sOFF}, {4*1152}")
    if wdstep < 0:
        for t in range(5): wd_issue(t)
    HG = 48
    def ld_gu():
        A(f"s_mov_b32 {sT0}, 0")
        for i in range(5):
            A(f"buffer_load_dwordx4 v[{HG+4*i}:{HG+4*i+3}], v{124 if i < 4 else 125}, {srd(rWS)}, {sT0} offen sc1")
            if i < 4: A(f"s_add_u32 {sT0}, {sT0}, {7*GU_ROW}")
    def ck_gu():
        A(f"v_mov_b32 v14, {sTAG}")
        A(f"v_cndmask_b32 v{HG+17}, v14, v{HG+17}, s[66:67]")
        A(f"v_cndmask_b32 v{HG+19}, v14, v{HG+19}, s[66:67]")
        tagcheck([HG + 2 * k + 1 for k in range(10)])
    if htail == 2 and hstep >= 32:
        A(f"v_mov_b32 v8, {LDS_CNT}")
        A("v_mov_b32 v9, 1")
        A("ds_write_b32 v8, v9 offset:4")
    if htail in (1, 3):
        A("s_mov_b32 exec_hi, 0x7fffffff")
        ld_gu()
        A("s_mov_b32 exec_hi, -1")
    A(f"s_lshl_b32 {sT0}, {sWV}, 9")
    A(f"v_lshlrev_b32 v8, 5, v{vN}")
    A(f"v_lshl_add_u32 v8, v{vG}, 4, v8")
    A(f"v_add_u32 v82, {sT0}, v8")
    A(f"s_mul_i32 {sT0}, {sWV}, 576")
    A(f"v_add_u32 v36, {sT0}, v8")
    A(f"s_lshl_b32 {sT0}, {sWV}, 3")
    A(f"v_mov_b32 v83, {sT0}")
    A(f"v_mov_b32 v44, {sM}")
    A(f"v_lshlrev_b32 v37, 2, v{vLANE}")
    def lidx(n):
        L = n % 16
        return 4 * (L % 4) + L // 4
    ptile()
    a = sel(vP, lidx(0))
    for n in range(32):
        if n + 1 == 16: ptile()
        if n + 1 < 32: a_next = sel(vP, lidx(n + 1))
        else: A("s_nop 0")
        nwd = NWD if wdstep < 0 else (NWD - 10) + 2 * max(0, min(5, n - wdstep))
        if n >= 32 - max(D, D2, D3) - 1:
            A(f"s_waitcnt vmcnt({nwd + 31 - n})")
        mfma(vACC, a, RING + 4 * n)
        if wdstep >= 0 and wdstep <= n < wdstep + 5: wd_issue(n - wdstep)
        a = a_next
        if n == 17:
            dpp_reduce([vL], "v_add_f32")
            A(f"v_mov_b32 v45, v{vL}")
            A("s_mov_b32 exec_lo, 0")
            A("s_mov_b32 exec_hi, 0x80000000")
            A(f"ds_write_b64 v83, v[44:45] offset:{LDS_ML}")
            A("s_mov_b64 exec, -1")
            record_addr_setup()
    if wdstep >= 0:
        for t in range(max(0, 32 - wdstep), 5): wd_issue(t)
    A("s_nop 7")
    A("s_mov_b32 exec_hi, 0")
    A(f"ds_write_b128 v82, v[{vACC}:{vACC+3}] offset:{LDS_O}")
    A("s_mov_b32 exec_hi, -1")
    A("s_waitcnt lgkmcnt(0)")
    stamp(2)
    A("s_barrier")
    if ts: stamp(4)
    if htail == 3:
        A(f"s_cmp_lg_u32 {sWV}, 0")
        A("s_cbranch_scc1 L_hothers")
    if htail in (1, 3):
        A("v_cmp_gt_u32 s[66:67], 4, v127")
        A("s_mov_b32 exec_hi, 0x7fffffff")
        A(f"s_mov_b32 {sSPIN}, 0")
        A("s_branch L_hchk")
        A.lab("L_hpoll")
        A(f"s_sleep {hsleep}")
        ld_gu()
        A.lab("L_hchk")
        A("s_waitcnt vmcnt(0)")
        ck_gu()
        A(f"s_add_u32 {sSPIN}, {sSPIN}, 1")
        A("v_cmp_ne_u32 vcc, 0, v9")
        A(f"s_cmp_ge_u32 {sSPIN}, {spin}")
        A("s_cbranch_scc1 L_hdone")
        A("s_and_b64 exec, exec, vcc")
        A("s_cbranch_execnz L_hpoll")
        A.lab("L_hdone")
        A("s_mov_b32 exec_lo, -1")
        A("s_mov_b32 exec_hi, 0x7fffffff")
        for i in range(4):
            A(f"ds_write2_b32 v126, v{HG+4*i}, v{HG+4*i+2} offset0:{i*126} offset1:{i*126+1}" if i * 126 + 1 < 256 else f"ds_write2_b32 v127, v{HG+4*i}, v{HG+4*i+2} offset0:{(i-2)*126} offset1:{(i-2)*126+1}")
            if i == 0: A(f"v_add_u32 v127, {2*504}, v126")
        A(f"v_add_u32 v126, {4*504}, v126")
        A("s_and_b64 exec, exec, s[66:67]")
        A(f"ds_write2_b32 v126, v{HG+16}, v{HG+18} offset0:0 offset1:1")
        A("s_mov_b64 exec, -1")
        A(f"v_lshl_add_u32 v8, v{vN}, 2, v{vG}")
        A("v_cmp_gt_u32 vcc, 18, v8")
        A(f"s_mul_i32 {sT0}, {sWV}, 2304")
        A(f"v_lshl_add_u32 v8, v8, 2, {sT0}")
        A("s_waitcnt lgkmcnt(0)")
        HR = RING
        for r in range(32):
            A(f"ds_read_b32 v{HR+r}, v8 offset:{LDS_G + r*72}")
            if r in (11, 22): A("s_waitcnt lgkmcnt(4)")
        for st in (8, 4, 2, 1):
            for r in range(st): A(f"v_add_f32 v{HR+r}, v{HR+r}, v{HR+r+st}")
        A("s_waitcnt lgkmcnt(0)")
        for st in (8, 4, 2, 1):
            for r in range(st): A(f"v_add_f32 v{HR+16+r}, v{HR+16+r}, v{HR+16+r+st}")
        bf16_round(HR, HR); bf16_round(HR + 16, HR + 16)
        A(f"v_mul_f32 v{vP}, v{HR}, v{HR+16}")
        A(f"v_cvt_pk_bf16_f32 v{vP}, v{vP}, v{vP}")
        A(f"v_cndmask_b32 v{vP}, 0, v{vP}, vcc")
        if htail == 3:
            A(f"ds_write_b32 v37, v{vP} offset:{LDS_H}")
            A("s_waitcnt lgkmcnt(0)")
            A("ds_write_b32 v71, v72 offset:4")
            A("s_branch L_hready")
            A.lab("L_hothers")
            A(f"s_mov_b32 {sSPIN}, 0")
            A.lab("L_hw2")
            A("ds_read_b32 v9, v71 offset:4")
            A(f"ds_read_b32 v{vP}, v37 offset:{LDS_H}")
            A(f"s_add_u32 {sSPIN}, {sSPIN}, 1")
            A("s_waitcnt lgkmcnt(0)")
            A(f"v_readfirstlane_b32 {sT0}, v9")
            A(f"s_cmp_ge_u32 {sSPIN}, {spin}")
            A("s_cbranch_scc1 L_hready")
            A(f"s_cmp_eq_u32 {sT0}, 0")
            A("s_cbranch_scc1 L_hw2")
            A.lab("L_hready")
            if ts: stamp(5)
        A("s_nop 1")
    else:
        A(f"ds_read_b32 v{vP}, v37 offset:{LDS_H}")
        A("s_waitcnt lgkmcnt(0)")
    for t in range(5):
        a = sel(vP, t)
        A(f"s_waitcnt vmcnt({2*(4 - t)})")
        A("s_nop 0")
        mfma(vACC, a, WDB + 8 * t, first=(t == 0))
        mfma(vACC + 4, a, WDB + 8 * t + 4, first=(t == 0))
    A("s_nop 7")
    two_group_to_lds(vACC, vACC + 4, 36)
    A("s_mov_b64 exec, 1")
    A("s_waitcnt lgkmcnt(0)")
    A("ds_add_u32 v71, v72")
    A("s_mov_b64 exec, -1")
    mk_srd(rO, pOUT, 1152)
    A(f"v_lshrrev_b32 v8, 2, v{vLANE}")
    A(f"v_and_b32 v11, 3, v{vLANE}")
    A("v_lshlrev_b32 v12, 14, v8")
    A("v_lshl_add_u32 v12, v11, 4, v12")
    A(f"s_lshl_b32 {sT0}, {sID}, 6")
    A(f"v_add_u32 v12, {sT0}, v12")
    A("v_lshlrev_b32 v13, 2, v8")
    A(f"v_add_u32 v13, {LDS_W}, v13")
    A(f"v_and_b32 v14, 1, v{vLANE}")
    A("v_cmp_eq_u32 vcc, 1, v14")
    A(f"s_lshl_b32 {sT0}, {sID}, 3")
    A(f"v_lshl_add_u32 v10, v14, 2, {sT0}")
    A(f"v_cndmask_b32 v92, v{vX4}, v{vX4+1}, vcc")
    A("v_and_b32 v93, 0xffff0000, v92")
    A("v_lshlrev_b32 v92, 16, v92")
    A(f"v_mov_b32 v9, {OOB}")
    A(f"v_cmp_gt_u32 vcc, 2, v{vLANE}")
    A(f"s_mov_b32 {sT2}, {LOG2E}")
    A(f"s_mov_b32 s64, {ML_BASE}")
    A("v_cndmask_b32 v96, v9, v10, vcc")
    if ts: stamp(6)
    lds_wait("L_sw", 8)
    record_store()
    stamp(8)
    A(f"s_cmp_lg_u32 {sWV}, 3")
    A("s_cbranch_scc1 L_fin")
    A(f"s_cmp_ge_u32 {sID}, 144")
    A("s_cbranch_scc1 L_fin")
    A.c("---- wave 3: final reduction for columns 4*id .. 4*id+3")
    GM, GW, GR = 100, RING, RING + 16
    mM, mR = "s[44:45]", "s[46:47]"
    if cdelay: A(f"s_sleep {cdelay}")
    for m in (mM, mR): A(f"s_mov_b64 {m}, -1")
    A(f"s_mov_b32 {sSPIN}, 0")
    def ld_ml():
        for k in range(4):
            A(f"buffer_load_dwordx4 v[{GM+4*k}:{GM+4*k+3}], v69, {srd(rWS)}, s64 offen offset:{k*1024} sc1")
    def ld_rec():
        A(f"s_mov_b32 {sT0}, 0")
        for i in range(16):
            A(f"buffer_load_dwordx4 v[{GR+4*i}:{GR+4*i+3}], v12, {srd(rWS)}, {sT0} offen sc1")
            if i < 15: A(f"s_add_u32 {sT0}, {sT0}, {16*BLK}")
    ld_ml()
    ld_rec()
    A("s_waitcnt vmcnt(16)")
    tagcheck([GM + 2 * k + 1 for k in range(8)])
    A(f"v_cmp_ne_u32 {mM}, 0, v9")
    A("s_nop 0")
    A(f"s_cmp_eq_u64 {mM}, 0")
    A("s_cbranch_scc1 L_fp_w")
    A("s_waitcnt vmcnt(0)")
    tagcheck([GR + 2 * k + 1 for k in range(32)])
    A(f"v_cmp_ne_u32 {mR}, 0, v9")
    A(f"s_mov_b64 exec, {mM}")
    A.lab("L_fp_m")
    if mlsleep: A(f"s_sleep {mlsleep}")
    ld_ml()
    A(f"s_add_u32 {sSPIN}, {sSPIN}, 1")
    A("s_waitcnt vmcnt(0)")
    tagcheck([GM + 2 * k + 1 for k in range(8)])
    A("v_cmp_ne_u32 vcc, 0, v9")
    A(f"s_cmp_ge_u32 {sSPIN}, {spin}")
    A("s_cbranch_scc1 L_fp_m2")
    A("s_and_b64 exec, exec, vcc")
    A("s_cbranch_execnz L_fp_m")
    A.lab("L_fp_m2")
    A(f"s_mov_b64 exec, {mR}")
    A("s_cbranch_execz L_fp_w")
    ld_rec()
    A.lab("L_fp_w")
    A("s_mov_b64 exec, -1")
    stamp(1)
    grp8 = ("quad_perm:[1,0,3,2]", "quad_perm:[2,3,0,1]", "row_half_mirror")
    for k in range(4): A(f"v_mov_b32 v{GM+4*k+1}, v{GM+4*k}")
    for d in grp8:
        for k in range(4): A(f"v_max_f32_dpp v{GM+4*k+1}, v{GM+4*k+1}, v{GM+4*k+1} {d} row_mask:0xf bank_mask:0xf")
    for k in range(4): A(f"v_sub_f32 v{GM+4*k}, v{GM+4*k}, v{GM+4*k+1}")
    for k in range(4): A(f"v_mul_f32 v{GM+4*k}, {sT2}, v{GM+4*k}")
    for k in range(4): A(f"v_exp_f32 v{GM+4*k}, v{GM+4*k}")
    for k in range(4): A(f"v_mul_f32 v{GM+4*k+2}, v{GM+4*k}, v{GM+4*k+2}")
    for d in grp8:
        for k in range(4): A(f"v_add_f32_dpp v{GM+4*k+2}, v{GM+4*k+2}, v{GM+4*k+2} {d} row_mask:0xf bank_mask:0xf")
    for k in range(4): A(f"v_rcp_f32 v{GM+4*k+2}, v{GM+4*k+2}")
    for k in range(4): A(f"v_mul_f32 v{GM+4*k}, v{GM+4*k}, v{GM+4*k+2}")
    for k in range(4): A(f"ds_write_b32 v37, v{GM+4*k} offset:{LDS_W + k*256}")
    A("s_waitcnt lgkmcnt(0)")
    for i in range(16):
        A(f"ds_read_b32 v{GW+i}, v13 offset:{i*64}")
        if i == 11: A("s_waitcnt lgkmcnt(8)")
    A("s_waitcnt lgkmcnt(0)")
    for i in range(16): A(f"v_cndmask_b32 v{GW+i}, 1.0, v{GW+i}, s[62:63]")
    A(f"s_mov_b64 exec, {mR}")
    A("s_cbranch_execz L_fp_done")
    A("s_branch L_fp_c")
    A.lab("L_fp_r")
    if fsleep: A(f"s_sleep {fsleep}")
    ld_rec()
    A.lab("L_fp_c")
    A(f"s_add_u32 {sSPIN}, {sSPIN}, 1")
    A("s_waitcnt vmcnt(0)")
    tagcheck([GR + 2 * k + 1 for k in range(32)])
    A("v_cmp_ne_u32 vcc, 0, v9")
    A(f"s_cmp_ge_u32 {sSPIN}, {spin}")
    A("s_cbranch_scc1 L_fp_done")
    A("s_and_b64 exec, exec, vcc")
    A("s_cbranch_execnz L_fp_r")
    A.lab("L_fp_done")
    A("s_mov_b64 exec, -1")
    stamp(10)
    for c in range(2):
        for i in range(2): A(f"v_mul_f32 v{88+2*c+i}, v{GW+8*c}, v{GR+32*c+2*i}")
    for k in range(1, 8):
        for c in range(2):
            for i in range(2): A(f"v_fmac_f32 v{88+2*c+i}, v{GW+8*c+k}, v{GR+32*c+4*k+2*i}")
    A("v_add_f32 v88, v88, v90")
    A("v_add_f32 v89, v89, v91")
    A("s_nop 0")
    for d in ("row_ror:4", "row_ror:8"):
        A(f"v_add_f32_dpp v88, v88, v88 {d} row_mask:0xf bank_mask:0xf")
        A(f"v_add_f32_dpp v89, v89, v89 {d} row_mask:0xf bank_mask:0xf")
        A("s_nop 0")
    for op in ("v_permlane16_swap_b32", "v_permlane32_swap_b32"):
        A("v_mov_b32 v14, v88")
        A("v_mov_b32 v15, v89")
        A("s_nop 1")
        A(f"{op} v14, v88")
        A(f"{op} v15, v89")
        A("v_add_f32 v88, v88, v14")
        A("v_add_f32 v89, v89, v15")
    for i in range(2): A(f"v_cvt_pk_bf16_f32 v{88+i}, v{88+i}, v{88+i}")
    for i in range(2): A(f"v_lshlrev_b32 v{88+i}, 16, v{88+i}")
    for i in range(2): A(f"v_add_f32 v{90+i}, v{92+i}, v{88+i}")
    for i in range(2): A(f"v_cvt_pk_bf16_f32 v{90+i}, v{90+i}, v{90+i}")
    for i in range(2): A(f"v_lshlrev_b32 v{90+i}, 16, v{90+i}")
    for i in range(2): A(f"v_add_f32_dpp v{90+i}, v{88+i}, v{90+i} quad_perm:[2,3,2,3] row_mask:0xf bank_mask:0xf")
    A("v_cvt_pk_bf16_f32 v12, v90, v91")
    A(f"buffer_store_dword v12, v96, {srd(rO)}, 0 offen")
    stamp(3)
    stampval(9, sSPIN)
    A(f"s_cmp_lg_u32 {sID}, 0")
    A("s_cbranch_scc1 L_fin")
    A(f"v_mov_b32 v10, {sTAG}")
    A(f"v_mov_b32 v11, {EPOCH_OFF}")
    A("s_mov_b64 exec, 1")
    A(f"buffer_store_dword v10, v11, {srd(rWS)}, 0 offen")
    if pad_to:
        A.lab("L_pad")
        A("s_memrealtime s[96:97]")
        A("s_waitcnt lgkmcnt(0)")
        A("s_sub_u32 s96, s96, s98")
        A(f"s_cmp_lt_u32 s96, {pad_to}")
        A("s_cbranch_scc1 L_pad")
    if stamps: A("s_branch L_fin")
    else: A("s_endpgm")

    A.lab("L_helper")
    A.c("---- helper waves 4..7")
    A(f"s_sub_u32 {sHW}, {sWV}, 4")
    A(f"v_lshlrev_b32 v8, 2, v{vLANE}")
    A(f"v_lshl_add_u32 v9, v{vN}, 2, v{vG}")
    A("v_and_b32 v9, -2, v9")
    A("v_lshlrev_b32 v9, 1, v9")
    A(f"s_mul_i32 {sT0}, {sS}, 144")
    A(f"s_lshr_b32 {sT1}, {sID}, 1")
    A(f"s_and_b32 {sT1}, {sT1}, 15")
    A(f"s_mul_i32 {sT1}, {sT1}, 72")
    A(f"s_mov_b32 {sT2}, {EPOCH_OFF}")
    A("s_waitcnt lgkmcnt(0)")
    A(f"s_load_dword {sTAG}, s[{pWS}:{pWS+1}], {sT2}")
    mk_srd(rX, pX, 1152)
    for k in range(5):
        A(f"buffer_load_dword v{vXA+k}, v8, {srd(rX)}, 0 offen offset:{k*256}")
    for T in range(2):
        A(f"buffer_load_dword v{vXC+T}, v9, {srd(rX)}, {sT0} offen offset:{T*128}")
    A(f"buffer_load_dword v{vXC+2}, v9, {srd(rX)}, {sT1} offen")
    GUB = WBUF + 72
    A(f"s_cmp_lg_u32 {sHW}, 0")
    A("s_cbranch_scc1 L_x13")
    mk_srd(rW, pWQ, 0 if "w" in abl else 576 * 4096 * 2)
    A(f"s_mul_i32 {sT0}, {sS}, {72*8192}")
    A(f"s_lshl_b32 {sT1}, {sH}, 8")
    A(f"s_add_u32 {sOFF}, {sT0}, {sT1}")
    A(f"v_lshlrev_b32 v8, 13, v{vG}")
    A(f"v_lshl_add_u32 v10, v{vN}, 4, v8")
    for t in range(18):
        r = WBUF + 4 * t
        A(f"buffer_load_dwordx4 v[{r}:{r+3}], v10, {srd(rW)}, {sOFF} offen nt")
        A(f"s_add_u32 {sOFF}, {sOFF}, 32768")
    A.lab("L_x13")
    if codepf:
        A(f"s_cmp_lg_u32 {sHW}, 3")
        A("s_cbranch_scc1 L_nopf")
        A(f"s_cmp_ge_u32 {sID}, {codepf}")
        A("s_cbranch_scc1 L_nopf")
        A("s_getpc_b64 s[76:77]")
        A.lab("L_pfbase")
        A(f"s_sub_u32 s76, s76, L_pfbase-{KNAME}")
        A("s_subb_u32 s77, s77, 0")
        A(f"v_lshlrev_b32 v8, 7, v{vLANE}")
        A("global_load_dword v12, v8, s[76:77]")
        A("v_add_u32 v8, 0x2000, v8")
        A(f"v_cmp_gt_u32 vcc, (L_codeend-{KNAME}-8192)/128, v{vLANE}")
        A("s_and_saveexec_b64 s[74:75], vcc")
        A("s_cbranch_execz L_pf2")
        A("global_load_dword v13, v8, s[76:77]")
        A.lab("L_pf2")
        A("s_mov_b64 exec, -1")
        A("s_waitcnt vmcnt(0)")
        A.lab("L_nopf")
    A(f"s_and_b32 {sT0}, {sID}, 1")
    A(f"s_cmp_eq_u32 {sT0}, 0")
    A(f"s_cselect_b32 s{rO}, s{pWG}, s{pWU}")
    A(f"s_cselect_b32 s{rO+1}, s{pWG+1}, s{pWU+1}")
    A(f"s_mov_b32 s{rO+2}, {0 if 'g' in abl else 576*4608*2}")
    A(f"s_mov_b32 s{rO+3}, 0x20000")
    two_group_offsets(9216, sHW, vOA, vOB)
    A(f"s_lshr_b32 {sT1}, {sID}, 1")
    A(f"s_and_b32 {sT1}, {sT1}, 15")
    A(f"s_lshr_b32 {sT2}, {sID}, 5")
    A(f"s_mul_i32 {sOFF}, {sT1}, {36*9216}")
    A(f"s_mul_i32 {sT0}, {sT2}, 1152")
    A(f"s_add_u32 {sOFF}, {sOFF}, {sT0}")
    def gu_issue(t):
        r = GUB + 8 * t
        A(f"buffer_load_dwordx4 v[{r}:{r+3}], v{vOA}, {srd(rO)}, {sOFF} offen nt")
        A(f"buffer_load_dwordx4 v[{r+4}:{r+7}], v{vOB}, {srd(rO)}, {sOFF} offen nt")
        A(f"s_add_u32 {sOFF}, {sOFF}, {4*9216}")
    GE = guearly
    for t in range(GE): gu_issue(t)
    stamp_init()
    mk_srd(rWS, pWS, WS_SIZE)
    masks()
    A(f"s_cmp_lg_u32 {sHW}, 0")
    A("s_cbranch_scc1 L_x13b")
    A(f"s_waitcnt vmcnt({18 + 2*GE})")
    A("s_branch L_ln")
    A.lab("L_x13b")
    A(f"s_waitcnt vmcnt({2*GE})")
    A.lab("L_ln")
    GE0 = GE
    GE = max(GE, gumid)
    for t in range(GE0, GE): gu_issue(t)
    stamp(8)
    XF = 68
    for k in range(5):
        A(f"v_lshlrev_b32 v{XF+2*k}, 16, v{vXA+k}")
        A(f"v_and_b32 v{XF+2*k+1}, 0xffff0000, v{vXA+k}")
    A(f"v_add_f32 v8, v{XF}, v{XF+1}")
    for k in range(2, 10): A(f"v_add_f32 v8, v8, v{XF+k}")
    dpp_reduce([8], "v_add_f32")
    A(f"v_mul_f32 v8, {f2u(1.0/576)}, v8")
    A(f"v_cmp_gt_u32 vcc, 32, v{vLANE}")
    A(f"v_readlane_b32 {sT0}, v8, 63")
    A("s_nop 1")
    for k in range(10): A(f"v_subrev_f32 v{XF+k}, {sT0}, v{XF+k}")
    A(f"v_cndmask_b32 v{XF+8}, 0, v{XF+8}, vcc")
    A(f"v_cndmask_b32 v{XF+9}, 0, v{XF+9}, vcc")
    A(f"v_mul_f32 v9, v{XF}, v{XF}")
    for k in range(1, 10): A(f"v_fmac_f32 v9, v{XF+k}, v{XF+k}")
    dpp_reduce([9], "v_add_f32")
    A(f"v_mul_f32 v9, {f2u(1.0/576)}, v9")
    bf16_round(9, 9)
    A(f"v_add_f32 v9, {f2u(1e-5)}, v9")
    bf16_round(9, 9)
    A("v_sqrt_f32 v9, v9")
    A("s_nop 0")
    bf16_round(9, 9)
    A("v_rcp_f32 v9, v9")
    bf16_round(8, 8)
    A("s_nop 0")
    A(f"v_readlane_b32 {sT0}, v8, 63")
    A(f"v_readlane_b32 {sT1}, v9, 63")
    A(f"v_and_b32 v10, 1, v{vG}")
    A("v_lshlrev_b32 v10, 4, v10")
    for k in range(3):
        r = vXC + k
        A(f"v_lshrrev_b32 v{r}, v10, v{r}")
        A(f"v_lshlrev_b32 v{r}, 16, v{r}")
        A(f"v_subrev_f32 v{r}, {sT0}, v{r}")
        bf16_round(r, r)
        A(f"v_mul_f32 v{r}, {sT1}, v{r}")
        A(f"v_cvt_pk_bf16_f32 v{r}, v{r}, v{r}")
    A("s_waitcnt lgkmcnt(0)")
    A(f"s_add_u32 {sTAG}, {sTAG}, {TAG_STEP}")
    stamp(1)
    A(f"s_cmp_lg_u32 {sHW}, 0")
    A("s_cbranch_scc1 L_noq")
    for t in range(18):
        a = sel(vXC + t // 16, t % 16)
        A(f"s_waitcnt vmcnt({17 - t + 2*GE})")
        A("s_nop 0")
        mfma(vACC, a, WBUF + 4 * t, first=(t == 0))
    A(f"v_lshlrev_b32 v8, 4, v{vLANE}")
    A(f"s_lshl_b32 {sT0}, {sB}, 14")
    A(f"s_add_u32 {sT0}, {sT0}, {OFF_Q}")
    A(f"s_lshl_b32 {sT1}, {sH}, 17")
    A(f"s_add_u32 {sT1}, {sT1}, {OFF_Q}")
    for k in range(8):
        A(f"s_add_u32 s{60+k}, {sT1}, {k*BLK}")
    A(f"v_mov_b32 v29, {sTAG}")
    A(f"v_mov_b32 v31, {sTAG}")
    A(f"v_mov_b32 v28, v{vACC}")
    A(f"v_mov_b32 v30, v{vACC+1}")
    A("s_nop 1")
    A(f"v_permlane32_swap_b32 v28, v{vACC+2}")
    A(f"v_permlane32_swap_b32 v30, v{vACC+3}")
    A(f"buffer_store_dwordx4 v[28:31], v8, {srd(rWS)}, {sT0} offen sc1")
    if tbase:
        A("v_mov_b32 v32, s78")
        A(f"v_mov_b32 v33, {sTAG}")
        A("v_mov_b32 v34, s78")
        A(f"v_mov_b32 v35, {sTAG}")
        A("s_mov_b64 exec, 0xff")
        A(f"buffer_store_dwordx4 v[32:35], v8, {srd(rWS)}, {sT0} offen offset:1024 sc1")
        A("s_mov_b64 exec, -1")
        A(f"v_and_b32 v11, 7, v{vLANE}")
        A("v_lshlrev_b32 v11, 14, v11")
    stamp(9)
    if qdelay: A(f"s_sleep {qdelay}")
    QG = WBUF
    def ld_q():
        for k in range(8):
            A(f"buffer_load_dwordx4 v[{QG+4*k}:{QG+4*k+3}], v8, {srd(rWS)}, s{60+k} offen sc1")
        if tbase:
            A(f"buffer_load_dwordx4 v[{QG+32}:{QG+35}], v11, {srd(rWS)}, s60 offen offset:1024 sc1")
    poll("L_qpoll", ld_q, [QG + 2 * k + 1 for k in range(18 if tbase else 16)], qsleep)
    for i in range(2):
        for k in range(4):
            A(f"v_add_f32 v{QG+8*k+2*i}, v{QG+8*k+2*i}, v{QG+8*k+4+2*i}")
        A(f"v_add_f32 v{QG+2*i}, v{QG+2*i}, v{QG+8+2*i}")
        A(f"v_add_f32 v{QG+16+2*i}, v{QG+16+2*i}, v{QG+24+2*i}")
        A(f"v_add_f32 v{28+i}, v{QG+2*i}, v{QG+16+2*i}")
    A(f"v_lshlrev_b32 v8, 5, v{vN}")
    A(f"v_and_b32 v9, 1, v{vG}")
    A("v_lshl_add_u32 v8, v9, 4, v8")
    A(f"v_lshrrev_b32 v9, 1, v{vG}")
    A("v_lshl_add_u32 v8, v9, 3, v8")
    A(f"ds_write_b64 v8, v[28:29] offset:{LDS_Q}")
    if tbase:
        A(f"v_subrev_u32 v12, s78, v{QG+32}")
        for d in ("quad_perm:[1,0,3,2]", "quad_perm:[2,3,0,1]", "row_half_mirror"):
            A("s_nop 1")
            A(f"v_min_i32_dpp v12, v12, v12 {d} row_mask:0xf bank_mask:0xf")
        A("v_add_u32 v12, s78, v12")
    A(f"v_mov_b32 v9, {LDS_CNT}")
    A("v_mov_b32 v10, 0")
    A("ds_write_b32 v9, v10")
    A("ds_write_b32 v9, v10 offset:4")
    if tbase: A("ds_write_b32 v9, v12 offset:8")
    if cal:
        A("v_mov_b32 v11, 0x3fffffff")
        A("ds_write_b32 v9, v11 offset:8")
        A("ds_write_b32 v9, v10 offset:20")
    stampval(10, sSPIN)
    A("s_waitcnt lgkmcnt(0)")
    stamp(2)
    A("s_barrier")
    A.lab("L_noq")
    for t in range(GE, min(max(GE, DG), 9)): gu_issue(t)
    DGE = min(max(GE, DG), 9)
    A(f"v_lshlrev_b32 v8, 5, v{vN}")
    A(f"v_lshl_add_u32 v8, v{vG}, 4, v8")
    A(f"s_mul_i32 {sT0}, {sHW}, 576")
    A(f"v_add_u32 v66, {sT0}, v8")
    A(f"s_mul_i32 {sT0}, {sHW}, 2304")
    A(f"v_add_u32 v67, {sT0}, v8")
    for t in range(9):
        a = sel(vXC + 2, t)
        A(f"s_waitcnt vmcnt({2*(min(DGE + t, 9) - (t + 1))})")
        A("s_nop 0")
        mfma(vACC, a, GUB + 8 * t, first=(t == 0))
        mfma(vACC + 4, a, GUB + 8 * t + 4, first=(t == 0))
        if DGE + t < 9: gu_issue(DGE + t)
    A(f"s_lshr_b32 {sT1}, {sID}, 1")
    A(f"s_and_b32 {sT1}, {sT1}, 15")
    A(f"s_and_b32 {sT0}, {sID}, 1")
    A(f"s_lshl_b32 {sT0}, {sT0}, 4")
    A(f"s_add_u32 {sT0}, {sT0}, {sT1}")
    A(f"s_mul_i32 {sT0}, {sT0}, {GU_ROW}")
    A(f"s_lshr_b32 {sT1}, {sID}, 5")
    A(f"s_mul_i32 {sT1}, {sT1}, 4608")
    A(f"s_add_u32 {sT0}, {sT0}, {sT1}")
    A(f"s_mul_i32 {sT1}, {sHW}, 1152")
    A(f"s_add_u32 {sT0}, {sT0}, {sT1}")
    A(f"s_add_u32 {sCNT}, {sT0}, {GU_BASE}")
    two_group_to_lds(vACC, vACC + 4, 66)
    A(f"s_mul_i32 {sT0}, {sHW}, 576")
    A(f"v_lshl_add_u32 v8, v{vLANE}, 3, {sT0}")
    A(f"v_lshlrev_b32 v9, 4, v{vLANE}")
    for r in (73, 75, 77, 79): A(f"v_mov_b32 v{r}, {sTAG}")
    A("s_waitcnt lgkmcnt(0)")
    A(f"ds_read_b64 v[68:69], v8 offset:{LDS_B}")
    A(f"ds_read_b64 v[70:71], v8 offset:{LDS_B + 512}")
    A("s_waitcnt lgkmcnt(0)")
    A("v_mov_b32 v72, v68"); A("v_mov_b32 v74, v69"); A("v_mov_b32 v76, v70"); A("v_mov_b32 v78, v71")
    if "G" not in abl:
        A(f"buffer_store_dwordx4 v[72:75], v9, {srd(rWS)}, {sCNT} offen sc1")
        A("s_mov_b64 exec, 0xff")
        A(f"buffer_store_dwordx4 v[76:79], v9, {srd(rWS)}, {sCNT} offen offset:1024 sc1")
        A("s_mov_b64 exec, -1")
    stamp(3)
    A(f"s_cmp_eq_u32 {sHW}, 0")
    A("s_cbranch_scc1 L_b1done")
    A("s_barrier")
    A.lab("L_b1done")
    mk_srd(rW, pWO, 0 if "O" in abl else 4096 * 576 * 2)
    A(f"v_mul_u32_u24 v8, 1152, v{vG}")
    A(f"v_lshl_add_u32 v{vOA}, v{vN}, 4, v8")
    A(f"v_mov_b32 v9, {OOB}")
    A(f"v_cmp_gt_u32 vcc, 8, v{vN}")
    A(f"s_lshl_b32 {sT0}, {sH}, 2")
    A(f"s_add_u32 {sT0}, {sT0}, {sHW}")
    A(f"v_cndmask_b32 v{vOB}, v9, v{vOA}, vcc")
    A(f"s_mul_i32 {sOFF}, {sT0}, {32*1152}")
    for t in range(8):
        for cg in range(5):
            A(f"s_waitcnt vmcnt({DW-1})")
            r = WBUF + 20 * t + 4 * cg
            A(f"buffer_load_dwordx4 v[{r}:{r+3}], v{vOA if cg < 4 else vOB}, {srd(rW)}, {sOFF} offen offset:{cg*256} nt")
        A(f"s_add_u32 {sOFF}, {sOFF}, {4*1152}")
    A(f"v_and_b32 v8, 7, v{vN}")
    A(f"v_lshl_add_u32 v8, v8, 2, v{vG}")
    A(f"s_lshl_b32 {sT0}, {sHW}, 7")
    A(f"v_lshl_add_u32 v66, v8, 2, {sT0}")
    record_addr_setup()
    A("v_mov_b32 v70, 0")
    for r in (81, 83): A(f"v_mov_b32 v{r}, {sTAG}")
    A(f"s_lshl_b32 {sCNT}, {sB}, 4")
    A(f"s_add_u32 {sCNT}, {sCNT}, {ML_BASE}")
    A(f"s_mov_b32 {sT2}, {LOG2E}")
    if htail == 2:
        A(f"s_cmp_lg_u32 {sHW}, 1")
        A("s_cbranch_scc1 L_noh")
        HG = 24
        hreg = lambda i: (HG + 4 * i) if i < 4 else 84
        A(f"v_mul_u32_u24 v8, 57, v{vLANE}")
        A("v_lshrrev_b32 v8, 9, v8")
        A("v_mul_u32_u24 v9, 9, v8")
        A(f"v_sub_u32 v9, v{vLANE}, v9")
        A(f"v_mul_u32_u24 v11, {GU_ROW}, v8")
        A("v_lshl_add_u32 v11, v9, 4, v11")
        A(f"s_mul_i32 {sT0}, {sID}, 144")
        A(f"s_add_u32 {sT0}, {sT0}, {GU_BASE}")
        A(f"v_add_u32 v11, {sT0}, v11")
        A("v_mul_u32_u24 v12, 72, v8")
        A("v_lshl_add_u32 v12, v9, 3, v12")
        A(f"v_add_u32 v12, {LDS_G}, v12")
        A(f"v_add_u32 v44, {2*504}, v12")
        A(f"v_add_u32 v45, {4*504}, v12")
        A(f"v_mov_b32 v13, {OOB}")
        A("v_cmp_gt_u32 s[66:67], 4, v8")
        A(f"v_lshl_add_u32 v46, v{vN}, 2, v{vG}")
        A("v_cmp_gt_u32 s[64:65], 18, v46")
        A("v_lshlrev_b32 v46, 2, v46")
        A("v_cndmask_b32 v13, v13, v11, s[66:67]")
        A(f"v_lshlrev_b32 v47, 2, v{vLANE}")
        A(f"s_mov_b32 {sSPIN}, 0")
        A.lab("L_hwait")
        A("s_sleep 2")
        A("ds_read_b32 v9, v71 offset:4")
        A(f"s_add_u32 {sSPIN}, {sSPIN}, 1")
        A("s_waitcnt lgkmcnt(0)")
        A(f"v_readfirstlane_b32 {sT0}, v9")
        A(f"s_cmp_ge_u32 {sSPIN}, {spin}")
        A("s_cbranch_scc1 L_hgo")
        A(f"s_cmp_lt_u32 {sT0}, {2 if hstep < 32 else 1}")
        A("s_cbranch_scc1 L_hwait")
        A.lab("L_hgo")
        A("s_mov_b32 exec_hi, 0x7fffffff")
        def ld_gu2():
            A(f"s_mov_b32 {sT0}, 0")
            for i in range(5):
                A(f"buffer_load_dwordx4 v[{hreg(i)}:{hreg(i)+3}], v{11 if i < 4 else 13}, {srd(rWS)}, {sT0} offen sc1")
                if i < 4: A(f"s_add_u32 {sT0}, {sT0}, {7*GU_ROW}")
        def ck_gu2():
            A(f"v_mov_b32 v14, {sTAG}")
            A("v_cndmask_b32 v85, v14, v85, s[66:67]")
            A("v_cndmask_b32 v87, v14, v87, s[66:67]")
            tagcheck([HG + 2 * k + 1 for k in range(8)] + [85, 87])
        poll("L_hpoll2", ld_gu2, None, hsleep, check=ck_gu2)
        A("s_mov_b32 exec_hi, 0x7fffffff")
        for i in range(4):
            A(f"ds_write2_b32 v{12 if i < 2 else 44}, v{HG+4*i}, v{HG+4*i+2} offset0:{(i%2)*126} offset1:{(i%2)*126+1}")
        A("s_mov_b64 exec, s[66:67]")
        A("ds_write2_b32 v45, v84, v86 offset0:0 offset1:1")
        A("s_mov_b64 exec, -1")
        A("s_waitcnt lgkmcnt(0)")
        for m in range(2):
            hr = [24 + r for r in range(16)]
            for r in range(16):
                A(f"ds_read_b32 v{hr[r]}, v46 offset:{LDS_G + (16*m + r)*72}")
                if r == 11: A("s_waitcnt lgkmcnt(8)")
            A("s_waitcnt lgkmcnt(0)")
            for st in (8, 4, 2):
                for r in range(st): A(f"v_add_f32 v{hr[r]}, v{hr[r]}, v{hr[r+st]}")
            A(f"v_add_f32 v{88+m}, v{hr[0]}, v{hr[1]}")
        bf16_round(88, 88); bf16_round(89, 89)
        A(f"v_mul_f32 v{vCO}, v88, v89")
        A(f"v_cvt_pk_bf16_f32 v{vCO}, v{vCO}, v{vCO}")
        A(f"v_cndmask_b32 v{vCO}, 0, v{vCO}, s[64:65]")
        A(f"ds_write_b32 v47, v{vCO} offset:{LDS_H}")
        stamp(4)
        A.lab("L_noh")
    if cal:
        A(f"s_cmp_lg_u32 {sHW}, 3")
        A("s_cbranch_scc1 L_nocal")
        A(f"s_and_b32 s64, {sID}, {256 - NS}")
        A("s_lshl_b32 s64, s64, 7")
        A(f"v_lshlrev_b32 v44, 7, v{vLANE}")
        A(f"v_mov_b32 v25, {sTAG}")
        A(f"v_mov_b32 v27, {sTAG}")
        def wait_seq(seq):
            l = newlab("cw")
            A(f"s_mov_b32 {sSPIN}, 0")
            A.lab(l)
            A("s_sleep 4")
            A("ds_read_b64 v[8:9], v71 offset:16")
            A(f"s_add_u32 {sSPIN}, {sSPIN}, 1")
            A("s_waitcnt lgkmcnt(0)")
            A("v_readfirstlane_b32 s67, v9")
            A(f"s_cmp_ge_u32 {sSPIN}, {spin}")
            A("s_cbranch_scc1 L_nocal")
            A(f"s_cmp_lt_u32 s67, {seq}")
            A(f"s_cbranch_scc1 {l}")
        for k, c in enumerate(CP):
            nominal = sum(2 * (TK if i < 4 else TV) for i in range(c))
            wait_seq(c + 1)
            l2 = newlab("cs")
            A(f"s_cmp_lg_u32 s67, {c + 1}")
            A(f"s_cbranch_scc1 {l2}")
            A("v_mov_b32 v24, v8")
            A("v_mov_b32 v26, v8")
            A(f"s_lshl_b32 {sT0}, {sID}, 7")
            A(f"s_add_u32 {sT0}, {sT0}, {TS_BASE + k*32768}")
            A("s_mov_b64 exec, 0xff")
            A(f"buffer_store_dwordx4 v[24:27], v69, {srd(rWS)}, {sT0} offen sc1")
            A("s_mov_b64 exec, -1")
            A.lab(l2)
            wait_seq(c + 2)
            A(f"s_add_u32 {sT0}, s64, {TS_BASE + k*32768}")
            A("v_mov_b32 v29, 0")
            A("v_mov_b32 v28, 0")
            if NS == 32: A("s_mov_b32 exec_hi, 0")
            elif NS == 16: A("s_mov_b64 exec, 0xffff")
            A(f"buffer_load_dwordx2 v[28:29], v44, {srd(rWS)}, {sT0} offen sc1")
            A("s_mov_b64 exec, -1")
            A("s_waitcnt vmcnt(0)")
            A(f"v_cmp_eq_u32 vcc, {sTAG}, v29")
            A("v_cvt_f32_u32 v28, v28")
            A("s_bcnt1_i32_b64 s65, vcc")
            A("v_cndmask_b32 v28, 0, v28, vcc")
            dpp_reduce([28], "v_add_f32")
            l3 = newlab("cf")
            A(f"s_cmp_lt_u32 s65, {NS // 2}")
            A(f"s_cbranch_scc1 {l3}")
            A("v_cvt_f32_u32 v9, s65")
            A("v_rcp_f32 v9, v9")
            A("s_nop 0")
            A("v_mul_f32 v28, v28, v9")
            A("v_cvt_u32_f32 v28, v28")
            A(f"v_subrev_u32 v28, {(nominal - MG) & 0xffffffff}, v28")
            A("s_mov_b32 exec_lo, 0")
            A("s_mov_b32 exec_hi, 0x80000000")
            A("ds_write_b32 v71, v28 offset:8")
            A("s_mov_b64 exec, -1")
            A.lab(l3)
        A.lab("L_nocal")
    A("s_waitcnt vmcnt(0) lgkmcnt(0)")
    stamp(5)
    A("s_barrier")
    if ts: stamp(1)
    A(f"ds_read_b128 v[48:51], v70 offset:{LDS_ML}")
    A(f"ds_read_b128 v[52:55], v70 offset:{LDS_ML+16}")
    for w in range(4):
        A(f"ds_read_b32 v{56+w}, v66 offset:{LDS_O + w*512}")
    A("s_waitcnt lgkmcnt(4)")
    A("v_max3_f32 v80, v48, v50, v52")
    A("v_max_f32 v80, v80, v54")
    for w in range(4): A(f"v_sub_f32 v{48+2*w}, v{48+2*w}, v80")
    for w in range(4): A(f"v_mul_f32 v{48+2*w}, {sT2}, v{48+2*w}")
    for w in range(4): A(f"v_exp_f32 v{48+2*w}, v{48+2*w}")
    A("s_waitcnt lgkmcnt(0)")
    A("v_mul_f32 v10, v48, v56")
    A("v_mul_f32 v82, v48, v49")
    for w in range(1, 4):
        A(f"v_fmac_f32 v10, v{48+2*w}, v{56+w}")
        A(f"v_fmac_f32 v82, v{48+2*w}, v{49+2*w}")
    A(f"v_cvt_pk_bf16_f32 v{vCO}, v10, v10")
    A(f"s_cmp_lg_u32 {sHW}, 2")
    A("s_cbranch_scc1 L_noml")
    A("s_mov_b64 exec, 1")
    A(f"buffer_store_dwordx4 v[80:83], v70, {srd(rWS)}, {sCNT} offen sc1")
    A("s_mov_b64 exec, -1")
    A.lab("L_noml")
    if ts: stamp(2)
    if apipe:
        a = sel(vCO, 0)
        A("s_nop 1")
        for t in range(8):
            an = vAop[aop_flip[0]]; aop_flip[0] ^= 1
            for cg in range(5):
                mfma(vACC + 4 * cg if cg < 4 else 84, a, WBUF + 20 * t + 4 * cg, first=(t == 0))
                if t < 7 and cg < 2:
                    for i in (2 * cg, 2 * cg + 1):
                        A(f"v_and_b32_dpp v{an+i}, v{vCO}, v{vMK[i]} row_newbcast:{t+1} row_mask:0xf bank_mask:0xf")
            a = an
    else:
        for t in range(8):
            a = sel(vCO, t)
            A("s_nop 1")
            for cg in range(5):
                mfma(vACC + 4 * cg if cg < 4 else 84, a, WBUF + 20 * t + 4 * cg, first=(t == 0))
    A("s_nop 3")
    A("s_mov_b32 exec_hi, 0")
    for cg in range(4):
        A(f"ds_write_b128 v67, v[{vACC+4*cg}:{vACC+4*cg+3}] offset:{LDS_A + cg*512}")
    A("s_mov_b32 exec_lo, 0x00ff00ff")
    A(f"ds_write_b128 v67, v[84:87] offset:{LDS_A + 2048}")
    A("s_mov_b64 exec, 1")
    A("s_waitcnt lgkmcnt(0)")
    A("ds_add_u32 v71, v72")
    A("s_mov_b64 exec, -1")
    if ts: stamp(4)
    lds_wait("L_hw", 8)
    if ts: stamp(7)
    record_store()
    A(f"s_cmp_lg_u32 {sHW}, 3")
    A("s_cbranch_scc1 L_nox")
    A("s_nop 1")
    record_store(extra=1)
    A.lab("L_nox")
    stamp(6)
    A.lab("L_fin")
    stamp_flush()
    A.lab("L_end")
    A("s_endpgm")
    A.lab("L_codeend")

    out = HEADER
    out += f"; @launch grid=(256,1,1) block=(512,1,1) lds={LDS_BYTES}\n"
    out += '.amdgcn_target "amdgcn-amd-amdhsa--gfx950"\n.text\n'
    out += f".globl {KNAME}\n.p2align 8\n.type {KNAME},@function\n"
    out += "\n".join(A.L) + "\n"
    out += '.section .rodata,"a"\n.p2align 6\n'
    out += f""".amdhsa_kernel {KNAME}
  .amdhsa_next_free_vgpr 256
  .amdhsa_next_free_sgpr 102
  .amdhsa_accum_offset 256
  .amdhsa_group_segment_fixed_size 0
  .amdhsa_kernarg_size 96
  .amdhsa_user_sgpr_count 2
  .amdhsa_user_sgpr_kernarg_segment_ptr 1
  .amdhsa_system_sgpr_workgroup_id_x 1
.end_amdhsa_kernel
"""
    return out

if __name__ == "__main__":
    import json
    kw = json.loads(sys.argv[1]) if len(sys.argv) > 1 else {}
    sys.stdout.write(gen(**kw))
```

```python
import sys, struct

KNAME = "parallel_sum__mha_block_cached__glu_gated_bilinear__decode_kernel"

HEADER = """; Kernarg layout for this problem (96 bytes, ptrs only, base s[0:1]):
"""

def f2u(x):
    return struct.unpack("<I", struct.pack("<f", x))[0]

BLK = 16384
OFF_R, OFF_Q = 0, 9216
GU_BASE = 256 * BLK
GU_ROW = 4608 * 8
ML_BASE = GU_BASE + 32 * GU_ROW
EPOCH_OFF = ML_BASE + 4096
TS_BASE = EPOCH_OFF + 4096
STAMP_BASE = 6 << 20
WS_SIZE = 7 << 20
OOB = 0x40000000
TAG_STEP = 0x9E3779B9
LOG2E = f2u(1.4426950408889634)
LDS_Q = 0
LDS_CNT = 512
LDS_H = 768
LDS_ML = 1024
LDS_O = 1280
LDS_B = 3328
LDS_W = 5632
LDS_A = 8192
LDS_G = 8192 + 4 * 2304 + 512
LDS_BYTES = LDS_G + 2304 + 256

class G:
    def __init__(self):
        self.L = []
    def __call__(self, s):
        self.L.append("  " + s)
    def lab(self, s):
        self.L.append(s + ":")
    def c(self, s):
        self.L.append("  ; " + s)

def gen(D=5, INIT=8, stamps=False, DG=3, DW=4, spin=1 << 18, codepf=16, fsleep=0, qdelay=8, abl="",
        hsleep=40, D2=6, T0=800, TK=236, TV=219, mlsleep=0, warm="", cdelay=32, dbg=0, ts=0, cal=1, MG=50, CP=(2, 4), NS=32, tbase=0, guearly=0, htail=2, hstep=16, wdstep=12, apipe=1, D3=8, L3=100, D0=4, L0=100, rot=0, CI=8, FK=0, FV=0, FP=0, clk=0, qld="nt", hld="nt", tld="sc1", qst="", gust="", tst="sc1", gupub=1, gck=0, swap=1, relayout=1, bar0=0, qfall=6, pad_to=0, gumid=0, qsleep=16):
    if dbg: stamps = True
    A = G()
    sID = "s2"
    pX, pK, pV, pWQ, pWO, pWG, pWU, pWD, pOUT, pDBG, pWS = 16, 18, 20, 22, 24, 28, 30, 32, 34, 36, 38
    rX, rST, rW, rWS, rO = 40, 44, 48, 52, 56
    sWV, sH, sS, sB, sHW = "s3", "s4", "s5", "s6", "s7"
    sOFF, sCNT, sT0, sT1, sT2, sM = "s8", "s9", "s10", "s11", "s12", "s13"
    sSPIN, sTAG = "s14", "s15"
    mU = ["s[60:61]", "s[62:63]", "s[64:65]", "s[66:67]"]
    mT = ["s[68:69]", "s[70:71]", "s[72:73]", "s[74:75]"]
    def srd(r): return f"s[{r}:{r+3}]"
    def mk_srd(r, p, size):
        A(f"s_mov_b32 s{r}, s{p}"); A(f"s_mov_b32 s{r+1}, s{p+1}"); A(f"s_mov_b32 s{r+2}, {size}"); A(f"s_mov_b32 s{r+3}, 0x20000")
    SB = 80
    def stamp(idx):
        if not stamps: return
        assert idx < 11
        A(f"s_memrealtime s[{SB+2*idx}:{SB+2*idx+1}]")
    def stampval(idx, sreg):
        if not stamps: return
        A(f"s_mov_b32 s{SB+2*idx}, {sreg}")
    def stamp_init():
        if stamps:
            for i in range(1, 11): A(f"s_mov_b32 s{SB+2*i}, 0")
    def stamp_flush():
        if not stamps: return
        A("s_waitcnt vmcnt(0) lgkmcnt(0)")
        A("s_mov_b64 exec, -1")
        A(f"s_lshl_b32 s8, {sID}, 3")
        A(f"s_add_u32 s8, s8, {sWV}")
        A("s_lshl_b32 s8, s8, 6")
        A(f"s_add_u32 s8, s8, {STAMP_BASE}")
        A("v_mov_b32 v8, 0")
        for i in range(11):
            A(f"v_writelane_b32 v8, s{SB+2*i}, {i}")
        A(f"v_lshlrev_b32 v9, 2, v{vLANE}")
        A(f"v_mov_b32 v10, {OOB}")
        A(f"v_cmp_gt_u32 vcc, 16, v{vLANE}")
        A("s_nop 1")
        A("v_cndmask_b32 v9, v10, v9, vcc")
        A(f"buffer_store_dword v8, v9, {srd(rWS)}, s8 offen")
        if dbg:
            A(f"s_cmp_lg_u32 {sID}, {dbg-1}")
            A("s_cbranch_scc1 L_end")
            A(f"s_cmp_lg_u32 {sWV}, 3")
            A("s_cbranch_scc1 L_end")
            mk_srd(rO, pDBG, 256)
            A(f"v_subrev_u32 v8, s{SB}, v8")
            A(f"buffer_store_dword v8, v9, {srd(rO)}, 0 offen")
    vLANE, vG, vN = 1, 2, 3
    vMK = [4, 5, 6, 7]
    vAop = [16, 20]
    vACC = 24
    vOFFC, vOFFV = 46, 47
    vBQ = 48
    vDK = 64
    vS = 68
    vSN, vP, vL = 76, 77, 78
    vX4 = 80
    WDB = 84
    RING = 128
    vXA = 48
    vXC = 56
    vOA, vOB = 60, 61
    vCO = 64
    WBUF = 96
    uid = [0]
    def newlab(p):
        uid[0] += 1
        return f"L_{p}{uid[0]}"

    def dpp_reduce(regs, op):
        pad = "s_nop 1" if len(regs) == 1 else ("s_nop 0" if len(regs) == 2 else None)
        A("s_nop 1")
        for d, rm in (("row_shr:1", "0xf"), ("row_shr:2", "0xf"), ("row_shr:4", "0xf"), ("row_shr:8", "0xf"), ("row_bcast:15", "0xa"), ("row_bcast:31", "0xc")):
            for r in regs: A(f"{op}_dpp v{r}, v{r}, v{r} {d} row_mask:{rm} bank_mask:0xf")
            if pad: A(pad)
        if not pad: A("s_nop 0")
    aop_flip = [0]
    def sel(coef, idx):
        a = vAop[aop_flip[0]]; aop_flip[0] ^= 1
        for i in range(4):
            A(f"v_and_b32_dpp v{a+i}, v{coef}, v{vMK[i]} row_newbcast:{idx} row_mask:0xf bank_mask:0xf")
        return a
    def mfma(d, a, b, first=False):
        c = "0" if first else f"v[{d}:{d+3}]"
        A(f"v_mfma_f32_16x16x32_bf16 v[{d}:{d+3}], v[{a}:{a+3}], v[{b}:{b+3}], {c}")
    def bf16_round(dst, src):
        A(f"v_cvt_pk_bf16_f32 v{dst}, v{src}, v{src}")
        A(f"v_lshlrev_b32 v{dst}, 16, v{dst}")
    sTAGX = "s75"
    def tagcheck(regs, dst=9, tmp=10, tmp2=15, sTAG=sTAG):
        regs = list(regs)
        lv = [(regs[i], regs[i+1]) for i in range(0, len(regs), 2)]
        A(f"v_bitop3_b32 v{dst}, v{lv[0][0]}, v{lv[0][1]}, {sTAG} bitop3:0x7e")
        rest = lv[1:]; k = 0
        while k < len(rest):
            A(f"v_bitop3_b32 v{tmp}, v{rest[k][0]}, v{rest[k][1]}, {sTAG} bitop3:0x7e")
            if k + 1 < len(rest):
                A(f"v_bitop3_b32 v{tmp2}, v{rest[k+1][0]}, v{rest[k+1][1]}, {sTAG} bitop3:0x7e")
                A(f"v_or3_b32 v{dst}, v{dst}, v{tmp}, v{tmp2}")
            else:
                A(f"v_or_b32 v{dst}, v{dst}, v{tmp}")
            k += 2
    def poll(label, loads, tagregs, slp, check=None, limit=None, keep=False, die=False):
        A(f"s_mov_b32 {sSPIN}, 0")
        A.lab(label)
        loads()
        A("s_waitcnt vmcnt(0)")
        verdict(tagregs, check, die)
        A(f"s_add_u32 {sSPIN}, {sSPIN}, 1")
        A("s_and_b64 exec, exec, vcc")
        A(f"s_cbranch_execz {label}_done")
        if slp: A(f"s_sleep {slp}")
        A(f"s_cmp_lt_u32 {sSPIN}, {limit or spin}")
        A(f"s_cbranch_scc1 {label}")
        A.lab(f"{label}_done")
        if not keep: A("s_mov_b64 exec, -1")
    def verdict(tagregs, check, die):
        if check: check()
        else: tagcheck(tagregs, sTAG=sTAGX if die else sTAG)
        if die:
            A("v_cmp_ne_u32 vcc, 0, v9")
            A("s_or_b64 s[44:45], s[44:45], vcc")
            A("v_cmp_lt_u32 vcc, 7, v9")
            A("s_andn2_b64 s[44:45], s[44:45], vcc")
        else:
            A("v_cmp_ne_u32 vcc, 0, v9")
    def two_group_offsets(rowstride, sw, oa, ob):
        A(f"s_mul_i32 {sT2}, {sw}, 288")
        A(f"v_mul_u32_u24 v8, {rowstride}, v{vG}")
        A(f"v_lshl_add_u32 v8, v{vN}, 4, v8")
        A(f"v_add_u32 v{oa}, {sT2}, v8")
        A(f"v_add_u32 v8, 256, v{oa}")
        A(f"v_mov_b32 v9, {OOB}")
        A(f"v_cmp_gt_u32 vcc, 2, v{vN}")
        A("s_nop 1")
        A(f"v_cndmask_b32 v{ob}, v9, v8, vcc")
    def two_group_to_lds(accA, accB, vaddr):
        A("s_mov_b32 exec_hi, 0")
        A(f"ds_write_b128 v{vaddr}, v[{accA}:{accA+3}] offset:{LDS_B}")
        A("s_mov_b32 exec_lo, 0x00030003")
        A(f"ds_write_b128 v{vaddr}, v[{accB}:{accB+3}] offset:{LDS_B+512}")
        A("s_mov_b64 exec, -1")
    def masks():
        A(f"v_and_b32 v8, 1, v{vN}")
        A("v_lshlrev_b32 v8, 4, v8")
        A(f"s_mov_b32 {sT0}, 0xffff")
        A(f"v_lshlrev_b32 v8, v8, {sT0}")
        A(f"v_lshrrev_b32 v11, 1, v{vN}")
        for i in range(4):
            A(f"v_cmp_eq_u32 vcc, {i}, v11")
            A("s_nop 1")
            A(f"v_cndmask_b32 v{vMK[i]}, 0, v8, vcc")
    def tail_store_setup():
        pass
    def lds_wait(label, target):
        A(f"s_mov_b32 {sSPIN}, 0")
        A.lab(label)
        A("ds_read_b32 v9, v71")
        A(f"s_add_u32 {sSPIN}, {sSPIN}, 1")
        A("s_waitcnt lgkmcnt(0)")
        A(f"v_readfirstlane_b32 {sT0}, v9")
        A(f"s_cmp_ge_u32 {sSPIN}, {spin}")
        A(f"s_cbranch_scc1 {label}_done")
        A(f"s_cmp_lt_u32 {sT0}, {target}")
        A(f"s_cbranch_scc1 {label}")
        A.lab(f"{label}_done")
    def record_addr_setup():
        A(f"v_and_b32 v8, 1, v{vLANE}")
        A(f"v_lshrrev_b32 v9, 2, v{vLANE}")
        A("v_lshlrev_b32 v9, 4, v9")
        A("v_lshl_add_u32 v8, v8, 3, v9")
        A(f"s_lshl_b32 {sT0}, {sWV}, 8")
        A(f"v_add_u32 v68, {sT0}, v8")
        A(f"v_lshlrev_b32 v69, 4, v{vLANE}")
        A(f"v_and_b32 v8, 2, v{vLANE}")
        A("v_cmp_eq_u32 s[62:63], 0, v8")
        A(f"v_mov_b32 v71, {LDS_CNT}")
        A("v_mov_b32 v72, 1")
        A(f"v_mov_b32 v41, {sTAG}")
        A(f"v_mov_b32 v43, {sTAG}")
        A(f"s_lshl_b32 s60, {sB}, 14")
        A(f"s_lshl_b32 {sT0}, {sWV}, 10")
        A(f"s_add_u32 s60, s60, {sT0}")
    def record_store(extra=0, base=48):
        lo = 256 * extra
        for w in range(4):
            A(f"ds_read_b64 v[{base+2*w}:{base+2*w+1}], v68 offset:{LDS_A + w*2304 + lo}")
        A(f"ds_read_b64 v[{base+8}:{base+9}], v68 offset:{LDS_B + lo}")
        A("s_waitcnt lgkmcnt(1)")
        for i in range(2):
            A(f"v_add_f32 v{base+i}, v{base+i}, v{base+2+i}")
            A(f"v_add_f32 v{base+4+i}, v{base+4+i}, v{base+6+i}")
        for i in range(2):
            A(f"v_add_f32 v{base+i}, v{base+i}, v{base+4+i}")
        A("s_waitcnt lgkmcnt(0)")
        A(f"v_cndmask_b32 v40, v{base+8}, v{base}, s[62:63]")
        A(f"v_cndmask_b32 v42, v{base+9}, v{base+1}, s[62:63]")
        A(f"buffer_store_dwordx4 v[40:43], v69, {srd(rWS)}, s60 offen offset:{1024*extra} sc1")

    A.lab(KNAME)
    A(f"s_cmp_ge_u32 {sID}, 256")
    A("s_cbranch_scc1 L_end")
    A("s_load_dwordx16 s[16:31], s[0:1], 0")
    A("s_load_dwordx8 s[32:39], s[0:1], 64")
    A("s_memrealtime s[78:79]")
    if pad_to: A("s_memrealtime s[98:99]")
    stamp(0)
    A("v_lshrrev_b32 v8, 6, v0")
    A(f"v_and_b32 v{vLANE}, 63, v0")
    A(f"v_readfirstlane_b32 {sWV}, v8")
    A(f"v_lshrrev_b32 v{vG}, 4, v{vLANE}")
    A(f"v_and_b32 v{vN}, 15, v{vLANE}")
    A(f"s_and_b32 {sT0}, {sID}, 7")
    A(f"s_lshr_b32 {sT1}, {sID}, 3")
    A(f"s_and_b32 {sH}, {sT1}, 3")
    A(f"s_lshr_b32 {sS}, {sT1}, 2")
    A(f"s_lshl_b32 {sT0}, {sT0}, 2")
    A(f"s_add_u32 {sH}, {sH}, {sT0}")
    A(f"s_lshl_b32 {sB}, {sH}, 3")
    A(f"s_add_u32 {sB}, {sB}, {sS}")
    if swap: A(f"s_xor_b32 {sWV}, {sWV}, 4")
    A(f"s_cmp_ge_u32 {sWV}, 4")
    A("s_cbranch_scc1 L_helper")

    A.c("---- streamer waves 0..3")
    A(f"s_lshl_b32 {sT0}, {sB}, 19")
    A(f"s_lshl_b32 {sT1}, {sWV}, 10")
    A(f"s_add_u32 {sT0}, {sT0}, {sT1}")
    A(f"v_lshrrev_b32 v8, 2, v{vN}")
    A("v_lshlrev_b32 v8, 8, v8")
    A(f"v_and_b32 v11, 3, v{vN}")
    A("v_lshlrev_b32 v11, 4, v11")
    A(f"v_lshlrev_b32 v12, 6, v{vG}")
    A("v_add3_u32 v8, v8, v11, v12")
    if "n" in abl: A(f"v_lshlrev_b32 v8, 4, v{vLANE}")
    A(f"v_add_u32 v{vOFFC}, {sT0}, v8")
    A(f"s_mov_b32 {sOFF}, 0")
    A(f"s_mov_b32 s{rST+2}, 0x8000000")
    A(f"s_mov_b32 s{rST+3}, 0x20000")
    A("s_waitcnt lgkmcnt(0)")
    A(f"s_mov_b32 s{rST}, s{pK}")
    A(f"s_mov_b32 s{rST+1}, s{pK+1}")
    if rot:
        A(f"s_mul_hi_u32 {sOFF}, s78, {int(2**32 / rot)}")
        A(f"s_lshl_b32 {sOFF}, {sOFF}, 12")
        A(f"s_and_b32 {sOFF}, {sOFF}, 0x7ffff")
    def pace(d):
        if T0:
            l = newlab("pc")
            if D3:
                A(f"s_cmp_gt_i32 s75, {L3}")
                A(f"s_cbranch_scc1 {l}b")
            A(f"s_cbranch_vccnz {l}")
            if D0:
                A(f"s_cmp_gt_i32 s75, {-L0}")
                A(f"s_cbranch_scc1 {l}a")
                A(f"s_waitcnt vmcnt({D0-1})")
                A.lab(l + "a")
            A(f"s_waitcnt vmcnt({d-1})")
            A.lab(l)
            A(f"s_waitcnt vmcnt({D2-1})")
            if D3:
                A.lab(l + "b")
                A(f"s_waitcnt vmcnt({D3-1})")
        else:
            A(f"s_waitcnt vmcnt({d-1})")
    def control(n, step):
        if not T0: return
        if n % CI == 0:
            A("s_memrealtime s[76:77]")
            if cal: A("ds_read_b32 v123, v122 offset:8")
        if n % CI == 2:
            A("s_waitcnt lgkmcnt(0)")
            if cal:
                A("v_readfirstlane_b32 s79, v123")
                A("s_and_b32 s76, s76, 0xfffff")
                if n == 2:
                    l = newlab("ck")
                    A(f"s_cmp_lg_u32 {sWV}, 0")
                    A(f"s_cbranch_scc1 {l}")
                    A("v_mov_b32 v120, s76")
                    A("v_add_u32 v121, 1, v121")
                    A("ds_write_b64 v122, v[120:121] offset:16")
                    A.lab(l)
                A("s_sub_u32 s76, s76, s79")
            A("s_sub_u32 s76, s76, s78")
            if D0:
                A("s_cmp_lt_i32 s76, -100000")
                A("s_cselect_b32 s75, 0, s76")
            elif D3: A("s_mov_b32 s75, s76")
            A("s_cmp_gt_i32 s76, 0")
            A("s_cselect_b64 vcc, -1, 0")
            k = (n % 16) // CI; parts = 16 // CI
            A(f"s_add_u32 s78, s78, {step * (k + 1) // parts - step * k // parts}")
    def issue(slot):
        r = RING + 4 * slot
        A(f"buffer_load_dwordx4 v[{r}:{r+3}], v{vOFFC}, {srd(rST)}, {sOFF} offen nt")
        A(f"s_add_u32 {sOFF}, {sOFF}, 4096")
        if rot: A(f"s_and_b32 {sOFF}, {sOFF}, 0x7ffff")
    if bar0: A("s_barrier")
    for n in range(INIT): issue(n)
    if relayout:
        A("s_branch L_stream2")
        A.L.append("@@HELPER@@")
        A.lab("L_stream2")
    stamp_init()
    A(f"s_mov_b32 {sT1}, {EPOCH_OFF}")
    A(f"s_load_dword {sTAG}, s[{pWS}:{pWS+1}], {sT1}")
    A(f"v_lshlrev_b32 v8, 4, v{vLANE}")
    A(f"v_add_u32 v{vOFFV}, {sT0}, v8")
    mk_srd(rX, pX, 1152)
    mk_srd(rWS, pWS, WS_SIZE)
    mk_srd(rW, pWD, 4608 * 576 * 2)
    masks()
    two_group_offsets(1152, sWV, 32, 33)
    A(f"v_cmp_gt_u32 vcc, 32, v{vLANE}")
    A(f"s_lshl_b32 {sT0}, {sID}, 3")
    A(f"v_mov_b32 v10, {sT0}")
    A("v_cndmask_b32 v34, v9, v32, vcc")
    A("v_cndmask_b32 v35, v9, v33, vcc")
    A(f"v_and_b32 v8, 3, v{vN}")
    A(f"v_lshrrev_b32 v9, 2, v{vN}")
    for u in range(4):
        A(f"v_cmp_eq_u32 {mU[u]}, {u}, v8")
        A(f"v_cmp_eq_u32 {mT[u]}, {u}, v9")
    A(f"v_lshlrev_b32 v9, 2, v{vG}")
    A("v_add_u32 v8, v8, v9")
    A("v_lshlrev_b32 v8, 5, v8")
    A(f"buffer_load_dwordx2 v[{vX4}:{vX4+1}], v10, {srd(rX)}, 0 offen")
    if htail in (1, 3):
        A(f"v_mul_u32_u24 v10, 57, v{vLANE}")
        A("v_lshrrev_b32 v127, 9, v10")
        A("v_mul_u32_u24 v9, 9, v127")
        A(f"v_sub_u32 v9, v{vLANE}, v9")
        A(f"v_mul_u32_u24 v11, {GU_ROW}, v127")
        A("v_lshl_add_u32 v11, v9, 4, v11")
        A(f"s_mul_i32 {sT0}, {sB}, 144")
        A(f"s_add_u32 {sT0}, {sT0}, {GU_BASE}")
        A(f"v_add_u32 v124, {sT0}, v11")
        A("v_mul_u32_u24 v12, 72, v127")
        A("v_lshl_add_u32 v12, v9, 3, v12")
        A(f"s_mul_i32 {sT0}, {sWV}, 2304")
        A(f"s_add_u32 {sT0}, {sT0}, {LDS_G}")
        A(f"v_add_u32 v126, {sT0}, v12")
        A(f"v_mov_b32 v13, {OOB}")
        A("v_cmp_gt_u32 vcc, 4, v127")
        A("s_nop 1")
        A("v_cndmask_b32 v125, v13, v124, vcc")
        if htail == 3:
            A(f"s_cmp_eq_u32 {sWV}, 0")
            A("s_cselect_b64 vcc, -1, 0")
            A("v_cndmask_b32 v124, v13, v124, vcc")
            A("v_cndmask_b32 v125, v13, v125, vcc")
    for n in range(INIT, 32):
        A(f"s_waitcnt vmcnt({D-1 + (1 if (n % 4) < FP else 0)})")
        issue(n)
    A("s_waitcnt lgkmcnt(0)")
    A(f"s_add_u32 {sTAG}, {sTAG}, {TAG_STEP}")
    if not ts: stamp(4)
    A("s_barrier")
    if not ts: stamp(5)
    if clk: A(f"s_memtime s[{SB+2}:{SB+3}]")
    QT = 84
    A(f"ds_read_b128 v[{QT}:{QT+3}], v8 offset:{LDS_Q}")
    A(f"ds_read_b128 v[{QT+4}:{QT+7}], v8 offset:{LDS_Q+16}")
    if tbase:
        A("v_mov_b32 v9, 0")
        A(f"ds_read_b32 v9, v9 offset:{LDS_CNT+8}")
    A("s_waitcnt lgkmcnt(0)")
    if tbase:
        A("v_readfirstlane_b32 s78, v9")
    for i in range(4):
        A(f"v_cvt_pk_bf16_f32 v{QT+8+i}, v{QT+2*i}, v{QT+2*i+1}")
    for t in range(4):
        for i in range(4):
            A(f"v_cndmask_b32 v{vBQ+4*t+i}, 0, v{QT+8+i}, {mT[t]}")
    if cal:
        A("s_mov_b32 s78, 0")
        A("v_mov_b32 v121, 0")
        A(f"v_mov_b32 v122, {LDS_CNT}")
    else:
        A(f"s_add_u32 s78, s78, {T0}")
    A("s_mov_b64 vcc, 0")
    A("s_mov_b32 s75, 0")
    A(f"s_mov_b32 {sT2}, {f2u(128 ** -0.5)}")
    A(f"s_mov_b32 {sCNT}, 0")
    A.lab("L_kloop")
    A(f"s_cmp_eq_u32 {sCNT}, 3")
    A("s_cbranch_scc0 L_kbody")
    A(f"s_mov_b32 s{rST}, s{pV}")
    A(f"s_mov_b32 s{rST+1}, s{pV+1}")
    if not rot: A(f"s_mov_b32 {sOFF}, 0")
    A(f"v_mov_b32 v{vOFFC}, v{vOFFV}")
    A.lab("L_kbody")
    for n in range(32):
        t, u = n % 4, (n // 4) % 4
        if "m" not in abl: mfma(vDK, RING + 4 * n, vBQ + 4 * t, first=(t == 0))
        pace(D + (1 if (n % 4) < FK else 0))
        issue(n)
        control(n, TK)
        if t == 3:
            A("s_nop 5")
            A(f"v_mov_b32_dpp v8, v{vDK} quad_perm:[0,0,0,0] row_mask:0xf bank_mask:0xf")
            for cidx in range(1, 4):
                A(f"v_add_f32_dpp v8, v{vDK+cidx}, v8 quad_perm:[{cidx},{cidx},{cidx},{cidx}] row_mask:0xf bank_mask:0xf")
            if u == 0:
                A(f"v_mov_b32 v{vSN}, v8")
            else:
                A(f"v_cndmask_b32 v{vSN}, v{vSN}, v8, {mU[u]}")
            if u == 3:
                bf16_round(vSN, vSN)
                A(f"v_mul_f32 v{vSN}, {sT2}, v{vSN}")
                bf16_round(vSN, vSN)
                for k in range(7):
                    A(f"v_mov_b32 v{vS+k}, v{vS+k+1}")
                A(f"v_mov_b32 v{vS+7}, v{vSN}")
    A(f"s_add_u32 {sCNT}, {sCNT}, 1")
    A(f"s_cmp_lt_u32 {sCNT}, 4")
    A("s_cbranch_scc1 L_kloop")
    if not ts: stamp(6)
    A(f"v_max3_f32 v8, v{vS}, v{vS+1}, v{vS+2}")
    A(f"v_max3_f32 v8, v8, v{vS+3}, v{vS+4}")
    A(f"v_max3_f32 v8, v8, v{vS+5}, v{vS+6}")
    A(f"v_max_f32 v8, v8, v{vS+7}")
    dpp_reduce([8], "v_max_f32")
    A(f"v_readlane_b32 {sM}, v8, 63")
    A(f"s_mov_b32 {sT2}, {LOG2E}")
    A(f"v_mov_b32 v{vL}, 0")
    for i in range(4): A(f"v_mov_b32 v{vACC+i}, 0")
    A(f"s_mov_b32 {sCNT}, 0")
    def ptile():
        A(f"v_subrev_f32 v8, {sM}, v{vS}")
        A(f"v_mul_f32 v8, {sT2}, v8")
        A("v_exp_f32 v8, v8")
        for k in range(7):
            A(f"v_mov_b32 v{vS+k}, v{vS+k+1}")
        A(f"v_add_f32 v{vL}, v{vL}, v8")
        A(f"v_cvt_pk_bf16_f32 v{vP}, v8, v8")
        A("s_nop 1")
    NWD = 15 if htail in (1, 3) else 10
    def vstep(n, last):
        if n % 16 == 0: ptile()
        if last and n == 17:
            dpp_reduce([vL], "v_add_f32")
            A(f"v_mov_b32 v45, v{vL}")
            A("s_mov_b32 exec_lo, 0")
            A("s_mov_b32 exec_hi, 0x80000000")
            A(f"ds_write_b64 v83, v[44:45] offset:{LDS_ML}")
            A("s_mov_b64 exec, -1")
            record_addr_setup()
        L = n % 16; t, u = L % 4, L // 4
        if "m" in abl:
            pace(D); issue(n); control(n, TV)
            return
        a = sel(vP, 4 * t + u)
        if last and n >= 32 - max(D, D2) - 1:
            A(f"s_waitcnt vmcnt({NWD + 31 - n})")
            A("s_nop 0")
        else:
            A("s_nop 1")
        mfma(vACC, a, RING + 4 * n)
        if not last:
            pace(D + (1 if (n % 4) < FV else 0))
            issue(n)
            control(n, TV)
    A.lab("L_vloop")
    for n in range(32):
        vstep(n, False)
    A(f"s_add_u32 {sCNT}, {sCNT}, 1")
    A(f"s_cmp_lt_u32 {sCNT}, 3")
    A("s_cbranch_scc1 L_vloop")
    stamp(7)
    if clk: A(f"s_memtime s[{SB+20}:{SB+21}]")
    A(f"s_mul_i32 {sOFF}, {sB}, {18*1152}")
    def wd_issue(t):
        r = WDB + 8 * t
        oa, ob = (32, 33) if t < 4 else (34, 35)
        A(f"buffer_load_dwordx4 v[{r}:{r+3}], v{oa}, {srd(rW)}, {sOFF} offen nt")
        A(f"buffer_load_dwordx4 v[{r+4}:{r+7}], v{ob}, {srd(rW)}, {sOFF} offen nt")
        A(f"s_add_u32 {sOFF}, {sOFF}, {4*1152}")
    if wdstep < 0:
        for t in range(5): wd_issue(t)
    HG = 48
    def ld_gu():
        A(f"s_mov_b32 {sT0}, 0")
        for i in range(5):
            A(f"buffer_load_dwordx4 v[{HG+4*i}:{HG+4*i+3}], v{124 if i < 4 else 125}, {srd(rWS)}, {sT0} offen sc1")
            if i < 4: A(f"s_add_u32 {sT0}, {sT0}, {7*GU_ROW}")
    def ck_gu():
        A(f"v_mov_b32 v14, {sTAG}")
        A(f"v_cndmask_b32 v{HG+17}, v14, v{HG+17}, s[66:67]")
        A(f"v_cndmask_b32 v{HG+19}, v14, v{HG+19}, s[66:67]")
        tagcheck([HG + 2 * k + 1 for k in range(10)])
    if htail == 2 and hstep >= 32:
        A(f"v_mov_b32 v8, {LDS_CNT}")
        A("v_mov_b32 v9, 1")
        A("ds_write_b32 v8, v9 offset:4")
    if htail in (1, 3):
        A("s_mov_b32 exec_hi, 0x7fffffff")
        ld_gu()
        A("s_mov_b32 exec_hi, -1")
    A(f"s_lshl_b32 {sT0}, {sWV}, 9")
    A(f"v_lshlrev_b32 v8, 5, v{vN}")
    A(f"v_lshl_add_u32 v8, v{vG}, 4, v8")
    A(f"v_add_u32 v82, {sT0}, v8")
    A(f"s_mul_i32 {sT0}, {sWV}, 576")
    A(f"v_add_u32 v36, {sT0}, v8")
    A(f"s_lshl_b32 {sT0}, {sWV}, 3")
    A(f"v_mov_b32 v83, {sT0}")
    A(f"v_mov_b32 v44, {sM}")
    A(f"v_lshlrev_b32 v37, 2, v{vLANE}")
    def lidx(n):
        L = n % 16
        return 4 * (L % 4) + L // 4
    ptile()
    a = sel(vP, lidx(0))
    for n in range(32):
        if n + 1 == 16: ptile()
        if n + 1 < 32: a_next = sel(vP, lidx(n + 1))
        else: A("s_nop 0")
        nwd = NWD if wdstep < 0 else (NWD - 10) + 2 * max(0, min(5, n - wdstep))
        if n >= 32 - max(D, D2, D3) - 1:
            A(f"s_waitcnt vmcnt({nwd + 31 - n})")
        mfma(vACC, a, RING + 4 * n)
        if wdstep >= 0 and wdstep <= n < wdstep + 5: wd_issue(n - wdstep)
        a = a_next
        if n == 17:
            dpp_reduce([vL], "v_add_f32")
            A(f"v_mov_b32 v45, v{vL}")
            A("s_mov_b32 exec_lo, 0")
            A("s_mov_b32 exec_hi, 0x80000000")
            A(f"ds_write_b64 v83, v[44:45] offset:{LDS_ML}")
            A("s_mov_b64 exec, -1")
            record_addr_setup()
    if wdstep >= 0:
        for t in range(max(0, 32 - wdstep), 5): wd_issue(t)
    A("s_nop 7")
    A("s_mov_b32 exec_hi, 0")
    A(f"ds_write_b128 v82, v[{vACC}:{vACC+3}] offset:{LDS_O}")
    A("s_mov_b32 exec_hi, -1")
    A("s_waitcnt lgkmcnt(0)")
    stamp(2)
    A("s_barrier")
    if ts: stamp(4)
    if htail == 3:
        A(f"s_cmp_lg_u32 {sWV}, 0")
        A("s_cbranch_scc1 L_hothers")
    if htail in (1, 3):
        A("v_cmp_gt_u32 s[66:67], 4, v127")
        A("s_mov_b32 exec_hi, 0x7fffffff")
        A(f"s_mov_b32 {sSPIN}, 0")
        A("s_branch L_hchk")
        A.lab("L_hpoll")
        A(f"s_sleep {hsleep}")
        ld_gu()
        A.lab("L_hchk")
        A("s_waitcnt vmcnt(0)")
        ck_gu()
        A(f"s_add_u32 {sSPIN}, {sSPIN}, 1")
        A("v_cmp_ne_u32 vcc, 0, v9")
        A(f"s_cmp_ge_u32 {sSPIN}, {spin}")
        A("s_cbranch_scc1 L_hdone")
        A("s_and_b64 exec, exec, vcc")
        A("s_cbranch_execnz L_hpoll")
        A.lab("L_hdone")
        A("s_mov_b32 exec_lo, -1")
        A("s_mov_b32 exec_hi, 0x7fffffff")
        for i in range(4):
            A(f"ds_write2_b32 v126, v{HG+4*i}, v{HG+4*i+2} offset0:{i*126} offset1:{i*126+1}" if i * 126 + 1 < 256 else f"ds_write2_b32 v127, v{HG+4*i}, v{HG+4*i+2} offset0:{(i-2)*126} offset1:{(i-2)*126+1}")
            if i == 0: A(f"v_add_u32 v127, {2*504}, v126")
        A(f"v_add_u32 v126, {4*504}, v126")
        A("s_and_b64 exec, exec, s[66:67]")
        A(f"ds_write2_b32 v126, v{HG+16}, v{HG+18} offset0:0 offset1:1")
        A("s_mov_b64 exec, -1")
        A(f"v_lshl_add_u32 v8, v{vN}, 2, v{vG}")
        A("v_cmp_gt_u32 vcc, 18, v8")
        A(f"s_mul_i32 {sT0}, {sWV}, 2304")
        A(f"v_lshl_add_u32 v8, v8, 2, {sT0}")
        A("s_waitcnt lgkmcnt(0)")
        HR = RING
        for r in range(32):
            A(f"ds_read_b32 v{HR+r}, v8 offset:{LDS_G + r*72}")
            if r in (11, 22): A("s_waitcnt lgkmcnt(4)")
        for st in (8, 4, 2, 1):
            for r in range(st): A(f"v_add_f32 v{HR+r}, v{HR+r}, v{HR+r+st}")
        A("s_waitcnt lgkmcnt(0)")
        for st in (8, 4, 2, 1):
            for r in range(st): A(f"v_add_f32 v{HR+16+r}, v{HR+16+r}, v{HR+16+r+st}")
        bf16_round(HR, HR); bf16_round(HR + 16, HR + 16)
        A(f"v_mul_f32 v{vP}, v{HR}, v{HR+16}")
        A(f"v_cvt_pk_bf16_f32 v{vP}, v{vP}, v{vP}")
        A(f"v_cndmask_b32 v{vP}, 0, v{vP}, vcc")
        if htail == 3:
            A(f"ds_write_b32 v37, v{vP} offset:{LDS_H}")
            A("s_waitcnt lgkmcnt(0)")
            A("ds_write_b32 v71, v72 offset:4")
            A("s_branch L_hready")
            A.lab("L_hothers")
            A(f"s_mov_b32 {sSPIN}, 0")
            A.lab("L_hw2")
            A("ds_read_b32 v9, v71 offset:4")
            A(f"ds_read_b32 v{vP}, v37 offset:{LDS_H}")
            A(f"s_add_u32 {sSPIN}, {sSPIN}, 1")
            A("s_waitcnt lgkmcnt(0)")
            A(f"v_readfirstlane_b32 {sT0}, v9")
            A(f"s_cmp_ge_u32 {sSPIN}, {spin}")
            A("s_cbranch_scc1 L_hready")
            A(f"s_cmp_eq_u32 {sT0}, 0")
            A("s_cbranch_scc1 L_hw2")
            A.lab("L_hready")
            if ts: stamp(5)
        A("s_nop 1")
    else:
        A(f"ds_read_b32 v{vP}, v37 offset:{LDS_H}")
        A("s_waitcnt lgkmcnt(0)")
    for t in range(5):
        a = sel(vP, t)
        A(f"s_waitcnt vmcnt({2*(4 - t)})")
        A("s_nop 0")
        mfma(vACC, a, WDB + 8 * t, first=(t == 0))
        mfma(vACC + 4, a, WDB + 8 * t + 4, first=(t == 0))
    A("s_nop 7")
    two_group_to_lds(vACC, vACC + 4, 36)
    A("s_mov_b64 exec, 1")
    A("s_waitcnt lgkmcnt(0)")
    A("ds_add_u32 v71, v72")
    A("s_mov_b64 exec, -1")
    mk_srd(rO, pOUT, 1152)
    A(f"v_lshrrev_b32 v8, 2, v{vLANE}")
    A(f"v_and_b32 v11, 3, v{vLANE}")
    A("v_lshlrev_b32 v12, 14, v8")
    A("v_lshl_add_u32 v12, v11, 4, v12")
    A(f"s_lshl_b32 {sT0}, {sID}, 6")
    A(f"v_add_u32 v12, {sT0}, v12")
    A("v_lshlrev_b32 v13, 2, v8")
    A(f"v_add_u32 v13, {LDS_W}, v13")
    A(f"v_and_b32 v14, 1, v{vLANE}")
    A("v_cmp_eq_u32 vcc, 1, v14")
    A(f"s_lshl_b32 {sT0}, {sID}, 3")
    A(f"v_lshl_add_u32 v10, v14, 2, {sT0}")
    A(f"v_cndmask_b32 v92, v{vX4}, v{vX4+1}, vcc")
    A("v_and_b32 v93, 0xffff0000, v92")
    A("v_lshlrev_b32 v92, 16, v92")
    A(f"v_mov_b32 v9, {OOB}")
    A(f"v_cmp_gt_u32 vcc, 2, v{vLANE}")
    A(f"s_mov_b32 {sT2}, {LOG2E}")
    A(f"s_mov_b32 s64, {ML_BASE}")
    A("v_cndmask_b32 v96, v9, v10, vcc")
    if ts: stamp(6)
    lds_wait("L_sw", 8)
    record_store()
    stamp(8)
    A(f"s_cmp_lg_u32 {sWV}, 3")
    A("s_cbranch_scc1 L_fin")
    A(f"s_cmp_ge_u32 {sID}, 144")
    A("s_cbranch_scc1 L_fin")
    A.c("---- wave 3: final reduction for columns 4*id .. 4*id+3")
    GM, GW, GR = 100, RING, RING + 16
    mM, mR = "s[44:45]", "s[46:47]"
    if cdelay: A(f"s_sleep {cdelay}")
    for m in (mM, mR): A(f"s_mov_b64 {m}, -1")
    A(f"s_mov_b32 {sSPIN}, 0")
    def ld_ml():
        for k in range(4):
            A(f"buffer_load_dwordx4 v[{GM+4*k}:{GM+4*k+3}], v69, {srd(rWS)}, s64 offen offset:{k*1024} sc1")
    def ld_rec():
        A(f"s_mov_b32 {sT0}, 0")
        for i in range(16):
            A(f"buffer_load_dwordx4 v[{GR+4*i}:{GR+4*i+3}], v12, {srd(rWS)}, {sT0} offen sc1")
            if i < 15: A(f"s_add_u32 {sT0}, {sT0}, {16*BLK}")
    ld_ml()
    ld_rec()
    A("s_waitcnt vmcnt(16)")
    tagcheck([GM + 2 * k + 1 for k in range(8)])
    A(f"v_cmp_ne_u32 {mM}, 0, v9")
    A("s_nop 0")
    A(f"s_cmp_eq_u64 {mM}, 0")
    A("s_cbranch_scc1 L_fp_w")
    A("s_waitcnt vmcnt(0)")
    tagcheck([GR + 2 * k + 1 for k in range(32)])
    A(f"v_cmp_ne_u32 {mR}, 0, v9")
    A(f"s_mov_b64 exec, {mM}")
    A.lab("L_fp_m")
    if mlsleep: A(f"s_sleep {mlsleep}")
    ld_ml()
    A(f"s_add_u32 {sSPIN}, {sSPIN}, 1")
    A("s_waitcnt vmcnt(0)")
    tagcheck([GM + 2 * k + 1 for k in range(8)])
    A("v_cmp_ne_u32 vcc, 0, v9")
    A(f"s_cmp_ge_u32 {sSPIN}, {spin}")
    A("s_cbranch_scc1 L_fp_m2")
    A("s_and_b64 exec, exec, vcc")
    A("s_cbranch_execnz L_fp_m")
    A.lab("L_fp_m2")
    A(f"s_mov_b64 exec, {mR}")
    A("s_cbranch_execz L_fp_w")
    ld_rec()
    A.lab("L_fp_w")
    A("s_mov_b64 exec, -1")
    stamp(1)
    grp8 = ("quad_perm:[1,0,3,2]", "quad_perm:[2,3,0,1]", "row_half_mirror")
    for k in range(4): A(f"v_mov_b32 v{GM+4*k+1}, v{GM+4*k}")
    for d in grp8:
        for k in range(4): A(f"v_max_f32_dpp v{GM+4*k+1}, v{GM+4*k+1}, v{GM+4*k+1} {d} row_mask:0xf bank_mask:0xf")
    for k in range(4): A(f"v_sub_f32 v{GM+4*k}, v{GM+4*k}, v{GM+4*k+1}")
    for k in range(4): A(f"v_mul_f32 v{GM+4*k}, {sT2}, v{GM+4*k}")
    for k in range(4): A(f"v_exp_f32 v{GM+4*k}, v{GM+4*k}")
    for k in range(4): A(f"v_mul_f32 v{GM+4*k+2}, v{GM+4*k}, v{GM+4*k+2}")
    for d in grp8:
        for k in range(4): A(f"v_add_f32_dpp v{GM+4*k+2}, v{GM+4*k+2}, v{GM+4*k+2} {d} row_mask:0xf bank_mask:0xf")
    for k in range(4): A(f"v_rcp_f32 v{GM+4*k+2}, v{GM+4*k+2}")
    for k in range(4): A(f"v_mul_f32 v{GM+4*k}, v{GM+4*k}, v{GM+4*k+2}")
    for k in range(4): A(f"ds_write_b32 v37, v{GM+4*k} offset:{LDS_W + k*256}")
    A("s_waitcnt lgkmcnt(0)")
    for i in range(16):
        A(f"ds_read_b32 v{GW+i}, v13 offset:{i*64}")
        if i == 11: A("s_waitcnt lgkmcnt(8)")
    A("s_waitcnt lgkmcnt(0)")
    for i in range(16): A(f"v_cndmask_b32 v{GW+i}, 1.0, v{GW+i}, s[62:63]")
    A(f"s_mov_b64 exec, {mR}")
    A("s_cbranch_execz L_fp_done")
    A("s_branch L_fp_c")
    A.lab("L_fp_r")
    if fsleep: A(f"s_sleep {fsleep}")
    ld_rec()
    A.lab("L_fp_c")
    A(f"s_add_u32 {sSPIN}, {sSPIN}, 1")
    A("s_waitcnt vmcnt(0)")
    tagcheck([GR + 2 * k + 1 for k in range(32)])
    A("v_cmp_ne_u32 vcc, 0, v9")
    A(f"s_cmp_ge_u32 {sSPIN}, {spin}")
    A("s_cbranch_scc1 L_fp_done")
    A("s_and_b64 exec, exec, vcc")
    A("s_cbranch_execnz L_fp_r")
    A.lab("L_fp_done")
    A("s_mov_b64 exec, -1")
    stamp(10)
    for c in range(2):
        for i in range(2): A(f"v_mul_f32 v{88+2*c+i}, v{GW+8*c}, v{GR+32*c+2*i}")
    for k in range(1, 8):
        for c in range(2):
            for i in range(2): A(f"v_fmac_f32 v{88+2*c+i}, v{GW+8*c+k}, v{GR+32*c+4*k+2*i}")
    A("v_add_f32 v88, v88, v90")
    A("v_add_f32 v89, v89, v91")
    A("s_nop 0")
    for d in ("row_ror:4", "row_ror:8"):
        A(f"v_add_f32_dpp v88, v88, v88 {d} row_mask:0xf bank_mask:0xf")
        A(f"v_add_f32_dpp v89, v89, v89 {d} row_mask:0xf bank_mask:0xf")
        A("s_nop 0")
    for op in ("v_permlane16_swap_b32", "v_permlane32_swap_b32"):
        A("v_mov_b32 v14, v88")
        A("v_mov_b32 v15, v89")
        A("s_nop 1")
        A(f"{op} v14, v88")
        A(f"{op} v15, v89")
        A("v_add_f32 v88, v88, v14")
        A("v_add_f32 v89, v89, v15")
    for i in range(2): A(f"v_cvt_pk_bf16_f32 v{88+i}, v{88+i}, v{88+i}")
    for i in range(2): A(f"v_lshlrev_b32 v{88+i}, 16, v{88+i}")
    for i in range(2): A(f"v_add_f32 v{90+i}, v{92+i}, v{88+i}")
    for i in range(2): A(f"v_cvt_pk_bf16_f32 v{90+i}, v{90+i}, v{90+i}")
    for i in range(2): A(f"v_lshlrev_b32 v{90+i}, 16, v{90+i}")
    for i in range(2): A(f"v_add_f32_dpp v{90+i}, v{88+i}, v{90+i} quad_perm:[2,3,2,3] row_mask:0xf bank_mask:0xf")
    A("v_cvt_pk_bf16_f32 v12, v90, v91")
    A(f"buffer_store_dword v12, v96, {srd(rO)}, 0 offen")
    stamp(3)
    stampval(9, sSPIN)
    A(f"s_cmp_lg_u32 {sID}, 0")
    A("s_cbranch_scc1 L_fin")
    A(f"v_mov_b32 v10, {sTAG}")
    A(f"v_mov_b32 v11, {EPOCH_OFF}")
    A("s_mov_b64 exec, 1")
    A(f"buffer_store_dword v10, v11, {srd(rWS)}, 0 offen")
    if pad_to:
        A.lab("L_pad")
        A("s_memrealtime s[96:97]")
        A("s_waitcnt lgkmcnt(0)")
        A("s_sub_u32 s96, s96, s98")
        A(f"s_cmp_lt_u32 s96, {pad_to}")
        A("s_cbranch_scc1 L_pad")
    if stamps: A("s_branch L_fin")
    else: A("s_endpgm")

    mark_helper = len(A.L)
    A.lab("L_helper")
    A.c("---- helper waves 4..7")
    A(f"s_sub_u32 {sHW}, {sWV}, 4")
    A(f"v_lshlrev_b32 v8, 2, v{vLANE}")
    A(f"v_lshl_add_u32 v9, v{vN}, 2, v{vG}")
    A("v_and_b32 v9, -2, v9")
    A("v_lshlrev_b32 v9, 1, v9")
    A(f"s_mul_i32 {sT0}, {sS}, 144")
    A(f"s_and_b32 {sT1}, {sS}, 3")
    A(f"s_lshl_b32 {sT1}, {sT1}, 2")
    A(f"s_add_u32 s74, {sT1}, {sHW}")
    A(f"s_mul_i32 {sT1}, s74, 72")
    A(f"s_mov_b32 {sT2}, {EPOCH_OFF}")
    A("s_waitcnt lgkmcnt(0)")
    A(f"s_load_dword {sTAG}, s[{pWS}:{pWS+1}], {sT2}")
    mk_srd(rX, pX, 1152)
    for k in range(5):
        A(f"buffer_load_dword v{vXA+k}, v8, {srd(rX)}, 0 offen offset:{k*256}")
    for T in range(2):
        A(f"buffer_load_dword v{vXC+T}, v9, {srd(rX)}, {sT0} offen offset:{T*128}")
    A(f"buffer_load_dword v{vXC+2}, v9, {srd(rX)}, {sT1} offen")
    GUB = WBUF + 72
    A(f"s_cmp_lg_u32 {sHW}, 0")
    A("s_cbranch_scc1 L_x13")
    mk_srd(rW, pWQ, 0 if "w" in abl else 576 * 4096 * 2)
    A(f"s_mul_i32 {sT0}, {sS}, {72*8192}")
    A(f"s_lshl_b32 {sT1}, {sH}, 8")
    A(f"s_add_u32 {sOFF}, {sT0}, {sT1}")
    A(f"v_lshlrev_b32 v8, 13, v{vG}")
    A(f"v_lshl_add_u32 v10, v{vN}, 4, v8")
    for t in range(0 if "W" in abl else 18):
        r = WBUF + 4 * t
        A(f"buffer_load_dwordx4 v[{r}:{r+3}], v10, {srd(rW)}, {sOFF} offen nt")
        A(f"s_add_u32 {sOFF}, {sOFF}, 32768")
    A.lab("L_x13")
    if bar0: A("s_barrier")
    if codepf:
        A(f"s_cmp_lg_u32 {sHW}, 3")
        A("s_cbranch_scc1 L_nopf")
        A(f"s_cmp_ge_u32 {sID}, {codepf}")
        A("s_cbranch_scc1 L_nopf")
        A("s_getpc_b64 s[76:77]")
        A.lab("L_pfbase")
        A(f"s_sub_u32 s76, s76, L_pfbase-{KNAME}")
        A("s_subb_u32 s77, s77, 0")
        A(f"v_lshlrev_b32 v8, 7, v{vLANE}")
        A("global_load_dword v12, v8, s[76:77]")
        for k in (1, 2):
            A("v_add_u32 v8, 0x2000, v8")
            A(f"v_cmp_gt_i32 vcc, (L_codeend-{KNAME}-{k*8192})/128, v{vLANE}")
            A("s_and_saveexec_b64 s[72:73], vcc")
            A("s_cbranch_execz L_pf2")
            A(f"global_load_dword v{12+k}, v8, s[76:77]")
        A.lab("L_pf2")
        A("s_mov_b64 exec, -1")
        A("s_waitcnt vmcnt(0)")
        A.lab("L_nopf")
    A(f"s_cmp_lt_u32 {sID}, 128")
    A(f"s_cselect_b32 s{rO}, s{pWG}, s{pWU}")
    A(f"s_cselect_b32 s{rO+1}, s{pWG+1}, s{pWU+1}")
    A(f"s_mov_b32 s{rO+2}, {0 if 'g' in abl else 576*4608*2}")
    A(f"s_mov_b32 s{rO+3}, 0x20000")
    two_group_offsets(9216, "0", vOA, vOB)
    A(f"s_mul_i32 {sOFF}, s74, {36*9216}")
    A(f"s_mul_i32 {sT0}, {sH}, 288")
    A(f"s_add_u32 {sOFF}, {sOFF}, {sT0}")
    def gu_issue(t):
        if "u" in abl: return
        r = GUB + 8 * t
        A(f"buffer_load_dwordx4 v[{r}:{r+3}], v{vOA}, {srd(rO)}, {sOFF} offen nt")
        A(f"buffer_load_dwordx4 v[{r+4}:{r+7}], v{vOB}, {srd(rO)}, {sOFF} offen nt")
        A(f"s_add_u32 {sOFF}, {sOFF}, {4*9216}")
    GE = guearly
    for t in range(GE): gu_issue(t)
    stamp_init()
    mk_srd(rWS, pWS, WS_SIZE)
    masks()
    A(f"s_cmp_lg_u32 {sHW}, 0")
    A("s_cbranch_scc1 L_x13b")
    A(f"s_waitcnt vmcnt({18 + 2*GE})")
    A("s_branch L_ln")
    A.lab("L_x13b")
    A(f"s_waitcnt vmcnt({2*GE})")
    A.lab("L_ln")
    GE0 = GE
    GE = max(GE, gumid)
    for t in range(GE0, GE): gu_issue(t)
    stamp(8)
    XF = 68
    for k in range(5):
        A(f"v_lshlrev_b32 v{XF+2*k}, 16, v{vXA+k}")
        A(f"v_and_b32 v{XF+2*k+1}, 0xffff0000, v{vXA+k}")
    A(f"v_add_f32 v8, v{XF}, v{XF+1}")
    for k in range(2, 10): A(f"v_add_f32 v8, v8, v{XF+k}")
    dpp_reduce([8], "v_add_f32")
    A(f"v_mul_f32 v8, {f2u(1.0/576)}, v8")
    A(f"v_cmp_gt_u32 vcc, 32, v{vLANE}")
    A(f"v_readlane_b32 {sT0}, v8, 63")
    A("s_nop 1")
    for k in range(10): A(f"v_subrev_f32 v{XF+k}, {sT0}, v{XF+k}")
    A(f"v_cndmask_b32 v{XF+8}, 0, v{XF+8}, vcc")
    A(f"v_cndmask_b32 v{XF+9}, 0, v{XF+9}, vcc")
    A(f"v_mul_f32 v9, v{XF}, v{XF}")
    for k in range(1, 10): A(f"v_fmac_f32 v9, v{XF+k}, v{XF+k}")
    dpp_reduce([9], "v_add_f32")
    A(f"v_mul_f32 v9, {f2u(1.0/576)}, v9")
    bf16_round(9, 9)
    A(f"v_add_f32 v9, {f2u(1e-5)}, v9")
    bf16_round(9, 9)
    A("v_sqrt_f32 v9, v9")
    A("s_nop 0")
    bf16_round(9, 9)
    A("v_rcp_f32 v9, v9")
    bf16_round(8, 8)
    A("s_nop 0")
    A(f"v_readlane_b32 {sT0}, v8, 63")
    A(f"v_readlane_b32 {sT1}, v9, 63")
    A(f"v_and_b32 v10, 1, v{vG}")
    A("v_lshlrev_b32 v10, 4, v10")
    for k in range(3):
        r = vXC + k
        A(f"v_lshrrev_b32 v{r}, v10, v{r}")
        A(f"v_lshlrev_b32 v{r}, 16, v{r}")
        A(f"v_subrev_f32 v{r}, {sT0}, v{r}")
        bf16_round(r, r)
        A(f"v_mul_f32 v{r}, {sT1}, v{r}")
        A(f"v_cvt_pk_bf16_f32 v{r}, v{r}, v{r}")
    A("s_waitcnt lgkmcnt(0)")
    A(f"s_add_u32 {sTAG}, {sTAG}, {TAG_STEP}")
    A(f"s_getreg_b32 {sTAGX}, hwreg(HW_REG_XCC_ID)")
    A(f"s_and_b32 {sTAGX}, {sTAGX}, 7")
    A(f"s_xor_b32 {sTAGX}, {sTAGX}, {sTAG}")
    stamp(1)
    A(f"s_cmp_lg_u32 {sHW}, 0")
    A("s_cbranch_scc1 L_noq")
    for t in range(18):
        a = sel(vXC + t // 16, t % 16)
        A(f"s_waitcnt vmcnt({17 - t + 2*GE})")
        A("s_nop 0")
        mfma(vACC, a, WBUF + 4 * t, first=(t == 0))
    A(f"v_lshlrev_b32 v8, 4, v{vLANE}")
    A(f"s_lshl_b32 {sT0}, {sB}, 14")
    A(f"s_add_u32 {sT0}, {sT0}, {OFF_Q}")
    A(f"s_lshl_b32 {sT1}, {sH}, 17")
    A(f"s_add_u32 {sT1}, {sT1}, {OFF_Q}")
    for k in range(8):
        A(f"s_add_u32 s{60+k}, {sT1}, {k*BLK}")
    A(f"v_mov_b32 v29, {sTAGX}")
    A(f"v_mov_b32 v31, {sTAGX}")
    A(f"v_mov_b32 v28, v{vACC}")
    A(f"v_mov_b32 v30, v{vACC+1}")
    A("s_nop 1")
    A(f"v_permlane32_swap_b32 v28, v{vACC+2}")
    A(f"v_permlane32_swap_b32 v30, v{vACC+3}")
    if "q" not in abl: A(f"buffer_store_dwordx4 v[28:31], v8, {srd(rWS)}, {sT0} offen {qst}")
    if tbase:
        A("v_mov_b32 v32, s78")
        A(f"v_mov_b32 v33, {sTAG}")
        A("v_mov_b32 v34, s78")
        A(f"v_mov_b32 v35, {sTAG}")
        A("s_mov_b64 exec, 0xff")
        A(f"buffer_store_dwordx4 v[32:35], v8, {srd(rWS)}, {sT0} offen offset:1024 sc1")
        A("s_mov_b64 exec, -1")
        A(f"v_and_b32 v11, 7, v{vLANE}")
        A("v_lshlrev_b32 v11, 14, v11")
    stamp(9)
    if qdelay: A(f"s_sleep {qdelay}")
    QG = WBUF
    def ld_q(fl):
        for k in range(8):
            A(f"buffer_load_dwordx4 v[{QG+4*k}:{QG+4*k+3}], v8, {srd(rWS)}, s{60+k} offen {fl}")
    qtags = [QG + 2 * k + 1 for k in range(16)]
    if "q" not in abl:
        A("s_mov_b64 s[44:45], 0")
        poll("L_qpoll", lambda: ld_q(qld), qtags, qsleep, limit=qfall, keep=True, die=True)
        A("s_or_b64 s[44:45], s[44:45], exec")
        A("s_cbranch_scc0 L_qok")
        A("s_mov_b64 s[44:45], exec")
        A("s_mov_b64 exec, -1")
        A(f"buffer_store_dwordx4 v[28:31], v8, {srd(rWS)}, {sT0} offen sc1")
        A("s_mov_b64 exec, s[44:45]")
        A("s_cbranch_execz L_qok")
        poll("L_qpoll2", lambda: ld_q("sc1"), qtags, 16, die=True)
        A.lab("L_qok")
        A("s_mov_b64 exec, -1")
    for i in range(2):
        for k in range(4):
            A(f"v_add_f32 v{QG+8*k+2*i}, v{QG+8*k+2*i}, v{QG+8*k+4+2*i}")
        A(f"v_add_f32 v{QG+2*i}, v{QG+2*i}, v{QG+8+2*i}")
        A(f"v_add_f32 v{QG+16+2*i}, v{QG+16+2*i}, v{QG+24+2*i}")
        A(f"v_add_f32 v{28+i}, v{QG+2*i}, v{QG+16+2*i}")
    A(f"v_lshlrev_b32 v8, 5, v{vN}")
    A(f"v_and_b32 v9, 1, v{vG}")
    A("v_lshl_add_u32 v8, v9, 4, v8")
    A(f"v_lshrrev_b32 v9, 1, v{vG}")
    A("v_lshl_add_u32 v8, v9, 3, v8")
    A(f"ds_write_b64 v8, v[28:29] offset:{LDS_Q}")
    if tbase:
        A(f"v_subrev_u32 v12, s78, v{QG+32}")
        for d in ("quad_perm:[1,0,3,2]", "quad_perm:[2,3,0,1]", "row_half_mirror"):
            A("s_nop 1")
            A(f"v_min_i32_dpp v12, v12, v12 {d} row_mask:0xf bank_mask:0xf")
        A("v_add_u32 v12, s78, v12")
    A(f"v_mov_b32 v9, {LDS_CNT}")
    A("v_mov_b32 v10, 0")
    A("ds_write_b32 v9, v10")
    A("ds_write_b32 v9, v10 offset:4")
    A("ds_write_b32 v9, v10 offset:12")
    if tbase: A("ds_write_b32 v9, v12 offset:8")
    if cal:
        A("v_mov_b32 v11, 0x3fffffff")
        A("ds_write_b32 v9, v11 offset:8")
        A("ds_write_b32 v9, v10 offset:20")
    stampval(10, sSPIN)
    A("s_waitcnt lgkmcnt(0)")
    stamp(2)
    A("s_barrier")
    A.lab("L_noq")
    for t in range(GE, min(max(GE, DG), 9)): gu_issue(t)
    DGE = min(max(GE, DG), 9)
    A(f"v_lshlrev_b32 v8, 5, v{vN}")
    A(f"v_lshl_add_u32 v8, v{vG}, 4, v8")
    A(f"s_mul_i32 {sT0}, {sHW}, 576")
    A(f"v_add_u32 v66, {sT0}, v8")
    A(f"s_mul_i32 {sT0}, {sHW}, 2304")
    A(f"v_add_u32 v67, {sT0}, v8")
    for t in range(9):
        a = sel(vXC + 2, t)
        A(f"s_waitcnt vmcnt({2*(min(DGE + t, 9) - (t + 1))})")
        A("s_nop 0")
        mfma(vACC, a, GUB + 8 * t, first=(t == 0))
        mfma(vACC + 4, a, GUB + 8 * t + 4, first=(t == 0))
        if DGE + t < 9: gu_issue(DGE + t)
    A(f"s_mul_i32 {sT0}, {sS}, {GU_ROW}")
    A(f"s_mul_i32 {sT1}, {sH}, 1152")
    A(f"s_add_u32 {sT0}, {sT0}, {sT1}")
    A(f"s_add_u32 s68, {sT0}, {GU_BASE}")
    A("s_nop 3")
    two_group_to_lds(vACC, vACC + 4, 66)
    def gu_publish():
        A(f"v_lshlrev_b32 v8, 3, v{vLANE}")
        for w in range(4):
            A(f"ds_read_b64 v[{24+2*w}:{25+2*w}], v8 offset:{LDS_B + w*576}")
            A(f"ds_read_b64 v[{32+2*w}:{33+2*w}], v8 offset:{LDS_B + w*576 + 512}")
        for r in (49, 51, 53, 55): A(f"v_mov_b32 v{r}, {sTAGX}")
        A("s_waitcnt lgkmcnt(0)")
        for b0, d in ((24, 48), (32, 52)):
            for i in range(2):
                A(f"v_add_f32 v{b0+i}, v{b0+i}, v{b0+2+i}")
                A(f"v_add_f32 v{b0+4+i}, v{b0+4+i}, v{b0+6+i}")
                A(f"v_add_f32 v{d+2*i}, v{b0+i}, v{b0+4+i}")
        gu_store(gust)
    def gu_store(fl):
        A("s_mov_b64 exec, -1")
        A(f"buffer_store_dwordx4 v[48:51], v69, {srd(rWS)}, s68 offen {fl}")
        A("s_mov_b64 exec, 0xff")
        A(f"buffer_store_dwordx4 v[52:55], v69, {srd(rWS)}, s68 offen offset:1024 {fl}")
        A("s_mov_b64 exec, -1")
    stamp(3)
    A(f"s_cmp_eq_u32 {sHW}, 0")
    A("s_cbranch_scc1 L_b1done")
    A("s_barrier")
    A.lab("L_b1done")
    A(f"v_mov_b32 v8, {LDS_CNT}")
    A("v_mov_b32 v9, 1")
    A("s_mov_b64 exec, 1")
    A("s_waitcnt lgkmcnt(0)")
    A("ds_add_u32 v8, v9 offset:12")
    A("s_mov_b64 exec, -1")
    mk_srd(rW, pWO, 0 if "O" in abl else 4096 * 576 * 2)
    A(f"v_mul_u32_u24 v8, 1152, v{vG}")
    A(f"v_lshl_add_u32 v{vOA}, v{vN}, 4, v8")
    A(f"v_mov_b32 v9, {OOB}")
    A(f"v_cmp_gt_u32 vcc, 8, v{vN}")
    A(f"s_lshl_b32 {sT0}, {sH}, 2")
    A(f"s_add_u32 {sT0}, {sT0}, {sHW}")
    A(f"v_cndmask_b32 v{vOB}, v9, v{vOA}, vcc")
    A(f"s_mul_i32 {sOFF}, {sT0}, {32*1152}")
    for t in range(0 if "o" in abl else 8):
        for cg in range(5):
            A(f"s_waitcnt vmcnt({DW-1})")
            r = WBUF + 20 * t + 4 * cg
            A(f"buffer_load_dwordx4 v[{r}:{r+3}], v{vOA if cg < 4 else vOB}, {srd(rW)}, {sOFF} offen offset:{cg*256} nt")
        A(f"s_add_u32 {sOFF}, {sOFF}, {4*1152}")
    A(f"v_and_b32 v8, 7, v{vN}")
    A(f"v_lshl_add_u32 v8, v8, 2, v{vG}")
    A(f"s_lshl_b32 {sT0}, {sHW}, 7")
    A(f"v_lshl_add_u32 v66, v8, 2, {sT0}")
    record_addr_setup()
    A("v_mov_b32 v70, 0")
    for r in (81, 83): A(f"v_mov_b32 v{r}, {sTAG}")
    A(f"s_lshl_b32 {sCNT}, {sB}, 4")
    A(f"s_add_u32 {sCNT}, {sCNT}, {ML_BASE}")
    A(f"s_mov_b32 {sT2}, {LOG2E}")
    A(f"s_cmp_lg_u32 {sHW}, 3")
    A("s_cbranch_scc1 L_nocal")
    A(f"s_and_b32 s64, {sID}, {256 - NS}")
    A("s_lshl_b32 s64, s64, 7")
    A(f"v_lshlrev_b32 v44, 7, v{vLANE}")
    A(f"v_mov_b32 v93, {sTAG}")
    A(f"v_mov_b32 v95, {sTAG}")
    HG = 24
    A(f"v_mul_u32_u24 v8, 57, v{vLANE}")
    A("v_lshrrev_b32 v8, 9, v8")
    A("v_mul_u32_u24 v9, 9, v8")
    A(f"v_sub_u32 v9, v{vLANE}, v9")
    A(f"v_mul_u32_u24 v11, {GU_ROW}, v8")
    A("v_lshl_add_u32 v11, v9, 4, v11")
    A(f"s_mul_i32 {sT0}, {sB}, 144")
    A(f"s_add_u32 {sT0}, {sT0}, {GU_BASE}")
    A(f"v_add_u32 v11, {sT0}, v11")
    A("v_mul_u32_u24 v12, 72, v8")
    A("v_lshl_add_u32 v12, v9, 3, v12")
    A(f"v_add_u32 v12, {LDS_G}, v12")
    A(f"v_mov_b32 v13, {OOB}")
    A("v_cmp_gt_u32 s[70:71], 1, v8")
    A(f"v_lshl_add_u32 v75, v{vN}, 2, v{vG}")
    A("v_cmp_gt_u32 s[72:73], 18, v75")
    A("v_lshlrev_b32 v75, 2, v75")
    A("v_cndmask_b32 v13, v13, v11, s[70:71]")
    A(f"v_lshlrev_b32 v76, 2, v{vLANE}")
    def wait_seq(seq, tile=False):
        l = newlab("cw")
        A(f"s_mov_b32 {sSPIN}, 0")
        A.lab(l)
        A("s_sleep 4")
        A("ds_read_b64 v[8:9], v71 offset:16")
        if tile: A("ds_read_b32 v10, v71 offset:12")
        A(f"s_add_u32 {sSPIN}, {sSPIN}, 1")
        A("s_waitcnt lgkmcnt(0)")
        A("v_readfirstlane_b32 s67, v9")
        if tile: A("v_readfirstlane_b32 s66, v10")
        A(f"s_cmp_ge_u32 {sSPIN}, {spin}")
        A(f"s_cbranch_scc1 {l}x")
        A(f"s_cmp_lt_u32 s67, {seq}")
        A(f"s_cbranch_scc1 {l}")
        if tile:
            A("s_cmp_lt_u32 s66, 4")
            A(f"s_cbranch_scc1 {l}")
        A.lab(l + "x")
    for k, c in enumerate(CP):
        nominal = sum(2 * (TK if i < 4 else TV) for i in range(c))
        wait_seq(c + 1, tile=(k == gck))
        l2 = newlab("cs")
        A(f"s_cmp_lg_u32 s67, {c + 1}")
        A(f"s_cbranch_scc1 {l2}")
        A("v_mov_b32 v92, v8")
        A("v_mov_b32 v94, v8")
        A(f"s_lshl_b32 {sT0}, {sID}, 7")
        A(f"s_add_u32 {sT0}, {sT0}, {TS_BASE + k*32768}")
        A("s_mov_b64 exec, 0xff")
        A(f"buffer_store_dwordx4 v[92:95], v69, {srd(rWS)}, {sT0} offen {tst}")
        A("s_mov_b64 exec, -1")
        A.lab(l2)
        if k == gck and "G" not in abl: gu_publish()
        wait_seq(c + 2)
        A(f"s_add_u32 {sT0}, s64, {TS_BASE + k*32768}")
        A("v_mov_b32 v79, 0")
        A("v_mov_b32 v78, 0")
        if NS == 32: A("s_mov_b32 exec_hi, 0")
        elif NS == 16: A("s_mov_b64 exec, 0xffff")
        A(f"buffer_load_dwordx2 v[78:79], v44, {srd(rWS)}, {sT0} offen {tld}")
        hh = (k == gck and "G" not in abl and "h" not in abl)
        def ld_gu2(fl=hld):
            A(f"s_mov_b32 {sT0}, {7*GU_ROW}")
            A(f"buffer_load_dwordx4 v[24:27], v11, {srd(rWS)}, 0 offen {fl}")
            A(f"buffer_load_dwordx4 v[28:31], v13, {srd(rWS)}, {sT0} offen {fl}")
        def ck_gu2():
            A(f"v_mov_b32 v14, {sTAGX}")
            A("v_cndmask_b32 v29, v14, v29, s[70:71]")
            A("v_cndmask_b32 v31, v14, v31, s[70:71]")
            tagcheck([25, 27, 29, 31], sTAG=sTAGX)
        if hh:
            A("s_mov_b32 exec_lo, -1")
            A("s_mov_b32 exec_hi, 0x7fffffff")
            ld_gu2()
        A("s_mov_b64 exec, -1")
        A(f"s_waitcnt vmcnt({2 if hh else 0})")
        A(f"v_cmp_eq_u32 vcc, {sTAG}, v79")
        A("v_cvt_f32_u32 v78, v78")
        A("s_bcnt1_i32_b64 s65, vcc")
        A("v_cndmask_b32 v78, 0, v78, vcc")
        dpp_reduce([78], "v_add_f32")
        l3 = newlab("cf")
        A(f"s_cmp_lt_u32 s65, {NS // 2}")
        A(f"s_cbranch_scc1 {l3}")
        A("v_cvt_f32_u32 v9, s65")
        A("v_rcp_f32 v9, v9")
        A("s_nop 0")
        A("v_mul_f32 v78, v78, v9")
        A("v_cvt_u32_f32 v78, v78")
        A(f"v_subrev_u32 v78, {(nominal - MG) & 0xffffffff}, v78")
        A("s_mov_b32 exec_lo, 0")
        A("s_mov_b32 exec_hi, 0x80000000")
        A("ds_write_b32 v71, v78 offset:8")
        A("s_mov_b64 exec, -1")
        A.lab(l3)
        if hh:
            A("s_mov_b32 exec_hi, 0x7fffffff")
            A("s_mov_b64 s[44:45], 0")
            A("s_waitcnt vmcnt(0)")
            verdict(None, ck_gu2, True)
            A("s_and_b64 exec, exec, vcc")
            A("s_cbranch_execz L_hpoll_done")
            poll("L_hpoll", ld_gu2, None, hsleep, check=ck_gu2, limit=4, keep=True, die=True)
            A("s_or_b64 s[44:45], s[44:45], exec")
            A("s_cbranch_scc0 L_hdone")
            A("s_mov_b64 s[66:67], exec")
            gu_store("sc1")
            A("s_mov_b64 exec, s[66:67]")
            A("s_cbranch_execz L_hdone")
            poll("L_hpoll2", lambda: ld_gu2("sc1"), None, hsleep, check=ck_gu2, die=True)
            A.lab("L_hdone")
            A("s_mov_b32 exec_lo, -1")
            A("s_mov_b32 exec_hi, 0x7fffffff")
            A("ds_write2_b32 v12, v24, v26 offset0:0 offset1:1")
            A("s_mov_b64 exec, s[70:71]")
            A("ds_write2_b32 v12, v28, v30 offset0:126 offset1:127")
            A("s_mov_b64 exec, -1")
            A("s_waitcnt lgkmcnt(0)")
            for r in range(8):
                A(f"ds_read_b32 v{24+r}, v75 offset:{LDS_G + r*72}")
            A("s_waitcnt lgkmcnt(0)")
            for m in range(2):
                A(f"v_add_f32 v{24+4*m}, v{24+4*m}, v{25+4*m}")
                A(f"v_add_f32 v{26+4*m}, v{26+4*m}, v{27+4*m}")
                A(f"v_add_f32 v{88+m}, v{24+4*m}, v{26+4*m}")
            bf16_round(88, 88); bf16_round(89, 89)
            A(f"v_mul_f32 v{vCO}, v88, v89")
            A(f"v_cvt_pk_bf16_f32 v{vCO}, v{vCO}, v{vCO}")
            A(f"v_cndmask_b32 v{vCO}, 0, v{vCO}, s[72:73]")
            A(f"ds_write_b32 v76, v{vCO} offset:{LDS_H}")
            stamp(4)
    A.lab("L_nocal")
    A("s_waitcnt vmcnt(0) lgkmcnt(0)")
    stamp(5)
    A("s_barrier")
    if ts: stamp(1)
    A(f"ds_read_b128 v[48:51], v70 offset:{LDS_ML}")
    A(f"ds_read_b128 v[52:55], v70 offset:{LDS_ML+16}")
    for w in range(4):
        A(f"ds_read_b32 v{56+w}, v66 offset:{LDS_O + w*512}")
    A("s_waitcnt lgkmcnt(4)")
    A("v_max3_f32 v80, v48, v50, v52")
    A("v_max_f32 v80, v80, v54")
    for w in range(4): A(f"v_sub_f32 v{48+2*w}, v{48+2*w}, v80")
    for w in range(4): A(f"v_mul_f32 v{48+2*w}, {sT2}, v{48+2*w}")
    for w in range(4): A(f"v_exp_f32 v{48+2*w}, v{48+2*w}")
    A("s_waitcnt lgkmcnt(0)")
    A("v_mul_f32 v10, v48, v56")
    A("v_mul_f32 v82, v48, v49")
    for w in range(1, 4):
        A(f"v_fmac_f32 v10, v{48+2*w}, v{56+w}")
        A(f"v_fmac_f32 v82, v{48+2*w}, v{49+2*w}")
    A(f"v_cvt_pk_bf16_f32 v{vCO}, v10, v10")
    A(f"s_cmp_lg_u32 {sHW}, 2")
    A("s_cbranch_scc1 L_noml")
    A("s_mov_b64 exec, 1")
    A(f"buffer_store_dwordx4 v[80:83], v70, {srd(rWS)}, {sCNT} offen sc1")
    A("s_mov_b64 exec, -1")
    A.lab("L_noml")
    if ts: stamp(2)
    if apipe:
        a = sel(vCO, 0)
        A("s_nop 1")
        for t in range(8):
            an = vAop[aop_flip[0]]; aop_flip[0] ^= 1
            for cg in range(5):
                mfma(vACC + 4 * cg if cg < 4 else 84, a, WBUF + 20 * t + 4 * cg, first=(t == 0))
                if t < 7 and cg < 2:
                    for i in (2 * cg, 2 * cg + 1):
                        A(f"v_and_b32_dpp v{an+i}, v{vCO}, v{vMK[i]} row_newbcast:{t+1} row_mask:0xf bank_mask:0xf")
            a = an
    else:
        for t in range(8):
            a = sel(vCO, t)
            A("s_nop 1")
            for cg in range(5):
                mfma(vACC + 4 * cg if cg < 4 else 84, a, WBUF + 20 * t + 4 * cg, first=(t == 0))
    A("s_nop 3")
    A("s_mov_b32 exec_hi, 0")
    for cg in range(4):
        A(f"ds_write_b128 v67, v[{vACC+4*cg}:{vACC+4*cg+3}] offset:{LDS_A + cg*512}")
    A("s_mov_b32 exec_lo, 0x00ff00ff")
    A(f"ds_write_b128 v67, v[84:87] offset:{LDS_A + 2048}")
    A("s_mov_b64 exec, 1")
    A("s_waitcnt lgkmcnt(0)")
    A("ds_add_u32 v71, v72")
    A("s_mov_b64 exec, -1")
    if ts: stamp(4)
    lds_wait("L_hw", 8)
    if ts: stamp(7)
    record_store()
    A(f"s_cmp_lg_u32 {sHW}, 3")
    A("s_cbranch_scc1 L_nox")
    A("s_nop 1")
    record_store(extra=1)
    A.lab("L_nox")
    stamp(6)
    if relayout:
        A("s_branch L_fin" if stamps else "s_endpgm")
        hl = A.L[mark_helper:]
        del A.L[mark_helper:]
        i = A.L.index("@@HELPER@@")
        A.L[i:i+1] = hl
    A.lab("L_fin")
    stamp_flush()
    A.lab("L_end")
    A("s_endpgm")
    A.lab("L_codeend")

    out = HEADER
    out += f"; @launch grid=(256,1,1) block=(512,1,1) lds={LDS_BYTES}\n"
    out += '.amdgcn_target "amdgcn-amd-amdhsa--gfx950"\n.text\n'
    out += f".globl {KNAME}\n.p2align 8\n.type {KNAME},@function\n"
    out += "\n".join(A.L) + "\n"
    out += '.section .rodata,"a"\n.p2align 6\n'
    out += f""".amdhsa_kernel {KNAME}
  .amdhsa_next_free_vgpr 256
  .amdhsa_next_free_sgpr 102
  .amdhsa_accum_offset 256
  .amdhsa_group_segment_fixed_size 0
  .amdhsa_kernarg_size 96
  .amdhsa_user_sgpr_count 2
  .amdhsa_user_sgpr_kernarg_segment_ptr 1
  .amdhsa_system_sgpr_workgroup_id_x 1
.end_amdhsa_kernel
"""
    return out

if __name__ == "__main__":
    import json
    kw = json.loads(sys.argv[1]) if len(sys.argv) > 1 else {}
    sys.stdout.write(gen(**kw))
```

```python
import sys, struct

KNAME = "parallel_sum__mha_block_cached__glu_gated_bilinear__decode_kernel"

HEADER = """; Kernarg layout for this problem (96 bytes, ptrs only, base s[0:1]):
"""

def f2u(x):
    return struct.unpack("<I", struct.pack("<f", x))[0]

BLK = 16384
OFF_R, OFF_Q = 0, 9216
GU_BASE = 256 * BLK
GU_ROW = 4608 * 8
ML_BASE = GU_BASE + 32 * GU_ROW
EPOCH_OFF = ML_BASE + 32768
TS_BASE = EPOCH_OFF + 4096
STAMP_BASE = 6 << 20
WS_SIZE = 7 << 20
OOB = 0x40000000
TAG_STEP = 0x9E3779B9
LOG2E = f2u(1.4426950408889634)
LDS_Q = 0
LDS_CNT = 512
LDS_H = 768
LDS_ML = 1024
LDS_O = 1280
LDS_B = 3328
LDS_W = 5632
LDS_A = 8192
LDS_G = 8192 + 4 * 2304 + 512
LDS_BYTES = LDS_G + 2304 + 256

class G:
    def __init__(self):
        self.L = []
    def __call__(self, s):
        self.L.append("  " + s)
    def lab(self, s):
        self.L.append(s + ":")
    def c(self, s):
        self.L.append("  ; " + s)

def gen(D=5, INIT=8, stamps=False, DG=3, DW=4, spin=1 << 18, codepf=16, fsleep=0, qdelay=8, abl="",
        hsleep=40, D2=6, T0=800, TK=236, TV=219, mlsleep=0, warm="", cdelay=0, dbg=0, ts=0, cal=1, MG=50, CP=(2, 4), NS=32, tbase=0, guearly=0, htail=2, hstep=16, wdstep=12, apipe=1, D3=8, L3=100, D0=4, L0=100, rot=0, CI=8, FK=0, FV=0, FP=0, clk=0, qld="nt", hld="nt", tld="sc1", qst="", gust="", tst="sc1", gupub=1, gck=1, fmode=1, rdelay=8, mlsh=4, early=1, swap=1, relayout=1, bar0=0, qfall=6, pad_to=0, gumid=0, qsleep=16):
    if dbg: stamps = True
    A = G()
    sID = "s2"
    pX, pK, pV, pWQ, pWO, pWG, pWU, pWD, pOUT, pDBG, pWS = 16, 18, 20, 22, 24, 28, 30, 32, 34, 36, 38
    rX, rST, rW, rWS, rO = 40, 44, 48, 52, 56
    sWV, sH, sS, sB, sHW = "s3", "s4", "s5", "s6", "s7"
    sOFF, sCNT, sT0, sT1, sT2, sM = "s8", "s9", "s10", "s11", "s12", "s13"
    sSPIN, sTAG = "s14", "s15"
    mU = ["s[60:61]", "s[62:63]", "s[64:65]", "s[66:67]"]
    mT = ["s[68:69]", "s[70:71]", "s[72:73]", "s[74:75]"]
    def srd(r): return f"s[{r}:{r+3}]"
    def mk_srd(r, p, size):
        A(f"s_mov_b32 s{r}, s{p}"); A(f"s_mov_b32 s{r+1}, s{p+1}"); A(f"s_mov_b32 s{r+2}, {size}"); A(f"s_mov_b32 s{r+3}, 0x20000")
    SB = 80
    def stamp(idx):
        if not stamps: return
        assert idx < 11
        A(f"s_memrealtime s[{SB+2*idx}:{SB+2*idx+1}]")
    def stampval(idx, sreg):
        if not stamps: return
        A(f"s_mov_b32 s{SB+2*idx}, {sreg}")
    def stamp_init():
        if stamps:
            for i in range(1, 11): A(f"s_mov_b32 s{SB+2*i}, 0")
    def stamp_flush():
        if not stamps: return
        A("s_waitcnt vmcnt(0) lgkmcnt(0)")
        A("s_mov_b64 exec, -1")
        A(f"s_lshl_b32 s8, {sID}, 3")
        A(f"s_add_u32 s8, s8, {sWV}")
        A("s_lshl_b32 s8, s8, 6")
        A(f"s_add_u32 s8, s8, {STAMP_BASE}")
        A("v_mov_b32 v8, 0")
        for i in range(11):
            A(f"v_writelane_b32 v8, s{SB+2*i}, {i}")
        A(f"v_lshlrev_b32 v9, 2, v{vLANE}")
        A(f"v_mov_b32 v10, {OOB}")
        A(f"v_cmp_gt_u32 vcc, 16, v{vLANE}")
        A("s_nop 1")
        A("v_cndmask_b32 v9, v10, v9, vcc")
        A(f"buffer_store_dword v8, v9, {srd(rWS)}, s8 offen")
        if dbg:
            A(f"s_cmp_lg_u32 {sID}, {dbg-1}")
            A("s_cbranch_scc1 L_end")
            A(f"s_cmp_lg_u32 {sWV}, 3")
            A("s_cbranch_scc1 L_end")
            mk_srd(rO, pDBG, 256)
            A(f"v_subrev_u32 v8, s{SB}, v8")
            A(f"buffer_store_dword v8, v9, {srd(rO)}, 0 offen")
    vLANE, vG, vN = 1, 2, 3
    vMK = [4, 5, 6, 7]
    vAop = [16, 20]
    vACC = 24
    vOFFC, vOFFV = 46, 47
    vBQ = 48
    vDK = 64
    vS = 68
    vSN, vP, vL = 76, 77, 78
    vX4 = 80
    WDB = 84
    RING = 128
    vXA = 48
    vXC = 56
    vOA, vOB = 60, 61
    vCO = 64
    WBUF = 96
    uid = [0]
    def newlab(p):
        uid[0] += 1
        return f"L_{p}{uid[0]}"

    def dpp_reduce(regs, op):
        pad = "s_nop 1" if len(regs) == 1 else ("s_nop 0" if len(regs) == 2 else None)
        A("s_nop 1")
        for d, rm in (("row_shr:1", "0xf"), ("row_shr:2", "0xf"), ("row_shr:4", "0xf"), ("row_shr:8", "0xf"), ("row_bcast:15", "0xa"), ("row_bcast:31", "0xc")):
            for r in regs: A(f"{op}_dpp v{r}, v{r}, v{r} {d} row_mask:{rm} bank_mask:0xf")
            if pad: A(pad)
        if not pad: A("s_nop 0")
    aop_flip = [0]
    def sel(coef, idx):
        a = vAop[aop_flip[0]]; aop_flip[0] ^= 1
        for i in range(4):
            A(f"v_and_b32_dpp v{a+i}, v{coef}, v{vMK[i]} row_newbcast:{idx} row_mask:0xf bank_mask:0xf")
        return a
    def mfma(d, a, b, first=False):
        c = "0" if first else f"v[{d}:{d+3}]"
        A(f"v_mfma_f32_16x16x32_bf16 v[{d}:{d+3}], v[{a}:{a+3}], v[{b}:{b+3}], {c}")
    def bf16_round(dst, src):
        A(f"v_cvt_pk_bf16_f32 v{dst}, v{src}, v{src}")
        A(f"v_lshlrev_b32 v{dst}, 16, v{dst}")
    sTAGX = "s75"
    def tagcheck(regs, dst=9, tmp=10, tmp2=15, sTAG=sTAG):
        regs = list(regs)
        lv = [(regs[i], regs[i+1]) for i in range(0, len(regs), 2)]
        A(f"v_bitop3_b32 v{dst}, v{lv[0][0]}, v{lv[0][1]}, {sTAG} bitop3:0x7e")
        rest = lv[1:]; k = 0
        while k < len(rest):
            A(f"v_bitop3_b32 v{tmp}, v{rest[k][0]}, v{rest[k][1]}, {sTAG} bitop3:0x7e")
            if k + 1 < len(rest):
                A(f"v_bitop3_b32 v{tmp2}, v{rest[k+1][0]}, v{rest[k+1][1]}, {sTAG} bitop3:0x7e")
                A(f"v_or3_b32 v{dst}, v{dst}, v{tmp}, v{tmp2}")
            else:
                A(f"v_or_b32 v{dst}, v{dst}, v{tmp}")
            k += 2
    def poll(label, loads, tagregs, slp, check=None, limit=None, keep=False, die=False, bail=None):
        A(f"s_mov_b32 {sSPIN}, 0")
        A.lab(label)
        loads()
        A("s_waitcnt vmcnt(0)")
        verdict(tagregs, check, die)
        A(f"s_add_u32 {sSPIN}, {sSPIN}, 1")
        A("s_and_b64 exec, exec, vcc")
        A(f"s_cbranch_execz {label}_done")
        if bail:
            A("s_cmp_lg_u64 s[44:45], 0")
            A(f"s_cbranch_scc1 {bail}")
        if slp: A(f"s_sleep {slp}")
        A(f"s_cmp_lt_u32 {sSPIN}, {limit or spin}")
        A(f"s_cbranch_scc1 {label}")
        A.lab(f"{label}_done")
        if not keep: A("s_mov_b64 exec, -1")
    def verdict(tagregs, check, die):
        if check: check()
        else: tagcheck(tagregs, sTAG=sTAGX if die else sTAG)
        if die:
            A("v_cmp_ne_u32 vcc, 0, v9")
            A("s_or_b64 s[44:45], s[44:45], vcc")
            A("v_cmp_lt_u32 vcc, 7, v9")
            A("s_andn2_b64 s[44:45], s[44:45], vcc")
        else:
            A("v_cmp_ne_u32 vcc, 0, v9")
    def two_group_offsets(rowstride, sw, oa, ob):
        A(f"s_mul_i32 {sT2}, {sw}, 288")
        A(f"v_mul_u32_u24 v8, {rowstride}, v{vG}")
        A(f"v_lshl_add_u32 v8, v{vN}, 4, v8")
        A(f"v_add_u32 v{oa}, {sT2}, v8")
        A(f"v_add_u32 v8, 256, v{oa}")
        A(f"v_mov_b32 v9, {OOB}")
        A(f"v_cmp_gt_u32 vcc, 2, v{vN}")
        A("s_nop 1")
        A(f"v_cndmask_b32 v{ob}, v9, v8, vcc")
    def two_group_to_lds(accA, accB, vaddr):
        A("s_mov_b32 exec_hi, 0")
        A(f"ds_write_b128 v{vaddr}, v[{accA}:{accA+3}] offset:{LDS_B}")
        A("s_mov_b32 exec_lo, 0x00030003")
        A(f"ds_write_b128 v{vaddr}, v[{accB}:{accB+3}] offset:{LDS_B+512}")
        A("s_mov_b64 exec, -1")
    def masks():
        A(f"v_and_b32 v8, 1, v{vN}")
        A("v_lshlrev_b32 v8, 4, v8")
        A(f"s_mov_b32 {sT0}, 0xffff")
        A(f"v_lshlrev_b32 v8, v8, {sT0}")
        A(f"v_lshrrev_b32 v11, 1, v{vN}")
        for i in range(4):
            A(f"v_cmp_eq_u32 vcc, {i}, v11")
            A("s_nop 1")
            A(f"v_cndmask_b32 v{vMK[i]}, 0, v8, vcc")
    def tail_store_setup():
        pass
    def lds_wait(label, target):
        A(f"s_mov_b32 {sSPIN}, 0")
        A.lab(label)
        A("ds_read_b32 v9, v71")
        A(f"s_add_u32 {sSPIN}, {sSPIN}, 1")
        A("s_waitcnt lgkmcnt(0)")
        A(f"v_readfirstlane_b32 {sT0}, v9")
        A(f"s_cmp_ge_u32 {sSPIN}, {spin}")
        A(f"s_cbranch_scc1 {label}_done")
        A(f"s_cmp_lt_u32 {sT0}, {target}")
        A(f"s_cbranch_scc1 {label}")
        A.lab(f"{label}_done")
    def record_addr_setup():
        A(f"v_and_b32 v8, 1, v{vLANE}")
        A(f"v_lshrrev_b32 v9, 2, v{vLANE}")
        A("v_lshlrev_b32 v9, 4, v9")
        A("v_lshl_add_u32 v8, v8, 3, v9")
        A(f"s_lshl_b32 {sT0}, {sWV}, 8")
        A(f"v_add_u32 v68, {sT0}, v8")
        A(f"v_lshlrev_b32 v69, 4, v{vLANE}")
        A(f"v_and_b32 v8, 2, v{vLANE}")
        A("v_cmp_eq_u32 s[62:63], 0, v8")
        A(f"v_mov_b32 v71, {LDS_CNT}")
        A("v_mov_b32 v72, 1")
        A(f"v_mov_b32 v41, {sTAG}")
        A(f"v_mov_b32 v43, {sTAG}")
        A(f"s_lshl_b32 s60, {sB}, 14")
        A(f"s_lshl_b32 {sT0}, {sWV}, 10")
        A(f"s_add_u32 s60, s60, {sT0}")
    def record_store(extra=0, base=48, back=0):
        lo = 256 * extra
        if back:
            A(f"v_subrev_u32 v68, {256*back}, v68")
            A(f"s_sub_u32 s60, s60, {1024*back}")
        for w in range(4):
            A(f"ds_read_b64 v[{base+2*w}:{base+2*w+1}], v68 offset:{LDS_A + w*2304 + lo}")
        A(f"ds_read_b64 v[{base+8}:{base+9}], v68 offset:{LDS_B + lo}")
        A("s_waitcnt lgkmcnt(1)")
        for i in range(2):
            A(f"v_add_f32 v{base+i}, v{base+i}, v{base+2+i}")
            A(f"v_add_f32 v{base+4+i}, v{base+4+i}, v{base+6+i}")
        for i in range(2):
            A(f"v_add_f32 v{base+i}, v{base+i}, v{base+4+i}")
        A("s_waitcnt lgkmcnt(0)")
        A(f"v_cndmask_b32 v40, v{base+8}, v{base}, s[62:63]")
        A(f"v_cndmask_b32 v42, v{base+9}, v{base+1}, s[62:63]")
        A(f"buffer_store_dwordx4 v[40:43], v69, {srd(rWS)}, s60 offen offset:{1024*extra} sc1")

    A.lab(KNAME)
    A(f"s_cmp_ge_u32 {sID}, 256")
    A("s_cbranch_scc1 L_end")
    A("s_load_dwordx16 s[16:31], s[0:1], 0")
    A("s_load_dwordx8 s[32:39], s[0:1], 64")
    A("s_memrealtime s[78:79]")
    if pad_to: A("s_memrealtime s[98:99]")
    stamp(0)
    A("v_lshrrev_b32 v8, 6, v0")
    A(f"v_and_b32 v{vLANE}, 63, v0")
    A(f"v_readfirstlane_b32 {sWV}, v8")
    A(f"v_lshrrev_b32 v{vG}, 4, v{vLANE}")
    A(f"v_and_b32 v{vN}, 15, v{vLANE}")
    A(f"s_and_b32 {sT0}, {sID}, 7")
    A(f"s_lshr_b32 {sT1}, {sID}, 3")
    A(f"s_and_b32 {sH}, {sT1}, 3")
    A(f"s_lshr_b32 {sS}, {sT1}, 2")
    A(f"s_lshl_b32 {sT0}, {sT0}, 2")
    A(f"s_add_u32 {sH}, {sH}, {sT0}")
    A(f"s_lshl_b32 {sB}, {sH}, 3")
    A(f"s_add_u32 {sB}, {sB}, {sS}")
    if swap: A(f"s_xor_b32 {sWV}, {sWV}, 4")
    A(f"s_cmp_ge_u32 {sWV}, 4")
    A("s_cbranch_scc1 L_helper")

    A.c("---- streamer waves 0..3")
    A(f"s_lshl_b32 {sT0}, {sB}, 19")
    A(f"s_lshl_b32 {sT1}, {sWV}, 10")
    A(f"s_add_u32 {sT0}, {sT0}, {sT1}")
    A(f"v_lshrrev_b32 v8, 2, v{vN}")
    A("v_lshlrev_b32 v8, 8, v8")
    A(f"v_and_b32 v11, 3, v{vN}")
    A("v_lshlrev_b32 v11, 4, v11")
    A(f"v_lshlrev_b32 v12, 6, v{vG}")
    A("v_add3_u32 v8, v8, v11, v12")
    if "n" in abl: A(f"v_lshlrev_b32 v8, 4, v{vLANE}")
    A(f"v_add_u32 v{vOFFC}, {sT0}, v8")
    A(f"s_mov_b32 {sOFF}, 0")
    A(f"s_mov_b32 s{rST+2}, 0x8000000")
    A(f"s_mov_b32 s{rST+3}, 0x20000")
    A("s_waitcnt lgkmcnt(0)")
    A(f"s_mov_b32 s{rST}, s{pK}")
    A(f"s_mov_b32 s{rST+1}, s{pK+1}")
    if rot:
        A(f"s_mul_hi_u32 {sOFF}, s78, {int(2**32 / rot)}")
        A(f"s_lshl_b32 {sOFF}, {sOFF}, 12")
        A(f"s_and_b32 {sOFF}, {sOFF}, 0x7ffff")
    def pace(d):
        if T0:
            l = newlab("pc")
            if D3:
                A(f"s_cmp_gt_i32 s75, {L3}")
                A(f"s_cbranch_scc1 {l}b")
            A(f"s_cbranch_vccnz {l}")
            if D0:
                A(f"s_cmp_gt_i32 s75, {-L0}")
                A(f"s_cbranch_scc1 {l}a")
                A(f"s_waitcnt vmcnt({D0-1})")
                A.lab(l + "a")
            A(f"s_waitcnt vmcnt({d-1})")
            A.lab(l)
            A(f"s_waitcnt vmcnt({D2-1})")
            if D3:
                A.lab(l + "b")
                A(f"s_waitcnt vmcnt({D3-1})")
        else:
            A(f"s_waitcnt vmcnt({d-1})")
    def control(n, step):
        if not T0: return
        if n % CI == 0:
            A("s_memrealtime s[76:77]")
            if cal: A("ds_read_b32 v123, v122 offset:8")
        if n % CI == 2:
            A("s_waitcnt lgkmcnt(0)")
            if cal:
                A("v_readfirstlane_b32 s79, v123")
                A("s_and_b32 s76, s76, 0xfffff")
                if n == 2:
                    l = newlab("ck")
                    A(f"s_cmp_lg_u32 {sWV}, 0")
                    A(f"s_cbranch_scc1 {l}")
                    A("v_mov_b32 v120, s76")
                    A("v_add_u32 v121, 1, v121")
                    A("ds_write_b64 v122, v[120:121] offset:16")
                    A.lab(l)
                A("s_sub_u32 s76, s76, s79")
            A("s_sub_u32 s76, s76, s78")
            if D0:
                A("s_cmp_lt_i32 s76, -100000")
                A("s_cselect_b32 s75, 0, s76")
            elif D3: A("s_mov_b32 s75, s76")
            A("s_cmp_gt_i32 s76, 0")
            A("s_cselect_b64 vcc, -1, 0")
            k = (n % 16) // CI; parts = 16 // CI
            A(f"s_add_u32 s78, s78, {step * (k + 1) // parts - step * k // parts}")
    def issue(slot):
        r = RING + 4 * slot
        A(f"buffer_load_dwordx4 v[{r}:{r+3}], v{vOFFC}, {srd(rST)}, {sOFF} offen nt")
        A(f"s_add_u32 {sOFF}, {sOFF}, 4096")
        if rot: A(f"s_and_b32 {sOFF}, {sOFF}, 0x7ffff")
    if bar0: A("s_barrier")
    for n in range(INIT): issue(n)
    if relayout:
        A("s_branch L_stream2")
        A.L.append("@@HELPER@@")
        A.lab("L_stream2")
    stamp_init()
    A(f"s_mov_b32 {sT1}, {EPOCH_OFF}")
    A(f"s_load_dword {sTAG}, s[{pWS}:{pWS+1}], {sT1}")
    A(f"v_lshlrev_b32 v8, 4, v{vLANE}")
    A(f"v_add_u32 v{vOFFV}, {sT0}, v8")
    mk_srd(rX, pX, 1152)
    mk_srd(rWS, pWS, WS_SIZE)
    mk_srd(rW, pWD, 4608 * 576 * 2)
    masks()
    two_group_offsets(1152, sWV, 32, 33)
    A(f"v_cmp_gt_u32 vcc, 32, v{vLANE}")
    A(f"s_lshl_b32 {sT0}, {sID}, 3")
    A(f"v_mov_b32 v10, {sT0}")
    A("v_cndmask_b32 v34, v9, v32, vcc")
    A("v_cndmask_b32 v35, v9, v33, vcc")
    A(f"v_and_b32 v8, 3, v{vN}")
    A(f"v_lshrrev_b32 v9, 2, v{vN}")
    for u in range(4):
        A(f"v_cmp_eq_u32 {mU[u]}, {u}, v8")
        A(f"v_cmp_eq_u32 {mT[u]}, {u}, v9")
    A(f"v_lshlrev_b32 v9, 2, v{vG}")
    A("v_add_u32 v8, v8, v9")
    A("v_lshlrev_b32 v8, 5, v8")
    A(f"buffer_load_dwordx2 v[{vX4}:{vX4+1}], v10, {srd(rX)}, 0 offen")
    if htail in (1, 3):
        A(f"v_mul_u32_u24 v10, 57, v{vLANE}")
        A("v_lshrrev_b32 v127, 9, v10")
        A("v_mul_u32_u24 v9, 9, v127")
        A(f"v_sub_u32 v9, v{vLANE}, v9")
        A(f"v_mul_u32_u24 v11, {GU_ROW}, v127")
        A("v_lshl_add_u32 v11, v9, 4, v11")
        A(f"s_mul_i32 {sT0}, {sB}, 144")
        A(f"s_add_u32 {sT0}, {sT0}, {GU_BASE}")
        A(f"v_add_u32 v124, {sT0}, v11")
        A("v_mul_u32_u24 v12, 72, v127")
        A("v_lshl_add_u32 v12, v9, 3, v12")
        A(f"s_mul_i32 {sT0}, {sWV}, 2304")
        A(f"s_add_u32 {sT0}, {sT0}, {LDS_G}")
        A(f"v_add_u32 v126, {sT0}, v12")
        A(f"v_mov_b32 v13, {OOB}")
        A("v_cmp_gt_u32 vcc, 4, v127")
        A("s_nop 1")
        A("v_cndmask_b32 v125, v13, v124, vcc")
        if htail == 3:
            A(f"s_cmp_eq_u32 {sWV}, 0")
            A("s_cselect_b64 vcc, -1, 0")
            A("v_cndmask_b32 v124, v13, v124, vcc")
            A("v_cndmask_b32 v125, v13, v125, vcc")
    for n in range(INIT, 32):
        A(f"s_waitcnt vmcnt({D-1 + (1 if (n % 4) < FP else 0)})")
        issue(n)
    A("s_waitcnt lgkmcnt(0)")
    A(f"s_add_u32 {sTAG}, {sTAG}, {TAG_STEP}")
    if not ts: stamp(4)
    A("s_barrier")
    if not ts: stamp(5)
    if clk: A(f"s_memtime s[{SB+2}:{SB+3}]")
    QT = 84
    A(f"ds_read_b128 v[{QT}:{QT+3}], v8 offset:{LDS_Q}")
    A(f"ds_read_b128 v[{QT+4}:{QT+7}], v8 offset:{LDS_Q+16}")
    if tbase:
        A("v_mov_b32 v9, 0")
        A(f"ds_read_b32 v9, v9 offset:{LDS_CNT+8}")
    A("s_waitcnt lgkmcnt(0)")
    if tbase:
        A("v_readfirstlane_b32 s78, v9")
    for i in range(4):
        A(f"v_cvt_pk_bf16_f32 v{QT+8+i}, v{QT+2*i}, v{QT+2*i+1}")
    for t in range(4):
        for i in range(4):
            A(f"v_cndmask_b32 v{vBQ+4*t+i}, 0, v{QT+8+i}, {mT[t]}")
    if cal:
        A("s_mov_b32 s78, 0")
        A("v_mov_b32 v121, 0")
        A(f"v_mov_b32 v122, {LDS_CNT}")
    else:
        A(f"s_add_u32 s78, s78, {T0}")
    A("s_mov_b64 vcc, 0")
    A("s_mov_b32 s75, 0")
    A(f"s_mov_b32 {sT2}, {f2u(128 ** -0.5)}")
    A(f"s_mov_b32 {sCNT}, 0")
    A.lab("L_kloop")
    A(f"s_cmp_eq_u32 {sCNT}, 3")
    A("s_cbranch_scc0 L_kbody")
    A(f"s_mov_b32 s{rST}, s{pV}")
    A(f"s_mov_b32 s{rST+1}, s{pV+1}")
    if not rot: A(f"s_mov_b32 {sOFF}, 0")
    A(f"v_mov_b32 v{vOFFC}, v{vOFFV}")
    A.lab("L_kbody")
    for n in range(32):
        t, u = n % 4, (n // 4) % 4
        if "m" not in abl: mfma(vDK, RING + 4 * n, vBQ + 4 * t, first=(t == 0))
        pace(D + (1 if (n % 4) < FK else 0))
        issue(n)
        control(n, TK)
        if t == 3:
            A("s_nop 5")
            A(f"v_mov_b32_dpp v8, v{vDK} quad_perm:[0,0,0,0] row_mask:0xf bank_mask:0xf")
            for cidx in range(1, 4):
                A(f"v_add_f32_dpp v8, v{vDK+cidx}, v8 quad_perm:[{cidx},{cidx},{cidx},{cidx}] row_mask:0xf bank_mask:0xf")
            if u == 0:
                A(f"v_mov_b32 v{vSN}, v8")
            else:
                A(f"v_cndmask_b32 v{vSN}, v{vSN}, v8, {mU[u]}")
            if u == 3:
                bf16_round(vSN, vSN)
                A(f"v_mul_f32 v{vSN}, {sT2}, v{vSN}")
                bf16_round(vSN, vSN)
                for k in range(7):
                    A(f"v_mov_b32 v{vS+k}, v{vS+k+1}")
                A(f"v_mov_b32 v{vS+7}, v{vSN}")
    A(f"s_add_u32 {sCNT}, {sCNT}, 1")
    A(f"s_cmp_lt_u32 {sCNT}, 4")
    A("s_cbranch_scc1 L_kloop")
    if not ts: stamp(6)
    A(f"v_max3_f32 v8, v{vS}, v{vS+1}, v{vS+2}")
    A(f"v_max3_f32 v8, v8, v{vS+3}, v{vS+4}")
    A(f"v_max3_f32 v8, v8, v{vS+5}, v{vS+6}")
    A(f"v_max_f32 v8, v8, v{vS+7}")
    dpp_reduce([8], "v_max_f32")
    A(f"v_readlane_b32 {sM}, v8, 63")
    A(f"s_mov_b32 {sT2}, {LOG2E}")
    A(f"v_mov_b32 v{vL}, 0")
    for i in range(4): A(f"v_mov_b32 v{vACC+i}, 0")
    A(f"s_mov_b32 {sCNT}, 0")
    def ptile():
        A(f"v_subrev_f32 v8, {sM}, v{vS}")
        A(f"v_mul_f32 v8, {sT2}, v8")
        A("v_exp_f32 v8, v8")
        for k in range(7):
            A(f"v_mov_b32 v{vS+k}, v{vS+k+1}")
        A(f"v_add_f32 v{vL}, v{vL}, v8")
        A(f"v_cvt_pk_bf16_f32 v{vP}, v8, v8")
        A("s_nop 1")
    NWD = 15 if htail in (1, 3) else 10
    def vstep(n, last):
        if n % 16 == 0: ptile()
        if last and n == 17:
            dpp_reduce([vL], "v_add_f32")
            A(f"v_mov_b32 v45, v{vL}")
            A("s_mov_b32 exec_lo, 0")
            A("s_mov_b32 exec_hi, 0x80000000")
            A(f"ds_write_b64 v83, v[44:45] offset:{LDS_ML}")
            A("s_mov_b64 exec, -1")
            record_addr_setup()
        L = n % 16; t, u = L % 4, L // 4
        if "m" in abl:
            pace(D); issue(n); control(n, TV)
            return
        a = sel(vP, 4 * t + u)
        if last and n >= 32 - max(D, D2) - 1:
            A(f"s_waitcnt vmcnt({NWD + 31 - n})")
            A("s_nop 0")
        else:
            A("s_nop 1")
        mfma(vACC, a, RING + 4 * n)
        if not last:
            pace(D + (1 if (n % 4) < FV else 0))
            issue(n)
            control(n, TV)
    A.lab("L_vloop")
    for n in range(32):
        vstep(n, False)
    A(f"s_add_u32 {sCNT}, {sCNT}, 1")
    A(f"s_cmp_lt_u32 {sCNT}, 3")
    A("s_cbranch_scc1 L_vloop")
    stamp(7)
    if clk: A(f"s_memtime s[{SB+20}:{SB+21}]")
    A(f"s_mul_i32 {sOFF}, {sB}, {18*1152}")
    def wd_issue(t):
        r = WDB + 8 * t
        oa, ob = (32, 33) if t < 4 else (34, 35)
        A(f"buffer_load_dwordx4 v[{r}:{r+3}], v{oa}, {srd(rW)}, {sOFF} offen nt")
        A(f"buffer_load_dwordx4 v[{r+4}:{r+7}], v{ob}, {srd(rW)}, {sOFF} offen nt")
        A(f"s_add_u32 {sOFF}, {sOFF}, {4*1152}")
    if wdstep < 0:
        for t in range(5): wd_issue(t)
    HG = 48
    def ld_gu():
        A(f"s_mov_b32 {sT0}, 0")
        for i in range(5):
            A(f"buffer_load_dwordx4 v[{HG+4*i}:{HG+4*i+3}], v{124 if i < 4 else 125}, {srd(rWS)}, {sT0} offen sc1")
            if i < 4: A(f"s_add_u32 {sT0}, {sT0}, {7*GU_ROW}")
    def ck_gu():
        A(f"v_mov_b32 v14, {sTAG}")
        A(f"v_cndmask_b32 v{HG+17}, v14, v{HG+17}, s[66:67]")
        A(f"v_cndmask_b32 v{HG+19}, v14, v{HG+19}, s[66:67]")
        tagcheck([HG + 2 * k + 1 for k in range(10)])
    if htail == 2 and hstep >= 32:
        A(f"v_mov_b32 v8, {LDS_CNT}")
        A("v_mov_b32 v9, 1")
        A("ds_write_b32 v8, v9 offset:4")
    if htail in (1, 3):
        A("s_mov_b32 exec_hi, 0x7fffffff")
        ld_gu()
        A("s_mov_b32 exec_hi, -1")
    A(f"s_lshl_b32 {sT0}, {sWV}, 9")
    A(f"v_lshlrev_b32 v8, 5, v{vN}")
    A(f"v_lshl_add_u32 v8, v{vG}, 4, v8")
    A(f"v_add_u32 v82, {sT0}, v8")
    A(f"s_mul_i32 {sT0}, {sWV}, 576")
    A(f"v_add_u32 v36, {sT0}, v8")
    A(f"s_lshl_b32 {sT0}, {sWV}, 3")
    A(f"v_mov_b32 v83, {sT0}")
    A(f"v_mov_b32 v44, {sM}")
    A(f"v_lshlrev_b32 v37, 2, v{vLANE}")
    def lidx(n):
        L = n % 16
        return 4 * (L % 4) + L // 4
    ptile()
    a = sel(vP, lidx(0))
    for n in range(32):
        if n + 1 == 16: ptile()
        if n + 1 < 32: a_next = sel(vP, lidx(n + 1))
        else: A("s_nop 0")
        nwd = NWD if wdstep < 0 else (NWD - 10) + 2 * max(0, min(5, n - wdstep))
        if n >= 32 - max(D, D2, D3) - 1:
            A(f"s_waitcnt vmcnt({nwd + 31 - n})")
        mfma(vACC, a, RING + 4 * n)
        if wdstep >= 0 and wdstep <= n < wdstep + 5: wd_issue(n - wdstep)
        a = a_next
        if n == 17:
            dpp_reduce([vL], "v_add_f32")
            A(f"v_mov_b32 v45, v{vL}")
            A("s_mov_b32 exec_lo, 0")
            A("s_mov_b32 exec_hi, 0x80000000")
            A(f"ds_write_b64 v83, v[44:45] offset:{LDS_ML}")
            A("s_mov_b64 exec, -1")
            record_addr_setup()
    if wdstep >= 0:
        for t in range(max(0, 32 - wdstep), 5): wd_issue(t)
    A("s_nop 7")
    A("s_mov_b32 exec_hi, 0")
    A(f"ds_write_b128 v82, v[{vACC}:{vACC+3}] offset:{LDS_O}")
    A("s_mov_b32 exec_hi, -1")
    A("s_waitcnt lgkmcnt(0)")
    stamp(2)
    A("s_barrier")
    if ts: stamp(4)
    if htail == 3:
        A(f"s_cmp_lg_u32 {sWV}, 0")
        A("s_cbranch_scc1 L_hothers")
    if htail in (1, 3):
        A("v_cmp_gt_u32 s[66:67], 4, v127")
        A("s_mov_b32 exec_hi, 0x7fffffff")
        A(f"s_mov_b32 {sSPIN}, 0")
        A("s_branch L_hchk")
        A.lab("L_hpoll")
        A(f"s_sleep {hsleep}")
        ld_gu()
        A.lab("L_hchk")
        A("s_waitcnt vmcnt(0)")
        ck_gu()
        A(f"s_add_u32 {sSPIN}, {sSPIN}, 1")
        A("v_cmp_ne_u32 vcc, 0, v9")
        A(f"s_cmp_ge_u32 {sSPIN}, {spin}")
        A("s_cbranch_scc1 L_hdone")
        A("s_and_b64 exec, exec, vcc")
        A("s_cbranch_execnz L_hpoll")
        A.lab("L_hdone")
        A("s_mov_b32 exec_lo, -1")
        A("s_mov_b32 exec_hi, 0x7fffffff")
        for i in range(4):
            A(f"ds_write2_b32 v126, v{HG+4*i}, v{HG+4*i+2} offset0:{i*126} offset1:{i*126+1}" if i * 126 + 1 < 256 else f"ds_write2_b32 v127, v{HG+4*i}, v{HG+4*i+2} offset0:{(i-2)*126} offset1:{(i-2)*126+1}")
            if i == 0: A(f"v_add_u32 v127, {2*504}, v126")
        A(f"v_add_u32 v126, {4*504}, v126")
        A("s_and_b64 exec, exec, s[66:67]")
        A(f"ds_write2_b32 v126, v{HG+16}, v{HG+18} offset0:0 offset1:1")
        A("s_mov_b64 exec, -1")
        A(f"v_lshl_add_u32 v8, v{vN}, 2, v{vG}")
        A("v_cmp_gt_u32 vcc, 18, v8")
        A(f"s_mul_i32 {sT0}, {sWV}, 2304")
        A(f"v_lshl_add_u32 v8, v8, 2, {sT0}")
        A("s_waitcnt lgkmcnt(0)")
        HR = RING
        for r in range(32):
            A(f"ds_read_b32 v{HR+r}, v8 offset:{LDS_G + r*72}")
            if r in (11, 22): A("s_waitcnt lgkmcnt(4)")
        for st in (8, 4, 2, 1):
            for r in range(st): A(f"v_add_f32 v{HR+r}, v{HR+r}, v{HR+r+st}")
        A("s_waitcnt lgkmcnt(0)")
        for st in (8, 4, 2, 1):
            for r in range(st): A(f"v_add_f32 v{HR+16+r}, v{HR+16+r}, v{HR+16+r+st}")
        bf16_round(HR, HR); bf16_round(HR + 16, HR + 16)
        A(f"v_mul_f32 v{vP}, v{HR}, v{HR+16}")
        A(f"v_cvt_pk_bf16_f32 v{vP}, v{vP}, v{vP}")
        A(f"v_cndmask_b32 v{vP}, 0, v{vP}, vcc")
        if htail == 3:
            A(f"ds_write_b32 v37, v{vP} offset:{LDS_H}")
            A("s_waitcnt lgkmcnt(0)")
            A("ds_write_b32 v71, v72 offset:4")
            A("s_branch L_hready")
            A.lab("L_hothers")
            A(f"s_mov_b32 {sSPIN}, 0")
            A.lab("L_hw2")
            A("ds_read_b32 v9, v71 offset:4")
            A(f"ds_read_b32 v{vP}, v37 offset:{LDS_H}")
            A(f"s_add_u32 {sSPIN}, {sSPIN}, 1")
            A("s_waitcnt lgkmcnt(0)")
            A(f"v_readfirstlane_b32 {sT0}, v9")
            A(f"s_cmp_ge_u32 {sSPIN}, {spin}")
            A("s_cbranch_scc1 L_hready")
            A(f"s_cmp_eq_u32 {sT0}, 0")
            A("s_cbranch_scc1 L_hw2")
            A.lab("L_hready")
            if ts: stamp(5)
        A("s_nop 1")
    else:
        A(f"ds_read_b32 v{vP}, v37 offset:{LDS_H}")
        A("s_waitcnt lgkmcnt(0)")
    for t in range(5):
        a = sel(vP, t)
        A(f"s_waitcnt vmcnt({2*(4 - t)})")
        A("s_nop 0")
        mfma(vACC, a, WDB + 8 * t, first=(t == 0))
        mfma(vACC + 4, a, WDB + 8 * t + 4, first=(t == 0))
    A("s_nop 7")
    two_group_to_lds(vACC, vACC + 4, 36)
    A("s_mov_b64 exec, 1")
    A("s_waitcnt lgkmcnt(0)")
    A("ds_add_u32 v71, v72")
    A("s_mov_b64 exec, -1")
    mk_srd(rO, pOUT, 1152)
    A(f"v_lshrrev_b32 v8, 2, v{vLANE}")
    A(f"v_and_b32 v11, 3, v{vLANE}")
    A("v_lshlrev_b32 v12, 14, v8")
    A("v_lshl_add_u32 v12, v11, 4, v12")
    A(f"s_lshl_b32 {sT0}, {sID}, 6")
    A(f"v_add_u32 v12, {sT0}, v12")
    A("v_lshlrev_b32 v13, 2, v8")
    A(f"v_add_u32 v13, {LDS_W}, v13")
    A(f"v_and_b32 v14, 1, v{vLANE}")
    A("v_cmp_eq_u32 vcc, 1, v14")
    A(f"s_lshl_b32 {sT0}, {sID}, 3")
    A(f"v_lshl_add_u32 v10, v14, 2, {sT0}")
    A(f"v_cndmask_b32 v92, v{vX4}, v{vX4+1}, vcc")
    A("v_and_b32 v93, 0xffff0000, v92")
    A("v_lshlrev_b32 v92, 16, v92")
    A(f"v_mov_b32 v9, {OOB}")
    A(f"v_cmp_gt_u32 vcc, 2, v{vLANE}")
    A(f"s_mov_b32 {sT2}, {LOG2E}")
    for k in range(4): A(f"s_mov_b32 s{64+k}, {ML_BASE + (k*64 << mlsh)}")
    A(f"v_lshlrev_b32 v97, {mlsh}, v{vLANE}")
    A("v_cndmask_b32 v96, v9, v10, vcc")
    if ts: stamp(6)
    if early:
        A(f"s_cmp_eq_u32 {sWV}, 3")
        A("s_cbranch_scc1 L_cons")
    lds_wait("L_sw", 8)
    record_store()
    stamp(8)
    if early:
        A("s_branch L_fin")
        A.lab("L_cons")
    else:
        A(f"s_cmp_lg_u32 {sWV}, 3")
        A("s_cbranch_scc1 L_fin")
    A(f"s_cmp_ge_u32 {sID}, 144")
    A("s_cbranch_scc1 L_fin")
    A.c("---- wave 3: final reduction for columns 4*id .. 4*id+3")
    GM, GW, GR = 100, RING, RING + 16
    mM, mR = "s[44:45]", "s[46:47]"
    if cdelay: A(f"s_sleep {cdelay}")
    for m in (mM, mR): A(f"s_mov_b64 {m}, -1")
    A(f"s_mov_b32 {sSPIN}, 0")
    def ld_ml():
        for k in range(4):
            A(f"buffer_load_dwordx4 v[{GM+4*k}:{GM+4*k+3}], v97, {srd(rWS)}, s{64+k} offen sc1")
    def ld_rec():
        A(f"s_mov_b32 {sT0}, 0")
        for i in range(16):
            A(f"buffer_load_dwordx4 v[{GR+4*i}:{GR+4*i+3}], v12, {srd(rWS)}, {sT0} offen sc1")
            if i < 15: A(f"s_add_u32 {sT0}, {sT0}, {16*BLK}")
    if fmode == 0:
        ld_ml()
        ld_rec()
        A("s_waitcnt vmcnt(16)")
        tagcheck([GM + 2 * k + 1 for k in range(8)])
        A(f"v_cmp_ne_u32 {mM}, 0, v9")
        A("s_nop 0")
        A(f"s_cmp_eq_u64 {mM}, 0")
        A("s_cbranch_scc1 L_fp_w")
        A("s_waitcnt vmcnt(0)")
        tagcheck([GR + 2 * k + 1 for k in range(32)])
        A(f"v_cmp_ne_u32 {mR}, 0, v9")
        A(f"s_mov_b64 exec, {mM}")
    A.lab("L_fp_m")
    if mlsleep: A(f"s_sleep {mlsleep}")
    ld_ml()
    A(f"s_add_u32 {sSPIN}, {sSPIN}, 1")
    A("s_waitcnt vmcnt(0)")
    tagcheck([GM + 2 * k + 1 for k in range(8)])
    A("v_cmp_ne_u32 vcc, 0, v9")
    A(f"s_cmp_ge_u32 {sSPIN}, {spin}")
    A("s_cbranch_scc1 L_fp_m2")
    A("s_and_b64 exec, exec, vcc")
    A("s_cbranch_execnz L_fp_m")
    A.lab("L_fp_m2")
    if rdelay: A(f"s_sleep {rdelay}")
    A(f"s_mov_b64 exec, {mR}")
    A("s_cbranch_execz L_fp_w")
    ld_rec()
    A.lab("L_fp_w")
    A("s_mov_b64 exec, -1")
    stamp(1)
    grp8 = ("quad_perm:[1,0,3,2]", "quad_perm:[2,3,0,1]", "row_half_mirror")
    for k in range(4): A(f"v_mov_b32 v{GM+4*k+1}, v{GM+4*k}")
    for d in grp8:
        for k in range(4): A(f"v_max_f32_dpp v{GM+4*k+1}, v{GM+4*k+1}, v{GM+4*k+1} {d} row_mask:0xf bank_mask:0xf")
    for k in range(4): A(f"v_sub_f32 v{GM+4*k}, v{GM+4*k}, v{GM+4*k+1}")
    for k in range(4): A(f"v_mul_f32 v{GM+4*k}, {sT2}, v{GM+4*k}")
    for k in range(4): A(f"v_exp_f32 v{GM+4*k}, v{GM+4*k}")
    for k in range(4): A(f"v_mul_f32 v{GM+4*k+2}, v{GM+4*k}, v{GM+4*k+2}")
    for d in grp8:
        for k in range(4): A(f"v_add_f32_dpp v{GM+4*k+2}, v{GM+4*k+2}, v{GM+4*k+2} {d} row_mask:0xf bank_mask:0xf")
    for k in range(4): A(f"v_rcp_f32 v{GM+4*k+2}, v{GM+4*k+2}")
    for k in range(4): A(f"v_mul_f32 v{GM+4*k}, v{GM+4*k}, v{GM+4*k+2}")
    for k in range(4): A(f"ds_write_b32 v37, v{GM+4*k} offset:{LDS_W + k*256}")
    A("s_waitcnt lgkmcnt(0)")
    for i in range(16):
        A(f"ds_read_b32 v{GW+i}, v13 offset:{i*64}")
        if i == 11: A("s_waitcnt lgkmcnt(8)")
    A("s_waitcnt lgkmcnt(0)")
    for i in range(16): A(f"v_cndmask_b32 v{GW+i}, 1.0, v{GW+i}, s[62:63]")
    A(f"s_mov_b64 exec, {mR}")
    A("s_cbranch_execz L_fp_done")
    A("s_branch L_fp_c")
    A.lab("L_fp_r")
    if fsleep: A(f"s_sleep {fsleep}")
    ld_rec()
    A.lab("L_fp_c")
    A(f"s_add_u32 {sSPIN}, {sSPIN}, 1")
    A("s_waitcnt vmcnt(0)")
    tagcheck([GR + 2 * k + 1 for k in range(32)])
    A("v_cmp_ne_u32 vcc, 0, v9")
    A(f"s_cmp_ge_u32 {sSPIN}, {spin}")
    A("s_cbranch_scc1 L_fp_done")
    A("s_and_b64 exec, exec, vcc")
    A("s_cbranch_execnz L_fp_r")
    A.lab("L_fp_done")
    A("s_mov_b64 exec, -1")
    stamp(10)
    for c in range(2):
        for i in range(2): A(f"v_mul_f32 v{88+2*c+i}, v{GW+8*c}, v{GR+32*c+2*i}")
    for k in range(1, 8):
        for c in range(2):
            for i in range(2): A(f"v_fmac_f32 v{88+2*c+i}, v{GW+8*c+k}, v{GR+32*c+4*k+2*i}")
    A("v_add_f32 v88, v88, v90")
    A("v_add_f32 v89, v89, v91")
    A("s_nop 0")
    for d in ("row_ror:4", "row_ror:8"):
        A(f"v_add_f32_dpp v88, v88, v88 {d} row_mask:0xf bank_mask:0xf")
        A(f"v_add_f32_dpp v89, v89, v89 {d} row_mask:0xf bank_mask:0xf")
        A("s_nop 0")
    for op in ("v_permlane16_swap_b32", "v_permlane32_swap_b32"):
        A("v_mov_b32 v14, v88")
        A("v_mov_b32 v15, v89")
        A("s_nop 1")
        A(f"{op} v14, v88")
        A(f"{op} v15, v89")
        A("v_add_f32 v88, v88, v14")
        A("v_add_f32 v89, v89, v15")
    for i in range(2): A(f"v_cvt_pk_bf16_f32 v{88+i}, v{88+i}, v{88+i}")
    for i in range(2): A(f"v_lshlrev_b32 v{88+i}, 16, v{88+i}")
    for i in range(2): A(f"v_add_f32 v{90+i}, v{92+i}, v{88+i}")
    for i in range(2): A(f"v_cvt_pk_bf16_f32 v{90+i}, v{90+i}, v{90+i}")
    for i in range(2): A(f"v_lshlrev_b32 v{90+i}, 16, v{90+i}")
    for i in range(2): A(f"v_add_f32_dpp v{90+i}, v{88+i}, v{90+i} quad_perm:[2,3,2,3] row_mask:0xf bank_mask:0xf")
    A("v_cvt_pk_bf16_f32 v12, v90, v91")
    A(f"buffer_store_dword v12, v96, {srd(rO)}, 0 offen")
    stamp(3)
    stampval(9, sSPIN)
    A(f"s_cmp_lg_u32 {sID}, 0")
    A("s_cbranch_scc1 L_fin")
    A(f"v_mov_b32 v10, {sTAG}")
    A(f"v_mov_b32 v11, {EPOCH_OFF}")
    A("s_mov_b64 exec, 1")
    A(f"buffer_store_dword v10, v11, {srd(rWS)}, 0 offen")
    if pad_to:
        A.lab("L_pad")
        A("s_memrealtime s[96:97]")
        A("s_waitcnt lgkmcnt(0)")
        A("s_sub_u32 s96, s96, s98")
        A(f"s_cmp_lt_u32 s96, {pad_to}")
        A("s_cbranch_scc1 L_pad")
    if stamps: A("s_branch L_fin")
    else: A("s_endpgm")

    mark_helper = len(A.L)
    A.lab("L_helper")
    A.c("---- helper waves 4..7")
    A(f"s_sub_u32 {sHW}, {sWV}, 4")
    A(f"v_lshlrev_b32 v8, 2, v{vLANE}")
    A(f"v_lshl_add_u32 v9, v{vN}, 2, v{vG}")
    A("v_and_b32 v9, -2, v9")
    A("v_lshlrev_b32 v9, 1, v9")
    A(f"s_mul_i32 {sT0}, {sS}, 144")
    A(f"s_and_b32 {sT1}, {sS}, 3")
    A(f"s_lshl_b32 {sT1}, {sT1}, 2")
    A(f"s_add_u32 s74, {sT1}, {sHW}")
    A(f"s_mul_i32 {sT1}, s74, 72")
    A(f"s_mov_b32 {sT2}, {EPOCH_OFF}")
    A("s_waitcnt lgkmcnt(0)")
    A(f"s_load_dword {sTAG}, s[{pWS}:{pWS+1}], {sT2}")
    mk_srd(rX, pX, 1152)
    for k in range(5):
        A(f"buffer_load_dword v{vXA+k}, v8, {srd(rX)}, 0 offen offset:{k*256}")
    for T in range(2):
        A(f"buffer_load_dword v{vXC+T}, v9, {srd(rX)}, {sT0} offen offset:{T*128}")
    A(f"buffer_load_dword v{vXC+2}, v9, {srd(rX)}, {sT1} offen")
    GUB = WBUF + 72
    A(f"s_cmp_lg_u32 {sHW}, 0")
    A("s_cbranch_scc1 L_x13")
    mk_srd(rW, pWQ, 0 if "w" in abl else 576 * 4096 * 2)
    A(f"s_mul_i32 {sT0}, {sS}, {72*8192}")
    A(f"s_lshl_b32 {sT1}, {sH}, 8")
    A(f"s_add_u32 {sOFF}, {sT0}, {sT1}")
    A(f"v_lshlrev_b32 v8, 13, v{vG}")
    A(f"v_lshl_add_u32 v10, v{vN}, 4, v8")
    for t in range(0 if "W" in abl else 18):
        r = WBUF + 4 * t
        A(f"buffer_load_dwordx4 v[{r}:{r+3}], v10, {srd(rW)}, {sOFF} offen nt")
        A(f"s_add_u32 {sOFF}, {sOFF}, 32768")
    A.lab("L_x13")
    if bar0: A("s_barrier")
    if codepf:
        A(f"s_cmp_lg_u32 {sHW}, 3")
        A("s_cbranch_scc1 L_nopf")
        A(f"s_cmp_ge_u32 {sID}, {codepf}")
        A("s_cbranch_scc1 L_nopf")
        A("s_getpc_b64 s[76:77]")
        A.lab("L_pfbase")
        A(f"s_sub_u32 s76, s76, L_pfbase-{KNAME}")
        A("s_subb_u32 s77, s77, 0")
        A(f"v_lshlrev_b32 v8, 7, v{vLANE}")
        A("global_load_dword v12, v8, s[76:77]")
        for k in (1, 2):
            A("v_add_u32 v8, 0x2000, v8")
            A(f"v_cmp_gt_i32 vcc, (L_codeend-{KNAME}-{k*8192})/128, v{vLANE}")
            A("s_and_saveexec_b64 s[72:73], vcc")
            A("s_cbranch_execz L_pf2")
            A(f"global_load_dword v{12+k}, v8, s[76:77]")
        A.lab("L_pf2")
        A("s_mov_b64 exec, -1")
        A("s_waitcnt vmcnt(0)")
        A.lab("L_nopf")
    A(f"s_cmp_lt_u32 {sID}, 128")
    A(f"s_cselect_b32 s{rO}, s{pWG}, s{pWU}")
    A(f"s_cselect_b32 s{rO+1}, s{pWG+1}, s{pWU+1}")
    A(f"s_mov_b32 s{rO+2}, {0 if 'g' in abl else 576*4608*2}")
    A(f"s_mov_b32 s{rO+3}, 0x20000")
    two_group_offsets(9216, "0", vOA, vOB)
    A(f"s_mul_i32 {sOFF}, s74, {36*9216}")
    A(f"s_mul_i32 {sT0}, {sH}, 288")
    A(f"s_add_u32 {sOFF}, {sOFF}, {sT0}")
    def gu_issue(t):
        if "u" in abl: return
        r = GUB + 8 * t
        A(f"buffer_load_dwordx4 v[{r}:{r+3}], v{vOA}, {srd(rO)}, {sOFF} offen nt")
        A(f"buffer_load_dwordx4 v[{r+4}:{r+7}], v{vOB}, {srd(rO)}, {sOFF} offen nt")
        A(f"s_add_u32 {sOFF}, {sOFF}, {4*9216}")
    GE = guearly
    for t in range(GE): gu_issue(t)
    stamp_init()
    mk_srd(rWS, pWS, WS_SIZE)
    masks()
    A(f"s_cmp_lg_u32 {sHW}, 0")
    A("s_cbranch_scc1 L_x13b")
    A(f"s_waitcnt vmcnt({18 + 2*GE})")
    A("s_branch L_ln")
    A.lab("L_x13b")
    A(f"s_waitcnt vmcnt({2*GE})")
    A.lab("L_ln")
    GE0 = GE
    GE = max(GE, gumid)
    for t in range(GE0, GE): gu_issue(t)
    stamp(8)
    XF = 68
    for k in range(5):
        A(f"v_lshlrev_b32 v{XF+2*k}, 16, v{vXA+k}")
        A(f"v_and_b32 v{XF+2*k+1}, 0xffff0000, v{vXA+k}")
    A(f"v_add_f32 v8, v{XF}, v{XF+1}")
    for k in range(2, 10): A(f"v_add_f32 v8, v8, v{XF+k}")
    dpp_reduce([8], "v_add_f32")
    A(f"v_mul_f32 v8, {f2u(1.0/576)}, v8")
    A(f"v_cmp_gt_u32 vcc, 32, v{vLANE}")
    A(f"v_readlane_b32 {sT0}, v8, 63")
    A("s_nop 1")
    for k in range(10): A(f"v_subrev_f32 v{XF+k}, {sT0}, v{XF+k}")
    A(f"v_cndmask_b32 v{XF+8}, 0, v{XF+8}, vcc")
    A(f"v_cndmask_b32 v{XF+9}, 0, v{XF+9}, vcc")
    A(f"v_mul_f32 v9, v{XF}, v{XF}")
    for k in range(1, 10): A(f"v_fmac_f32 v9, v{XF+k}, v{XF+k}")
    dpp_reduce([9], "v_add_f32")
    A(f"v_mul_f32 v9, {f2u(1.0/576)}, v9")
    bf16_round(9, 9)
    A(f"v_add_f32 v9, {f2u(1e-5)}, v9")
    bf16_round(9, 9)
    A("v_sqrt_f32 v9, v9")
    A("s_nop 0")
    bf16_round(9, 9)
    A("v_rcp_f32 v9, v9")
    bf16_round(8, 8)
    A("s_nop 0")
    A(f"v_readlane_b32 {sT0}, v8, 63")
    A(f"v_readlane_b32 {sT1}, v9, 63")
    A(f"v_and_b32 v10, 1, v{vG}")
    A("v_lshlrev_b32 v10, 4, v10")
    for k in range(3):
        r = vXC + k
        A(f"v_lshrrev_b32 v{r}, v10, v{r}")
        A(f"v_lshlrev_b32 v{r}, 16, v{r}")
        A(f"v_subrev_f32 v{r}, {sT0}, v{r}")
        bf16_round(r, r)
        A(f"v_mul_f32 v{r}, {sT1}, v{r}")
        A(f"v_cvt_pk_bf16_f32 v{r}, v{r}, v{r}")
    A("s_waitcnt lgkmcnt(0)")
    A(f"s_add_u32 {sTAG}, {sTAG}, {TAG_STEP}")
    A(f"s_getreg_b32 {sTAGX}, hwreg(HW_REG_XCC_ID)")
    A(f"s_and_b32 {sTAGX}, {sTAGX}, 7")
    A(f"s_and_b32 s46, {sID}, 7")
    A(f"s_xor_b32 s46, s46, {sTAGX}")
    A(f"s_xor_b32 {sTAGX}, {sTAGX}, {sTAG}")
    stamp(1)
    A(f"s_cmp_lg_u32 {sHW}, 0")
    A("s_cbranch_scc1 L_noq")
    for t in range(18):
        a = sel(vXC + t // 16, t % 16)
        A(f"s_waitcnt vmcnt({17 - t + 2*GE})")
        A("s_nop 0")
        mfma(vACC, a, WBUF + 4 * t, first=(t == 0))
    A(f"v_lshlrev_b32 v8, 4, v{vLANE}")
    A(f"s_lshl_b32 {sT0}, {sB}, 14")
    A(f"s_add_u32 {sT0}, {sT0}, {OFF_Q}")
    A(f"s_lshl_b32 {sT1}, {sH}, 17")
    A(f"s_add_u32 {sT1}, {sT1}, {OFF_Q}")
    for k in range(8):
        A(f"s_add_u32 s{60+k}, {sT1}, {k*BLK}")
    A(f"v_mov_b32 v29, {sTAGX}")
    A(f"v_mov_b32 v31, {sTAGX}")
    A(f"v_mov_b32 v28, v{vACC}")
    A(f"v_mov_b32 v30, v{vACC+1}")
    A("s_nop 1")
    A(f"v_permlane32_swap_b32 v28, v{vACC+2}")
    A(f"v_permlane32_swap_b32 v30, v{vACC+3}")
    QG = WBUF
    def ld_q(fl):
        for k in range(8):
            A(f"buffer_load_dwordx4 v[{QG+4*k}:{QG+4*k+3}], v8, {srd(rWS)}, s{60+k} offen {fl}")
    qtags = [QG + 2 * k + 1 for k in range(16)]
    def exchange(name, store, load, tags, check, first_delay, slp, limit, preloaded=False):
        A("s_mov_b64 s[44:45], 0")
        if not preloaded:
            A("s_cmp_lg_u32 s46, 0")
            A(f"s_cbranch_scc1 {name}_wt")
            store("")
            stamp(9)
            if first_delay: A(f"s_sleep {first_delay}")
            load("nt")
        A("s_waitcnt vmcnt(0)")
        verdict(tags, check, True)
        A("s_and_b64 exec, exec, vcc")
        A(f"s_cbranch_execz {name}_chk")
        A("s_cmp_lg_u64 s[44:45], 0")
        A(f"s_cbranch_scc1 {name}_wt")
        poll(f"{name}_p1", lambda: load("sc1"), tags, slp, check=check, limit=limit, keep=True, die=True, bail=f"{name}_wt")
        A.lab(f"{name}_chk")
        A("s_or_b64 s[44:45], s[44:45], exec")
        A(f"s_cbranch_scc0 {name}_ok")
        A.lab(f"{name}_wt")
        A("s_mov_b64 s[44:45], exec")
        store("sc1")
        A("s_mov_b64 exec, s[44:45]")
        A(f"s_cbranch_execz {name}_ok")
        poll(f"{name}_p2", lambda: load("sc1"), tags, slp, check=check, die=True)
        A.lab(f"{name}_ok")
        A("s_mov_b64 exec, -1")
    def q_store(fl):
        A("s_mov_b64 exec, -1")
        A(f"buffer_store_dwordx4 v[28:31], v8, {srd(rWS)}, {sT0} offen {fl}")
    if "q" not in abl:
        exchange("L_q", q_store, ld_q, qtags, None, qdelay, qsleep, qfall)
    for i in range(2):
        for k in range(4):
            A(f"v_add_f32 v{QG+8*k+2*i}, v{QG+8*k+2*i}, v{QG+8*k+4+2*i}")
        A(f"v_add_f32 v{QG+2*i}, v{QG+2*i}, v{QG+8+2*i}")
        A(f"v_add_f32 v{QG+16+2*i}, v{QG+16+2*i}, v{QG+24+2*i}")
        A(f"v_add_f32 v{28+i}, v{QG+2*i}, v{QG+16+2*i}")
    A(f"v_lshlrev_b32 v8, 5, v{vN}")
    A(f"v_and_b32 v9, 1, v{vG}")
    A("v_lshl_add_u32 v8, v9, 4, v8")
    A(f"v_lshrrev_b32 v9, 1, v{vG}")
    A("v_lshl_add_u32 v8, v9, 3, v8")
    A(f"ds_write_b64 v8, v[28:29] offset:{LDS_Q}")
    if tbase:
        A(f"v_subrev_u32 v12, s78, v{QG+32}")
        for d in ("quad_perm:[1,0,3,2]", "quad_perm:[2,3,0,1]", "row_half_mirror"):
            A("s_nop 1")
            A(f"v_min_i32_dpp v12, v12, v12 {d} row_mask:0xf bank_mask:0xf")
        A("v_add_u32 v12, s78, v12")
    A(f"v_mov_b32 v9, {LDS_CNT}")
    A("v_mov_b32 v10, 0")
    A("ds_write_b32 v9, v10")
    A("ds_write_b32 v9, v10 offset:4")
    A("ds_write_b32 v9, v10 offset:12")
    if tbase: A("ds_write_b32 v9, v12 offset:8")
    if cal:
        A("v_mov_b32 v11, 0x3fffffff")
        A("ds_write_b32 v9, v11 offset:8")
        A("ds_write_b32 v9, v10 offset:20")
    stampval(10, sSPIN)
    A("s_waitcnt lgkmcnt(0)")
    stamp(2)
    A("s_barrier")
    A.lab("L_noq")
    for t in range(GE, min(max(GE, DG), 9)): gu_issue(t)
    DGE = min(max(GE, DG), 9)
    A(f"v_lshlrev_b32 v8, 5, v{vN}")
    A(f"v_lshl_add_u32 v8, v{vG}, 4, v8")
    A(f"s_mul_i32 {sT0}, {sHW}, 576")
    A(f"v_add_u32 v66, {sT0}, v8")
    A(f"s_mul_i32 {sT0}, {sHW}, 2304")
    A(f"v_add_u32 v67, {sT0}, v8")
    for t in range(9):
        a = sel(vXC + 2, t)
        A(f"s_waitcnt vmcnt({2*(min(DGE + t, 9) - (t + 1))})")
        A("s_nop 0")
        mfma(vACC, a, GUB + 8 * t, first=(t == 0))
        mfma(vACC + 4, a, GUB + 8 * t + 4, first=(t == 0))
        if DGE + t < 9: gu_issue(DGE + t)
    A(f"s_mul_i32 {sT0}, {sS}, {GU_ROW}")
    A(f"s_mul_i32 {sT1}, {sH}, 1152")
    A(f"s_add_u32 {sT0}, {sT0}, {sT1}")
    A(f"s_add_u32 s68, {sT0}, {GU_BASE}")
    A("s_nop 3")
    two_group_to_lds(vACC, vACC + 4, 66)
    def gu_publish():
        A(f"v_lshlrev_b32 v8, 3, v{vLANE}")
        for w in range(4):
            A(f"ds_read_b64 v[{24+2*w}:{25+2*w}], v8 offset:{LDS_B + w*576}")
            A(f"ds_read_b64 v[{32+2*w}:{33+2*w}], v8 offset:{LDS_B + w*576 + 512}")
        for r in (49, 51, 53, 55): A(f"v_mov_b32 v{r}, {sTAGX}")
        A("s_waitcnt lgkmcnt(0)")
        for b0, d in ((24, 48), (32, 52)):
            for i in range(2):
                A(f"v_add_f32 v{b0+i}, v{b0+i}, v{b0+2+i}")
                A(f"v_add_f32 v{b0+4+i}, v{b0+4+i}, v{b0+6+i}")
                A(f"v_add_f32 v{d+2*i}, v{b0+i}, v{b0+4+i}")
        A("s_cmp_lg_u32 s46, 0")
        A("s_cbranch_scc1 L_gu_wt")
        gu_store("")
        A("s_branch L_gu_pub")
        A.lab("L_gu_wt")
        gu_store("sc1")
        A.lab("L_gu_pub")
    def gu_store(fl):
        A("s_mov_b64 exec, -1")
        A(f"buffer_store_dwordx4 v[48:51], v69, {srd(rWS)}, s68 offen {fl}")
        A("s_mov_b64 exec, 0xff")
        A(f"buffer_store_dwordx4 v[52:55], v69, {srd(rWS)}, s68 offen offset:1024 {fl}")
        A("s_mov_b64 exec, -1")
    stamp(3)
    A(f"s_cmp_eq_u32 {sHW}, 0")
    A("s_cbranch_scc1 L_b1done")
    A("s_barrier")
    A.lab("L_b1done")
    A(f"v_mov_b32 v8, {LDS_CNT}")
    A("v_mov_b32 v9, 1")
    A("s_mov_b64 exec, 1")
    A("s_waitcnt lgkmcnt(0)")
    A("ds_add_u32 v8, v9 offset:12")
    A("s_mov_b64 exec, -1")
    mk_srd(rW, pWO, 0 if "O" in abl else 4096 * 576 * 2)
    A(f"v_mul_u32_u24 v8, 1152, v{vG}")
    A(f"v_lshl_add_u32 v{vOA}, v{vN}, 4, v8")
    A(f"v_mov_b32 v9, {OOB}")
    A(f"v_cmp_gt_u32 vcc, 8, v{vN}")
    A(f"s_lshl_b32 {sT0}, {sH}, 2")
    A(f"s_add_u32 {sT0}, {sT0}, {sHW}")
    A(f"v_cndmask_b32 v{vOB}, v9, v{vOA}, vcc")
    A(f"s_mul_i32 {sOFF}, {sT0}, {32*1152}")
    for t in range(0 if "o" in abl else 8):
        for cg in range(5):
            A(f"s_waitcnt vmcnt({DW-1})")
            r = WBUF + 20 * t + 4 * cg
            A(f"buffer_load_dwordx4 v[{r}:{r+3}], v{vOA if cg < 4 else vOB}, {srd(rW)}, {sOFF} offen offset:{cg*256} nt")
        A(f"s_add_u32 {sOFF}, {sOFF}, {4*1152}")
    A(f"v_and_b32 v8, 7, v{vN}")
    A(f"v_lshl_add_u32 v8, v8, 2, v{vG}")
    A(f"s_lshl_b32 {sT0}, {sHW}, 7")
    A(f"v_lshl_add_u32 v66, v8, 2, {sT0}")
    record_addr_setup()
    A("v_mov_b32 v70, 0")
    for r in (81, 83): A(f"v_mov_b32 v{r}, {sTAG}")
    A(f"s_lshl_b32 {sCNT}, {sB}, {mlsh}")
    A(f"s_add_u32 {sCNT}, {sCNT}, {ML_BASE}")
    A(f"s_mov_b32 {sT2}, {LOG2E}")
    A(f"s_cmp_lg_u32 {sHW}, 3")
    A("s_cbranch_scc1 L_nocal")
    A(f"s_and_b32 s64, {sID}, {256 - NS}")
    A("s_lshl_b32 s64, s64, 7")
    A(f"v_lshlrev_b32 v44, 7, v{vLANE}")
    A(f"v_mov_b32 v93, {sTAG}")
    A(f"v_mov_b32 v95, {sTAG}")
    HG = 24
    A(f"v_mul_u32_u24 v8, 57, v{vLANE}")
    A("v_lshrrev_b32 v8, 9, v8")
    A("v_mul_u32_u24 v9, 9, v8")
    A(f"v_sub_u32 v9, v{vLANE}, v9")
    A(f"v_mul_u32_u24 v11, {GU_ROW}, v8")
    A("v_lshl_add_u32 v11, v9, 4, v11")
    A(f"s_mul_i32 {sT0}, {sB}, 144")
    A(f"s_add_u32 {sT0}, {sT0}, {GU_BASE}")
    A(f"v_add_u32 v11, {sT0}, v11")
    A("v_mul_u32_u24 v12, 72, v8")
    A("v_lshl_add_u32 v12, v9, 3, v12")
    A(f"v_add_u32 v12, {LDS_G}, v12")
    A(f"v_mov_b32 v13, {OOB}")
    A("v_cmp_gt_u32 s[70:71], 1, v8")
    A(f"v_lshl_add_u32 v75, v{vN}, 2, v{vG}")
    A("v_cmp_gt_u32 s[72:73], 18, v75")
    A("v_lshlrev_b32 v75, 2, v75")
    A("v_cndmask_b32 v13, v13, v11, s[70:71]")
    A(f"v_lshlrev_b32 v76, 2, v{vLANE}")
    def wait_seq(seq, tile=False):
        l = newlab("cw")
        A(f"s_mov_b32 {sSPIN}, 0")
        A.lab(l)
        A("s_sleep 4")
        A("ds_read_b64 v[8:9], v71 offset:16")
        if tile: A("ds_read_b32 v10, v71 offset:12")
        A(f"s_add_u32 {sSPIN}, {sSPIN}, 1")
        A("s_waitcnt lgkmcnt(0)")
        A("v_readfirstlane_b32 s67, v9")
        if tile: A("v_readfirstlane_b32 s66, v10")
        A(f"s_cmp_ge_u32 {sSPIN}, {spin}")
        A(f"s_cbranch_scc1 {l}x")
        A(f"s_cmp_lt_u32 s67, {seq}")
        A(f"s_cbranch_scc1 {l}")
        if tile:
            A("s_cmp_lt_u32 s66, 4")
            A(f"s_cbranch_scc1 {l}")
        A.lab(l + "x")
    for k, c in enumerate(CP):
        nominal = sum(2 * (TK if i < 4 else TV) for i in range(c))
        wait_seq(c + 1, tile=(k == gck))
        l2 = newlab("cs")
        A(f"s_cmp_lg_u32 s67, {c + 1}")
        A(f"s_cbranch_scc1 {l2}")
        A("v_mov_b32 v92, v8")
        A("v_mov_b32 v94, v8")
        A(f"s_lshl_b32 {sT0}, {sID}, 7")
        A(f"s_add_u32 {sT0}, {sT0}, {TS_BASE + k*32768}")
        A("s_mov_b64 exec, 0xff")
        A(f"buffer_store_dwordx4 v[92:95], v69, {srd(rWS)}, {sT0} offen {tst}")
        A("s_mov_b64 exec, -1")
        A.lab(l2)
        if k == gck and "G" not in abl: gu_publish()
        wait_seq(c + 2)
        A(f"s_add_u32 {sT0}, s64, {TS_BASE + k*32768}")
        A("v_mov_b32 v79, 0")
        A("v_mov_b32 v78, 0")
        if NS == 32: A("s_mov_b32 exec_hi, 0")
        elif NS == 16: A("s_mov_b64 exec, 0xffff")
        A(f"buffer_load_dwordx2 v[78:79], v44, {srd(rWS)}, {sT0} offen {tld}")
        hh = (k == gck and "G" not in abl and "h" not in abl)
        def ld_gu2(fl=hld):
            A(f"s_mov_b32 {sT0}, {7*GU_ROW}")
            A(f"buffer_load_dwordx4 v[24:27], v11, {srd(rWS)}, 0 offen {fl}")
            A(f"buffer_load_dwordx4 v[28:31], v13, {srd(rWS)}, {sT0} offen {fl}")
        def ck_gu2():
            A(f"v_mov_b32 v14, {sTAGX}")
            A("v_cndmask_b32 v29, v14, v29, s[70:71]")
            A("v_cndmask_b32 v31, v14, v31, s[70:71]")
            tagcheck([25, 27, 29, 31], sTAG=sTAGX)
        if hh:
            A("s_mov_b32 exec_lo, -1")
            A("s_mov_b32 exec_hi, 0x7fffffff")
            ld_gu2()
        A("s_mov_b64 exec, -1")
        A(f"s_waitcnt vmcnt({2 if hh else 0})")
        A(f"v_cmp_eq_u32 vcc, {sTAG}, v79")
        A("v_cvt_f32_u32 v78, v78")
        A("s_bcnt1_i32_b64 s65, vcc")
        A("v_cndmask_b32 v78, 0, v78, vcc")
        dpp_reduce([78], "v_add_f32")
        l3 = newlab("cf")
        A(f"s_cmp_lt_u32 s65, {NS // 2}")
        A(f"s_cbranch_scc1 {l3}")
        A("v_cvt_f32_u32 v9, s65")
        A("v_rcp_f32 v9, v9")
        A("s_nop 0")
        A("v_mul_f32 v78, v78, v9")
        A("v_cvt_u32_f32 v78, v78")
        A(f"v_subrev_u32 v78, {(nominal - MG) & 0xffffffff}, v78")
        A("s_mov_b32 exec_lo, 0")
        A("s_mov_b32 exec_hi, 0x80000000")
        A("ds_write_b32 v71, v78 offset:8")
        A("s_mov_b64 exec, -1")
        A.lab(l3)
        if hh:
            A("s_mov_b32 exec_hi, 0x7fffffff")
            exchange("L_h", gu_store, ld_gu2, None, ck_gu2, 0, hsleep, 4, preloaded=True)
            A("s_mov_b32 exec_lo, -1")
            A("s_mov_b32 exec_hi, 0x7fffffff")
            A("ds_write2_b32 v12, v24, v26 offset0:0 offset1:1")
            A("s_mov_b64 exec, s[70:71]")
            A("ds_write2_b32 v12, v28, v30 offset0:126 offset1:127")
            A("s_mov_b64 exec, -1")
            A("s_waitcnt lgkmcnt(0)")
            for r in range(8):
                A(f"ds_read_b32 v{24+r}, v75 offset:{LDS_G + r*72}")
            A("s_waitcnt lgkmcnt(0)")
            for m in range(2):
                A(f"v_add_f32 v{24+4*m}, v{24+4*m}, v{25+4*m}")
                A(f"v_add_f32 v{26+4*m}, v{26+4*m}, v{27+4*m}")
                A(f"v_add_f32 v{88+m}, v{24+4*m}, v{26+4*m}")
            bf16_round(88, 88); bf16_round(89, 89)
            A(f"v_mul_f32 v{vCO}, v88, v89")
            A(f"v_cvt_pk_bf16_f32 v{vCO}, v{vCO}, v{vCO}")
            A(f"v_cndmask_b32 v{vCO}, 0, v{vCO}, s[72:73]")
            A(f"ds_write_b32 v76, v{vCO} offset:{LDS_H}")
            stamp(4)
    A.lab("L_nocal")
    A("s_waitcnt vmcnt(0) lgkmcnt(0)")
    stamp(5)
    A("s_barrier")
    if ts: stamp(1)
    A(f"ds_read_b128 v[48:51], v70 offset:{LDS_ML}")
    A(f"ds_read_b128 v[52:55], v70 offset:{LDS_ML+16}")
    for w in range(4):
        A(f"ds_read_b32 v{56+w}, v66 offset:{LDS_O + w*512}")
    A("s_waitcnt lgkmcnt(4)")
    A("v_max3_f32 v80, v48, v50, v52")
    A("v_max_f32 v80, v80, v54")
    for w in range(4): A(f"v_sub_f32 v{48+2*w}, v{48+2*w}, v80")
    for w in range(4): A(f"v_mul_f32 v{48+2*w}, {sT2}, v{48+2*w}")
    for w in range(4): A(f"v_exp_f32 v{48+2*w}, v{48+2*w}")
    A("s_waitcnt lgkmcnt(0)")
    A("v_mul_f32 v10, v48, v56")
    A("v_mul_f32 v82, v48, v49")
    for w in range(1, 4):
        A(f"v_fmac_f32 v10, v{48+2*w}, v{56+w}")
        A(f"v_fmac_f32 v82, v{48+2*w}, v{49+2*w}")
    A(f"v_cvt_pk_bf16_f32 v{vCO}, v10, v10")
    A(f"s_cmp_lg_u32 {sHW}, 2")
    A("s_cbranch_scc1 L_noml")
    A("s_mov_b64 exec, 1")
    A(f"buffer_store_dwordx4 v[80:83], v70, {srd(rWS)}, {sCNT} offen sc1")
    A("s_mov_b64 exec, -1")
    A.lab("L_noml")
    if ts: stamp(2)
    if apipe:
        a = sel(vCO, 0)
        A("s_nop 1")
        for t in range(8):
            an = vAop[aop_flip[0]]; aop_flip[0] ^= 1
            for cg in range(5):
                mfma(vACC + 4 * cg if cg < 4 else 84, a, WBUF + 20 * t + 4 * cg, first=(t == 0))
                if t < 7 and cg < 2:
                    for i in (2 * cg, 2 * cg + 1):
                        A(f"v_and_b32_dpp v{an+i}, v{vCO}, v{vMK[i]} row_newbcast:{t+1} row_mask:0xf bank_mask:0xf")
            a = an
    else:
        for t in range(8):
            a = sel(vCO, t)
            A("s_nop 1")
            for cg in range(5):
                mfma(vACC + 4 * cg if cg < 4 else 84, a, WBUF + 20 * t + 4 * cg, first=(t == 0))
    A("s_nop 3")
    A("s_mov_b32 exec_hi, 0")
    for cg in range(4):
        A(f"ds_write_b128 v67, v[{vACC+4*cg}:{vACC+4*cg+3}] offset:{LDS_A + cg*512}")
    A("s_mov_b32 exec_lo, 0x00ff00ff")
    A(f"ds_write_b128 v67, v[84:87] offset:{LDS_A + 2048}")
    A("s_mov_b64 exec, 1")
    A("s_waitcnt lgkmcnt(0)")
    A("ds_add_u32 v71, v72")
    A("s_mov_b64 exec, -1")
    if ts: stamp(4)
    lds_wait("L_hw", 8)
    if ts: stamp(7)
    record_store()
    A(f"s_cmp_lg_u32 {sHW}, 3")
    A("s_cbranch_scc1 L_nox")
    A("s_nop 1")
    record_store(extra=1)
    A.lab("L_nox")
    if early:
        A(f"s_cmp_lg_u32 {sHW}, 2")
        A("s_cbranch_scc1 L_nox2")
        record_store(back=3)
        A.lab("L_nox2")
    stamp(6)
    if relayout:
        A("s_branch L_fin" if stamps else "s_endpgm")
        hl = A.L[mark_helper:]
        del A.L[mark_helper:]
        i = A.L.index("@@HELPER@@")
        A.L[i:i+1] = hl
    A.lab("L_fin")
    stamp_flush()
    A.lab("L_end")
    A("s_endpgm")
    A.lab("L_codeend")

    out = HEADER
    out += f"; @launch grid=(256,1,1) block=(512,1,1) lds={LDS_BYTES}\n"
    out += '.amdgcn_target "amdgcn-amd-amdhsa--gfx950"\n.text\n'
    out += f".globl {KNAME}\n.p2align 8\n.type {KNAME},@function\n"
    out += "\n".join(A.L) + "\n"
    out += '.section .rodata,"a"\n.p2align 6\n'
    out += f""".amdhsa_kernel {KNAME}
  .amdhsa_next_free_vgpr 256
  .amdhsa_next_free_sgpr 102
  .amdhsa_accum_offset 256
  .amdhsa_group_segment_fixed_size 0
  .amdhsa_kernarg_size 96
  .amdhsa_user_sgpr_count 2
  .amdhsa_user_sgpr_kernarg_segment_ptr 1
  .amdhsa_system_sgpr_workgroup_id_x 1
.end_amdhsa_kernel
"""
    return out

if __name__ == "__main__":
    import json
    kw = json.loads(sys.argv[1]) if len(sys.argv) > 1 else {}
    sys.stdout.write(gen(**kw))
```

```python
import sys, struct

KNAME = "parallel_sum__mha_block_cached__glu_gated_bilinear__decode_kernel"

HEADER = """; Kernarg layout for this problem (96 bytes, ptrs only, base s[0:1]):
"""

def f2u(x):
    return struct.unpack("<I", struct.pack("<f", x))[0]

BLK = 16384
OFF_R, OFF_Q = 0, 9216
GU_BASE = 256 * BLK
GU_ROW = 4608 * 8
ML_BASE = GU_BASE + 32 * GU_ROW
EPOCH_OFF = ML_BASE + 32768
TS_BASE = EPOCH_OFF + 4096
STAMP_BASE = 6 << 20
REC_BASE = 8 << 20
WS_SIZE = 12 << 20
OOB = 0x40000000
TAG_STEP = 0x9E3779B9
LOG2E = f2u(1.4426950408889634)
LDS_Q = 0
LDS_CNT = 512
LDS_H = 768
LDS_ML = 1024
LDS_O = 1280
LDS_B = 3328
LDS_W = 5632
LDS_A = 8192
LDS_G = 8192 + 4 * 2304 + 512
LDS_BYTES = LDS_G + 2304 + 256

class G:
    def __init__(self):
        self.L = []
    def __call__(self, s):
        self.L.append("  " + s)
    def lab(self, s):
        self.L.append(s + ":")
    def c(self, s):
        self.L.append("  ; " + s)

def gen(D=5, INIT=8, stamps=False, DG=5, DW=4, spin=1 << 18, codepf=16, fsleep=0, qdelay=8, abl="",
        hsleep=40, D2=6, T0=800, TK=236, TV=219, mlsleep=0, warm="", cdelay=0, dbg=0, ts=0, cal=1, MG=50, CP=(2, 4), NS=32, tbase=0, guearly=0, htail=2, hstep=16, wdstep=8, apipe=1, D3=8, L3=100, D0=4, L0=100, rot=0, CI=8, FK=0, FV=0, FP=0, clk=0, qld="nt", hld="nt", tld="sc1", qst="", gust="", tst="sc1", gupub=1, gck=1, fmode=1, rdelay=0, mlsh=6, early=0, INIT0=0, XS=0, late=None, ldelay=6, bar4=1, prew=1, endb=100, endstep=24, rt=0, swap=1, relayout=1, bar0=0, qfall=6, pad_to=0, gumid=0, qsleep=16):
    if dbg: stamps = True
    A = G()
    sID = "s2"
    pX, pK, pV, pWQ, pWO, pWG, pWU, pWD, pOUT, pDBG, pWS = 16, 18, 20, 22, 24, 28, 30, 32, 34, 36, 38
    rX, rST, rW, rWS, rO = 40, 44, 48, 52, 56
    sWV, sH, sS, sB, sHW = "s3", "s4", "s5", "s6", "s7"
    sOFF, sCNT, sT0, sT1, sT2, sM = "s8", "s9", "s10", "s11", "s12", "s13"
    sSPIN, sTAG = "s14", "s15"
    mU = ["s[60:61]", "s[62:63]", "s[64:65]", "s[66:67]"]
    mT = ["s[68:69]", "s[70:71]", "s[72:73]", "s[74:75]"]
    def srd(r): return f"s[{r}:{r+3}]"
    def mk_srd(r, p, size):
        A(f"s_mov_b32 s{r}, s{p}"); A(f"s_mov_b32 s{r+1}, s{p+1}"); A(f"s_mov_b32 s{r+2}, {size}"); A(f"s_mov_b32 s{r+3}, 0x20000")
    SB = 80
    def stamp(idx):
        if not stamps: return
        assert idx < 11
        A(f"s_memrealtime s[{SB+2*idx}:{SB+2*idx+1}]")
    def stampval(idx, sreg):
        if not stamps: return
        A(f"s_mov_b32 s{SB+2*idx}, {sreg}")
    def stamp_init():
        if stamps:
            for i in range(1, 11): A(f"s_mov_b32 s{SB+2*i}, 0")
    def stamp_flush():
        if not stamps: return
        A("s_waitcnt vmcnt(0) lgkmcnt(0)")
        A("s_mov_b64 exec, -1")
        A(f"s_lshl_b32 s8, {sID}, 3")
        A(f"s_add_u32 s8, s8, {sWV}")
        A("s_lshl_b32 s8, s8, 6")
        A(f"s_add_u32 s8, s8, {STAMP_BASE}")
        A("v_mov_b32 v8, 0")
        for i in range(11):
            A(f"v_writelane_b32 v8, s{SB+2*i}, {i}")
        A(f"v_lshlrev_b32 v9, 2, v{vLANE}")
        A(f"v_mov_b32 v10, {OOB}")
        A(f"v_cmp_gt_u32 vcc, 16, v{vLANE}")
        A("s_nop 1")
        A("v_cndmask_b32 v9, v10, v9, vcc")
        A(f"buffer_store_dword v8, v9, {srd(rWS)}, s8 offen")
        if dbg:
            A(f"s_cmp_lg_u32 {sID}, {dbg-1}")
            A("s_cbranch_scc1 L_end")
            A(f"s_cmp_lg_u32 {sWV}, 3")
            A("s_cbranch_scc1 L_end")
            mk_srd(rO, pDBG, 256)
            A(f"v_subrev_u32 v8, s{SB}, v8")
            A(f"buffer_store_dword v8, v9, {srd(rO)}, 0 offen")
    vLANE, vG, vN = 1, 2, 3
    vMK = [4, 5, 6, 7]
    vAop = [16, 20]
    vACC = 24
    vOFFC, vOFFV = 46, 47
    vBQ = 48
    vDK = 64
    vS = 68
    vSN, vP, vL = 76, 77, 78
    vX4 = 80
    WDB = 84
    RING = 128
    vXA = 48
    vXC = 56
    vOA, vOB = 60, 61
    vCO = 64
    WBUF = 96
    uid = [0]
    def newlab(p):
        uid[0] += 1
        return f"L_{p}{uid[0]}"

    def dpp_reduce(regs, op):
        pad = "s_nop 1" if len(regs) == 1 else ("s_nop 0" if len(regs) == 2 else None)
        A("s_nop 1")
        for d, rm in (("row_shr:1", "0xf"), ("row_shr:2", "0xf"), ("row_shr:4", "0xf"), ("row_shr:8", "0xf"), ("row_bcast:15", "0xa"), ("row_bcast:31", "0xc")):
            for r in regs: A(f"{op}_dpp v{r}, v{r}, v{r} {d} row_mask:{rm} bank_mask:0xf")
            if pad: A(pad)
        if not pad: A("s_nop 0")
    aop_flip = [0]
    def sel(coef, idx):
        a = vAop[aop_flip[0]]; aop_flip[0] ^= 1
        for i in range(4):
            A(f"v_and_b32_dpp v{a+i}, v{coef}, v{vMK[i]} row_newbcast:{idx} row_mask:0xf bank_mask:0xf")
        return a
    def mfma(d, a, b, first=False):
        c = "0" if first else f"v[{d}:{d+3}]"
        A(f"v_mfma_f32_16x16x32_bf16 v[{d}:{d+3}], v[{a}:{a+3}], v[{b}:{b+3}], {c}")
    def bf16_round(dst, src):
        A(f"v_cvt_pk_bf16_f32 v{dst}, v{src}, v{src}")
        A(f"v_lshlrev_b32 v{dst}, 16, v{dst}")
    sTAGX = "s75"
    def tagcheck(regs, dst=9, tmp=10, tmp2=15, sTAG=sTAG):
        regs = list(regs)
        lv = [(regs[i], regs[i+1]) for i in range(0, len(regs), 2)]
        A(f"v_bitop3_b32 v{dst}, v{lv[0][0]}, v{lv[0][1]}, {sTAG} bitop3:0x7e")
        rest = lv[1:]; k = 0
        while k < len(rest):
            A(f"v_bitop3_b32 v{tmp}, v{rest[k][0]}, v{rest[k][1]}, {sTAG} bitop3:0x7e")
            if k + 1 < len(rest):
                A(f"v_bitop3_b32 v{tmp2}, v{rest[k+1][0]}, v{rest[k+1][1]}, {sTAG} bitop3:0x7e")
                A(f"v_or3_b32 v{dst}, v{dst}, v{tmp}, v{tmp2}")
            else:
                A(f"v_or_b32 v{dst}, v{dst}, v{tmp}")
            k += 2
    def poll(label, loads, tagregs, slp, check=None, limit=None, keep=False, die=False, bail=None):
        A(f"s_mov_b32 {sSPIN}, 0")
        A.lab(label)
        loads()
        A("s_waitcnt vmcnt(0)")
        verdict(tagregs, check, die)
        A(f"s_add_u32 {sSPIN}, {sSPIN}, 1")
        A("s_and_b64 exec, exec, vcc")
        A(f"s_cbranch_execz {label}_done")
        if bail:
            A("s_cmp_lg_u64 s[44:45], 0")
            A(f"s_cbranch_scc1 {bail}")
        if slp: A(f"s_sleep {slp}")
        A(f"s_cmp_lt_u32 {sSPIN}, {limit or spin}")
        A(f"s_cbranch_scc1 {label}")
        A.lab(f"{label}_done")
        if not keep: A("s_mov_b64 exec, -1")
    def verdict(tagregs, check, die):
        if check: check()
        else: tagcheck(tagregs, sTAG=sTAGX if die else sTAG)
        if die:
            A("v_cmp_ne_u32 vcc, 0, v9")
            A("s_or_b64 s[44:45], s[44:45], vcc")
            A("v_cmp_lt_u32 vcc, 7, v9")
            A("s_andn2_b64 s[44:45], s[44:45], vcc")
        else:
            A("v_cmp_ne_u32 vcc, 0, v9")
    def two_group_offsets(rowstride, sw, oa, ob):
        A(f"s_mul_i32 {sT2}, {sw}, 288")
        A(f"v_mul_u32_u24 v8, {rowstride}, v{vG}")
        A(f"v_lshl_add_u32 v8, v{vN}, 4, v8")
        A(f"v_add_u32 v{oa}, {sT2}, v8")
        A(f"v_add_u32 v8, 256, v{oa}")
        A(f"v_mov_b32 v9, {OOB}")
        A(f"v_cmp_gt_u32 vcc, 2, v{vN}")
        A("s_nop 1")
        A(f"v_cndmask_b32 v{ob}, v9, v8, vcc")
    def two_group_to_lds(accA, accB, vaddr):
        A("s_mov_b32 exec_hi, 0")
        A(f"ds_write_b128 v{vaddr}, v[{accA}:{accA+3}] offset:{LDS_B}")
        A("s_mov_b32 exec_lo, 0x00030003")
        A(f"ds_write_b128 v{vaddr}, v[{accB}:{accB+3}] offset:{LDS_B+512}")
        A("s_mov_b64 exec, -1")
    def masks():
        A(f"v_and_b32 v8, 1, v{vN}")
        A("v_lshlrev_b32 v8, 4, v8")
        A(f"s_mov_b32 {sT0}, 0xffff")
        A(f"v_lshlrev_b32 v8, v8, {sT0}")
        A(f"v_lshrrev_b32 v11, 1, v{vN}")
        for i in range(4):
            A(f"v_cmp_eq_u32 vcc, {i}, v11")
            A("s_nop 1")
            A(f"v_cndmask_b32 v{vMK[i]}, 0, v8, vcc")
    def tail_store_setup():
        pass
    def lds_wait(label, target):
        A(f"s_mov_b32 {sSPIN}, 0")
        A.lab(label)
        A("ds_read_b32 v9, v71")
        A(f"s_add_u32 {sSPIN}, {sSPIN}, 1")
        A("s_waitcnt lgkmcnt(0)")
        A(f"v_readfirstlane_b32 {sT0}, v9")
        A(f"s_cmp_ge_u32 {sSPIN}, {spin}")
        A(f"s_cbranch_scc1 {label}_done")
        A(f"s_cmp_lt_u32 {sT0}, {target}")
        A(f"s_cbranch_scc1 {label}")
        A.lab(f"{label}_done")
    def record_addr_setup():
        A(f"v_and_b32 v8, 1, v{vLANE}")
        A(f"v_lshrrev_b32 v9, 2, v{vLANE}")
        A("v_lshlrev_b32 v9, 4, v9")
        A("v_lshl_add_u32 v8, v8, 3, v9")
        A(f"s_lshl_b32 {sT0}, {sWV}, 8")
        A(f"v_add_u32 v68, {sT0}, v8")
        A(f"v_lshlrev_b32 v69, 4, v{vLANE}")
        A(f"v_and_b32 v8, 2, v{vLANE}")
        A("v_cmp_eq_u32 s[62:63], 0, v8")
        A(f"v_mov_b32 v71, {LDS_CNT}")
        A("v_mov_b32 v72, 1")
        A(f"v_mov_b32 v41, {sTAG}")
        A(f"v_mov_b32 v43, {sTAG}")
        if rt:
            A(f"v_lshrrev_b32 v8, 2, v{vLANE}")
            A(f"v_and_b32 v9, 3, v{vLANE}")
            A("v_lshlrev_b32 v9, 4, v9")
            A("v_lshl_add_u32 v65, v8, 14, v9")
            A(f"s_lshl_b32 s60, {sB}, 6")
            A(f"s_lshl_b32 {sT0}, {sWV}, 18")
            A(f"s_add_u32 s60, s60, {sT0}")
            A(f"s_add_u32 s60, s60, {REC_BASE}")
            A(f"s_add_u32 s61, s60, {1 << 18}")
        else:
            A(f"s_lshl_b32 s60, {sB}, 14")
            A(f"s_lshl_b32 {sT0}, {sWV}, 10")
            A(f"s_add_u32 s60, s60, {sT0}")
    def record_store(extra=0, base=48, back=0):
        lo = 256 * extra
        if back:
            A(f"v_subrev_u32 v68, {256*back}, v68")
            A(f"s_sub_u32 s60, s60, {1024*back}")
        for w in range(4):
            A(f"ds_read_b64 v[{base+2*w}:{base+2*w+1}], v68 offset:{LDS_A + w*2304 + lo}")
        A(f"ds_read_b64 v[{base+8}:{base+9}], v68 offset:{LDS_B + lo}")
        A("s_waitcnt lgkmcnt(1)")
        for i in range(2):
            A(f"v_add_f32 v{base+i}, v{base+i}, v{base+2+i}")
            A(f"v_add_f32 v{base+4+i}, v{base+4+i}, v{base+6+i}")
        for i in range(2):
            A(f"v_add_f32 v{base+i}, v{base+i}, v{base+4+i}")
        A("s_waitcnt lgkmcnt(0)")
        A(f"v_cndmask_b32 v40, v{base+8}, v{base}, s[62:63]")
        A(f"v_cndmask_b32 v42, v{base+9}, v{base+1}, s[62:63]")
        if rt: A(f"buffer_store_dwordx4 v[40:43], v65, {srd(rWS)}, s{60+extra} offen sc1")
        else: A(f"buffer_store_dwordx4 v[40:43], v69, {srd(rWS)}, s60 offen offset:{1024*extra} sc1")

    A.lab(KNAME)
    A(f"s_cmp_ge_u32 {sID}, 256")
    A("s_cbranch_scc1 L_end")
    A("s_load_dwordx16 s[16:31], s[0:1], 0")
    A("s_load_dwordx8 s[32:39], s[0:1], 64")
    A("s_memrealtime s[78:79]")
    if pad_to: A("s_memrealtime s[98:99]")
    stamp(0)
    A("v_lshrrev_b32 v8, 6, v0")
    A(f"v_and_b32 v{vLANE}, 63, v0")
    A(f"v_readfirstlane_b32 {sWV}, v8")
    A(f"v_lshrrev_b32 v{vG}, 4, v{vLANE}")
    A(f"v_and_b32 v{vN}, 15, v{vLANE}")
    A(f"s_and_b32 {sT0}, {sID}, 7")
    A(f"s_lshr_b32 {sT1}, {sID}, 3")
    A(f"s_and_b32 {sH}, {sT1}, 3")
    A(f"s_lshr_b32 {sS}, {sT1}, 2")
    A(f"s_lshl_b32 {sT0}, {sT0}, 2")
    A(f"s_add_u32 {sH}, {sH}, {sT0}")
    A(f"s_lshl_b32 {sB}, {sH}, 3")
    A(f"s_add_u32 {sB}, {sB}, {sS}")
    if swap: A(f"s_xor_b32 {sWV}, {sWV}, 4")
    A(f"s_cmp_ge_u32 {sWV}, 4")
    A("s_cbranch_scc1 L_helper")

    A.c("---- streamer waves 0..3")
    A(f"s_lshl_b32 {sT0}, {sB}, 19")
    A(f"s_lshl_b32 {sT1}, {sWV}, 10")
    A(f"s_add_u32 {sT0}, {sT0}, {sT1}")
    A(f"v_lshrrev_b32 v8, 2, v{vN}")
    A("v_lshlrev_b32 v8, 8, v8")
    A(f"v_and_b32 v11, 3, v{vN}")
    A("v_lshlrev_b32 v11, 4, v11")
    A(f"v_lshlrev_b32 v12, 6, v{vG}")
    A("v_add3_u32 v8, v8, v11, v12")
    if "n" in abl: A(f"v_lshlrev_b32 v8, 4, v{vLANE}")
    A(f"v_add_u32 v{vOFFC}, {sT0}, v8")
    A(f"s_mov_b32 {sOFF}, 0")
    A(f"s_mov_b32 s{rST+2}, 0x8000000")
    A(f"s_mov_b32 s{rST+3}, 0x20000")
    A("s_waitcnt lgkmcnt(0)")
    A(f"s_mov_b32 s{rST}, s{pK}")
    A(f"s_mov_b32 s{rST+1}, s{pK+1}")
    if rot:
        A(f"s_mul_hi_u32 {sOFF}, s78, {int(2**32 / rot)}")
        A(f"s_lshl_b32 {sOFF}, {sOFF}, 12")
        A(f"s_and_b32 {sOFF}, {sOFF}, 0x7ffff")
    def pace(d):
        if T0:
            l = newlab("pc")
            if D3:
                A(f"s_cmp_gt_i32 s75, {L3}")
                A(f"s_cbranch_scc1 {l}b")
            A(f"s_cbranch_vccnz {l}")
            if D0:
                A(f"s_cmp_gt_i32 s75, {-L0}")
                A(f"s_cbranch_scc1 {l}a")
                A(f"s_waitcnt vmcnt({D0-1})")
                A.lab(l + "a")
            A(f"s_waitcnt vmcnt({d-1})")
            A.lab(l)
            A(f"s_waitcnt vmcnt({D2-1})")
            if D3:
                A.lab(l + "b")
                A(f"s_waitcnt vmcnt({D3-1})")
        else:
            A(f"s_waitcnt vmcnt({d-1})")
    def control(n, step):
        if not T0: return
        if n % CI == 0:
            A("s_memrealtime s[76:77]")
            if cal: A("ds_read_b32 v123, v122 offset:8")
        if n % CI == 2:
            A("s_waitcnt lgkmcnt(0)")
            if cal:
                A("v_readfirstlane_b32 s79, v123")
                if n == 2:
                    l = newlab("ck")
                    A(f"s_cmp_lg_u32 {sWV}, 0")
                    A(f"s_cbranch_scc1 {l}")
                    A("v_mov_b32 v120, s76")
                    A("v_add_u32 v121, 1, v121")
                    A("ds_write_b64 v122, v[120:121] offset:16")
                    A.lab(l)
                A("s_sub_u32 s76, s76, s79")
            A("s_sub_u32 s76, s76, s78")
            A("s_abs_i32 s77, s76")
            A("s_cmp_gt_u32 s77, 100000")
            A("s_cselect_b32 s75, 0, s76")
            A("s_cmp_gt_i32 s75, 0")
            A("s_cselect_b64 vcc, -1, 0")
            k = (n % 16) // CI; parts = 16 // CI
            A(f"s_add_u32 s78, s78, {step * (k + 1) // parts - step * k // parts}")
    def issue(slot):
        r = RING + 4 * slot
        A(f"buffer_load_dwordx4 v[{r}:{r+3}], v{vOFFC}, {srd(rST)}, {sOFF} offen nt")
        A(f"s_add_u32 {sOFF}, {sOFF}, 4096")
        if rot: A(f"s_and_b32 {sOFF}, {sOFF}, 0x7ffff")
    if bar0: A("s_barrier")
    for n in range(INIT0 or INIT): issue(n)
    if relayout:
        A("s_branch L_stream2")
        A.L.append("@@HELPER@@")
        A.lab("L_stream2")
    stamp_init()
    A(f"s_mov_b32 {sT1}, {EPOCH_OFF}")
    A(f"s_load_dword {sTAG}, s[{pWS}:{pWS+1}], {sT1}")
    A(f"v_lshlrev_b32 v8, 4, v{vLANE}")
    A(f"v_add_u32 v{vOFFV}, {sT0}, v8")
    mk_srd(rX, pX, 1152)
    mk_srd(rWS, pWS, WS_SIZE)
    mk_srd(rW, pWD, 4608 * 576 * 2)
    masks()
    two_group_offsets(1152, sWV, 32, 33)
    A(f"v_cmp_gt_u32 vcc, 32, v{vLANE}")
    A(f"s_lshl_b32 {sT0}, {sID}, 3")
    A(f"v_mov_b32 v10, {sT0}")
    A("v_cndmask_b32 v34, v9, v32, vcc")
    A("v_cndmask_b32 v35, v9, v33, vcc")
    A(f"v_and_b32 v8, 3, v{vN}")
    A(f"v_lshrrev_b32 v9, 2, v{vN}")
    for u in range(4):
        A(f"v_cmp_eq_u32 {mU[u]}, {u}, v8")
        A(f"v_cmp_eq_u32 {mT[u]}, {u}, v9")
    A(f"v_lshlrev_b32 v9, 2, v{vG}")
    A("v_add_u32 v8, v8, v9")
    A("v_lshlrev_b32 v8, 5, v8")
    A(f"buffer_load_dwordx2 v[{vX4}:{vX4+1}], v10, {srd(rX)}, 0 offen")
    if htail in (1, 3):
        A(f"v_mul_u32_u24 v10, 57, v{vLANE}")
        A("v_lshrrev_b32 v127, 9, v10")
        A("v_mul_u32_u24 v9, 9, v127")
        A(f"v_sub_u32 v9, v{vLANE}, v9")
        A(f"v_mul_u32_u24 v11, {GU_ROW}, v127")
        A("v_lshl_add_u32 v11, v9, 4, v11")
        A(f"s_mul_i32 {sT0}, {sB}, 144")
        A(f"s_add_u32 {sT0}, {sT0}, {GU_BASE}")
        A(f"v_add_u32 v124, {sT0}, v11")
        A("v_mul_u32_u24 v12, 72, v127")
        A("v_lshl_add_u32 v12, v9, 3, v12")
        A(f"s_mul_i32 {sT0}, {sWV}, 2304")
        A(f"s_add_u32 {sT0}, {sT0}, {LDS_G}")
        A(f"v_add_u32 v126, {sT0}, v12")
        A(f"v_mov_b32 v13, {OOB}")
        A("v_cmp_gt_u32 vcc, 4, v127")
        A("s_nop 1")
        A("v_cndmask_b32 v125, v13, v124, vcc")
        if htail == 3:
            A(f"s_cmp_eq_u32 {sWV}, 0")
            A("s_cselect_b64 vcc, -1, 0")
            A("v_cndmask_b32 v124, v13, v124, vcc")
            A("v_cndmask_b32 v125, v13, v125, vcc")
    for n in range(INIT0 or INIT, INIT): issue(n)
    for n in range(INIT, 32):
        A(f"s_waitcnt vmcnt({D-1 + (1 if (n % 4) < FP else 0)})")
        issue(n)
    XB = 88
    for n in range(XS):
        A(f"s_waitcnt vmcnt({D-1})")
        r = 96 + 4 * n
        A(f"buffer_load_dwordx4 v[{r}:{r+3}], v{vOFFC}, {srd(rST)}, {sOFF} offen nt")
        A(f"s_add_u32 {sOFF}, {sOFF}, 4096")
    A("s_waitcnt lgkmcnt(0)")
    A(f"s_add_u32 {sTAG}, {sTAG}, {TAG_STEP}")
    if not ts: stamp(4)
    A("s_barrier")
    if not ts: stamp(5)
    if clk: A(f"s_memtime s[{SB+2}:{SB+3}]")
    QT = 84
    A(f"ds_read_b128 v[{QT}:{QT+3}], v8 offset:{LDS_Q}")
    A(f"ds_read_b128 v[{QT+4}:{QT+7}], v8 offset:{LDS_Q+16}")
    if tbase:
        A("v_mov_b32 v9, 0")
        A(f"ds_read_b32 v9, v9 offset:{LDS_CNT+8}")
    A("s_waitcnt lgkmcnt(0)")
    if tbase:
        A("v_readfirstlane_b32 s78, v9")
    for i in range(4):
        A(f"v_cvt_pk_bf16_f32 v{QT+8+i}, v{QT+2*i}, v{QT+2*i+1}")
    for t in range(4):
        for i in range(4):
            A(f"v_cndmask_b32 v{vBQ+4*t+i}, 0, v{QT+8+i}, {mT[t]}")
    if cal:
        A("s_mov_b32 s78, 0")
        A("v_mov_b32 v121, 0")
        A(f"v_mov_b32 v122, {LDS_CNT}")
    else:
        A(f"s_add_u32 s78, s78, {T0}")
    A("s_mov_b64 vcc, 0")
    A("s_mov_b32 s75, 0")
    A(f"s_mov_b32 {sT2}, {f2u(128 ** -0.5)}")
    A(f"s_mov_b32 {sCNT}, 0")
    A.lab("L_kloop")
    A(f"s_cmp_eq_u32 {sCNT}, 3")
    A("s_cbranch_scc0 L_kbody")
    A(f"s_mov_b32 s{rST}, s{pV}")
    A(f"s_mov_b32 s{rST+1}, s{pV+1}")
    if not rot: A(f"s_mov_b32 {sOFF}, 0")
    A(f"v_mov_b32 v{vOFFC}, v{vOFFV}")
    A.lab("L_kbody")
    for n in range(32):
        t, u = n % 4, (n // 4) % 4
        if "m" not in abl: mfma(vDK, RING + 4 * n, vBQ + 4 * t, first=(t == 0))
        if n < XS:
            l = newlab("xs")
            A(f"s_cmp_eq_u32 {sCNT}, 0")
            A(f"s_cbranch_scc1 {l}")
        pace(D + (1 if (n % 4) < FK else 0))
        issue(n)
        if n < XS: A.lab(l)
        if XS and 20 <= n < 20 + XS:
            l = newlab("xc")
            A(f"s_cmp_lg_u32 {sCNT}, 0")
            A(f"s_cbranch_scc1 {l}")
            for j in range(4): A(f"v_mov_b32 v{RING+4*(n-20)+j}, v{96+4*(n-20)+j}")
            A.lab(l)
        control(n, TK)
        if t == 3:
            A("s_nop 5")
            A(f"v_mov_b32_dpp v8, v{vDK} quad_perm:[0,0,0,0] row_mask:0xf bank_mask:0xf")
            for cidx in range(1, 4):
                A(f"v_add_f32_dpp v8, v{vDK+cidx}, v8 quad_perm:[{cidx},{cidx},{cidx},{cidx}] row_mask:0xf bank_mask:0xf")
            if u == 0:
                A(f"v_mov_b32 v{vSN}, v8")
            else:
                A(f"v_cndmask_b32 v{vSN}, v{vSN}, v8, {mU[u]}")
            if u == 3:
                bf16_round(vSN, vSN)
                A(f"v_mul_f32 v{vSN}, {sT2}, v{vSN}")
                bf16_round(vSN, vSN)
                for k in range(7):
                    A(f"v_mov_b32 v{vS+k}, v{vS+k+1}")
                A(f"v_mov_b32 v{vS+7}, v{vSN}")
    A(f"s_add_u32 {sCNT}, {sCNT}, 1")
    A(f"s_cmp_lt_u32 {sCNT}, 4")
    A("s_cbranch_scc1 L_kloop")
    if not ts: stamp(6)
    A(f"v_max3_f32 v8, v{vS}, v{vS+1}, v{vS+2}")
    A(f"v_max3_f32 v8, v8, v{vS+3}, v{vS+4}")
    A(f"v_max3_f32 v8, v8, v{vS+5}, v{vS+6}")
    A(f"v_max_f32 v8, v8, v{vS+7}")
    dpp_reduce([8], "v_max_f32")
    A(f"v_readlane_b32 {sM}, v8, 63")
    A(f"s_mov_b32 {sT2}, {LOG2E}")
    A(f"v_mov_b32 v{vL}, 0")
    for i in range(4): A(f"v_mov_b32 v{vACC+i}, 0")
    A(f"s_mov_b32 {sCNT}, 0")
    def ptile():
        A(f"v_subrev_f32 v8, {sM}, v{vS}")
        A(f"v_mul_f32 v8, {sT2}, v8")
        A("v_exp_f32 v8, v8")
        for k in range(7):
            A(f"v_mov_b32 v{vS+k}, v{vS+k+1}")
        A(f"v_add_f32 v{vL}, v{vL}, v8")
        A(f"v_cvt_pk_bf16_f32 v{vP}, v8, v8")
        A("s_nop 1")
    NWD = 15 if htail in (1, 3) else 10
    def vstep(n, last):
        if n % 16 == 0: ptile()
        if last and n == 17:
            dpp_reduce([vL], "v_add_f32")
            A(f"v_mov_b32 v45, v{vL}")
            A("s_mov_b32 exec_lo, 0")
            A("s_mov_b32 exec_hi, 0x80000000")
            A(f"ds_write_b64 v83, v[44:45] offset:{LDS_ML}")
            A("s_mov_b64 exec, -1")
            record_addr_setup()
        L = n % 16; t, u = L % 4, L // 4
        if "m" in abl:
            pace(D); issue(n); control(n, TV)
            return
        a = sel(vP, 4 * t + u)
        if last and n >= 32 - max(D, D2) - 1:
            A(f"s_waitcnt vmcnt({NWD + 31 - n})")
            A("s_nop 0")
        else:
            A("s_nop 1")
        mfma(vACC, a, RING + 4 * n)
        if not last:
            pace(D + (1 if (n % 4) < FV else 0))
            issue(n)
            control(n, TV)
    A.lab("L_vloop")
    for n in range(32):
        vstep(n, False)
        if endb and n == endstep - 1:
            A(f"s_cmp_eq_u32 {sCNT}, 2")
            A(f"s_cselect_b32 s77, {endb}, 0")
            A("s_sub_u32 s78, s78, s77")
    A(f"s_add_u32 {sCNT}, {sCNT}, 1")
    A(f"s_cmp_lt_u32 {sCNT}, 3")
    A("s_cbranch_scc1 L_vloop")
    stamp(7)
    if clk: A(f"s_memtime s[{SB+20}:{SB+21}]")
    A(f"s_mul_i32 {sOFF}, {sB}, {18*1152}")
    def wd_issue(t):
        r = WDB + 8 * t
        oa, ob = (32, 33) if t < 4 else (34, 35)
        A(f"buffer_load_dwordx4 v[{r}:{r+3}], v{oa}, {srd(rW)}, {sOFF} offen nt")
        A(f"buffer_load_dwordx4 v[{r+4}:{r+7}], v{ob}, {srd(rW)}, {sOFF} offen nt")
        A(f"s_add_u32 {sOFF}, {sOFF}, {4*1152}")
    if wdstep < 0:
        for t in range(5): wd_issue(t)
    HG = 48
    def ld_gu():
        A(f"s_mov_b32 {sT0}, 0")
        for i in range(5):
            A(f"buffer_load_dwordx4 v[{HG+4*i}:{HG+4*i+3}], v{124 if i < 4 else 125}, {srd(rWS)}, {sT0} offen sc1")
            if i < 4: A(f"s_add_u32 {sT0}, {sT0}, {7*GU_ROW}")
    def ck_gu():
        A(f"v_mov_b32 v14, {sTAG}")
        A(f"v_cndmask_b32 v{HG+17}, v14, v{HG+17}, s[66:67]")
        A(f"v_cndmask_b32 v{HG+19}, v14, v{HG+19}, s[66:67]")
        tagcheck([HG + 2 * k + 1 for k in range(10)])
    if htail == 2 and hstep >= 32:
        A(f"v_mov_b32 v8, {LDS_CNT}")
        A("v_mov_b32 v9, 1")
        A("ds_write_b32 v8, v9 offset:4")
    if htail in (1, 3):
        A("s_mov_b32 exec_hi, 0x7fffffff")
        ld_gu()
        A("s_mov_b32 exec_hi, -1")
    A(f"s_lshl_b32 {sT0}, {sWV}, 9")
    A(f"v_lshlrev_b32 v8, 5, v{vN}")
    A(f"v_lshl_add_u32 v8, v{vG}, 4, v8")
    A(f"v_add_u32 v82, {sT0}, v8")
    A(f"s_mul_i32 {sT0}, {sWV}, 576")
    A(f"v_add_u32 v36, {sT0}, v8")
    A(f"s_lshl_b32 {sT0}, {sWV}, 3")
    A(f"v_mov_b32 v83, {sT0}")
    A(f"v_mov_b32 v44, {sM}")
    A(f"v_lshlrev_b32 v37, 2, v{vLANE}")
    def lidx(n):
        L = n % 16
        return 4 * (L % 4) + L // 4
    ptile()
    a = sel(vP, lidx(0))
    for n in range(32):
        if n + 1 == 16: ptile()
        if n + 1 < 32: a_next = sel(vP, lidx(n + 1))
        else: A("s_nop 0")
        nwd = NWD if wdstep < 0 else (NWD - 10) + 2 * max(0, min(5, n - wdstep))
        if n >= 32 - max(D, D2, D3) - 1:
            A(f"s_waitcnt vmcnt({nwd + 31 - n})")
        mfma(vACC, a, RING + 4 * n)
        if wdstep >= 0 and wdstep <= n < wdstep + 5: wd_issue(n - wdstep)
        a = a_next
        if n == 17:
            dpp_reduce([vL], "v_add_f32")
            A(f"v_mov_b32 v45, v{vL}")
            A("s_mov_b32 exec_lo, 0")
            A("s_mov_b32 exec_hi, 0x80000000")
            A(f"ds_write_b64 v83, v[44:45] offset:{LDS_ML}")
            A("s_mov_b64 exec, -1")
            record_addr_setup()
    if wdstep >= 0:
        for t in range(max(0, 32 - wdstep), 5): wd_issue(t)
    A("s_nop 7")
    A("s_mov_b32 exec_hi, 0")
    A(f"ds_write_b128 v82, v[{vACC}:{vACC+3}] offset:{LDS_O}")
    A("s_mov_b32 exec_hi, -1")
    A("s_waitcnt lgkmcnt(0)")
    stamp(2)
    A("s_barrier")
    if ts: stamp(4)
    if htail == 3:
        A(f"s_cmp_lg_u32 {sWV}, 0")
        A("s_cbranch_scc1 L_hothers")
    if htail in (1, 3):
        A("v_cmp_gt_u32 s[66:67], 4, v127")
        A("s_mov_b32 exec_hi, 0x7fffffff")
        A(f"s_mov_b32 {sSPIN}, 0")
        A("s_branch L_hchk")
        A.lab("L_hpoll")
        A(f"s_sleep {hsleep}")
        ld_gu()
        A.lab("L_hchk")
        A("s_waitcnt vmcnt(0)")
        ck_gu()
        A(f"s_add_u32 {sSPIN}, {sSPIN}, 1")
        A("v_cmp_ne_u32 vcc, 0, v9")
        A(f"s_cmp_ge_u32 {sSPIN}, {spin}")
        A("s_cbranch_scc1 L_hdone")
        A("s_and_b64 exec, exec, vcc")
        A("s_cbranch_execnz L_hpoll")
        A.lab("L_hdone")
        A("s_mov_b32 exec_lo, -1")
        A("s_mov_b32 exec_hi, 0x7fffffff")
        for i in range(4):
            A(f"ds_write2_b32 v126, v{HG+4*i}, v{HG+4*i+2} offset0:{i*126} offset1:{i*126+1}" if i * 126 + 1 < 256 else f"ds_write2_b32 v127, v{HG+4*i}, v{HG+4*i+2} offset0:{(i-2)*126} offset1:{(i-2)*126+1}")
            if i == 0: A(f"v_add_u32 v127, {2*504}, v126")
        A(f"v_add_u32 v126, {4*504}, v126")
        A("s_and_b64 exec, exec, s[66:67]")
        A(f"ds_write2_b32 v126, v{HG+16}, v{HG+18} offset0:0 offset1:1")
        A("s_mov_b64 exec, -1")
        A(f"v_lshl_add_u32 v8, v{vN}, 2, v{vG}")
        A("v_cmp_gt_u32 vcc, 18, v8")
        A(f"s_mul_i32 {sT0}, {sWV}, 2304")
        A(f"v_lshl_add_u32 v8, v8, 2, {sT0}")
        A("s_waitcnt lgkmcnt(0)")
        HR = RING
        for r in range(32):
            A(f"ds_read_b32 v{HR+r}, v8 offset:{LDS_G + r*72}")
            if r in (11, 22): A("s_waitcnt lgkmcnt(4)")
        for st in (8, 4, 2, 1):
            for r in range(st): A(f"v_add_f32 v{HR+r}, v{HR+r}, v{HR+r+st}")
        A("s_waitcnt lgkmcnt(0)")
        for st in (8, 4, 2, 1):
            for r in range(st): A(f"v_add_f32 v{HR+16+r}, v{HR+16+r}, v{HR+16+r+st}")
        bf16_round(HR, HR); bf16_round(HR + 16, HR + 16)
        A(f"v_mul_f32 v{vP}, v{HR}, v{HR+16}")
        A(f"v_cvt_pk_bf16_f32 v{vP}, v{vP}, v{vP}")
        A(f"v_cndmask_b32 v{vP}, 0, v{vP}, vcc")
        if htail == 3:
            A(f"ds_write_b32 v37, v{vP} offset:{LDS_H}")
            A("s_waitcnt lgkmcnt(0)")
            A("ds_write_b32 v71, v72 offset:4")
            A("s_branch L_hready")
            A.lab("L_hothers")
            A(f"s_mov_b32 {sSPIN}, 0")
            A.lab("L_hw2")
            A("ds_read_b32 v9, v71 offset:4")
            A(f"ds_read_b32 v{vP}, v37 offset:{LDS_H}")
            A(f"s_add_u32 {sSPIN}, {sSPIN}, 1")
            A("s_waitcnt lgkmcnt(0)")
            A(f"v_readfirstlane_b32 {sT0}, v9")
            A(f"s_cmp_ge_u32 {sSPIN}, {spin}")
            A("s_cbranch_scc1 L_hready")
            A(f"s_cmp_eq_u32 {sT0}, 0")
            A("s_cbranch_scc1 L_hw2")
            A.lab("L_hready")
            if ts: stamp(5)
        A("s_nop 1")
    else:
        A(f"ds_read_b32 v{vP}, v37 offset:{LDS_H}")
        A("s_waitcnt lgkmcnt(0)")
    for t in range(5):
        a = sel(vP, t)
        A(f"s_waitcnt vmcnt({2*(4 - t)})")
        A("s_nop 0")
        mfma(vACC, a, WDB + 8 * t, first=(t == 0))
        mfma(vACC + 4, a, WDB + 8 * t + 4, first=(t == 0))
    A("s_nop 7")
    two_group_to_lds(vACC, vACC + 4, 36)
    if not bar4:
        A("s_mov_b64 exec, 1")
        A("s_waitcnt lgkmcnt(0)")
        A("ds_add_u32 v71, v72")
        A("s_mov_b64 exec, -1")
    mk_srd(rO, pOUT, 1152)
    A(f"v_lshrrev_b32 v8, 2, v{vLANE}")
    A(f"v_and_b32 v11, 3, v{vLANE}")
    A("v_lshlrev_b32 v12, 14, v8")
    A("v_lshl_add_u32 v12, v11, 4, v12")
    A(f"s_lshl_b32 {sT0}, {sID}, 6")
    A(f"v_add_u32 v12, {sT0}, v12")
    if rt:
        A(f"s_lshl_b32 {sT0}, {sID}, 14")
        A(f"s_add_u32 {sT0}, {sT0}, {REC_BASE}")
        A(f"v_add_u32 v12, {sT0}, v69")
    A("v_lshlrev_b32 v13, 2, v8")
    A(f"v_add_u32 v13, {LDS_W}, v13")
    A(f"v_and_b32 v14, 1, v{vLANE}")
    A("v_cmp_eq_u32 vcc, 1, v14")
    A(f"s_lshl_b32 {sT0}, {sID}, 3")
    A(f"v_lshl_add_u32 v10, v14, 2, {sT0}")
    A(f"v_cndmask_b32 v92, v{vX4}, v{vX4+1}, vcc")
    A("v_and_b32 v93, 0xffff0000, v92")
    A("v_lshlrev_b32 v92, 16, v92")
    A(f"v_mov_b32 v9, {OOB}")
    A(f"v_cmp_gt_u32 vcc, 2, v{vLANE}")
    A(f"s_mov_b32 {sT2}, {LOG2E}")
    for k in range(4): A(f"s_mov_b32 s{64+k}, {ML_BASE + (k*64 << mlsh)}")
    A(f"v_lshlrev_b32 v97, {mlsh}, v{vLANE}")
    A("v_cndmask_b32 v96, v9, v10, vcc")
    if ts: stamp(6)
    if early:
        A(f"s_cmp_eq_u32 {sWV}, 3")
        A("s_cbranch_scc1 L_cons")
    if bar4:
        A("s_waitcnt lgkmcnt(0)")
        A("s_barrier")
    else: lds_wait("L_sw", 8)
    record_store()
    stamp(8)
    if early:
        A("s_branch L_fin")
        A.lab("L_cons")
    else:
        A(f"s_cmp_lg_u32 {sWV}, 3")
        A("s_cbranch_scc1 L_fin")
    A(f"s_cmp_ge_u32 {sID}, 144")
    A("s_cbranch_scc1 L_fin")
    A.c("---- wave 3: final reduction for columns 4*id .. 4*id+3")
    GM, GW, GR = 100, RING, RING + 16
    mM, mR = "s[44:45]", "s[46:47]"
    if cdelay: A(f"s_sleep {cdelay}")
    for m in (mM, mR): A(f"s_mov_b64 {m}, -1")
    A(f"s_mov_b32 {sSPIN}, 0")
    def ld_ml():
        for k in range(4):
            A(f"buffer_load_dwordx4 v[{GM+4*k}:{GM+4*k+3}], v97, {srd(rWS)}, s{64+k} offen sc1")
    def ld_rec():
        A(f"s_mov_b32 {sT0}, 0")
        for i in range(16):
            A(f"buffer_load_dwordx4 v[{GR+4*i}:{GR+4*i+3}], v12, {srd(rWS)}, {sT0} offen sc1")
            if i < 15: A(f"s_add_u32 {sT0}, {sT0}, {1024 if rt else 16*BLK}")
    if late is not None:
        A(f"s_cmp_lt_i32 s75, {late}")
        A("s_cbranch_scc1 L_fp_m")
        if ldelay: A(f"s_sleep {ldelay}")
    if fmode == 0 or late is not None:
        ld_ml()
        ld_rec()
        A("s_waitcnt vmcnt(16)")
        tagcheck([GM + 2 * k + 1 for k in range(8)])
        A(f"v_cmp_ne_u32 {mM}, 0, v9")
        A("s_nop 0")
        A(f"s_cmp_eq_u64 {mM}, 0")
        A("s_cbranch_scc1 L_fp_w")
        A("s_waitcnt vmcnt(0)")
        tagcheck([GR + 2 * k + 1 for k in range(32)])
        A(f"v_cmp_ne_u32 {mR}, 0, v9")
        A(f"s_mov_b64 exec, {mM}")
    A.lab("L_fp_m")
    if mlsleep: A(f"s_sleep {mlsleep}")
    ld_ml()
    A(f"s_add_u32 {sSPIN}, {sSPIN}, 1")
    A("s_waitcnt vmcnt(0)")
    tagcheck([GM + 2 * k + 1 for k in range(8)])
    A("v_cmp_ne_u32 vcc, 0, v9")
    A(f"s_cmp_ge_u32 {sSPIN}, {spin}")
    A("s_cbranch_scc1 L_fp_m2")
    A("s_and_b64 exec, exec, vcc")
    A("s_cbranch_execnz L_fp_m")
    A.lab("L_fp_m2")
    if rdelay: A(f"s_sleep {rdelay}")
    A(f"s_mov_b64 exec, {mR}")
    A("s_cbranch_execz L_fp_w")
    ld_rec()
    A.lab("L_fp_w")
    A("s_mov_b64 exec, -1")
    stamp(1)
    grp8 = ("quad_perm:[1,0,3,2]", "quad_perm:[2,3,0,1]", "row_half_mirror")
    for k in range(4): A(f"v_mov_b32 v{GM+4*k+1}, v{GM+4*k}")
    for d in grp8:
        for k in range(4): A(f"v_max_f32_dpp v{GM+4*k+1}, v{GM+4*k+1}, v{GM+4*k+1} {d} row_mask:0xf bank_mask:0xf")
    for k in range(4): A(f"v_sub_f32 v{GM+4*k}, v{GM+4*k}, v{GM+4*k+1}")
    for k in range(4): A(f"v_mul_f32 v{GM+4*k}, {sT2}, v{GM+4*k}")
    for k in range(4): A(f"v_exp_f32 v{GM+4*k}, v{GM+4*k}")
    for k in range(4): A(f"v_mul_f32 v{GM+4*k+2}, v{GM+4*k}, v{GM+4*k+2}")
    for d in grp8:
        for k in range(4): A(f"v_add_f32_dpp v{GM+4*k+2}, v{GM+4*k+2}, v{GM+4*k+2} {d} row_mask:0xf bank_mask:0xf")
    for k in range(4): A(f"v_rcp_f32 v{GM+4*k+2}, v{GM+4*k+2}")
    for k in range(4): A(f"v_mul_f32 v{GM+4*k}, v{GM+4*k}, v{GM+4*k+2}")
    for k in range(4): A(f"ds_write_b32 v37, v{GM+4*k} offset:{LDS_W + k*256}")
    A("s_waitcnt lgkmcnt(0)")
    for i in range(16):
        A(f"ds_read_b32 v{GW+i}, v13 offset:{i*64}")
        if i == 11: A("s_waitcnt lgkmcnt(8)")
    A("s_waitcnt lgkmcnt(0)")
    for i in range(16): A(f"v_cndmask_b32 v{GW+i}, 1.0, v{GW+i}, s[62:63]")
    A(f"s_mov_b64 exec, {mR}")
    A("s_cbranch_execz L_fp_done")
    A("s_branch L_fp_c")
    A.lab("L_fp_r")
    if fsleep: A(f"s_sleep {fsleep}")
    ld_rec()
    A.lab("L_fp_c")
    A(f"s_add_u32 {sSPIN}, {sSPIN}, 1")
    A("s_waitcnt vmcnt(0)")
    tagcheck([GR + 2 * k + 1 for k in range(32)])
    A("v_cmp_ne_u32 vcc, 0, v9")
    A(f"s_cmp_ge_u32 {sSPIN}, {spin}")
    A("s_cbranch_scc1 L_fp_done")
    A("s_and_b64 exec, exec, vcc")
    A("s_cbranch_execnz L_fp_r")
    A.lab("L_fp_done")
    A("s_mov_b64 exec, -1")
    stamp(10)
    for c in range(2):
        for i in range(2): A(f"v_mul_f32 v{88+2*c+i}, v{GW+8*c}, v{GR+32*c+2*i}")
    for k in range(1, 8):
        for c in range(2):
            for i in range(2): A(f"v_fmac_f32 v{88+2*c+i}, v{GW+8*c+k}, v{GR+32*c+4*k+2*i}")
    A("v_add_f32 v88, v88, v90")
    A("v_add_f32 v89, v89, v91")
    A("s_nop 0")
    for d in ("row_ror:4", "row_ror:8"):
        A(f"v_add_f32_dpp v88, v88, v88 {d} row_mask:0xf bank_mask:0xf")
        A(f"v_add_f32_dpp v89, v89, v89 {d} row_mask:0xf bank_mask:0xf")
        A("s_nop 0")
    for op in ("v_permlane16_swap_b32", "v_permlane32_swap_b32"):
        A("v_mov_b32 v14, v88")
        A("v_mov_b32 v15, v89")
        A("s_nop 1")
        A(f"{op} v14, v88")
        A(f"{op} v15, v89")
        A("v_add_f32 v88, v88, v14")
        A("v_add_f32 v89, v89, v15")
    for i in range(2): A(f"v_cvt_pk_bf16_f32 v{88+i}, v{88+i}, v{88+i}")
    for i in range(2): A(f"v_lshlrev_b32 v{88+i}, 16, v{88+i}")
    for i in range(2): A(f"v_add_f32 v{90+i}, v{92+i}, v{88+i}")
    for i in range(2): A(f"v_cvt_pk_bf16_f32 v{90+i}, v{90+i}, v{90+i}")
    for i in range(2): A(f"v_lshlrev_b32 v{90+i}, 16, v{90+i}")
    for i in range(2): A(f"v_add_f32_dpp v{90+i}, v{88+i}, v{90+i} quad_perm:[2,3,2,3] row_mask:0xf bank_mask:0xf")
    A("v_cvt_pk_bf16_f32 v12, v90, v91")
    A(f"buffer_store_dword v12, v96, {srd(rO)}, 0 offen")
    stamp(3)
    stampval(9, sSPIN)
    A(f"s_cmp_lg_u32 {sID}, 0")
    A("s_cbranch_scc1 L_fin")
    A(f"v_mov_b32 v10, {sTAG}")
    A(f"v_mov_b32 v11, {EPOCH_OFF}")
    A("s_mov_b64 exec, 1")
    A(f"buffer_store_dword v10, v11, {srd(rWS)}, 0 offen")
    if pad_to:
        A.lab("L_pad")
        A("s_memrealtime s[96:97]")
        A("s_waitcnt lgkmcnt(0)")
        A("s_sub_u32 s96, s96, s98")
        A(f"s_cmp_lt_u32 s96, {pad_to}")
        A("s_cbranch_scc1 L_pad")
    if stamps: A("s_branch L_fin")
    else: A("s_endpgm")

    mark_helper = len(A.L)
    A.lab("L_helper")
    A.c("---- helper waves 4..7")
    A(f"s_sub_u32 {sHW}, {sWV}, 4")
    A(f"v_lshlrev_b32 v8, 2, v{vLANE}")
    A(f"v_lshl_add_u32 v9, v{vN}, 2, v{vG}")
    A("v_and_b32 v9, -2, v9")
    A("v_lshlrev_b32 v9, 1, v9")
    A(f"s_mul_i32 {sT0}, {sS}, 144")
    A(f"s_and_b32 {sT1}, {sS}, 3")
    A(f"s_lshl_b32 {sT1}, {sT1}, 2")
    A(f"s_add_u32 s74, {sT1}, {sHW}")
    A(f"s_mul_i32 {sT1}, s74, 72")
    A(f"s_mov_b32 {sT2}, {EPOCH_OFF}")
    A("s_waitcnt lgkmcnt(0)")
    A(f"s_load_dword {sTAG}, s[{pWS}:{pWS+1}], {sT2}")
    mk_srd(rX, pX, 1152)
    for k in range(5):
        A(f"buffer_load_dword v{vXA+k}, v8, {srd(rX)}, 0 offen offset:{k*256}")
    for T in range(2):
        A(f"buffer_load_dword v{vXC+T}, v9, {srd(rX)}, {sT0} offen offset:{T*128}")
    A(f"buffer_load_dword v{vXC+2}, v9, {srd(rX)}, {sT1} offen")
    GUB = WBUF + 72
    A(f"s_cmp_lg_u32 {sHW}, 0")
    A("s_cbranch_scc1 L_x13")
    mk_srd(rW, pWQ, 0 if "w" in abl else 576 * 4096 * 2)
    A(f"s_mul_i32 {sT0}, {sS}, {72*8192}")
    A(f"s_lshl_b32 {sT1}, {sH}, 8")
    A(f"s_add_u32 {sOFF}, {sT0}, {sT1}")
    A(f"v_lshlrev_b32 v8, 13, v{vG}")
    A(f"v_lshl_add_u32 v10, v{vN}, 4, v8")
    for t in range(0 if "W" in abl else 18):
        r = WBUF + 4 * t
        A(f"buffer_load_dwordx4 v[{r}:{r+3}], v10, {srd(rW)}, {sOFF} offen nt")
        A(f"s_add_u32 {sOFF}, {sOFF}, 32768")
    A.lab("L_x13")
    if bar0: A("s_barrier")
    if codepf:
        A(f"s_cmp_lg_u32 {sHW}, 3")
        A("s_cbranch_scc1 L_nopf")
        A(f"s_cmp_ge_u32 {sID}, {codepf}")
        A("s_cbranch_scc1 L_nopf")
        A("s_getpc_b64 s[76:77]")
        A.lab("L_pfbase")
        A(f"s_sub_u32 s76, s76, L_pfbase-{KNAME}")
        A("s_subb_u32 s77, s77, 0")
        A(f"v_lshlrev_b32 v8, 7, v{vLANE}")
        A("global_load_dword v12, v8, s[76:77]")
        for k in (1, 2):
            A("v_add_u32 v8, 0x2000, v8")
            A(f"v_cmp_gt_i32 vcc, (L_codeend-{KNAME}-{k*8192})/128, v{vLANE}")
            A("s_and_saveexec_b64 s[72:73], vcc")
            A("s_cbranch_execz L_pf2")
            A(f"global_load_dword v{12+k}, v8, s[76:77]")
        A.lab("L_pf2")
        A("s_mov_b64 exec, -1")
        A("s_waitcnt vmcnt(0)")
        A.lab("L_nopf")
    A(f"s_cmp_lt_u32 {sID}, 128")
    A(f"s_cselect_b32 s{rO}, s{pWG}, s{pWU}")
    A(f"s_cselect_b32 s{rO+1}, s{pWG+1}, s{pWU+1}")
    A(f"s_mov_b32 s{rO+2}, {0 if 'g' in abl else 576*4608*2}")
    A(f"s_mov_b32 s{rO+3}, 0x20000")
    two_group_offsets(9216, "0", vOA, vOB)
    A(f"s_mul_i32 {sOFF}, s74, {36*9216}")
    A(f"s_mul_i32 {sT0}, {sH}, 288")
    A(f"s_add_u32 {sOFF}, {sOFF}, {sT0}")
    def gu_issue(t):
        if "u" in abl: return
        r = GUB + 8 * t
        A(f"buffer_load_dwordx4 v[{r}:{r+3}], v{vOA}, {srd(rO)}, {sOFF} offen nt")
        A(f"buffer_load_dwordx4 v[{r+4}:{r+7}], v{vOB}, {srd(rO)}, {sOFF} offen nt")
        A(f"s_add_u32 {sOFF}, {sOFF}, {4*9216}")
    GE = guearly
    for t in range(GE): gu_issue(t)
    stamp_init()
    mk_srd(rWS, pWS, WS_SIZE)
    masks()
    A(f"s_cmp_lg_u32 {sHW}, 0")
    A("s_cbranch_scc1 L_x13b")
    A(f"s_waitcnt vmcnt({18 + 2*GE})")
    A("s_branch L_ln")
    A.lab("L_x13b")
    A(f"s_waitcnt vmcnt({2*GE})")
    A.lab("L_ln")
    GE0 = GE
    GE = max(GE, gumid)
    for t in range(GE0, GE): gu_issue(t)
    stamp(8)
    XF = 68
    for k in range(5):
        A(f"v_lshlrev_b32 v{XF+2*k}, 16, v{vXA+k}")
        A(f"v_and_b32 v{XF+2*k+1}, 0xffff0000, v{vXA+k}")
    A(f"v_add_f32 v8, v{XF}, v{XF+1}")
    for k in range(2, 10): A(f"v_add_f32 v8, v8, v{XF+k}")
    dpp_reduce([8], "v_add_f32")
    A(f"v_mul_f32 v8, {f2u(1.0/576)}, v8")
    A(f"v_cmp_gt_u32 vcc, 32, v{vLANE}")
    A(f"v_readlane_b32 {sT0}, v8, 63")
    A("s_nop 1")
    for k in range(10): A(f"v_subrev_f32 v{XF+k}, {sT0}, v{XF+k}")
    A(f"v_cndmask_b32 v{XF+8}, 0, v{XF+8}, vcc")
    A(f"v_cndmask_b32 v{XF+9}, 0, v{XF+9}, vcc")
    A(f"v_mul_f32 v9, v{XF}, v{XF}")
    for k in range(1, 10): A(f"v_fmac_f32 v9, v{XF+k}, v{XF+k}")
    dpp_reduce([9], "v_add_f32")
    A(f"v_mul_f32 v9, {f2u(1.0/576)}, v9")
    bf16_round(9, 9)
    A(f"v_add_f32 v9, {f2u(1e-5)}, v9")
    bf16_round(9, 9)
    A("v_sqrt_f32 v9, v9")
    A("s_nop 0")
    bf16_round(9, 9)
    A("v_rcp_f32 v9, v9")
    bf16_round(8, 8)
    A("s_nop 0")
    A(f"v_readlane_b32 {sT0}, v8, 63")
    A(f"v_readlane_b32 {sT1}, v9, 63")
    A(f"v_and_b32 v10, 1, v{vG}")
    A("v_lshlrev_b32 v10, 4, v10")
    for k in range(3):
        r = vXC + k
        A(f"v_lshrrev_b32 v{r}, v10, v{r}")
        A(f"v_lshlrev_b32 v{r}, 16, v{r}")
        A(f"v_subrev_f32 v{r}, {sT0}, v{r}")
        bf16_round(r, r)
        A(f"v_mul_f32 v{r}, {sT1}, v{r}")
        A(f"v_cvt_pk_bf16_f32 v{r}, v{r}, v{r}")
    A("s_waitcnt lgkmcnt(0)")
    A(f"s_add_u32 {sTAG}, {sTAG}, {TAG_STEP}")
    A(f"s_getreg_b32 {sTAGX}, hwreg(HW_REG_XCC_ID)")
    A(f"s_and_b32 {sTAGX}, {sTAGX}, 7")
    A(f"s_and_b32 s46, {sID}, 7")
    A(f"s_xor_b32 s46, s46, {sTAGX}")
    A(f"s_xor_b32 {sTAGX}, {sTAGX}, {sTAG}")
    stamp(1)
    A(f"s_cmp_lg_u32 {sHW}, 0")
    A("s_cbranch_scc1 L_noq")
    for t in range(18):
        a = sel(vXC + t // 16, t % 16)
        A(f"s_waitcnt vmcnt({17 - t + 2*GE})")
        A("s_nop 0")
        mfma(vACC, a, WBUF + 4 * t, first=(t == 0))
    A(f"v_lshlrev_b32 v8, 4, v{vLANE}")
    A(f"s_lshl_b32 {sT0}, {sB}, 14")
    A(f"s_add_u32 {sT0}, {sT0}, {OFF_Q}")
    A(f"s_lshl_b32 {sT1}, {sH}, 17")
    A(f"s_add_u32 {sT1}, {sT1}, {OFF_Q}")
    for k in range(8):
        A(f"s_add_u32 s{60+k}, {sT1}, {k*BLK}")
    A(f"v_mov_b32 v29, {sTAGX}")
    A(f"v_mov_b32 v31, {sTAGX}")
    A(f"v_mov_b32 v28, v{vACC}")
    A(f"v_mov_b32 v30, v{vACC+1}")
    A("s_nop 1")
    A(f"v_permlane32_swap_b32 v28, v{vACC+2}")
    A(f"v_permlane32_swap_b32 v30, v{vACC+3}")
    QG = WBUF
    def ld_q(fl):
        for k in range(8):
            A(f"buffer_load_dwordx4 v[{QG+4*k}:{QG+4*k+3}], v8, {srd(rWS)}, s{60+k} offen {fl}")
    qtags = [QG + 2 * k + 1 for k in range(16)]
    def exchange(name, store, load, tags, check, first_delay, slp, limit, preloaded=False):
        A("s_mov_b64 s[44:45], 0")
        if not preloaded:
            A("s_cmp_lg_u32 s46, 0")
            A(f"s_cbranch_scc1 {name}_wt")
            store("")
            stamp(9)
            if first_delay: A(f"s_sleep {first_delay}")
            load("nt")
        A("s_waitcnt vmcnt(0)")
        verdict(tags, check, True)
        A("s_and_b64 exec, exec, vcc")
        A(f"s_cbranch_execz {name}_chk")
        A("s_cmp_lg_u64 s[44:45], 0")
        A(f"s_cbranch_scc1 {name}_wt")
        poll(f"{name}_p1", lambda: load("sc1"), tags, slp, check=check, limit=limit, keep=True, die=True, bail=f"{name}_wt")
        A.lab(f"{name}_chk")
        A("s_or_b64 s[44:45], s[44:45], exec")
        A(f"s_cbranch_scc0 {name}_ok")
        A.lab(f"{name}_wt")
        A("s_mov_b64 s[44:45], exec")
        store("sc1")
        A("s_mov_b64 exec, s[44:45]")
        A(f"s_cbranch_execz {name}_ok")
        poll(f"{name}_p2", lambda: load("sc1"), tags, slp, check=check, die=True)
        A.lab(f"{name}_ok")
        A("s_mov_b64 exec, -1")
    def q_store(fl):
        A("s_mov_b64 exec, -1")
        A(f"buffer_store_dwordx4 v[28:31], v8, {srd(rWS)}, {sT0} offen {fl}")
    if "q" not in abl:
        exchange("L_q", q_store, ld_q, qtags, None, qdelay, qsleep, qfall)
    for i in range(2):
        for k in range(4):
            A(f"v_add_f32 v{QG+8*k+2*i}, v{QG+8*k+2*i}, v{QG+8*k+4+2*i}")
        A(f"v_add_f32 v{QG+2*i}, v{QG+2*i}, v{QG+8+2*i}")
        A(f"v_add_f32 v{QG+16+2*i}, v{QG+16+2*i}, v{QG+24+2*i}")
        A(f"v_add_f32 v{28+i}, v{QG+2*i}, v{QG+16+2*i}")
    A(f"v_lshlrev_b32 v8, 5, v{vN}")
    A(f"v_and_b32 v9, 1, v{vG}")
    A("v_lshl_add_u32 v8, v9, 4, v8")
    A(f"v_lshrrev_b32 v9, 1, v{vG}")
    A("v_lshl_add_u32 v8, v9, 3, v8")
    A(f"ds_write_b64 v8, v[28:29] offset:{LDS_Q}")
    if tbase:
        A(f"v_subrev_u32 v12, s78, v{QG+32}")
        for d in ("quad_perm:[1,0,3,2]", "quad_perm:[2,3,0,1]", "row_half_mirror"):
            A("s_nop 1")
            A(f"v_min_i32_dpp v12, v12, v12 {d} row_mask:0xf bank_mask:0xf")
        A("v_add_u32 v12, s78, v12")
    A(f"v_mov_b32 v9, {LDS_CNT}")
    A("v_mov_b32 v10, 0")
    A("ds_write_b32 v9, v10")
    A("ds_write_b32 v9, v10 offset:4")
    A("ds_write_b32 v9, v10 offset:12")
    if tbase: A("ds_write_b32 v9, v12 offset:8")
    if cal:
        A("s_add_u32 s79, s78, 0x40000000")
        A("v_mov_b32 v11, s79")
        A("ds_write_b32 v9, v11 offset:8")
        A("ds_write_b32 v9, v10 offset:20")
    if prew:
        A("v_mov_b32 v11, -1.0")
        for w in range(4): A(f"ds_write_b32 v10, v11 offset:{LDS_ML + 8*w + 4}")
    stampval(10, sSPIN)
    A("s_waitcnt lgkmcnt(0)")
    stamp(2)
    A("s_barrier")
    A.lab("L_noq")
    for t in range(GE, min(max(GE, DG), 9)): gu_issue(t)
    DGE = min(max(GE, DG), 9)
    A(f"v_lshlrev_b32 v8, 5, v{vN}")
    A(f"v_lshl_add_u32 v8, v{vG}, 4, v8")
    A(f"s_mul_i32 {sT0}, {sHW}, 576")
    A(f"v_add_u32 v66, {sT0}, v8")
    A(f"s_mul_i32 {sT0}, {sHW}, 2304")
    A(f"v_add_u32 v67, {sT0}, v8")
    for t in range(9):
        a = sel(vXC + 2, t)
        A(f"s_waitcnt vmcnt({2*(min(DGE + t, 9) - (t + 1))})")
        A("s_nop 0")
        mfma(vACC, a, GUB + 8 * t, first=(t == 0))
        mfma(vACC + 4, a, GUB + 8 * t + 4, first=(t == 0))
        if DGE + t < 9: gu_issue(DGE + t)
    A(f"s_mul_i32 {sT0}, {sS}, {GU_ROW}")
    A(f"s_mul_i32 {sT1}, {sH}, 1152")
    A(f"s_add_u32 {sT0}, {sT0}, {sT1}")
    A(f"s_add_u32 s68, {sT0}, {GU_BASE}")
    A("s_nop 3")
    two_group_to_lds(vACC, vACC + 4, 66)
    def gu_publish():
        A(f"v_lshlrev_b32 v8, 3, v{vLANE}")
        for w in range(4):
            A(f"ds_read_b64 v[{24+2*w}:{25+2*w}], v8 offset:{LDS_B + w*576}")
            A(f"ds_read_b64 v[{32+2*w}:{33+2*w}], v8 offset:{LDS_B + w*576 + 512}")
        for r in (49, 51, 53, 55): A(f"v_mov_b32 v{r}, {sTAGX}")
        A("s_waitcnt lgkmcnt(0)")
        for b0, d in ((24, 48), (32, 52)):
            for i in range(2):
                A(f"v_add_f32 v{b0+i}, v{b0+i}, v{b0+2+i}")
                A(f"v_add_f32 v{b0+4+i}, v{b0+4+i}, v{b0+6+i}")
                A(f"v_add_f32 v{d+2*i}, v{b0+i}, v{b0+4+i}")
        A("s_cmp_lg_u32 s46, 0")
        A("s_cbranch_scc1 L_gu_wt")
        gu_store("")
        A("s_branch L_gu_pub")
        A.lab("L_gu_wt")
        gu_store("sc1")
        A.lab("L_gu_pub")
    def gu_store(fl):
        A("s_mov_b64 exec, -1")
        A(f"buffer_store_dwordx4 v[48:51], v69, {srd(rWS)}, s68 offen {fl}")
        A("s_mov_b64 exec, 0xff")
        A(f"buffer_store_dwordx4 v[52:55], v69, {srd(rWS)}, s68 offen offset:1024 {fl}")
        A("s_mov_b64 exec, -1")
    stamp(3)
    A(f"s_cmp_eq_u32 {sHW}, 0")
    A("s_cbranch_scc1 L_b1done")
    A("s_barrier")
    A.lab("L_b1done")
    A(f"v_mov_b32 v8, {LDS_CNT}")
    A("v_mov_b32 v9, 1")
    A("s_mov_b64 exec, 1")
    A("s_waitcnt lgkmcnt(0)")
    A("ds_add_u32 v8, v9 offset:12")
    A("s_mov_b64 exec, -1")
    mk_srd(rW, pWO, 0 if "O" in abl else 4096 * 576 * 2)
    A(f"v_mul_u32_u24 v8, 1152, v{vG}")
    A(f"v_lshl_add_u32 v{vOA}, v{vN}, 4, v8")
    A(f"v_mov_b32 v9, {OOB}")
    A(f"v_cmp_gt_u32 vcc, 8, v{vN}")
    A(f"s_lshl_b32 {sT0}, {sH}, 2")
    A(f"s_add_u32 {sT0}, {sT0}, {sHW}")
    A(f"v_cndmask_b32 v{vOB}, v9, v{vOA}, vcc")
    A(f"s_mul_i32 {sOFF}, {sT0}, {32*1152}")
    for t in range(0 if "o" in abl else 8):
        for cg in range(5):
            A(f"s_waitcnt vmcnt({DW-1})")
            r = WBUF + 20 * t + 4 * cg
            A(f"buffer_load_dwordx4 v[{r}:{r+3}], v{vOA if cg < 4 else vOB}, {srd(rW)}, {sOFF} offen offset:{cg*256} nt")
        A(f"s_add_u32 {sOFF}, {sOFF}, {4*1152}")
    A(f"v_and_b32 v8, 7, v{vN}")
    A(f"v_lshl_add_u32 v8, v8, 2, v{vG}")
    A(f"s_lshl_b32 {sT0}, {sHW}, 7")
    A(f"v_lshl_add_u32 v66, v8, 2, {sT0}")
    record_addr_setup()
    A("v_mov_b32 v70, 0")
    for r in (81, 83): A(f"v_mov_b32 v{r}, {sTAG}")
    A(f"s_lshl_b32 {sCNT}, {sB}, {mlsh}")
    A(f"s_add_u32 {sCNT}, {sCNT}, {ML_BASE}")
    A(f"s_mov_b32 {sT2}, {LOG2E}")
    A(f"s_cmp_lg_u32 {sHW}, 3")
    A("s_cbranch_scc1 L_nocal")
    A(f"s_and_b32 s64, {sID}, {256 - NS}")
    A("s_lshl_b32 s64, s64, 7")
    A(f"v_lshlrev_b32 v44, 7, v{vLANE}")
    A(f"v_mov_b32 v93, {sTAG}")
    A(f"v_mov_b32 v95, {sTAG}")
    HG = 24
    A(f"v_mul_u32_u24 v8, 57, v{vLANE}")
    A("v_lshrrev_b32 v8, 9, v8")
    A("v_mul_u32_u24 v9, 9, v8")
    A(f"v_sub_u32 v9, v{vLANE}, v9")
    A(f"v_mul_u32_u24 v11, {GU_ROW}, v8")
    A("v_lshl_add_u32 v11, v9, 4, v11")
    A(f"s_mul_i32 {sT0}, {sB}, 144")
    A(f"s_add_u32 {sT0}, {sT0}, {GU_BASE}")
    A(f"v_add_u32 v11, {sT0}, v11")
    A("v_mul_u32_u24 v12, 72, v8")
    A("v_lshl_add_u32 v12, v9, 3, v12")
    A(f"v_add_u32 v12, {LDS_G}, v12")
    A(f"v_mov_b32 v13, {OOB}")
    A("v_cmp_gt_u32 s[70:71], 1, v8")
    A(f"v_lshl_add_u32 v75, v{vN}, 2, v{vG}")
    A("v_cmp_gt_u32 s[72:73], 18, v75")
    A("v_lshlrev_b32 v75, 2, v75")
    A("v_cndmask_b32 v13, v13, v11, s[70:71]")
    A(f"v_lshlrev_b32 v76, 2, v{vLANE}")
    def wait_seq(seq, tile=False):
        l = newlab("cw")
        A(f"s_mov_b32 {sSPIN}, 0")
        A.lab(l)
        A("s_sleep 4")
        A("ds_read_b64 v[8:9], v71 offset:16")
        if tile: A("ds_read_b32 v10, v71 offset:12")
        A(f"s_add_u32 {sSPIN}, {sSPIN}, 1")
        A("s_waitcnt lgkmcnt(0)")
        A("v_readfirstlane_b32 s67, v9")
        if tile: A("v_readfirstlane_b32 s66, v10")
        A(f"s_cmp_ge_u32 {sSPIN}, {spin}")
        A(f"s_cbranch_scc1 {l}x")
        A(f"s_cmp_lt_u32 s67, {seq}")
        A(f"s_cbranch_scc1 {l}")
        if tile:
            A("s_cmp_lt_u32 s66, 4")
            A(f"s_cbranch_scc1 {l}")
        A.lab(l + "x")
    for k, c in enumerate(CP):
        nominal = sum(2 * (TK if i < 4 else TV) for i in range(c))
        wait_seq(c + 1, tile=(k == gck))
        l2 = newlab("cs")
        A(f"s_cmp_lg_u32 s67, {c + 1}")
        A(f"s_cbranch_scc1 {l2}")
        A("v_mov_b32 v92, v8")
        A("v_mov_b32 v94, v8")
        A(f"s_lshl_b32 {sT0}, {sID}, 7")
        A(f"s_add_u32 {sT0}, {sT0}, {TS_BASE + k*32768}")
        A("s_mov_b64 exec, 0xff")
        A(f"buffer_store_dwordx4 v[92:95], v69, {srd(rWS)}, {sT0} offen {tst}")
        A("s_mov_b64 exec, -1")
        A.lab(l2)
        if k == gck and "G" not in abl: gu_publish()
        wait_seq(c + 2)
        A(f"s_add_u32 {sT0}, s64, {TS_BASE + k*32768}")
        A("v_mov_b32 v79, 0")
        A("v_mov_b32 v78, 0")
        if NS == 32: A("s_mov_b32 exec_hi, 0")
        elif NS == 16: A("s_mov_b64 exec, 0xffff")
        A(f"buffer_load_dwordx2 v[78:79], v44, {srd(rWS)}, {sT0} offen {tld}")
        hh = (k == gck and "G" not in abl and "h" not in abl)
        def ld_gu2(fl=hld):
            A(f"s_mov_b32 {sT0}, {7*GU_ROW}")
            A(f"buffer_load_dwordx4 v[24:27], v11, {srd(rWS)}, 0 offen {fl}")
            A(f"buffer_load_dwordx4 v[28:31], v13, {srd(rWS)}, {sT0} offen {fl}")
        def ck_gu2():
            A(f"v_mov_b32 v14, {sTAGX}")
            A("v_cndmask_b32 v29, v14, v29, s[70:71]")
            A("v_cndmask_b32 v31, v14, v31, s[70:71]")
            tagcheck([25, 27, 29, 31], sTAG=sTAGX)
        if hh:
            A("s_mov_b32 exec_lo, -1")
            A("s_mov_b32 exec_hi, 0x7fffffff")
            ld_gu2()
        A("s_mov_b64 exec, -1")
        A(f"s_waitcnt vmcnt({2 if hh else 0})")
        A(f"v_cmp_eq_u32 vcc, {sTAG}, v79")
        A("v_sub_u32 v78, v78, v8")
        A("v_cvt_f32_i32 v78, v78")
        A("s_bcnt1_i32_b64 s65, vcc")
        A("v_cndmask_b32 v78, 0, v78, vcc")
        dpp_reduce([78], "v_add_f32")
        l3 = newlab("cf")
        A(f"s_cmp_lt_u32 s65, {NS // 2}")
        A(f"s_cbranch_scc1 {l3}")
        A("v_cvt_f32_u32 v9, s65")
        A("v_rcp_f32 v9, v9")
        A("s_nop 0")
        A("v_mul_f32 v78, v78, v9")
        A("v_cvt_i32_f32 v78, v78")
        A("v_add_u32 v78, v78, v8")
        A(f"v_subrev_u32 v78, {(nominal - MG) & 0xffffffff}, v78")
        A("s_mov_b32 exec_lo, 0")
        A("s_mov_b32 exec_hi, 0x80000000")
        A("ds_write_b32 v71, v78 offset:8")
        A("s_mov_b64 exec, -1")
        A.lab(l3)
        if hh:
            A("s_mov_b32 exec_hi, 0x7fffffff")
            exchange("L_h", gu_store, ld_gu2, None, ck_gu2, 0, hsleep, 4, preloaded=True)
            A("s_mov_b32 exec_lo, -1")
            A("s_mov_b32 exec_hi, 0x7fffffff")
            A("ds_write2_b32 v12, v24, v26 offset0:0 offset1:1")
            A("s_mov_b64 exec, s[70:71]")
            A("ds_write2_b32 v12, v28, v30 offset0:126 offset1:127")
            A("s_mov_b64 exec, -1")
            A("s_waitcnt lgkmcnt(0)")
            for r in range(8):
                A(f"ds_read_b32 v{24+r}, v75 offset:{LDS_G + r*72}")
            A("s_waitcnt lgkmcnt(0)")
            for m in range(2):
                A(f"v_add_f32 v{24+4*m}, v{24+4*m}, v{25+4*m}")
                A(f"v_add_f32 v{26+4*m}, v{26+4*m}, v{27+4*m}")
                A(f"v_add_f32 v{88+m}, v{24+4*m}, v{26+4*m}")
            bf16_round(88, 88); bf16_round(89, 89)
            A(f"v_mul_f32 v{vCO}, v88, v89")
            A(f"v_cvt_pk_bf16_f32 v{vCO}, v{vCO}, v{vCO}")
            A(f"v_cndmask_b32 v{vCO}, 0, v{vCO}, s[72:73]")
            A(f"ds_write_b32 v76, v{vCO} offset:{LDS_H}")
            stamp(4)
    A.lab("L_nocal")
    A("s_waitcnt vmcnt(0) lgkmcnt(0)")
    stamp(5)
    def weights():
        A("v_max3_f32 v80, v48, v50, v52")
        A("v_max_f32 v80, v80, v54")
        for w in range(4): A(f"v_sub_f32 v{48+2*w}, v{48+2*w}, v80")
        for w in range(4): A(f"v_mul_f32 v{48+2*w}, {sT2}, v{48+2*w}")
        for w in range(4): A(f"v_exp_f32 v{48+2*w}, v{48+2*w}")
        A("s_nop 0")
        A("v_mul_f32 v82, v48, v49")
        for w in range(1, 4): A(f"v_fmac_f32 v82, v{48+2*w}, v{49+2*w}")
    if prew:
        A(f"s_mov_b32 {sSPIN}, 0")
        A.lab("L_mlw")
        A("s_sleep 1")
        A(f"ds_read_b128 v[48:51], v70 offset:{LDS_ML}")
        A(f"ds_read_b128 v[52:55], v70 offset:{LDS_ML+16}")
        A(f"s_add_u32 {sSPIN}, {sSPIN}, 1")
        A("s_waitcnt lgkmcnt(0)")
        A("v_or3_b32 v9, v49, v51, v53")
        A("v_or_b32 v9, v9, v55")
        A("s_nop 0")
        A(f"v_readfirstlane_b32 {sT0}, v9")
        A(f"s_cmp_ge_u32 {sSPIN}, {spin*4}")
        A("s_cbranch_scc1 L_mlw2")
        A(f"s_cmp_lt_i32 {sT0}, 0")
        A("s_cbranch_scc1 L_mlw")
        A.lab("L_mlw2")
        weights()
        if prew == 2:
            A(f"s_cmp_lg_u32 {sHW}, 2")
            A("s_cbranch_scc1 L_noml0")
            A("s_mov_b64 exec, 1")
            A(f"buffer_store_dwordx4 v[80:83], v70, {srd(rWS)}, {sCNT} offen sc1")
            A("s_mov_b64 exec, -1")
            A.lab("L_noml0")
    A("s_barrier")
    if ts: stamp(1)
    if not prew:
        A(f"ds_read_b128 v[48:51], v70 offset:{LDS_ML}")
        A(f"ds_read_b128 v[52:55], v70 offset:{LDS_ML+16}")
    for w in range(4):
        A(f"ds_read_b32 v{56+w}, v66 offset:{LDS_O + w*512}")
    if not prew:
        A("s_waitcnt lgkmcnt(4)")
        weights()
    A("s_waitcnt lgkmcnt(0)")
    A("v_mul_f32 v10, v48, v56")
    for w in range(1, 4):
        A(f"v_fmac_f32 v10, v{48+2*w}, v{56+w}")
    A(f"v_cvt_pk_bf16_f32 v{vCO}, v10, v10")
    A(f"s_cmp_lg_u32 {sHW}, {99 if prew == 2 else 2}")
    A("s_cbranch_scc1 L_noml")
    A("s_mov_b64 exec, 1")
    A(f"buffer_store_dwordx4 v[80:83], v70, {srd(rWS)}, {sCNT} offen sc1")
    A("s_mov_b64 exec, -1")
    A.lab("L_noml")
    if ts: stamp(2)
    if apipe:
        a = sel(vCO, 0)
        A("s_nop 1")
        for t in range(8):
            an = vAop[aop_flip[0]]; aop_flip[0] ^= 1
            for cg in range(5):
                mfma(vACC + 4 * cg if cg < 4 else 84, a, WBUF + 20 * t + 4 * cg, first=(t == 0))
                if t < 7 and cg < 2:
                    for i in (2 * cg, 2 * cg + 1):
                        A(f"v_and_b32_dpp v{an+i}, v{vCO}, v{vMK[i]} row_newbcast:{t+1} row_mask:0xf bank_mask:0xf")
            a = an
    else:
        for t in range(8):
            a = sel(vCO, t)
            A("s_nop 1")
            for cg in range(5):
                mfma(vACC + 4 * cg if cg < 4 else 84, a, WBUF + 20 * t + 4 * cg, first=(t == 0))
    A("s_nop 3")
    A("s_mov_b32 exec_hi, 0")
    for cg in range(4):
        A(f"ds_write_b128 v67, v[{vACC+4*cg}:{vACC+4*cg+3}] offset:{LDS_A + cg*512}")
    A("s_mov_b32 exec_lo, 0x00ff00ff")
    A(f"ds_write_b128 v67, v[84:87] offset:{LDS_A + 2048}")
    if bar4:
        A("s_mov_b64 exec, -1")
        A("s_waitcnt lgkmcnt(0)")
        if ts: stamp(4)
        A("s_barrier")
    else:
        A("s_mov_b64 exec, 1")
        A("s_waitcnt lgkmcnt(0)")
        A("ds_add_u32 v71, v72")
        A("s_mov_b64 exec, -1")
        if ts: stamp(4)
        lds_wait("L_hw", 8)
    if ts: stamp(7)
    record_store()
    A(f"s_cmp_lg_u32 {sHW}, 3")
    A("s_cbranch_scc1 L_nox")
    A("s_nop 1")
    record_store(extra=1)
    A.lab("L_nox")
    if early:
        A(f"s_cmp_lg_u32 {sHW}, 2")
        A("s_cbranch_scc1 L_nox2")
        record_store(back=3)
        A.lab("L_nox2")
    stamp(6)
    if relayout:
        A("s_branch L_fin" if stamps else "s_endpgm")
        hl = A.L[mark_helper:]
        del A.L[mark_helper:]
        i = A.L.index("@@HELPER@@")
        A.L[i:i+1] = hl
    A.lab("L_fin")
    stamp_flush()
    A.lab("L_end")
    A("s_endpgm")
    A.lab("L_codeend")

    out = HEADER
    out += f"; @launch grid=(256,1,1) block=(512,1,1) lds={LDS_BYTES}\n"
    out += '.amdgcn_target "amdgcn-amd-amdhsa--gfx950"\n.text\n'
    out += f".globl {KNAME}\n.p2align 8\n.type {KNAME},@function\n"
    out += "\n".join(A.L) + "\n"
    out += '.section .rodata,"a"\n.p2align 6\n'
    out += f""".amdhsa_kernel {KNAME}
  .amdhsa_next_free_vgpr 256
  .amdhsa_next_free_sgpr 102
  .amdhsa_accum_offset 256
  .amdhsa_group_segment_fixed_size 0
  .amdhsa_kernarg_size 96
  .amdhsa_user_sgpr_count 2
  .amdhsa_user_sgpr_kernarg_segment_ptr 1
  .amdhsa_system_sgpr_workgroup_id_x 1
.end_amdhsa_kernel
"""
    return out

if __name__ == "__main__":
    import json
    kw = json.loads(sys.argv[1]) if len(sys.argv) > 1 else {}
    sys.stdout.write(gen(**kw))
```

```python
import sys, struct

KNAME = "parallel_sum__mha_block_cached__glu_gated_bilinear__decode_kernel"

HEADER = """; Kernarg layout for this problem (96 bytes, ptrs only, base s[0:1]):
"""

DOC = """; ---------------------------------------------------------------------------------------------------------
; Hand-offs between workgroups are {data, tag} granules in d_ws; tag = epoch word of d_ws + constant, the epoch
; ---------------------------------------------------------------------------------------------------------
"""

def f2u(x):
    return struct.unpack("<I", struct.pack("<f", x))[0]

BLK = 16384
OFF_R, OFF_Q = 0, 9216
GU_BASE = 256 * BLK
GU_ROW = 4608 * 8
ML_BASE = GU_BASE + 32 * GU_ROW
EPOCH_OFF = ML_BASE + 16 * 32768
TS_BASE = EPOCH_OFF + 4096
STAMP_BASE = 6 << 20
REC_BASE = 8 << 20
WS_SIZE = 12 << 20
OOB = 0x40000000
TAG_STEP = 0x9E3779B9
LOG2E = f2u(1.4426950408889634)
LDS_Q = 0
LDS_CNT = 512
LDS_H = 768
LDS_ML = 1024
LDS_O = 1280
LDS_B = 3328
LDS_W = 5632
LDS_A = 8192
LDS_G = 8192 + 4 * 2304 + 512
LDS_BYTES = LDS_G + 2304 + 256

class G:
    def __init__(self):
        self.L = []
    def __call__(self, s):
        self.L.append("  " + s)
    def lab(self, s):
        self.L.append(s + ":")
    def c(self, s):
        self.L.append("  ; " + s)

def gen(D=5, INIT=8, stamps=False, DG=5, DW=4, spin=1 << 18, codepf=16, fsleep=0, qdelay=8, abl="",
        hsleep=40, D2=6, T0=800, TK=236, TV=219, mlsleep=0, warm="", cdelay=0, dbg=0, ts=0, cal=1, MG=50, CP=(2, 4), NS=32, tbase=0, guearly=0, htail=2, hstep=16, wdstep=8, apipe=1, D3=8, L3=100, D0=4, L0=100, rot=0, CI=8, FK=0, FV=0, FP=0, clk=0, qld="nt", hld="nt", tld="sc1", qst="", gust="", tst="sc1", gupub=1, gck=1, fmode=1, rdelay=0, mlsh=6, early=0, INIT0=0, XS=0, late=None, ldelay=6, bar4=1, prew=1, endb=100, endstep=24, rt=0, pre=0, pdelay=4, wsleep=4, R=1, swap=1, relayout=1, bar0=0, qfall=6, pad_to=0, gumid=0, qsleep=16):
    if dbg: stamps = True
    A = G()
    sID = "s2"
    pX, pK, pV, pWQ, pWO, pWG, pWU, pWD, pOUT, pDBG, pWS = 16, 18, 20, 22, 24, 28, 30, 32, 34, 36, 38
    rX, rST, rW, rWS, rO = 40, 44, 48, 52, 56
    sWV, sH, sS, sB, sHW = "s3", "s4", "s5", "s6", "s7"
    sOFF, sCNT, sT0, sT1, sT2, sM = "s8", "s9", "s10", "s11", "s12", "s13"
    sSPIN, sTAG = "s14", "s15"
    mU = ["s[60:61]", "s[62:63]", "s[64:65]", "s[66:67]"]
    mT = ["s[68:69]", "s[70:71]", "s[72:73]", "s[74:75]"]
    def srd(r): return f"s[{r}:{r+3}]"
    def mk_srd(r, p, size):
        A(f"s_mov_b32 s{r}, s{p}"); A(f"s_mov_b32 s{r+1}, s{p+1}"); A(f"s_mov_b32 s{r+2}, {size}"); A(f"s_mov_b32 s{r+3}, 0x20000")
    SB = 80
    def stamp(idx):
        if not stamps: return
        assert idx < 11
        A(f"s_memrealtime s[{SB+2*idx}:{SB+2*idx+1}]")
    def stampval(idx, sreg):
        if not stamps: return
        A(f"s_mov_b32 s{SB+2*idx}, {sreg}")
    def stamp_init():
        if stamps:
            for i in range(1, 11): A(f"s_mov_b32 s{SB+2*i}, 0")
    def stamp_flush():
        if not stamps: return
        A("s_waitcnt vmcnt(0) lgkmcnt(0)")
        A("s_mov_b64 exec, -1")
        A(f"s_lshl_b32 s8, {sID}, 3")
        A(f"s_add_u32 s8, s8, {sWV}")
        A("s_lshl_b32 s8, s8, 6")
        A(f"s_add_u32 s8, s8, {STAMP_BASE}")
        A("v_mov_b32 v8, 0")
        for i in range(11):
            A(f"v_writelane_b32 v8, s{SB+2*i}, {i}")
        A(f"v_lshlrev_b32 v9, 2, v{vLANE}")
        A(f"v_mov_b32 v10, {OOB}")
        A(f"v_cmp_gt_u32 vcc, 16, v{vLANE}")
        A("s_nop 1")
        A("v_cndmask_b32 v9, v10, v9, vcc")
        A(f"buffer_store_dword v8, v9, {srd(rWS)}, s8 offen")
        if dbg:
            A(f"s_cmp_lg_u32 {sID}, {dbg-1}")
            A("s_cbranch_scc1 L_end")
            A(f"s_cmp_lg_u32 {sWV}, 3")
            A("s_cbranch_scc1 L_end")
            mk_srd(rO, pDBG, 256)
            A(f"v_subrev_u32 v8, s{SB}, v8")
            A(f"buffer_store_dword v8, v9, {srd(rO)}, 0 offen")
    vLANE, vG, vN = 1, 2, 3
    vMK = [4, 5, 6, 7]
    vAop = [16, 20]
    vACC = 24
    vOFFC, vOFFV = 46, 47
    vBQ = 48
    vDK = 64
    vS = 68
    vSN, vP, vL = 76, 77, 78
    vX4 = 80
    WDB = 84
    RING = 128
    vXA = 48
    vXC = 56
    vOA, vOB = 60, 61
    vCO = 64
    WBUF = 96
    uid = [0]
    def newlab(p):
        uid[0] += 1
        return f"L_{p}{uid[0]}"

    def dpp_reduce(regs, op):
        pad = "s_nop 1" if len(regs) == 1 else ("s_nop 0" if len(regs) == 2 else None)
        A("s_nop 1")
        for d, rm in (("row_shr:1", "0xf"), ("row_shr:2", "0xf"), ("row_shr:4", "0xf"), ("row_shr:8", "0xf"), ("row_bcast:15", "0xa"), ("row_bcast:31", "0xc")):
            for r in regs: A(f"{op}_dpp v{r}, v{r}, v{r} {d} row_mask:{rm} bank_mask:0xf")
            if pad: A(pad)
        if not pad: A("s_nop 0")
    aop_flip = [0]
    def sel(coef, idx):
        a = vAop[aop_flip[0]]; aop_flip[0] ^= 1
        for i in range(4):
            A(f"v_and_b32_dpp v{a+i}, v{coef}, v{vMK[i]} row_newbcast:{idx} row_mask:0xf bank_mask:0xf")
        return a
    def mfma(d, a, b, first=False):
        c = "0" if first else f"v[{d}:{d+3}]"
        A(f"v_mfma_f32_16x16x32_bf16 v[{d}:{d+3}], v[{a}:{a+3}], v[{b}:{b+3}], {c}")
    def bf16_round(dst, src):
        A(f"v_cvt_pk_bf16_f32 v{dst}, v{src}, v{src}")
        A(f"v_lshlrev_b32 v{dst}, 16, v{dst}")
    sTAGX = "s75"
    def tagcheck(regs, dst=9, tmp=10, tmp2=15, sTAG=sTAG):
        regs = list(regs)
        lv = [(regs[i], regs[i+1]) for i in range(0, len(regs), 2)]
        A(f"v_bitop3_b32 v{dst}, v{lv[0][0]}, v{lv[0][1]}, {sTAG} bitop3:0x7e")
        rest = lv[1:]; k = 0
        while k < len(rest):
            A(f"v_bitop3_b32 v{tmp}, v{rest[k][0]}, v{rest[k][1]}, {sTAG} bitop3:0x7e")
            if k + 1 < len(rest):
                A(f"v_bitop3_b32 v{tmp2}, v{rest[k+1][0]}, v{rest[k+1][1]}, {sTAG} bitop3:0x7e")
                A(f"v_or3_b32 v{dst}, v{dst}, v{tmp}, v{tmp2}")
            else:
                A(f"v_or_b32 v{dst}, v{dst}, v{tmp}")
            k += 2
    def poll(label, loads, tagregs, slp, check=None, limit=None, keep=False, die=False, bail=None):
        A(f"s_mov_b32 {sSPIN}, 0")
        A.lab(label)
        loads()
        A("s_waitcnt vmcnt(0)")
        verdict(tagregs, check, die)
        A(f"s_add_u32 {sSPIN}, {sSPIN}, 1")
        A("s_and_b64 exec, exec, vcc")
        A(f"s_cbranch_execz {label}_done")
        if bail:
            A("s_cmp_lg_u64 s[44:45], 0")
            A(f"s_cbranch_scc1 {bail}")
        if slp: A(f"s_sleep {slp}")
        A(f"s_cmp_lt_u32 {sSPIN}, {limit or spin}")
        A(f"s_cbranch_scc1 {label}")
        A.lab(f"{label}_done")
        if not keep: A("s_mov_b64 exec, -1")
    def verdict(tagregs, check, die):
        if check: check()
        else: tagcheck(tagregs, sTAG=sTAGX if die else sTAG)
        if die:
            A("v_cmp_ne_u32 vcc, 0, v9")
            A("s_or_b64 s[44:45], s[44:45], vcc")
            A("v_cmp_lt_u32 vcc, 7, v9")
            A("s_andn2_b64 s[44:45], s[44:45], vcc")
        else:
            A("v_cmp_ne_u32 vcc, 0, v9")
    def two_group_offsets(rowstride, sw, oa, ob):
        A(f"s_mul_i32 {sT2}, {sw}, 288")
        A(f"v_mul_u32_u24 v8, {rowstride}, v{vG}")
        A(f"v_lshl_add_u32 v8, v{vN}, 4, v8")
        A(f"v_add_u32 v{oa}, {sT2}, v8")
        A(f"v_add_u32 v8, 256, v{oa}")
        A(f"v_mov_b32 v9, {OOB}")
        A(f"v_cmp_gt_u32 vcc, 2, v{vN}")
        A("s_nop 1")
        A(f"v_cndmask_b32 v{ob}, v9, v8, vcc")
    def two_group_to_lds(accA, accB, vaddr):
        A("s_mov_b32 exec_hi, 0")
        A(f"ds_write_b128 v{vaddr}, v[{accA}:{accA+3}] offset:{LDS_B}")
        A("s_mov_b32 exec_lo, 0x00030003")
        A(f"ds_write_b128 v{vaddr}, v[{accB}:{accB+3}] offset:{LDS_B+512}")
        A("s_mov_b64 exec, -1")
    def masks():
        A(f"v_and_b32 v8, 1, v{vN}")
        A("v_lshlrev_b32 v8, 4, v8")
        A(f"s_mov_b32 {sT0}, 0xffff")
        A(f"v_lshlrev_b32 v8, v8, {sT0}")
        A(f"v_lshrrev_b32 v11, 1, v{vN}")
        for i in range(4):
            A(f"v_cmp_eq_u32 vcc, {i}, v11")
            A("s_nop 1")
            A(f"v_cndmask_b32 v{vMK[i]}, 0, v8, vcc")
    def tail_store_setup():
        pass
    def lds_wait(label, target):
        A(f"s_mov_b32 {sSPIN}, 0")
        A.lab(label)
        A("ds_read_b32 v9, v71")
        A(f"s_add_u32 {sSPIN}, {sSPIN}, 1")
        A("s_waitcnt lgkmcnt(0)")
        A(f"v_readfirstlane_b32 {sT0}, v9")
        A(f"s_cmp_ge_u32 {sSPIN}, {spin}")
        A(f"s_cbranch_scc1 {label}_done")
        A(f"s_cmp_lt_u32 {sT0}, {target}")
        A(f"s_cbranch_scc1 {label}")
        A.lab(f"{label}_done")
    def record_addr_setup():
        A(f"v_and_b32 v8, 1, v{vLANE}")
        A(f"v_lshrrev_b32 v9, 2, v{vLANE}")
        A("v_lshlrev_b32 v9, 4, v9")
        A("v_lshl_add_u32 v8, v8, 3, v9")
        A(f"s_lshl_b32 {sT0}, {sWV}, 8")
        A(f"v_add_u32 v68, {sT0}, v8")
        A(f"v_lshlrev_b32 v69, 4, v{vLANE}")
        A(f"v_and_b32 v8, 2, v{vLANE}")
        A("v_cmp_eq_u32 s[62:63], 0, v8")
        A(f"v_mov_b32 v71, {LDS_CNT}")
        A("v_mov_b32 v72, 1")
        A(f"v_mov_b32 v41, {sTAG}")
        A(f"v_mov_b32 v43, {sTAG}")
        if rt:
            A(f"v_lshrrev_b32 v8, 2, v{vLANE}")
            A(f"v_and_b32 v9, 3, v{vLANE}")
            A("v_lshlrev_b32 v9, 4, v9")
            A("v_lshl_add_u32 v65, v8, 14, v9")
            A(f"s_lshl_b32 s60, {sB}, 6")
            A(f"s_lshl_b32 {sT0}, {sWV}, 18")
            A(f"s_add_u32 s60, s60, {sT0}")
            A(f"s_add_u32 s60, s60, {REC_BASE}")
            A(f"s_add_u32 s61, s60, {1 << 18}")
        else:
            A(f"s_lshl_b32 s60, {sB}, 14")
            A(f"s_lshl_b32 {sT0}, {sWV}, 10")
            A(f"s_add_u32 s60, s60, {sT0}")
    def record_store(extra=0, base=48, back=0):
        lo = 256 * extra
        if back:
            A(f"v_subrev_u32 v68, {256*back}, v68")
            A(f"s_sub_u32 s60, s60, {1024*back}")
        for w in range(4):
            A(f"ds_read_b64 v[{base+2*w}:{base+2*w+1}], v68 offset:{LDS_A + w*2304 + lo}")
        A(f"ds_read_b64 v[{base+8}:{base+9}], v68 offset:{LDS_B + lo}")
        A("s_waitcnt lgkmcnt(1)")
        for i in range(2):
            A(f"v_add_f32 v{base+i}, v{base+i}, v{base+2+i}")
            A(f"v_add_f32 v{base+4+i}, v{base+4+i}, v{base+6+i}")
        for i in range(2):
            A(f"v_add_f32 v{base+i}, v{base+i}, v{base+4+i}")
        A("s_waitcnt lgkmcnt(0)")
        A(f"v_cndmask_b32 v40, v{base+8}, v{base}, s[62:63]")
        A(f"v_cndmask_b32 v42, v{base+9}, v{base+1}, s[62:63]")
        if rt: A(f"buffer_store_dwordx4 v[40:43], v65, {srd(rWS)}, s{60+extra} offen sc1")
        else: A(f"buffer_store_dwordx4 v[40:43], v69, {srd(rWS)}, s60 offen offset:{1024*extra} sc1")

    A.lab(KNAME)
    A(f"s_cmp_ge_u32 {sID}, 256")
    A("s_cbranch_scc1 L_end")
    A("s_load_dwordx16 s[16:31], s[0:1], 0")
    A("s_load_dwordx8 s[32:39], s[0:1], 64")
    A("s_memrealtime s[78:79]")
    if pad_to: A("s_memrealtime s[98:99]")
    stamp(0)
    A("v_lshrrev_b32 v8, 6, v0")
    A(f"v_and_b32 v{vLANE}, 63, v0")
    A(f"v_readfirstlane_b32 {sWV}, v8")
    A(f"v_lshrrev_b32 v{vG}, 4, v{vLANE}")
    A(f"v_and_b32 v{vN}, 15, v{vLANE}")
    A(f"s_and_b32 {sT0}, {sID}, 7")
    A(f"s_lshr_b32 {sT1}, {sID}, 3")
    A(f"s_and_b32 {sH}, {sT1}, 3")
    A(f"s_lshr_b32 {sS}, {sT1}, 2")
    A(f"s_lshl_b32 {sT0}, {sT0}, 2")
    A(f"s_add_u32 {sH}, {sH}, {sT0}")
    A(f"s_lshl_b32 {sB}, {sH}, 3")
    A(f"s_add_u32 {sB}, {sB}, {sS}")
    if swap: A(f"s_xor_b32 {sWV}, {sWV}, 4")
    A(f"s_cmp_ge_u32 {sWV}, 4")
    A("s_cbranch_scc1 L_helper")

    A.c("---- streamer waves 0..3")
    A(f"s_lshl_b32 {sT0}, {sB}, 19")
    A(f"s_lshl_b32 {sT1}, {sWV}, 10")
    A(f"s_add_u32 {sT0}, {sT0}, {sT1}")
    A(f"v_lshrrev_b32 v8, 2, v{vN}")
    A("v_lshlrev_b32 v8, 8, v8")
    A(f"v_and_b32 v11, 3, v{vN}")
    A("v_lshlrev_b32 v11, 4, v11")
    A(f"v_lshlrev_b32 v12, 6, v{vG}")
    A("v_add3_u32 v8, v8, v11, v12")
    if "n" in abl: A(f"v_lshlrev_b32 v8, 4, v{vLANE}")
    A(f"v_add_u32 v{vOFFC}, {sT0}, v8")
    A(f"s_mov_b32 {sOFF}, 0")
    A(f"s_mov_b32 s{rST+2}, 0x8000000")
    A(f"s_mov_b32 s{rST+3}, 0x20000")
    A("s_waitcnt lgkmcnt(0)")
    A(f"s_mov_b32 s{rST}, s{pK}")
    A(f"s_mov_b32 s{rST+1}, s{pK+1}")
    if rot:
        A(f"s_mul_hi_u32 {sOFF}, s78, {int(2**32 / rot)}")
        A(f"s_lshl_b32 {sOFF}, {sOFF}, 12")
        A(f"s_and_b32 {sOFF}, {sOFF}, 0x7ffff")
    def pace(d):
        if T0:
            l = newlab("pc")
            if D3:
                A(f"s_cmp_gt_i32 s75, {L3}")
                A(f"s_cbranch_scc1 {l}b")
            A(f"s_cbranch_vccnz {l}")
            if D0:
                A(f"s_cmp_gt_i32 s75, {-L0}")
                A(f"s_cbranch_scc1 {l}a")
                A(f"s_waitcnt vmcnt({D0-1})")
                A.lab(l + "a")
            A(f"s_waitcnt vmcnt({d-1})")
            A.lab(l)
            A(f"s_waitcnt vmcnt({D2-1})")
            if D3:
                A.lab(l + "b")
                A(f"s_waitcnt vmcnt({D3-1})")
        else:
            A(f"s_waitcnt vmcnt({d-1})")
    def control(n, step):
        if not T0: return
        if n % CI == 0:
            A("s_memrealtime s[76:77]")
            if cal: A("ds_read_b32 v123, v122 offset:8")
        if n % CI == 2:
            A("s_waitcnt lgkmcnt(0)")
            if cal:
                A("v_readfirstlane_b32 s79, v123")
                if n == 2:
                    l = newlab("ck")
                    A(f"s_cmp_lg_u32 {sWV}, 0")
                    A(f"s_cbranch_scc1 {l}")
                    A("v_mov_b32 v120, s76")
                    A("v_add_u32 v121, 1, v121")
                    A("ds_write_b64 v122, v[120:121] offset:16")
                    A.lab(l)
                A("s_sub_u32 s76, s76, s79")
            A("s_sub_u32 s76, s76, s78")
            A("s_abs_i32 s77, s76")
            A("s_cmp_gt_u32 s77, 100000")
            A("s_cselect_b32 s75, 0, s76")
            A("s_cmp_gt_i32 s75, 0")
            A("s_cselect_b64 vcc, -1, 0")
            k = (n % 16) // CI; parts = 16 // CI
            A(f"s_add_u32 s78, s78, {step * (k + 1) // parts - step * k // parts}")
    def issue(slot):
        r = RING + 4 * slot
        A(f"buffer_load_dwordx4 v[{r}:{r+3}], v{vOFFC}, {srd(rST)}, {sOFF} offen nt")
        A(f"s_add_u32 {sOFF}, {sOFF}, 4096")
        if rot: A(f"s_and_b32 {sOFF}, {sOFF}, 0x7ffff")
    if bar0: A("s_barrier")
    for n in range(INIT0 or INIT): issue(n)
    if relayout:
        A("s_branch L_stream2")
        A.L.append("@@HELPER@@")
        A.lab("L_stream2")
    stamp_init()
    A(f"s_mov_b32 {sT1}, {EPOCH_OFF}")
    A(f"s_load_dword {sTAG}, s[{pWS}:{pWS+1}], {sT1}")
    A(f"v_lshlrev_b32 v8, 4, v{vLANE}")
    A(f"v_add_u32 v{vOFFV}, {sT0}, v8")
    mk_srd(rX, pX, 1152)
    mk_srd(rWS, pWS, WS_SIZE)
    mk_srd(rW, pWD, 4608 * 576 * 2)
    masks()
    two_group_offsets(1152, sWV, 32, 33)
    A(f"v_cmp_gt_u32 vcc, 32, v{vLANE}")
    A(f"s_lshl_b32 {sT0}, {sID}, 3")
    A(f"v_mov_b32 v10, {sT0}")
    A("v_cndmask_b32 v34, v9, v32, vcc")
    A("v_cndmask_b32 v35, v9, v33, vcc")
    A(f"v_and_b32 v8, 3, v{vN}")
    A(f"v_lshrrev_b32 v9, 2, v{vN}")
    for u in range(4):
        A(f"v_cmp_eq_u32 {mU[u]}, {u}, v8")
        A(f"v_cmp_eq_u32 {mT[u]}, {u}, v9")
    A(f"v_lshlrev_b32 v9, 2, v{vG}")
    A("v_add_u32 v8, v8, v9")
    A("v_lshlrev_b32 v8, 5, v8")
    A(f"buffer_load_dwordx2 v[{vX4}:{vX4+1}], v10, {srd(rX)}, 0 offen")
    if htail in (1, 3):
        A(f"v_mul_u32_u24 v10, 57, v{vLANE}")
        A("v_lshrrev_b32 v127, 9, v10")
        A("v_mul_u32_u24 v9, 9, v127")
        A(f"v_sub_u32 v9, v{vLANE}, v9")
        A(f"v_mul_u32_u24 v11, {GU_ROW}, v127")
        A("v_lshl_add_u32 v11, v9, 4, v11")
        A(f"s_mul_i32 {sT0}, {sB}, 144")
        A(f"s_add_u32 {sT0}, {sT0}, {GU_BASE}")
        A(f"v_add_u32 v124, {sT0}, v11")
        A("v_mul_u32_u24 v12, 72, v127")
        A("v_lshl_add_u32 v12, v9, 3, v12")
        A(f"s_mul_i32 {sT0}, {sWV}, 2304")
        A(f"s_add_u32 {sT0}, {sT0}, {LDS_G}")
        A(f"v_add_u32 v126, {sT0}, v12")
        A(f"v_mov_b32 v13, {OOB}")
        A("v_cmp_gt_u32 vcc, 4, v127")
        A("s_nop 1")
        A("v_cndmask_b32 v125, v13, v124, vcc")
        if htail == 3:
            A(f"s_cmp_eq_u32 {sWV}, 0")
            A("s_cselect_b64 vcc, -1, 0")
            A("v_cndmask_b32 v124, v13, v124, vcc")
            A("v_cndmask_b32 v125, v13, v125, vcc")
    for n in range(INIT0 or INIT, INIT): issue(n)
    for n in range(INIT, 32):
        A(f"s_waitcnt vmcnt({D-1 + (1 if (n % 4) < FP else 0)})")
        issue(n)
    XB = 88
    for n in range(XS):
        A(f"s_waitcnt vmcnt({D-1})")
        r = 96 + 4 * n
        A(f"buffer_load_dwordx4 v[{r}:{r+3}], v{vOFFC}, {srd(rST)}, {sOFF} offen nt")
        A(f"s_add_u32 {sOFF}, {sOFF}, 4096")
    A("s_waitcnt lgkmcnt(0)")
    A(f"s_add_u32 {sTAG}, {sTAG}, {TAG_STEP}")
    if not ts: stamp(4)
    A("s_barrier")
    if not ts: stamp(5)
    if clk: A(f"s_memtime s[{SB+2}:{SB+3}]")
    QT = 84
    A(f"ds_read_b128 v[{QT}:{QT+3}], v8 offset:{LDS_Q}")
    A(f"ds_read_b128 v[{QT+4}:{QT+7}], v8 offset:{LDS_Q+16}")
    if tbase:
        A("v_mov_b32 v9, 0")
        A(f"ds_read_b32 v9, v9 offset:{LDS_CNT+8}")
    A("s_waitcnt lgkmcnt(0)")
    if tbase:
        A("v_readfirstlane_b32 s78, v9")
    for i in range(4):
        A(f"v_cvt_pk_bf16_f32 v{QT+8+i}, v{QT+2*i}, v{QT+2*i+1}")
    for t in range(4):
        for i in range(4):
            A(f"v_cndmask_b32 v{vBQ+4*t+i}, 0, v{QT+8+i}, {mT[t]}")
    if cal:
        A("s_mov_b32 s78, 0")
        A("v_mov_b32 v121, 0")
        A(f"v_mov_b32 v122, {LDS_CNT}")
    else:
        A(f"s_add_u32 s78, s78, {T0}")
    A("s_mov_b64 vcc, 0")
    A("s_mov_b32 s75, 0")
    A(f"s_mov_b32 {sT2}, {f2u(128 ** -0.5)}")
    A(f"s_mov_b32 {sCNT}, 0")
    A.lab("L_kloop")
    A(f"s_cmp_eq_u32 {sCNT}, 3")
    A("s_cbranch_scc0 L_kbody")
    A(f"s_mov_b32 s{rST}, s{pV}")
    A(f"s_mov_b32 s{rST+1}, s{pV+1}")
    if not rot: A(f"s_mov_b32 {sOFF}, 0")
    A(f"v_mov_b32 v{vOFFC}, v{vOFFV}")
    A.lab("L_kbody")
    for n in range(32):
        t, u = n % 4, (n // 4) % 4
        if "m" not in abl: mfma(vDK, RING + 4 * n, vBQ + 4 * t, first=(t == 0))
        if n < XS:
            l = newlab("xs")
            A(f"s_cmp_eq_u32 {sCNT}, 0")
            A(f"s_cbranch_scc1 {l}")
        pace(D + (1 if (n % 4) < FK else 0))
        issue(n)
        if n < XS: A.lab(l)
        if XS and 20 <= n < 20 + XS:
            l = newlab("xc")
            A(f"s_cmp_lg_u32 {sCNT}, 0")
            A(f"s_cbranch_scc1 {l}")
            for j in range(4): A(f"v_mov_b32 v{RING+4*(n-20)+j}, v{96+4*(n-20)+j}")
            A.lab(l)
        control(n, TK)
        if t == 3:
            A("s_nop 5")
            A(f"v_mov_b32_dpp v8, v{vDK} quad_perm:[0,0,0,0] row_mask:0xf bank_mask:0xf")
            for cidx in range(1, 4):
                A(f"v_add_f32_dpp v8, v{vDK+cidx}, v8 quad_perm:[{cidx},{cidx},{cidx},{cidx}] row_mask:0xf bank_mask:0xf")
            if u == 0:
                A(f"v_mov_b32 v{vSN}, v8")
            else:
                A(f"v_cndmask_b32 v{vSN}, v{vSN}, v8, {mU[u]}")
            if u == 3:
                bf16_round(vSN, vSN)
                A(f"v_mul_f32 v{vSN}, {sT2}, v{vSN}")
                bf16_round(vSN, vSN)
                for k in range(7):
                    A(f"v_mov_b32 v{vS+k}, v{vS+k+1}")
                A(f"v_mov_b32 v{vS+7}, v{vSN}")
    A(f"s_add_u32 {sCNT}, {sCNT}, 1")
    A(f"s_cmp_lt_u32 {sCNT}, 4")
    A("s_cbranch_scc1 L_kloop")
    if not ts: stamp(6)
    A(f"v_max3_f32 v8, v{vS}, v{vS+1}, v{vS+2}")
    A(f"v_max3_f32 v8, v8, v{vS+3}, v{vS+4}")
    A(f"v_max3_f32 v8, v8, v{vS+5}, v{vS+6}")
    A(f"v_max_f32 v8, v8, v{vS+7}")
    dpp_reduce([8], "v_max_f32")
    A(f"v_readlane_b32 {sM}, v8, 63")
    A(f"s_mov_b32 {sT2}, {LOG2E}")
    A(f"v_mov_b32 v{vL}, 0")
    for i in range(4): A(f"v_mov_b32 v{vACC+i}, 0")
    A(f"s_mov_b32 {sCNT}, 0")
    def ptile():
        A(f"v_subrev_f32 v8, {sM}, v{vS}")
        A(f"v_mul_f32 v8, {sT2}, v8")
        A("v_exp_f32 v8, v8")
        for k in range(7):
            A(f"v_mov_b32 v{vS+k}, v{vS+k+1}")
        A(f"v_add_f32 v{vL}, v{vL}, v8")
        A(f"v_cvt_pk_bf16_f32 v{vP}, v8, v8")
        A("s_nop 1")
    NWD = 15 if htail in (1, 3) else 10
    GM, GW, GR = RING + 80, RING, RING + 16
    def vstep(n, last):
        if n % 16 == 0: ptile()
        if last and n == 17:
            dpp_reduce([vL], "v_add_f32")
            A(f"v_mov_b32 v45, v{vL}")
            A("s_mov_b32 exec_lo, 0")
            A("s_mov_b32 exec_hi, 0x80000000")
            A(f"ds_write_b64 v83, v[44:45] offset:{LDS_ML}")
            A("s_mov_b64 exec, -1")
            record_addr_setup()
        L = n % 16; t, u = L % 4, L // 4
        if "m" in abl:
            pace(D); issue(n); control(n, TV)
            return
        a = sel(vP, 4 * t + u)
        if last and n >= 32 - max(D, D2) - 1:
            A(f"s_waitcnt vmcnt({NWD + 31 - n})")
            A("s_nop 0")
        else:
            A("s_nop 1")
        mfma(vACC, a, RING + 4 * n)
        if not last:
            pace(D + (1 if (n % 4) < FV else 0))
            issue(n)
            control(n, TV)
    A.lab("L_vloop")
    for n in range(32):
        vstep(n, False)
        if endb and n == endstep - 1:
            A(f"s_cmp_eq_u32 {sCNT}, 2")
            A(f"s_cselect_b32 s77, {endb}, 0")
            A("s_sub_u32 s78, s78, s77")
    A(f"s_add_u32 {sCNT}, {sCNT}, 1")
    A(f"s_cmp_lt_u32 {sCNT}, 3")
    A("s_cbranch_scc1 L_vloop")
    stamp(7)
    if clk: A(f"s_memtime s[{SB+20}:{SB+21}]")
    A(f"s_mul_i32 {sOFF}, {sB}, {18*1152}")
    def wd_issue(t):
        r = WDB + 8 * t
        oa, ob = (32, 33) if t < 4 else (34, 35)
        A(f"buffer_load_dwordx4 v[{r}:{r+3}], v{oa}, {srd(rW)}, {sOFF} offen nt")
        A(f"buffer_load_dwordx4 v[{r+4}:{r+7}], v{ob}, {srd(rW)}, {sOFF} offen nt")
        A(f"s_add_u32 {sOFF}, {sOFF}, {4*1152}")
    if wdstep < 0:
        for t in range(5): wd_issue(t)
    HG = 48
    def ld_gu():
        A(f"s_mov_b32 {sT0}, 0")
        for i in range(5):
            A(f"buffer_load_dwordx4 v[{HG+4*i}:{HG+4*i+3}], v{124 if i < 4 else 125}, {srd(rWS)}, {sT0} offen sc1")
            if i < 4: A(f"s_add_u32 {sT0}, {sT0}, {7*GU_ROW}")
    def ck_gu():
        A(f"v_mov_b32 v14, {sTAG}")
        A(f"v_cndmask_b32 v{HG+17}, v14, v{HG+17}, s[66:67]")
        A(f"v_cndmask_b32 v{HG+19}, v14, v{HG+19}, s[66:67]")
        tagcheck([HG + 2 * k + 1 for k in range(10)])
    if htail == 2 and hstep >= 32:
        A(f"v_mov_b32 v8, {LDS_CNT}")
        A("v_mov_b32 v9, 1")
        A("ds_write_b32 v8, v9 offset:4")
    if htail in (1, 3):
        A("s_mov_b32 exec_hi, 0x7fffffff")
        ld_gu()
        A("s_mov_b32 exec_hi, -1")
    A(f"s_lshl_b32 {sT0}, {sWV}, 9")
    A(f"v_lshlrev_b32 v8, 5, v{vN}")
    A(f"v_lshl_add_u32 v8, v{vG}, 4, v8")
    A(f"v_add_u32 v82, {sT0}, v8")
    A(f"s_mul_i32 {sT0}, {sWV}, 576")
    A(f"v_add_u32 v36, {sT0}, v8")
    A(f"s_lshl_b32 {sT0}, {sWV}, 3")
    A(f"v_mov_b32 v83, {sT0}")
    A(f"v_mov_b32 v44, {sM}")
    A(f"v_lshlrev_b32 v37, 2, v{vLANE}")
    A(f"s_and_b32 {sT0}, {sID}, {R - 1}")
    A(f"s_lshl_b32 {sT0}, {sT0}, {8 + mlsh}")
    for k in range(4): A(f"s_add_u32 s{64+k}, {sT0}, {ML_BASE + (k*64 << mlsh)}")
    A(f"s_cmp_eq_u32 {sWV}, 3")
    A(f"s_cselect_b32 {sT0}, 144, 0")
    A(f"s_cmp_lt_u32 {sID}, {sT0}")
    A(f"s_cselect_b32 {sT0}, 0, {OOB}")
    A(f"v_lshl_add_u32 v79, v{vLANE}, {mlsh}, {sT0}")
    def lidx(n):
        L = n % 16
        return 4 * (L % 4) + L // 4
    ptile()
    a = sel(vP, lidx(0))
    for n in range(32):
        if n + 1 == 16: ptile()
        if n + 1 < 32: a_next = sel(vP, lidx(n + 1))
        else: A("s_nop 0")
        nwd = NWD if wdstep < 0 else (NWD - 10) + 2 * max(0, min(5, n - wdstep))
        if n >= 32 - max(D, D2, D3) - 1:
            A(f"s_waitcnt vmcnt({nwd + 31 - n})")
        mfma(vACC, a, RING + 4 * n)
        if wdstep >= 0 and wdstep <= n < wdstep + 5: wd_issue(n - wdstep)
        a = a_next
        if n == 17:
            dpp_reduce([vL], "v_add_f32")
            A(f"v_mov_b32 v45, v{vL}")
            A("s_mov_b32 exec_lo, 0")
            A("s_mov_b32 exec_hi, 0x80000000")
            A(f"ds_write_b64 v83, v[44:45] offset:{LDS_ML}")
            A("s_mov_b64 exec, -1")
            record_addr_setup()
    if wdstep >= 0:
        for t in range(max(0, 32 - wdstep), 5): wd_issue(t)
    A("s_nop 7")
    A("s_mov_b32 exec_hi, 0")
    A(f"ds_write_b128 v82, v[{vACC}:{vACC+3}] offset:{LDS_O}")
    A("s_mov_b32 exec_hi, -1")
    A("s_waitcnt lgkmcnt(0)")
    stamp(2)
    A("s_barrier")
    if ts: stamp(4)
    if htail == 3:
        A(f"s_cmp_lg_u32 {sWV}, 0")
        A("s_cbranch_scc1 L_hothers")
    if htail in (1, 3):
        A("v_cmp_gt_u32 s[66:67], 4, v127")
        A("s_mov_b32 exec_hi, 0x7fffffff")
        A(f"s_mov_b32 {sSPIN}, 0")
        A("s_branch L_hchk")
        A.lab("L_hpoll")
        A(f"s_sleep {hsleep}")
        ld_gu()
        A.lab("L_hchk")
        A("s_waitcnt vmcnt(0)")
        ck_gu()
        A(f"s_add_u32 {sSPIN}, {sSPIN}, 1")
        A("v_cmp_ne_u32 vcc, 0, v9")
        A(f"s_cmp_ge_u32 {sSPIN}, {spin}")
        A("s_cbranch_scc1 L_hdone")
        A("s_and_b64 exec, exec, vcc")
        A("s_cbranch_execnz L_hpoll")
        A.lab("L_hdone")
        A("s_mov_b32 exec_lo, -1")
        A("s_mov_b32 exec_hi, 0x7fffffff")
        for i in range(4):
            A(f"ds_write2_b32 v126, v{HG+4*i}, v{HG+4*i+2} offset0:{i*126} offset1:{i*126+1}" if i * 126 + 1 < 256 else f"ds_write2_b32 v127, v{HG+4*i}, v{HG+4*i+2} offset0:{(i-2)*126} offset1:{(i-2)*126+1}")
            if i == 0: A(f"v_add_u32 v127, {2*504}, v126")
        A(f"v_add_u32 v126, {4*504}, v126")
        A("s_and_b64 exec, exec, s[66:67]")
        A(f"ds_write2_b32 v126, v{HG+16}, v{HG+18} offset0:0 offset1:1")
        A("s_mov_b64 exec, -1")
        A(f"v_lshl_add_u32 v8, v{vN}, 2, v{vG}")
        A("v_cmp_gt_u32 vcc, 18, v8")
        A(f"s_mul_i32 {sT0}, {sWV}, 2304")
        A(f"v_lshl_add_u32 v8, v8, 2, {sT0}")
        A("s_waitcnt lgkmcnt(0)")
        HR = RING
        for r in range(32):
            A(f"ds_read_b32 v{HR+r}, v8 offset:{LDS_G + r*72}")
            if r in (11, 22): A("s_waitcnt lgkmcnt(4)")
        for st in (8, 4, 2, 1):
            for r in range(st): A(f"v_add_f32 v{HR+r}, v{HR+r}, v{HR+r+st}")
        A("s_waitcnt lgkmcnt(0)")
        for st in (8, 4, 2, 1):
            for r in range(st): A(f"v_add_f32 v{HR+16+r}, v{HR+16+r}, v{HR+16+r+st}")
        bf16_round(HR, HR); bf16_round(HR + 16, HR + 16)
        A(f"v_mul_f32 v{vP}, v{HR}, v{HR+16}")
        A(f"v_cvt_pk_bf16_f32 v{vP}, v{vP}, v{vP}")
        A(f"v_cndmask_b32 v{vP}, 0, v{vP}, vcc")
        if htail == 3:
            A(f"ds_write_b32 v37, v{vP} offset:{LDS_H}")
            A("s_waitcnt lgkmcnt(0)")
            A("ds_write_b32 v71, v72 offset:4")
            A("s_branch L_hready")
            A.lab("L_hothers")
            A(f"s_mov_b32 {sSPIN}, 0")
            A.lab("L_hw2")
            A("ds_read_b32 v9, v71 offset:4")
            A(f"ds_read_b32 v{vP}, v37 offset:{LDS_H}")
            A(f"s_add_u32 {sSPIN}, {sSPIN}, 1")
            A("s_waitcnt lgkmcnt(0)")
            A(f"v_readfirstlane_b32 {sT0}, v9")
            A(f"s_cmp_ge_u32 {sSPIN}, {spin}")
            A("s_cbranch_scc1 L_hready")
            A(f"s_cmp_eq_u32 {sT0}, 0")
            A("s_cbranch_scc1 L_hw2")
            A.lab("L_hready")
            if ts: stamp(5)
        A("s_nop 1")
    else:
        A(f"ds_read_b32 v{vP}, v37 offset:{LDS_H}")
        if pre:
            A(f"s_sleep {pre}")
            for k in range(4):
                A(f"buffer_load_dwordx4 v[{GM+4*k}:{GM+4*k+3}], v79, {srd(rWS)}, s{64+k} offen sc1")
        A("s_waitcnt lgkmcnt(0)")
    for t in range(5):
        a = sel(vP, t)
        A(f"s_waitcnt vmcnt({2*(4 - t) + (4 if pre else 0)})")
        A("s_nop 0")
        mfma(vACC, a, WDB + 8 * t, first=(t == 0))
        mfma(vACC + 4, a, WDB + 8 * t + 4, first=(t == 0))
    A("s_nop 7")
    two_group_to_lds(vACC, vACC + 4, 36)
    if not bar4:
        A("s_mov_b64 exec, 1")
        A("s_waitcnt lgkmcnt(0)")
        A("ds_add_u32 v71, v72")
        A("s_mov_b64 exec, -1")
    mk_srd(rO, pOUT, 1152)
    A(f"v_lshrrev_b32 v8, 2, v{vLANE}")
    A(f"v_and_b32 v11, 3, v{vLANE}")
    A("v_lshlrev_b32 v12, 14, v8")
    A("v_lshl_add_u32 v12, v11, 4, v12")
    A(f"s_lshl_b32 {sT0}, {sID}, 6")
    A(f"v_add_u32 v12, {sT0}, v12")
    if rt:
        A(f"s_lshl_b32 {sT0}, {sID}, 14")
        A(f"s_add_u32 {sT0}, {sT0}, {REC_BASE}")
        A(f"v_add_u32 v12, {sT0}, v69")
    A("v_lshlrev_b32 v13, 2, v8")
    A(f"v_add_u32 v13, {LDS_W}, v13")
    A(f"v_and_b32 v14, 1, v{vLANE}")
    A("v_cmp_eq_u32 vcc, 1, v14")
    A(f"s_lshl_b32 {sT0}, {sID}, 3")
    A(f"v_lshl_add_u32 v10, v14, 2, {sT0}")
    A(f"v_cndmask_b32 v92, v{vX4}, v{vX4+1}, vcc")
    A("v_and_b32 v93, 0xffff0000, v92")
    A("v_lshlrev_b32 v92, 16, v92")
    A(f"v_mov_b32 v9, {OOB}")
    A(f"v_cmp_gt_u32 vcc, 2, v{vLANE}")
    A(f"s_mov_b32 {sT2}, {LOG2E}")
    A(f"v_lshlrev_b32 v97, {mlsh}, v{vLANE}")
    A("v_cndmask_b32 v96, v9, v10, vcc")
    if ts: stamp(6)
    if early:
        A(f"s_cmp_eq_u32 {sWV}, 3")
        A("s_cbranch_scc1 L_cons")
    if bar4:
        A("s_waitcnt lgkmcnt(0)")
        A("s_barrier")
    else: lds_wait("L_sw", 8)
    record_store()
    stamp(8)
    if early:
        A("s_branch L_fin")
        A.lab("L_cons")
    else:
        A(f"s_cmp_lg_u32 {sWV}, 3")
        A("s_cbranch_scc1 L_fin")
    A(f"s_cmp_ge_u32 {sID}, 144")
    A("s_cbranch_scc1 L_fin")
    A.c("---- wave 3: final reduction for columns 4*id .. 4*id+3")
    mM, mR = "s[44:45]", "s[46:47]"
    if cdelay: A(f"s_sleep {cdelay}")
    for m in (mM, mR): A(f"s_mov_b64 {m}, -1")
    A(f"s_mov_b32 {sSPIN}, 0")
    def ld_ml():
        for k in range(4):
            A(f"buffer_load_dwordx4 v[{GM+4*k}:{GM+4*k+3}], v97, {srd(rWS)}, s{64+k} offen sc1")
    def ld_rec():
        A(f"s_mov_b32 {sT0}, 0")
        for i in range(16):
            A(f"buffer_load_dwordx4 v[{GR+4*i}:{GR+4*i+3}], v12, {srd(rWS)}, {sT0} offen sc1")
            if i < 15: A(f"s_add_u32 {sT0}, {sT0}, {1024 if rt else 16*BLK}")
    if pre:
        A("s_waitcnt vmcnt(1)")
        tagcheck([GM + 2 * k + 1 for k in range(8)])
        A("v_cmp_ne_u32 vcc, 0, v9")
        A("s_and_b64 exec, exec, vcc")
        A("s_cbranch_execnz L_fp_m")
        if pdelay: A(f"s_sleep {pdelay}")
        A("s_branch L_fp_m2")
    if late is not None:
        A(f"s_cmp_lt_i32 s75, {late}")
        A("s_cbranch_scc1 L_fp_m")
        if ldelay: A(f"s_sleep {ldelay}")
    if fmode == 0 or late is not None:
        ld_ml()
        ld_rec()
        A("s_waitcnt vmcnt(16)")
        tagcheck([GM + 2 * k + 1 for k in range(8)])
        A(f"v_cmp_ne_u32 {mM}, 0, v9")
        A("s_nop 0")
        A(f"s_cmp_eq_u64 {mM}, 0")
        A("s_cbranch_scc1 L_fp_w")
        A("s_waitcnt vmcnt(0)")
        tagcheck([GR + 2 * k + 1 for k in range(32)])
        A(f"v_cmp_ne_u32 {mR}, 0, v9")
        A(f"s_mov_b64 exec, {mM}")
    A.lab("L_fp_m")
    if mlsleep: A(f"s_sleep {mlsleep}")
    ld_ml()
    A(f"s_add_u32 {sSPIN}, {sSPIN}, 1")
    A("s_waitcnt vmcnt(0)")
    tagcheck([GM + 2 * k + 1 for k in range(8)])
    A("v_cmp_ne_u32 vcc, 0, v9")
    A(f"s_cmp_ge_u32 {sSPIN}, {spin}")
    A("s_cbranch_scc1 L_fp_m2")
    A("s_and_b64 exec, exec, vcc")
    A("s_cbranch_execnz L_fp_m")
    A.lab("L_fp_m2")
    if rdelay: A(f"s_sleep {rdelay}")
    A(f"s_mov_b64 exec, {mR}")
    A("s_cbranch_execz L_fp_w")
    ld_rec()
    A.lab("L_fp_w")
    A("s_mov_b64 exec, -1")
    stamp(1)
    grp8 = ("quad_perm:[1,0,3,2]", "quad_perm:[2,3,0,1]", "row_half_mirror")
    for k in range(4): A(f"v_mov_b32 v{GM+4*k+1}, v{GM+4*k}")
    for d in grp8:
        for k in range(4): A(f"v_max_f32_dpp v{GM+4*k+1}, v{GM+4*k+1}, v{GM+4*k+1} {d} row_mask:0xf bank_mask:0xf")
    for k in range(4): A(f"v_sub_f32 v{GM+4*k}, v{GM+4*k}, v{GM+4*k+1}")
    for k in range(4): A(f"v_mul_f32 v{GM+4*k}, {sT2}, v{GM+4*k}")
    for k in range(4): A(f"v_exp_f32 v{GM+4*k}, v{GM+4*k}")
    for k in range(4): A(f"v_mul_f32 v{GM+4*k+2}, v{GM+4*k}, v{GM+4*k+2}")
    for d in grp8:
        for k in range(4): A(f"v_add_f32_dpp v{GM+4*k+2}, v{GM+4*k+2}, v{GM+4*k+2} {d} row_mask:0xf bank_mask:0xf")
    for k in range(4): A(f"v_rcp_f32 v{GM+4*k+2}, v{GM+4*k+2}")
    for k in range(4): A(f"v_mul_f32 v{GM+4*k}, v{GM+4*k}, v{GM+4*k+2}")
    for k in range(4): A(f"ds_write_b32 v37, v{GM+4*k} offset:{LDS_W + k*256}")
    A("s_waitcnt lgkmcnt(0)")
    for i in range(16):
        A(f"ds_read_b32 v{GW+i}, v13 offset:{i*64}")
        if i == 11: A("s_waitcnt lgkmcnt(8)")
    A("s_waitcnt lgkmcnt(0)")
    for i in range(16): A(f"v_cndmask_b32 v{GW+i}, 1.0, v{GW+i}, s[62:63]")
    A(f"s_mov_b64 exec, {mR}")
    A("s_cbranch_execz L_fp_done")
    A("s_branch L_fp_c")
    A.lab("L_fp_r")
    if fsleep: A(f"s_sleep {fsleep}")
    ld_rec()
    A.lab("L_fp_c")
    A(f"s_add_u32 {sSPIN}, {sSPIN}, 1")
    A("s_waitcnt vmcnt(0)")
    tagcheck([GR + 2 * k + 1 for k in range(32)])
    A("v_cmp_ne_u32 vcc, 0, v9")
    A(f"s_cmp_ge_u32 {sSPIN}, {spin}")
    A("s_cbranch_scc1 L_fp_done")
    A("s_and_b64 exec, exec, vcc")
    A("s_cbranch_execnz L_fp_r")
    A.lab("L_fp_done")
    A("s_mov_b64 exec, -1")
    stamp(10)
    for c in range(2):
        for i in range(2): A(f"v_mul_f32 v{88+2*c+i}, v{GW+8*c}, v{GR+32*c+2*i}")
    for k in range(1, 8):
        for c in range(2):
            for i in range(2): A(f"v_fmac_f32 v{88+2*c+i}, v{GW+8*c+k}, v{GR+32*c+4*k+2*i}")
    A("v_add_f32 v88, v88, v90")
    A("v_add_f32 v89, v89, v91")
    A("s_nop 0")
    for d in ("row_ror:4", "row_ror:8"):
        A(f"v_add_f32_dpp v88, v88, v88 {d} row_mask:0xf bank_mask:0xf")
        A(f"v_add_f32_dpp v89, v89, v89 {d} row_mask:0xf bank_mask:0xf")
        A("s_nop 0")
    for op in ("v_permlane16_swap_b32", "v_permlane32_swap_b32"):
        A("v_mov_b32 v14, v88")
        A("v_mov_b32 v15, v89")
        A("s_nop 1")
        A(f"{op} v14, v88")
        A(f"{op} v15, v89")
        A("v_add_f32 v88, v88, v14")
        A("v_add_f32 v89, v89, v15")
    for i in range(2): A(f"v_cvt_pk_bf16_f32 v{88+i}, v{88+i}, v{88+i}")
    for i in range(2): A(f"v_lshlrev_b32 v{88+i}, 16, v{88+i}")
    for i in range(2): A(f"v_add_f32 v{90+i}, v{92+i}, v{88+i}")
    for i in range(2): A(f"v_cvt_pk_bf16_f32 v{90+i}, v{90+i}, v{90+i}")
    for i in range(2): A(f"v_lshlrev_b32 v{90+i}, 16, v{90+i}")
    for i in range(2): A(f"v_add_f32_dpp v{90+i}, v{88+i}, v{90+i} quad_perm:[2,3,2,3] row_mask:0xf bank_mask:0xf")
    A("v_cvt_pk_bf16_f32 v12, v90, v91")
    A(f"buffer_store_dword v12, v96, {srd(rO)}, 0 offen")
    stamp(3)
    stampval(9, sSPIN)
    A(f"s_cmp_lg_u32 {sID}, 0")
    A("s_cbranch_scc1 L_fin")
    A(f"v_mov_b32 v10, {sTAG}")
    A(f"v_mov_b32 v11, {EPOCH_OFF}")
    A("s_mov_b64 exec, 1")
    A(f"buffer_store_dword v10, v11, {srd(rWS)}, 0 offen")
    if pad_to:
        A.lab("L_pad")
        A("s_memrealtime s[96:97]")
        A("s_waitcnt lgkmcnt(0)")
        A("s_sub_u32 s96, s96, s98")
        A(f"s_cmp_lt_u32 s96, {pad_to}")
        A("s_cbranch_scc1 L_pad")
    if stamps: A("s_branch L_fin")
    else: A("s_endpgm")

    mark_helper = len(A.L)
    A.lab("L_helper")
    A.c("---- helper waves 4..7")
    A(f"s_sub_u32 {sHW}, {sWV}, 4")
    A(f"v_lshlrev_b32 v8, 2, v{vLANE}")
    A(f"v_lshl_add_u32 v9, v{vN}, 2, v{vG}")
    A("v_and_b32 v9, -2, v9")
    A("v_lshlrev_b32 v9, 1, v9")
    A(f"s_mul_i32 {sT0}, {sS}, 144")
    A(f"s_and_b32 {sT1}, {sS}, 3")
    A(f"s_lshl_b32 {sT1}, {sT1}, 2")
    A(f"s_add_u32 s74, {sT1}, {sHW}")
    A(f"s_mul_i32 {sT1}, s74, 72")
    A(f"s_mov_b32 {sT2}, {EPOCH_OFF}")
    A("s_waitcnt lgkmcnt(0)")
    A(f"s_load_dword {sTAG}, s[{pWS}:{pWS+1}], {sT2}")
    mk_srd(rX, pX, 1152)
    for k in range(5):
        A(f"buffer_load_dword v{vXA+k}, v8, {srd(rX)}, 0 offen offset:{k*256}")
    for T in range(2):
        A(f"buffer_load_dword v{vXC+T}, v9, {srd(rX)}, {sT0} offen offset:{T*128}")
    A(f"buffer_load_dword v{vXC+2}, v9, {srd(rX)}, {sT1} offen")
    GUB = WBUF + 72
    A(f"s_cmp_lg_u32 {sHW}, 0")
    A("s_cbranch_scc1 L_x13")
    mk_srd(rW, pWQ, 0 if "w" in abl else 576 * 4096 * 2)
    A(f"s_mul_i32 {sT0}, {sS}, {72*8192}")
    A(f"s_lshl_b32 {sT1}, {sH}, 8")
    A(f"s_add_u32 {sOFF}, {sT0}, {sT1}")
    A(f"v_lshlrev_b32 v8, 13, v{vG}")
    A(f"v_lshl_add_u32 v10, v{vN}, 4, v8")
    for t in range(0 if "W" in abl else 18):
        r = WBUF + 4 * t
        A(f"buffer_load_dwordx4 v[{r}:{r+3}], v10, {srd(rW)}, {sOFF} offen nt")
        A(f"s_add_u32 {sOFF}, {sOFF}, 32768")
    A.lab("L_x13")
    if bar0: A("s_barrier")
    if codepf:
        A(f"s_cmp_lg_u32 {sHW}, 3")
        A("s_cbranch_scc1 L_nopf")
        A(f"s_cmp_ge_u32 {sID}, {codepf}")
        A("s_cbranch_scc1 L_nopf")
        A("s_getpc_b64 s[76:77]")
        A.lab("L_pfbase")
        A(f"s_sub_u32 s76, s76, L_pfbase-{KNAME}")
        A("s_subb_u32 s77, s77, 0")
        A(f"v_lshlrev_b32 v8, 7, v{vLANE}")
        A("global_load_dword v12, v8, s[76:77]")
        for k in (1, 2):
            A("v_add_u32 v8, 0x2000, v8")
            A(f"v_cmp_gt_i32 vcc, (L_codeend-{KNAME}-{k*8192})/128, v{vLANE}")
            A("s_and_saveexec_b64 s[72:73], vcc")
            A("s_cbranch_execz L_pf2")
            A(f"global_load_dword v{12+k}, v8, s[76:77]")
        A.lab("L_pf2")
        A("s_mov_b64 exec, -1")
        A("s_waitcnt vmcnt(0)")
        A.lab("L_nopf")
    A(f"s_cmp_lt_u32 {sID}, 128")
    A(f"s_cselect_b32 s{rO}, s{pWG}, s{pWU}")
    A(f"s_cselect_b32 s{rO+1}, s{pWG+1}, s{pWU+1}")
    A(f"s_mov_b32 s{rO+2}, {0 if 'g' in abl else 576*4608*2}")
    A(f"s_mov_b32 s{rO+3}, 0x20000")
    two_group_offsets(9216, "0", vOA, vOB)
    A(f"s_mul_i32 {sOFF}, s74, {36*9216}")
    A(f"s_mul_i32 {sT0}, {sH}, 288")
    A(f"s_add_u32 {sOFF}, {sOFF}, {sT0}")
    def gu_issue(t):
        if "u" in abl: return
        r = GUB + 8 * t
        A(f"buffer_load_dwordx4 v[{r}:{r+3}], v{vOA}, {srd(rO)}, {sOFF} offen nt")
        A(f"buffer_load_dwordx4 v[{r+4}:{r+7}], v{vOB}, {srd(rO)}, {sOFF} offen nt")
        A(f"s_add_u32 {sOFF}, {sOFF}, {4*9216}")
    GE = guearly
    for t in range(GE): gu_issue(t)
    stamp_init()
    mk_srd(rWS, pWS, WS_SIZE)
    masks()
    A(f"s_cmp_lg_u32 {sHW}, 0")
    A("s_cbranch_scc1 L_x13b")
    A(f"s_waitcnt vmcnt({18 + 2*GE})")
    A("s_branch L_ln")
    A.lab("L_x13b")
    A(f"s_waitcnt vmcnt({2*GE})")
    A.lab("L_ln")
    GE0 = GE
    GE = max(GE, gumid)
    for t in range(GE0, GE): gu_issue(t)
    stamp(8)
    XF = 68
    for k in range(5):
        A(f"v_lshlrev_b32 v{XF+2*k}, 16, v{vXA+k}")
        A(f"v_and_b32 v{XF+2*k+1}, 0xffff0000, v{vXA+k}")
    A(f"v_add_f32 v8, v{XF}, v{XF+1}")
    for k in range(2, 10): A(f"v_add_f32 v8, v8, v{XF+k}")
    dpp_reduce([8], "v_add_f32")
    A(f"v_mul_f32 v8, {f2u(1.0/576)}, v8")
    A(f"v_cmp_gt_u32 vcc, 32, v{vLANE}")
    A(f"v_readlane_b32 {sT0}, v8, 63")
    A("s_nop 1")
    for k in range(10): A(f"v_subrev_f32 v{XF+k}, {sT0}, v{XF+k}")
    A(f"v_cndmask_b32 v{XF+8}, 0, v{XF+8}, vcc")
    A(f"v_cndmask_b32 v{XF+9}, 0, v{XF+9}, vcc")
    A(f"v_mul_f32 v9, v{XF}, v{XF}")
    for k in range(1, 10): A(f"v_fmac_f32 v9, v{XF+k}, v{XF+k}")
    dpp_reduce([9], "v_add_f32")
    A(f"v_mul_f32 v9, {f2u(1.0/576)}, v9")
    bf16_round(9, 9)
    A(f"v_add_f32 v9, {f2u(1e-5)}, v9")
    bf16_round(9, 9)
    A("v_sqrt_f32 v9, v9")
    A("s_nop 0")
    bf16_round(9, 9)
    A("v_rcp_f32 v9, v9")
    bf16_round(8, 8)
    A("s_nop 0")
    A(f"v_readlane_b32 {sT0}, v8, 63")
    A(f"v_readlane_b32 {sT1}, v9, 63")
    A(f"v_and_b32 v10, 1, v{vG}")
    A("v_lshlrev_b32 v10, 4, v10")
    for k in range(3):
        r = vXC + k
        A(f"v_lshrrev_b32 v{r}, v10, v{r}")
        A(f"v_lshlrev_b32 v{r}, 16, v{r}")
        A(f"v_subrev_f32 v{r}, {sT0}, v{r}")
        bf16_round(r, r)
        A(f"v_mul_f32 v{r}, {sT1}, v{r}")
        A(f"v_cvt_pk_bf16_f32 v{r}, v{r}, v{r}")
    A("s_waitcnt lgkmcnt(0)")
    A(f"s_add_u32 {sTAG}, {sTAG}, {TAG_STEP}")
    A(f"s_getreg_b32 {sTAGX}, hwreg(HW_REG_XCC_ID)")
    A(f"s_and_b32 {sTAGX}, {sTAGX}, 7")
    A(f"s_and_b32 s46, {sID}, 7")
    A(f"s_xor_b32 s46, s46, {sTAGX}")
    A(f"s_xor_b32 {sTAGX}, {sTAGX}, {sTAG}")
    stamp(1)
    A(f"s_cmp_lg_u32 {sHW}, 0")
    A("s_cbranch_scc1 L_noq")
    for t in range(18):
        a = sel(vXC + t // 16, t % 16)
        A(f"s_waitcnt vmcnt({17 - t + 2*GE})")
        A("s_nop 0")
        mfma(vACC, a, WBUF + 4 * t, first=(t == 0))
    A(f"v_lshlrev_b32 v8, 4, v{vLANE}")
    A(f"s_lshl_b32 {sT0}, {sB}, 14")
    A(f"s_add_u32 {sT0}, {sT0}, {OFF_Q}")
    A(f"s_lshl_b32 {sT1}, {sH}, 17")
    A(f"s_add_u32 {sT1}, {sT1}, {OFF_Q}")
    for k in range(8):
        A(f"s_add_u32 s{60+k}, {sT1}, {k*BLK}")
    A(f"v_mov_b32 v29, {sTAGX}")
    A(f"v_mov_b32 v31, {sTAGX}")
    A(f"v_mov_b32 v28, v{vACC}")
    A(f"v_mov_b32 v30, v{vACC+1}")
    A("s_nop 1")
    A(f"v_permlane32_swap_b32 v28, v{vACC+2}")
    A(f"v_permlane32_swap_b32 v30, v{vACC+3}")
    QG = WBUF
    def ld_q(fl):
        for k in range(8):
            A(f"buffer_load_dwordx4 v[{QG+4*k}:{QG+4*k+3}], v8, {srd(rWS)}, s{60+k} offen {fl}")
    qtags = [QG + 2 * k + 1 for k in range(16)]
    def exchange(name, store, load, tags, check, first_delay, slp, limit, preloaded=False):
        A("s_mov_b64 s[44:45], 0")
        if not preloaded:
            A("s_cmp_lg_u32 s46, 0")
            A(f"s_cbranch_scc1 {name}_wt")
            store("")
            stamp(9)
            if first_delay: A(f"s_sleep {first_delay}")
            load("nt")
        A("s_waitcnt vmcnt(0)")
        verdict(tags, check, True)
        A("s_and_b64 exec, exec, vcc")
        A(f"s_cbranch_execz {name}_chk")
        A("s_cmp_lg_u64 s[44:45], 0")
        A(f"s_cbranch_scc1 {name}_wt")
        poll(f"{name}_p1", lambda: load("sc1"), tags, slp, check=check, limit=limit, keep=True, die=True, bail=f"{name}_wt")
        A.lab(f"{name}_chk")
        A("s_or_b64 s[44:45], s[44:45], exec")
        A(f"s_cbranch_scc0 {name}_ok")
        A.lab(f"{name}_wt")
        A("s_mov_b64 s[44:45], exec")
        store("sc1")
        A("s_mov_b64 exec, s[44:45]")
        A(f"s_cbranch_execz {name}_ok")
        poll(f"{name}_p2", lambda: load("sc1"), tags, slp, check=check, die=True)
        A.lab(f"{name}_ok")
        A("s_mov_b64 exec, -1")
    def q_store(fl):
        A("s_mov_b64 exec, -1")
        A(f"buffer_store_dwordx4 v[28:31], v8, {srd(rWS)}, {sT0} offen {fl}")
    if "q" not in abl:
        exchange("L_q", q_store, ld_q, qtags, None, qdelay, qsleep, qfall)
    for i in range(2):
        for k in range(4):
            A(f"v_add_f32 v{QG+8*k+2*i}, v{QG+8*k+2*i}, v{QG+8*k+4+2*i}")
        A(f"v_add_f32 v{QG+2*i}, v{QG+2*i}, v{QG+8+2*i}")
        A(f"v_add_f32 v{QG+16+2*i}, v{QG+16+2*i}, v{QG+24+2*i}")
        A(f"v_add_f32 v{28+i}, v{QG+2*i}, v{QG+16+2*i}")
    A(f"v_lshlrev_b32 v8, 5, v{vN}")
    A(f"v_and_b32 v9, 1, v{vG}")
    A("v_lshl_add_u32 v8, v9, 4, v8")
    A(f"v_lshrrev_b32 v9, 1, v{vG}")
    A("v_lshl_add_u32 v8, v9, 3, v8")
    A(f"ds_write_b64 v8, v[28:29] offset:{LDS_Q}")
    if tbase:
        A(f"v_subrev_u32 v12, s78, v{QG+32}")
        for d in ("quad_perm:[1,0,3,2]", "quad_perm:[2,3,0,1]", "row_half_mirror"):
            A("s_nop 1")
            A(f"v_min_i32_dpp v12, v12, v12 {d} row_mask:0xf bank_mask:0xf")
        A("v_add_u32 v12, s78, v12")
    A(f"v_mov_b32 v9, {LDS_CNT}")
    A("v_mov_b32 v10, 0")
    A("ds_write_b32 v9, v10")
    A("ds_write_b32 v9, v10 offset:4")
    A("ds_write_b32 v9, v10 offset:12")
    if tbase: A("ds_write_b32 v9, v12 offset:8")
    if cal:
        A("s_add_u32 s79, s78, 0x40000000")
        A("v_mov_b32 v11, s79")
        A("ds_write_b32 v9, v11 offset:8")
        A("ds_write_b32 v9, v10 offset:20")
    if prew:
        A("v_mov_b32 v11, -1.0")
        for w in range(4): A(f"ds_write_b32 v10, v11 offset:{LDS_ML + 8*w + 4}")
    stampval(10, sSPIN)
    A("s_waitcnt lgkmcnt(0)")
    stamp(2)
    A("s_barrier")
    A.lab("L_noq")
    for t in range(GE, min(max(GE, DG), 9)): gu_issue(t)
    DGE = min(max(GE, DG), 9)
    A(f"v_lshlrev_b32 v8, 5, v{vN}")
    A(f"v_lshl_add_u32 v8, v{vG}, 4, v8")
    A(f"s_mul_i32 {sT0}, {sHW}, 576")
    A(f"v_add_u32 v66, {sT0}, v8")
    A(f"s_mul_i32 {sT0}, {sHW}, 2304")
    A(f"v_add_u32 v67, {sT0}, v8")
    for t in range(9):
        a = sel(vXC + 2, t)
        A(f"s_waitcnt vmcnt({2*(min(DGE + t, 9) - (t + 1))})")
        A("s_nop 0")
        mfma(vACC, a, GUB + 8 * t, first=(t == 0))
        mfma(vACC + 4, a, GUB + 8 * t + 4, first=(t == 0))
        if DGE + t < 9: gu_issue(DGE + t)
    A(f"s_mul_i32 {sT0}, {sS}, {GU_ROW}")
    A(f"s_mul_i32 {sT1}, {sH}, 1152")
    A(f"s_add_u32 {sT0}, {sT0}, {sT1}")
    A(f"s_add_u32 s68, {sT0}, {GU_BASE}")
    A("s_nop 3")
    two_group_to_lds(vACC, vACC + 4, 66)
    def gu_publish():
        A(f"v_lshlrev_b32 v8, 3, v{vLANE}")
        for w in range(4):
            A(f"ds_read_b64 v[{24+2*w}:{25+2*w}], v8 offset:{LDS_B + w*576}")
            A(f"ds_read_b64 v[{32+2*w}:{33+2*w}], v8 offset:{LDS_B + w*576 + 512}")
        for r in (49, 51, 53, 55): A(f"v_mov_b32 v{r}, {sTAGX}")
        A("s_waitcnt lgkmcnt(0)")
        for b0, d in ((24, 48), (32, 52)):
            for i in range(2):
                A(f"v_add_f32 v{b0+i}, v{b0+i}, v{b0+2+i}")
                A(f"v_add_f32 v{b0+4+i}, v{b0+4+i}, v{b0+6+i}")
                A(f"v_add_f32 v{d+2*i}, v{b0+i}, v{b0+4+i}")
        A("s_cmp_lg_u32 s46, 0")
        A("s_cbranch_scc1 L_gu_wt")
        gu_store("")
        A("s_branch L_gu_pub")
        A.lab("L_gu_wt")
        gu_store("sc1")
        A.lab("L_gu_pub")
    def gu_store(fl):
        A("s_mov_b64 exec, -1")
        A(f"buffer_store_dwordx4 v[48:51], v69, {srd(rWS)}, s68 offen {fl}")
        A("s_mov_b64 exec, 0xff")
        A(f"buffer_store_dwordx4 v[52:55], v69, {srd(rWS)}, s68 offen offset:1024 {fl}")
        A("s_mov_b64 exec, -1")
    stamp(3)
    A(f"s_cmp_eq_u32 {sHW}, 0")
    A("s_cbranch_scc1 L_b1done")
    A("s_barrier")
    A.lab("L_b1done")
    A(f"v_mov_b32 v8, {LDS_CNT}")
    A("v_mov_b32 v9, 1")
    A("s_mov_b64 exec, 1")
    A("s_waitcnt lgkmcnt(0)")
    A("ds_add_u32 v8, v9 offset:12")
    A("s_mov_b64 exec, -1")
    mk_srd(rW, pWO, 0 if "O" in abl else 4096 * 576 * 2)
    A(f"v_mul_u32_u24 v8, 1152, v{vG}")
    A(f"v_lshl_add_u32 v{vOA}, v{vN}, 4, v8")
    A(f"v_mov_b32 v9, {OOB}")
    A(f"v_cmp_gt_u32 vcc, 8, v{vN}")
    A(f"s_lshl_b32 {sT0}, {sH}, 2")
    A(f"s_add_u32 {sT0}, {sT0}, {sHW}")
    A(f"v_cndmask_b32 v{vOB}, v9, v{vOA}, vcc")
    A(f"s_mul_i32 {sOFF}, {sT0}, {32*1152}")
    for t in range(0 if "o" in abl else 8):
        for cg in range(5):
            A(f"s_waitcnt vmcnt({DW-1})")
            r = WBUF + 20 * t + 4 * cg
            A(f"buffer_load_dwordx4 v[{r}:{r+3}], v{vOA if cg < 4 else vOB}, {srd(rW)}, {sOFF} offen offset:{cg*256} nt")
        A(f"s_add_u32 {sOFF}, {sOFF}, {4*1152}")
    A(f"v_and_b32 v8, 7, v{vN}")
    A(f"v_lshl_add_u32 v8, v8, 2, v{vG}")
    A(f"s_lshl_b32 {sT0}, {sHW}, 7")
    A(f"v_lshl_add_u32 v66, v8, 2, {sT0}")
    record_addr_setup()
    A("v_mov_b32 v70, 0")
    A(f"v_lshlrev_b32 v65, {8 + mlsh}, v{vLANE}")
    for r in (81, 83): A(f"v_mov_b32 v{r}, {sTAG}")
    A(f"s_lshl_b32 {sCNT}, {sB}, {mlsh}")
    A(f"s_add_u32 {sCNT}, {sCNT}, {ML_BASE}")
    A(f"s_mov_b32 {sT2}, {LOG2E}")
    A(f"s_cmp_lg_u32 {sHW}, 3")
    A("s_cbranch_scc1 L_nocal")
    A(f"s_and_b32 s64, {sID}, {256 - NS}")
    A("s_lshl_b32 s64, s64, 7")
    A(f"v_lshlrev_b32 v44, 7, v{vLANE}")
    A(f"v_mov_b32 v93, {sTAG}")
    A(f"v_mov_b32 v95, {sTAG}")
    HG = 24
    A(f"v_mul_u32_u24 v8, 57, v{vLANE}")
    A("v_lshrrev_b32 v8, 9, v8")
    A("v_mul_u32_u24 v9, 9, v8")
    A(f"v_sub_u32 v9, v{vLANE}, v9")
    A(f"v_mul_u32_u24 v11, {GU_ROW}, v8")
    A("v_lshl_add_u32 v11, v9, 4, v11")
    A(f"s_mul_i32 {sT0}, {sB}, 144")
    A(f"s_add_u32 {sT0}, {sT0}, {GU_BASE}")
    A(f"v_add_u32 v11, {sT0}, v11")
    A("v_mul_u32_u24 v12, 72, v8")
    A("v_lshl_add_u32 v12, v9, 3, v12")
    A(f"v_add_u32 v12, {LDS_G}, v12")
    A(f"v_mov_b32 v13, {OOB}")
    A("v_cmp_gt_u32 s[70:71], 1, v8")
    A(f"v_lshl_add_u32 v75, v{vN}, 2, v{vG}")
    A("v_cmp_gt_u32 s[72:73], 18, v75")
    A("v_lshlrev_b32 v75, 2, v75")
    A("v_cndmask_b32 v13, v13, v11, s[70:71]")
    A(f"v_lshlrev_b32 v76, 2, v{vLANE}")
    def wait_seq(seq, tile=False):
        l = newlab("cw")
        A(f"s_mov_b32 {sSPIN}, 0")
        A.lab(l)
        A("s_sleep 4")
        A("ds_read_b64 v[8:9], v71 offset:16")
        if tile: A("ds_read_b32 v10, v71 offset:12")
        A(f"s_add_u32 {sSPIN}, {sSPIN}, 1")
        A("s_waitcnt lgkmcnt(0)")
        A("v_readfirstlane_b32 s67, v9")
        if tile: A("v_readfirstlane_b32 s66, v10")
        A(f"s_cmp_ge_u32 {sSPIN}, {spin}")
        A(f"s_cbranch_scc1 {l}x")
        A(f"s_cmp_lt_u32 s67, {seq}")
        A(f"s_cbranch_scc1 {l}")
        if tile:
            A("s_cmp_lt_u32 s66, 4")
            A(f"s_cbranch_scc1 {l}")
        A.lab(l + "x")
    for k, c in enumerate(CP):
        nominal = sum(2 * (TK if i < 4 else TV) for i in range(c))
        wait_seq(c + 1, tile=(k == gck))
        l2 = newlab("cs")
        A(f"s_cmp_lg_u32 s67, {c + 1}")
        A(f"s_cbranch_scc1 {l2}")
        A("v_mov_b32 v92, v8")
        A("v_mov_b32 v94, v8")
        A(f"s_lshl_b32 {sT0}, {sID}, 7")
        A(f"s_add_u32 {sT0}, {sT0}, {TS_BASE + k*32768}")
        A("s_mov_b64 exec, 0xff")
        A(f"buffer_store_dwordx4 v[92:95], v69, {srd(rWS)}, {sT0} offen {tst}")
        A("s_mov_b64 exec, -1")
        A.lab(l2)
        if k == gck and "G" not in abl: gu_publish()
        wait_seq(c + 2)
        A(f"s_add_u32 {sT0}, s64, {TS_BASE + k*32768}")
        A("v_mov_b32 v79, 0")
        A("v_mov_b32 v78, 0")
        if NS == 32: A("s_mov_b32 exec_hi, 0")
        elif NS == 16: A("s_mov_b64 exec, 0xffff")
        A(f"buffer_load_dwordx2 v[78:79], v44, {srd(rWS)}, {sT0} offen {tld}")
        hh = (k == gck and "G" not in abl and "h" not in abl)
        def ld_gu2(fl=hld):
            A(f"s_mov_b32 {sT0}, {7*GU_ROW}")
            A(f"buffer_load_dwordx4 v[24:27], v11, {srd(rWS)}, 0 offen {fl}")
            A(f"buffer_load_dwordx4 v[28:31], v13, {srd(rWS)}, {sT0} offen {fl}")
        def ck_gu2():
            A(f"v_mov_b32 v14, {sTAGX}")
            A("v_cndmask_b32 v29, v14, v29, s[70:71]")
            A("v_cndmask_b32 v31, v14, v31, s[70:71]")
            tagcheck([25, 27, 29, 31], sTAG=sTAGX)
        if hh:
            A("s_mov_b32 exec_lo, -1")
            A("s_mov_b32 exec_hi, 0x7fffffff")
            ld_gu2()
        A("s_mov_b64 exec, -1")
        A(f"s_waitcnt vmcnt({2 if hh else 0})")
        A(f"v_cmp_eq_u32 vcc, {sTAG}, v79")
        A("v_sub_u32 v78, v78, v8")
        A("v_cvt_f32_i32 v78, v78")
        A("s_bcnt1_i32_b64 s65, vcc")
        A("v_cndmask_b32 v78, 0, v78, vcc")
        dpp_reduce([78], "v_add_f32")
        l3 = newlab("cf")
        A(f"s_cmp_lt_u32 s65, {NS // 2}")
        A(f"s_cbranch_scc1 {l3}")
        A("v_cvt_f32_u32 v9, s65")
        A("v_rcp_f32 v9, v9")
        A("s_nop 0")
        A("v_mul_f32 v78, v78, v9")
        A("v_cvt_i32_f32 v78, v78")
        A("v_add_u32 v78, v78, v8")
        A(f"v_subrev_u32 v78, {(nominal - MG) & 0xffffffff}, v78")
        A("s_mov_b32 exec_lo, 0")
        A("s_mov_b32 exec_hi, 0x80000000")
        A("ds_write_b32 v71, v78 offset:8")
        A("s_mov_b64 exec, -1")
        A.lab(l3)
        if hh:
            A("s_mov_b32 exec_hi, 0x7fffffff")
            exchange("L_h", gu_store, ld_gu2, None, ck_gu2, 0, hsleep, 4, preloaded=True)
            A("s_mov_b32 exec_lo, -1")
            A("s_mov_b32 exec_hi, 0x7fffffff")
            A("ds_write2_b32 v12, v24, v26 offset0:0 offset1:1")
            A("s_mov_b64 exec, s[70:71]")
            A("ds_write2_b32 v12, v28, v30 offset0:126 offset1:127")
            A("s_mov_b64 exec, -1")
            A("s_waitcnt lgkmcnt(0)")
            for r in range(8):
                A(f"ds_read_b32 v{24+r}, v75 offset:{LDS_G + r*72}")
            A("s_waitcnt lgkmcnt(0)")
            for m in range(2):
                A(f"v_add_f32 v{24+4*m}, v{24+4*m}, v{25+4*m}")
                A(f"v_add_f32 v{26+4*m}, v{26+4*m}, v{27+4*m}")
                A(f"v_add_f32 v{88+m}, v{24+4*m}, v{26+4*m}")
            bf16_round(88, 88); bf16_round(89, 89)
            A(f"v_mul_f32 v{vCO}, v88, v89")
            A(f"v_cvt_pk_bf16_f32 v{vCO}, v{vCO}, v{vCO}")
            A(f"v_cndmask_b32 v{vCO}, 0, v{vCO}, s[72:73]")
            A(f"ds_write_b32 v76, v{vCO} offset:{LDS_H}")
            stamp(4)
    A.lab("L_nocal")
    A("s_waitcnt vmcnt(0) lgkmcnt(0)")
    stamp(5)
    def weights():
        A("v_max3_f32 v80, v48, v50, v52")
        A("v_max_f32 v80, v80, v54")
        for w in range(4): A(f"v_sub_f32 v{48+2*w}, v{48+2*w}, v80")
        for w in range(4): A(f"v_mul_f32 v{48+2*w}, {sT2}, v{48+2*w}")
        for w in range(4): A(f"v_exp_f32 v{48+2*w}, v{48+2*w}")
        A("s_nop 0")
        A("v_mul_f32 v82, v48, v49")
        for w in range(1, 4): A(f"v_fmac_f32 v82, v{48+2*w}, v{49+2*w}")
    if prew:
        A(f"s_mov_b32 {sSPIN}, 0")
        A.lab("L_mlw")
        A(f"s_sleep {wsleep}")
        A(f"ds_read_b128 v[48:51], v70 offset:{LDS_ML}")
        A(f"ds_read_b128 v[52:55], v70 offset:{LDS_ML+16}")
        A(f"s_add_u32 {sSPIN}, {sSPIN}, 1")
        A("s_waitcnt lgkmcnt(0)")
        A("v_or3_b32 v9, v49, v51, v53")
        A("v_or_b32 v9, v9, v55")
        A("s_nop 0")
        A(f"v_readfirstlane_b32 {sT0}, v9")
        A(f"s_cmp_ge_u32 {sSPIN}, {spin*4}")
        A("s_cbranch_scc1 L_mlw2")
        A(f"s_cmp_lt_i32 {sT0}, 0")
        A("s_cbranch_scc1 L_mlw")
        A.lab("L_mlw2")
        weights()
        if prew == 2:
            A(f"s_cmp_lg_u32 {sHW}, 2")
            A("s_cbranch_scc1 L_noml0")
            A(f"s_mov_b64 exec, {(1 << R) - 1}")
            A(f"buffer_store_dwordx4 v[80:83], v65, {srd(rWS)}, {sCNT} offen sc1")
            A("s_mov_b64 exec, -1")
            A.lab("L_noml0")
    A("s_barrier")
    if ts: stamp(1)
    if not prew:
        A(f"ds_read_b128 v[48:51], v70 offset:{LDS_ML}")
        A(f"ds_read_b128 v[52:55], v70 offset:{LDS_ML+16}")
    for w in range(4):
        A(f"ds_read_b32 v{56+w}, v66 offset:{LDS_O + w*512}")
    if not prew:
        A("s_waitcnt lgkmcnt(4)")
        weights()
    A("s_waitcnt lgkmcnt(0)")
    A("v_mul_f32 v10, v48, v56")
    for w in range(1, 4):
        A(f"v_fmac_f32 v10, v{48+2*w}, v{56+w}")
    A(f"v_cvt_pk_bf16_f32 v{vCO}, v10, v10")
    A(f"s_cmp_lg_u32 {sHW}, {99 if prew == 2 else 2}")
    A("s_cbranch_scc1 L_noml")
    A(f"s_mov_b64 exec, {(1 << R) - 1}")
    A(f"buffer_store_dwordx4 v[80:83], v65, {srd(rWS)}, {sCNT} offen sc1")
    A("s_mov_b64 exec, -1")
    A.lab("L_noml")
    if ts: stamp(2)
    if apipe:
        a = sel(vCO, 0)
        A("s_nop 1")
        for t in range(8):
            an = vAop[aop_flip[0]]; aop_flip[0] ^= 1
            for cg in range(5):
                mfma(vACC + 4 * cg if cg < 4 else 84, a, WBUF + 20 * t + 4 * cg, first=(t == 0))
                if t < 7 and cg < 2:
                    for i in (2 * cg, 2 * cg + 1):
                        A(f"v_and_b32_dpp v{an+i}, v{vCO}, v{vMK[i]} row_newbcast:{t+1} row_mask:0xf bank_mask:0xf")
            a = an
    else:
        for t in range(8):
            a = sel(vCO, t)
            A("s_nop 1")
            for cg in range(5):
                mfma(vACC + 4 * cg if cg < 4 else 84, a, WBUF + 20 * t + 4 * cg, first=(t == 0))
    A("s_nop 3")
    A("s_mov_b32 exec_hi, 0")
    for cg in range(4):
        A(f"ds_write_b128 v67, v[{vACC+4*cg}:{vACC+4*cg+3}] offset:{LDS_A + cg*512}")
    A("s_mov_b32 exec_lo, 0x00ff00ff")
    A(f"ds_write_b128 v67, v[84:87] offset:{LDS_A + 2048}")
    if bar4:
        A("s_mov_b64 exec, -1")
        A("s_waitcnt lgkmcnt(0)")
        if ts: stamp(4)
        A("s_barrier")
    else:
        A("s_mov_b64 exec, 1")
        A("s_waitcnt lgkmcnt(0)")
        A("ds_add_u32 v71, v72")
        A("s_mov_b64 exec, -1")
        if ts: stamp(4)
        lds_wait("L_hw", 8)
    if ts: stamp(7)
    record_store()
    A(f"s_cmp_lg_u32 {sHW}, 3")
    A("s_cbranch_scc1 L_nox")
    A("s_nop 1")
    record_store(extra=1)
    A.lab("L_nox")
    if early:
        A(f"s_cmp_lg_u32 {sHW}, 2")
        A("s_cbranch_scc1 L_nox2")
        record_store(back=3)
        A.lab("L_nox2")
    stamp(6)
    if relayout:
        A("s_branch L_fin" if stamps else "s_endpgm")
        hl = A.L[mark_helper:]
        del A.L[mark_helper:]
        i = A.L.index("@@HELPER@@")
        A.L[i:i+1] = hl
    A.lab("L_fin")
    stamp_flush()
    A.lab("L_end")
    A("s_endpgm")
    A.lab("L_codeend")

    out = HEADER + DOC
    out += f"; @launch grid=(256,1,1) block=(512,1,1) lds={LDS_BYTES}\n"
    out += '.amdgcn_target "amdgcn-amd-amdhsa--gfx950"\n.text\n'
    out += f".globl {KNAME}\n.p2align 8\n.type {KNAME},@function\n"
    out += "\n".join(A.L) + "\n"
    out += '.section .rodata,"a"\n.p2align 6\n'
    out += f""".amdhsa_kernel {KNAME}
  .amdhsa_next_free_vgpr 256
  .amdhsa_next_free_sgpr 102
  .amdhsa_accum_offset 256
  .amdhsa_group_segment_fixed_size 0
  .amdhsa_kernarg_size 96
  .amdhsa_user_sgpr_count 2
  .amdhsa_user_sgpr_kernarg_segment_ptr 1
  .amdhsa_system_sgpr_workgroup_id_x 1
.end_amdhsa_kernel
"""
    return out

if __name__ == "__main__":
    import json
    kw = json.loads(sys.argv[1]) if len(sys.argv) > 1 else {}
    sys.stdout.write(gen(**kw))
```

```python
import sys, struct

KNAME = "parallel_sum__mha_block_cached__glu_gated_bilinear__decode_kernel"

HEADER = """; Kernarg layout for this problem (96 bytes, ptrs only, base s[0:1]):
"""

DOC = """; ---------------------------------------------------------------------------------------------------------
; Hand-offs between workgroups are {data, tag} granules in d_ws; tag = epoch word of d_ws + constant, the epoch
; ---------------------------------------------------------------------------------------------------------
"""

def f2u(x):
    return struct.unpack("<I", struct.pack("<f", x))[0]

BLK = 16384
OFF_R, OFF_Q = 0, 9216
GU_BASE = 256 * BLK
GU_ROW = 4608 * 8
ML_BASE = GU_BASE + 32 * GU_ROW
EPOCH_OFF = ML_BASE + 16 * 32768
TS_BASE = EPOCH_OFF + 4096
STAMP_BASE = 6 << 20
REC_BASE = 8 << 20
WS_SIZE = 12 << 20
OOB = 0x40000000
TAG_STEP = 0x9E3779B9
LOG2E = f2u(1.4426950408889634)
LDS_Q = 0
LDS_CNT = 512
LDS_H = 768
LDS_ML = 1024
LDS_O = 1280
LDS_B = 3328
LDS_W = 5632
LDS_A = 8192
LDS_G = 8192 + 4 * 2304 + 512
LDS_BYTES = LDS_G + 2304 + 256

class G:
    def __init__(self):
        self.L = []
    def __call__(self, s):
        self.L.append("  " + s)
    def lab(self, s):
        self.L.append(s + ":")
    def c(self, s):
        self.L.append("  ; " + s)

def gen(D=5, INIT=6, stamps=False, DG=5, DW=3, spin=1 << 18, codepf=16, fsleep=0, qdelay=8, abl="",
        hsleep=40, D2=6, T0=800, TK=236, TV=219, mlsleep=2, warm="", cdelay=0, dbg=0, ts=0, cal=1, MG=40, CP=(2, 4), NS=32, tbase=0, guearly=0, htail=2, hstep=16, wdstep=8, apipe=1, D3=8, L3=70, D0=4, L0=80, rot=0, CI=8, FK=0, FV=0, FP=0, clk=0, qld="nt", hld="nt", tld="sc1", qst="", gust="", tst="sc1", gupub=1, gck=1, fmode=1, rdelay=0, mlsh=6, early=0, INIT0=0, XS=0, late=None, ldelay=6, bar4=1, prew=1, endb=100, endstep=24, rt=0, pre=0, pdelay=4, wsleep=4, R=1, ost="", prio=0, hprio=2, fpipe=1, kvtrim=0, pack36=0, qrt="sc1", pfld="", xld="", wold="nt", rld="sc1", mlld="sc1", rst="sc1", mlst="sc1", swap=0, relayout=1, bar0=0, qfall=6, pad_to=0, gumid=0, qsleep=16):
    if dbg: stamps = True
    A = G()
    sID = "s2"
    pX, pK, pV, pWQ, pWO, pWG, pWU, pWD, pOUT, pDBG, pWS = 16, 18, 20, 22, 24, 28, 30, 32, 34, 36, 38
    rX, rST, rW, rWS, rO = 40, 44, 48, 52, 56
    sWV, sH, sS, sB, sHW = "s3", "s4", "s5", "s6", "s7"
    sOFF, sCNT, sT0, sT1, sT2, sM = "s8", "s9", "s10", "s11", "s12", "s13"
    sSPIN, sTAG = "s14", "s15"
    mU = ["s[60:61]", "s[62:63]", "s[64:65]", "s[66:67]"]
    mT = ["s[68:69]", "s[70:71]", "s[72:73]", "s[74:75]"]
    def srd(r): return f"s[{r}:{r+3}]"
    def mk_srd(r, p, size):
        A(f"s_mov_b32 s{r}, s{p}"); A(f"s_mov_b32 s{r+1}, s{p+1}"); A(f"s_mov_b32 s{r+2}, {size}"); A(f"s_mov_b32 s{r+3}, 0x20000")
    SB = 80
    def stamp(idx):
        if not stamps: return
        assert idx < 11
        A(f"s_memrealtime s[{SB+2*idx}:{SB+2*idx+1}]")
    def stampval(idx, sreg):
        if not stamps: return
        A(f"s_mov_b32 s{SB+2*idx}, {sreg}")
    def stamp_init():
        if stamps:
            for i in range(1, 11): A(f"s_mov_b32 s{SB+2*i}, 0")
    def stamp_flush():
        if not stamps: return
        A("s_waitcnt vmcnt(0) lgkmcnt(0)")
        A("s_mov_b64 exec, -1")
        A(f"s_lshl_b32 s8, {sID}, 3")
        A(f"s_add_u32 s8, s8, {sWV}")
        A("s_lshl_b32 s8, s8, 6")
        A(f"s_add_u32 s8, s8, {STAMP_BASE}")
        A("v_mov_b32 v8, 0")
        for i in range(11):
            A(f"v_writelane_b32 v8, s{SB+2*i}, {i}")
        A(f"v_lshlrev_b32 v9, 2, v{vLANE}")
        A(f"v_mov_b32 v10, {OOB}")
        A(f"v_cmp_gt_u32 vcc, 16, v{vLANE}")
        A("s_nop 1")
        A("v_cndmask_b32 v9, v10, v9, vcc")
        A(f"buffer_store_dword v8, v9, {srd(rWS)}, s8 offen")
        if dbg:
            A(f"s_cmp_lg_u32 {sID}, {dbg-1}")
            A("s_cbranch_scc1 L_end")
            A(f"s_cmp_lg_u32 {sWV}, 3")
            A("s_cbranch_scc1 L_end")
            mk_srd(rO, pDBG, 256)
            A(f"v_subrev_u32 v8, s{SB}, v8")
            A(f"buffer_store_dword v8, v9, {srd(rO)}, 0 offen")
    vLANE, vG, vN = 1, 2, 3
    vMK = [4, 5, 6, 7]
    vAop = [16, 20]
    vACC = 24
    vOFFC, vOFFV = 46, 47
    vBQ = 48
    vDK = 64
    vS = 68
    vSN, vP, vL = 76, 77, 78
    vX4 = 80
    WDB = 84
    RING = 128
    vXA = 48
    vXC = 56
    vOA, vOB = 60, 61
    vCO = 64
    WBUF = 96
    uid = [0]
    def newlab(p):
        uid[0] += 1
        return f"L_{p}{uid[0]}"

    def dpp_reduce(regs, op):
        pad = "s_nop 1" if len(regs) == 1 else ("s_nop 0" if len(regs) == 2 else None)
        A("s_nop 1")
        for d, rm in (("row_shr:1", "0xf"), ("row_shr:2", "0xf"), ("row_shr:4", "0xf"), ("row_shr:8", "0xf"), ("row_bcast:15", "0xa"), ("row_bcast:31", "0xc")):
            for r in regs: A(f"{op}_dpp v{r}, v{r}, v{r} {d} row_mask:{rm} bank_mask:0xf")
            if pad: A(pad)
        if not pad: A("s_nop 0")
    aop_flip = [0]
    def sel(coef, idx):
        a = vAop[aop_flip[0]]; aop_flip[0] ^= 1
        for i in range(4):
            A(f"v_and_b32_dpp v{a+i}, v{coef}, v{vMK[i]} row_newbcast:{idx} row_mask:0xf bank_mask:0xf")
        return a
    def mfma(d, a, b, first=False):
        c = "0" if first else f"v[{d}:{d+3}]"
        A(f"v_mfma_f32_16x16x32_bf16 v[{d}:{d+3}], v[{a}:{a+3}], v[{b}:{b+3}], {c}")
    def bf16_round(dst, src):
        A(f"v_cvt_pk_bf16_f32 v{dst}, v{src}, v{src}")
        A(f"v_lshlrev_b32 v{dst}, 16, v{dst}")
    sTAGX = "s75"
    def tagcheck(regs, dst=9, tmp=10, tmp2=15, sTAG=sTAG):
        regs = list(regs)
        lv = [(regs[i], regs[i+1]) for i in range(0, len(regs), 2)]
        A(f"v_bitop3_b32 v{dst}, v{lv[0][0]}, v{lv[0][1]}, {sTAG} bitop3:0x7e")
        rest = lv[1:]; k = 0
        while k < len(rest):
            A(f"v_bitop3_b32 v{tmp}, v{rest[k][0]}, v{rest[k][1]}, {sTAG} bitop3:0x7e")
            if k + 1 < len(rest):
                A(f"v_bitop3_b32 v{tmp2}, v{rest[k+1][0]}, v{rest[k+1][1]}, {sTAG} bitop3:0x7e")
                A(f"v_or3_b32 v{dst}, v{dst}, v{tmp}, v{tmp2}")
            else:
                A(f"v_or_b32 v{dst}, v{dst}, v{tmp}")
            k += 2
    def poll(label, loads, tagregs, slp, check=None, limit=None, keep=False, die=False, bail=None):
        A(f"s_mov_b32 {sSPIN}, 0")
        A.lab(label)
        loads()
        A("s_waitcnt vmcnt(0)")
        verdict(tagregs, check, die)
        A(f"s_add_u32 {sSPIN}, {sSPIN}, 1")
        A("s_and_b64 exec, exec, vcc")
        A(f"s_cbranch_execz {label}_done")
        if bail:
            A("s_cmp_lg_u64 s[44:45], 0")
            A(f"s_cbranch_scc1 {bail}")
        if slp: A(f"s_sleep {slp}")
        A(f"s_cmp_lt_u32 {sSPIN}, {limit or spin}")
        A(f"s_cbranch_scc1 {label}")
        A.lab(f"{label}_done")
        if not keep: A("s_mov_b64 exec, -1")
    def verdict(tagregs, check, die):
        if check: check()
        else: tagcheck(tagregs, sTAG=sTAGX if die else sTAG)
        if die:
            A("v_cmp_ne_u32 vcc, 0, v9")
            A("s_or_b64 s[44:45], s[44:45], vcc")
            A("v_cmp_lt_u32 vcc, 7, v9")
            A("s_andn2_b64 s[44:45], s[44:45], vcc")
        else:
            A("v_cmp_ne_u32 vcc, 0, v9")
    def two_group_offsets(rowstride, sw, oa, ob):
        A(f"s_mul_i32 {sT2}, {sw}, 288")
        A(f"v_mul_u32_u24 v8, {rowstride}, v{vG}")
        A(f"v_lshl_add_u32 v8, v{vN}, 4, v8")
        A(f"v_add_u32 v{oa}, {sT2}, v8")
        A(f"v_add_u32 v8, 256, v{oa}")
        A(f"v_mov_b32 v9, {OOB}")
        A(f"v_cmp_gt_u32 vcc, 2, v{vN}")
        A("s_nop 1")
        A(f"v_cndmask_b32 v{ob}, v9, v8, vcc")
    def two_group_to_lds(accA, accB, vaddr):
        A("s_mov_b32 exec_hi, 0")
        A(f"ds_write_b128 v{vaddr}, v[{accA}:{accA+3}] offset:{LDS_B}")
        A("s_mov_b32 exec_lo, 0x00030003")
        A(f"ds_write_b128 v{vaddr}, v[{accB}:{accB+3}] offset:{LDS_B+512}")
        A("s_mov_b64 exec, -1")
    def masks():
        A(f"v_and_b32 v8, 1, v{vN}")
        A("v_lshlrev_b32 v8, 4, v8")
        A(f"s_mov_b32 {sT0}, 0xffff")
        A(f"v_lshlrev_b32 v8, v8, {sT0}")
        A(f"v_lshrrev_b32 v11, 1, v{vN}")
        for i in range(4):
            A(f"v_cmp_eq_u32 vcc, {i}, v11")
            A("s_nop 1")
            A(f"v_cndmask_b32 v{vMK[i]}, 0, v8, vcc")
    def tail_store_setup():
        pass
    def lds_wait(label, target):
        A(f"s_mov_b32 {sSPIN}, 0")
        A.lab(label)
        A("ds_read_b32 v9, v71")
        A(f"s_add_u32 {sSPIN}, {sSPIN}, 1")
        A("s_waitcnt lgkmcnt(0)")
        A(f"v_readfirstlane_b32 {sT0}, v9")
        A(f"s_cmp_ge_u32 {sSPIN}, {spin}")
        A(f"s_cbranch_scc1 {label}_done")
        A(f"s_cmp_lt_u32 {sT0}, {target}")
        A(f"s_cbranch_scc1 {label}")
        A.lab(f"{label}_done")
    def record_addr_setup():
        A(f"v_and_b32 v8, 1, v{vLANE}")
        A(f"v_lshrrev_b32 v9, 2, v{vLANE}")
        A("v_lshlrev_b32 v9, 4, v9")
        A("v_lshl_add_u32 v8, v8, 3, v9")
        A(f"s_lshl_b32 {sT0}, {sWV}, 8")
        A(f"v_add_u32 v68, {sT0}, v8")
        A(f"v_lshlrev_b32 v69, 4, v{vLANE}")
        A(f"v_and_b32 v8, 2, v{vLANE}")
        A("v_cmp_eq_u32 s[62:63], 0, v8")
        A(f"v_mov_b32 v71, {LDS_CNT}")
        A("v_mov_b32 v72, 1")
        A(f"v_mov_b32 v41, {sTAG}")
        A(f"v_mov_b32 v43, {sTAG}")
        if rt:
            A(f"v_lshrrev_b32 v8, 2, v{vLANE}")
            A(f"v_and_b32 v9, 3, v{vLANE}")
            A("v_lshlrev_b32 v9, 4, v9")
            A("v_lshl_add_u32 v65, v8, 14, v9")
            A(f"s_lshl_b32 s60, {sB}, 6")
            A(f"s_lshl_b32 {sT0}, {sWV}, 18")
            A(f"s_add_u32 s60, s60, {sT0}")
            A(f"s_add_u32 s60, s60, {REC_BASE}")
            A(f"s_add_u32 s61, s60, {1 << 18}")
        else:
            A(f"s_lshl_b32 s60, {sB}, 14")
            A(f"s_lshl_b32 {sT0}, {sWV}, 10")
            A(f"s_add_u32 s60, s60, {sT0}")
    def record_store(extra=0, base=48, back=0):
        lo = 256 * extra
        if back:
            A(f"v_subrev_u32 v68, {256*back}, v68")
            A(f"s_sub_u32 s60, s60, {1024*back}")
        for w in range(4):
            A(f"ds_read_b64 v[{base+2*w}:{base+2*w+1}], v68 offset:{LDS_A + w*2304 + lo}")
        A(f"ds_read_b64 v[{base+8}:{base+9}], v68 offset:{LDS_B + lo}")
        A("s_waitcnt lgkmcnt(1)")
        for i in range(2):
            A(f"v_add_f32 v{base+i}, v{base+i}, v{base+2+i}")
            A(f"v_add_f32 v{base+4+i}, v{base+4+i}, v{base+6+i}")
        for i in range(2):
            A(f"v_add_f32 v{base+i}, v{base+i}, v{base+4+i}")
        A("s_waitcnt lgkmcnt(0)")
        A(f"v_cndmask_b32 v40, v{base+8}, v{base}, s[62:63]")
        A(f"v_cndmask_b32 v42, v{base+9}, v{base+1}, s[62:63]")
        if rt: A(f"buffer_store_dwordx4 v[40:43], v65, {srd(rWS)}, s{60+extra} offen sc1")
        else: A(f"buffer_store_dwordx4 v[40:43], v69, {srd(rWS)}, s60 offen offset:{1024*extra} {rst}")

    A.lab(KNAME)
    A(f"s_cmp_ge_u32 {sID}, 256")
    A("s_cbranch_scc1 L_end")
    A("s_load_dwordx16 s[16:31], s[0:1], 0")
    A("s_load_dwordx8 s[32:39], s[0:1], 64")
    if rot or not cal: A("s_memrealtime s[78:79]")
    if pad_to: A("s_memrealtime s[98:99]")
    stamp(0)
    A("v_lshrrev_b32 v8, 6, v0")
    A(f"v_and_b32 v{vLANE}, 63, v0")
    A(f"v_readfirstlane_b32 {sWV}, v8")
    A(f"v_lshrrev_b32 v{vG}, 4, v{vLANE}")
    A(f"v_and_b32 v{vN}, 15, v{vLANE}")
    A(f"s_and_b32 {sT0}, {sID}, 7")
    A(f"s_lshr_b32 {sT1}, {sID}, 3")
    A(f"s_and_b32 {sH}, {sT1}, 3")
    A(f"s_lshr_b32 {sS}, {sT1}, 2")
    A(f"s_lshl_b32 {sT0}, {sT0}, 2")
    A(f"s_add_u32 {sH}, {sH}, {sT0}")
    A(f"s_lshl_b32 {sB}, {sH}, 3")
    A(f"s_add_u32 {sB}, {sB}, {sS}")
    if swap: A(f"s_xor_b32 {sWV}, {sWV}, 4")
    A(f"s_cmp_ge_u32 {sWV}, 4")
    A("s_cbranch_scc1 L_helper")

    A.c("---- streamer waves 0..3")
    A(f"s_lshl_b32 {sT0}, {sB}, 19")
    A(f"s_lshl_b32 {sT1}, {sWV}, 10")
    A(f"s_add_u32 {sT0}, {sT0}, {sT1}")
    A(f"v_lshrrev_b32 v8, 2, v{vN}")
    A("v_lshlrev_b32 v8, 8, v8")
    A(f"v_and_b32 v11, 3, v{vN}")
    A("v_lshlrev_b32 v11, 4, v11")
    A(f"v_lshlrev_b32 v12, 6, v{vG}")
    A("v_add3_u32 v8, v8, v11, v12")
    if "n" in abl: A(f"v_lshlrev_b32 v8, 4, v{vLANE}")
    A(f"v_add_u32 v{vOFFC}, {sT0}, v8")
    A(f"s_mov_b32 {sOFF}, 0")
    A(f"s_mov_b32 s{rST+2}, 0x8000000")
    A(f"s_mov_b32 s{rST+3}, 0x20000")
    A("s_waitcnt lgkmcnt(0)")
    A(f"s_mov_b32 s{rST}, s{pK}")
    A(f"s_mov_b32 s{rST+1}, s{pK+1}")
    if rot:
        A(f"s_mul_hi_u32 {sOFF}, s78, {int(2**32 / rot)}")
        A(f"s_lshl_b32 {sOFF}, {sOFF}, 12")
        A(f"s_and_b32 {sOFF}, {sOFF}, 0x7ffff")
    def pace(d):
        if T0:
            l = newlab("pc")
            if D3:
                A(f"s_cmp_gt_i32 s75, {L3}")
                A(f"s_cbranch_scc1 {l}b")
            A(f"s_cbranch_vccnz {l}")
            if D0:
                A(f"s_cmp_gt_i32 s75, {-L0}")
                A(f"s_cbranch_scc1 {l}a")
                A(f"s_waitcnt vmcnt({D0-1})")
                A.lab(l + "a")
            A(f"s_waitcnt vmcnt({d-1})")
            A.lab(l)
            A(f"s_waitcnt vmcnt({D2-1})")
            if D3:
                A.lab(l + "b")
                A(f"s_waitcnt vmcnt({D3-1})")
        else:
            A(f"s_waitcnt vmcnt({d-1})")
    def control(n, step):
        if not T0: return
        if n % CI == 0:
            A("s_memrealtime s[76:77]")
            if cal: A("ds_read_b32 v123, v122 offset:8")
        if n % CI == 2:
            A("s_waitcnt lgkmcnt(0)")
            if cal:
                A("v_readfirstlane_b32 s79, v123")
                if n == 2:
                    l = newlab("ck")
                    A(f"s_cmp_lg_u32 {sWV}, 0")
                    A(f"s_cbranch_scc1 {l}")
                    A("v_mov_b32 v120, s76")
                    A("v_add_u32 v121, 1, v121")
                    A("ds_write_b64 v122, v[120:121] offset:16")
                    A.lab(l)
                A("s_sub_u32 s76, s76, s79")
            A("s_sub_u32 s76, s76, s78")
            A("s_abs_i32 s77, s76")
            A("s_cmp_gt_u32 s77, 100000")
            A("s_cselect_b32 s75, 0, s76")
            A("s_cmp_gt_i32 s75, 0")
            A("s_cselect_b64 vcc, -1, 0")
            k = (n % 16) // CI; parts = 16 // CI
            A(f"s_add_u32 s78, s78, {step * (k + 1) // parts - step * k // parts}")
    def issue(slot):
        r = RING + 4 * slot
        A(f"buffer_load_dwordx4 v[{r}:{r+3}], v{vOFFC}, {srd(rST)}, {sOFF} offen nt")
        A(f"s_add_u32 {sOFF}, {sOFF}, 4096")
        if rot: A(f"s_and_b32 {sOFF}, {sOFF}, 0x7ffff")
    if bar0: A("s_barrier")
    for n in range(INIT0 or INIT): issue(n)
    if relayout:
        A("s_branch L_stream2")
        A.L.append("@@HELPER@@")
        A.lab("L_stream2")
    if prio: A(f"s_setprio {prio}")
    stamp_init()
    A(f"s_mov_b32 {sT1}, {EPOCH_OFF}")
    A(f"s_load_dword {sTAG}, s[{pWS}:{pWS+1}], {sT1}")
    A(f"v_lshlrev_b32 v8, 4, v{vLANE}")
    A(f"v_add_u32 v{vOFFV}, {sT0}, v8")
    mk_srd(rX, pX, 1152)
    mk_srd(rWS, pWS, WS_SIZE)
    mk_srd(rW, pWD, 4608 * 576 * 2)
    masks()
    two_group_offsets(1152, sWV, 32, 33)
    A(f"v_cmp_gt_u32 vcc, 32, v{vLANE}")
    A(f"s_lshl_b32 {sT0}, {sID}, 3")
    A(f"v_mov_b32 v10, {sT0}")
    A("v_cndmask_b32 v34, v9, v32, vcc")
    A("v_cndmask_b32 v35, v9, v33, vcc")
    A(f"v_and_b32 v8, 3, v{vN}")
    A(f"v_lshrrev_b32 v9, 2, v{vN}")
    for u in range(4):
        A(f"v_cmp_eq_u32 {mU[u]}, {u}, v8")
        A(f"v_cmp_eq_u32 {mT[u]}, {u}, v9")
    A(f"v_lshlrev_b32 v9, 2, v{vG}")
    A("v_add_u32 v8, v8, v9")
    A("v_lshlrev_b32 v8, 5, v8")
    A(f"buffer_load_dwordx2 v[{vX4}:{vX4+1}], v10, {srd(rX)}, 0 offen {xld}")
    if kvtrim:
        A(f"v_mov_b32 v{vL}, 0xff800000")
        for i in range(4): A(f"v_mov_b32 v{vACC+i}, 0")
    if htail in (1, 3):
        A(f"v_mul_u32_u24 v10, 57, v{vLANE}")
        A("v_lshrrev_b32 v127, 9, v10")
        A("v_mul_u32_u24 v9, 9, v127")
        A(f"v_sub_u32 v9, v{vLANE}, v9")
        A(f"v_mul_u32_u24 v11, {GU_ROW}, v127")
        A("v_lshl_add_u32 v11, v9, 4, v11")
        A(f"s_mul_i32 {sT0}, {sB}, 144")
        A(f"s_add_u32 {sT0}, {sT0}, {GU_BASE}")
        A(f"v_add_u32 v124, {sT0}, v11")
        A("v_mul_u32_u24 v12, 72, v127")
        A("v_lshl_add_u32 v12, v9, 3, v12")
        A(f"s_mul_i32 {sT0}, {sWV}, 2304")
        A(f"s_add_u32 {sT0}, {sT0}, {LDS_G}")
        A(f"v_add_u32 v126, {sT0}, v12")
        A(f"v_mov_b32 v13, {OOB}")
        A("v_cmp_gt_u32 vcc, 4, v127")
        A("s_nop 1")
        A("v_cndmask_b32 v125, v13, v124, vcc")
        if htail == 3:
            A(f"s_cmp_eq_u32 {sWV}, 0")
            A("s_cselect_b64 vcc, -1, 0")
            A("v_cndmask_b32 v124, v13, v124, vcc")
            A("v_cndmask_b32 v125, v13, v125, vcc")
    for n in range(INIT0 or INIT, INIT): issue(n)
    for n in range(INIT, 32):
        A(f"s_waitcnt vmcnt({D-1 + (1 if (n % 4) < FP else 0)})")
        issue(n)
    XB = 88
    for n in range(XS):
        A(f"s_waitcnt vmcnt({D-1})")
        r = 96 + 4 * n
        A(f"buffer_load_dwordx4 v[{r}:{r+3}], v{vOFFC}, {srd(rST)}, {sOFF} offen nt")
        A(f"s_add_u32 {sOFF}, {sOFF}, 4096")
    A("s_waitcnt lgkmcnt(0)")
    A(f"s_add_u32 {sTAG}, {sTAG}, {TAG_STEP}")
    if not ts: stamp(4)
    A("s_barrier")
    if not ts: stamp(5)
    if clk: A(f"s_memtime s[{SB+2}:{SB+3}]")
    QT = 84
    A(f"ds_read_b128 v[{QT}:{QT+3}], v8 offset:{LDS_Q}")
    A(f"ds_read_b128 v[{QT+4}:{QT+7}], v8 offset:{LDS_Q+16}")
    if tbase:
        A("v_mov_b32 v9, 0")
        A(f"ds_read_b32 v9, v9 offset:{LDS_CNT+8}")
    A("s_waitcnt lgkmcnt(0)")
    if tbase:
        A("v_readfirstlane_b32 s78, v9")
    for i in range(4):
        A(f"v_cvt_pk_bf16_f32 v{QT+8+i}, v{QT+2*i}, v{QT+2*i+1}")
    for t in range(4):
        for i in range(4):
            A(f"v_cndmask_b32 v{vBQ+4*t+i}, 0, v{QT+8+i}, {mT[t]}")
    if cal:
        A("s_mov_b32 s78, 0")
        A("v_mov_b32 v121, 0")
        A(f"v_mov_b32 v122, {LDS_CNT}")
    else:
        A(f"s_add_u32 s78, s78, {T0}")
    A("s_mov_b64 vcc, 0")
    A("s_mov_b32 s75, 0")
    A(f"s_mov_b32 {sT2}, {f2u(128 ** -0.5)}")
    A(f"s_mov_b32 {sCNT}, 0")
    A.lab("L_kloop")
    A(f"s_cmp_eq_u32 {sCNT}, 3")
    A("s_cbranch_scc0 L_kbody")
    A(f"s_mov_b32 s{rST}, s{pV}")
    A(f"s_mov_b32 s{rST+1}, s{pV+1}")
    if not rot: A(f"s_mov_b32 {sOFF}, 0")
    A(f"v_mov_b32 v{vOFFC}, v{vOFFV}")
    A.lab("L_kbody")
    for n in range(32):
        t, u = n % 4, (n // 4) % 4
        if "m" not in abl: mfma(vDK, RING + 4 * n, vBQ + 4 * t, first=(t == 0))
        if n < XS:
            l = newlab("xs")
            A(f"s_cmp_eq_u32 {sCNT}, 0")
            A(f"s_cbranch_scc1 {l}")
        pace(D + (1 if (n % 4) < FK else 0))
        issue(n)
        if n < XS: A.lab(l)
        if XS and 20 <= n < 20 + XS:
            l = newlab("xc")
            A(f"s_cmp_lg_u32 {sCNT}, 0")
            A(f"s_cbranch_scc1 {l}")
            for j in range(4): A(f"v_mov_b32 v{RING+4*(n-20)+j}, v{96+4*(n-20)+j}")
            A.lab(l)
        control(n, TK)
        if t == 3:
            A("s_nop 5")
            A(f"v_mov_b32_dpp v8, v{vDK} quad_perm:[0,0,0,0] row_mask:0xf bank_mask:0xf")
            for cidx in range(1, 4):
                A(f"v_add_f32_dpp v8, v{vDK+cidx}, v8 quad_perm:[{cidx},{cidx},{cidx},{cidx}] row_mask:0xf bank_mask:0xf")
            if u == 0:
                A(f"v_mov_b32 v{vSN}, v8")
            else:
                A(f"v_cndmask_b32 v{vSN}, v{vSN}, v8, {mU[u]}")
            if u == 3:
                bf16_round(vSN, vSN)
                A(f"v_mul_f32 v{vSN}, {sT2}, v{vSN}")
                bf16_round(vSN, vSN)
                for k in range(7):
                    A(f"v_mov_b32 v{vS+k}, v{vS+k+1}")
                A(f"v_mov_b32 v{vS+7}, v{vSN}")
                if kvtrim: A(f"v_max_f32 v{vL}, v{vL}, v{vSN}")
    A(f"s_add_u32 {sCNT}, {sCNT}, 1")
    A(f"s_cmp_lt_u32 {sCNT}, 4")
    A("s_cbranch_scc1 L_kloop")
    if not ts: stamp(6)
    if kvtrim:
        dpp_reduce([vL], "v_max_f32")
        A(f"v_readlane_b32 {sM}, v{vL}, 63")
        A(f"s_mov_b32 {sT2}, {LOG2E}")
        A(f"v_mov_b32 v{vL}, 0")
    else:
        A(f"v_max3_f32 v8, v{vS}, v{vS+1}, v{vS+2}")
        A(f"v_max3_f32 v8, v8, v{vS+3}, v{vS+4}")
        A(f"v_max3_f32 v8, v8, v{vS+5}, v{vS+6}")
        A(f"v_max_f32 v8, v8, v{vS+7}")
        dpp_reduce([8], "v_max_f32")
        A(f"v_readlane_b32 {sM}, v8, 63")
        A(f"s_mov_b32 {sT2}, {LOG2E}")
        A(f"v_mov_b32 v{vL}, 0")
        for i in range(4): A(f"v_mov_b32 v{vACC+i}, 0")
    A(f"s_mov_b32 {sCNT}, 0")
    def ptile():
        A(f"v_subrev_f32 v8, {sM}, v{vS}")
        A(f"v_mul_f32 v8, {sT2}, v8")
        A("v_exp_f32 v8, v8")
        for k in range(7):
            A(f"v_mov_b32 v{vS+k}, v{vS+k+1}")
        A(f"v_add_f32 v{vL}, v{vL}, v8")
        A(f"v_cvt_pk_bf16_f32 v{vP}, v8, v8")
        A("s_nop 1")
    NWD = 15 if htail in (1, 3) else 10
    GM, GW, GR = RING + 80, RING, RING + 16
    def vstep(n, last):
        if n % 16 == 0: ptile()
        if last and n == 17:
            dpp_reduce([vL], "v_add_f32")
            A(f"v_mov_b32 v45, v{vL}")
            A("s_mov_b32 exec_lo, 0")
            A("s_mov_b32 exec_hi, 0x80000000")
            A(f"ds_write_b64 v83, v[44:45] offset:{LDS_ML}")
            A("s_mov_b64 exec, -1")
            record_addr_setup()
        L = n % 16; t, u = L % 4, L // 4
        if "m" in abl:
            pace(D); issue(n); control(n, TV)
            return
        a = sel(vP, 4 * t + u)
        if last and n >= 32 - max(D, D2) - 1:
            A(f"s_waitcnt vmcnt({NWD + 31 - n})")
            A("s_nop 0")
        else:
            A("s_nop 1")
        mfma(vACC, a, RING + 4 * n)
        if not last:
            pace(D + (1 if (n % 4) < FV else 0))
            issue(n)
            control(n, TV)
    A.lab("L_vloop")
    for n in range(32):
        vstep(n, False)
        if endb and n == endstep - 1:
            A(f"s_cmp_eq_u32 {sCNT}, 2")
            A(f"s_cselect_b32 s77, {endb}, 0")
            A("s_sub_u32 s78, s78, s77")
    A(f"s_add_u32 {sCNT}, {sCNT}, 1")
    A(f"s_cmp_lt_u32 {sCNT}, 3")
    A("s_cbranch_scc1 L_vloop")
    stamp(7)
    if clk: A(f"s_memtime s[{SB+20}:{SB+21}]")
    A(f"s_mul_i32 {sOFF}, {sB}, {18*1152}")
    def wd_issue(t):
        r = WDB + 8 * t
        oa, ob = (32, 33) if t < 4 else (34, 35)
        A(f"buffer_load_dwordx4 v[{r}:{r+3}], v{oa}, {srd(rW)}, {sOFF} offen nt")
        A(f"buffer_load_dwordx4 v[{r+4}:{r+7}], v{ob}, {srd(rW)}, {sOFF} offen nt")
        A(f"s_add_u32 {sOFF}, {sOFF}, {4*1152}")
    if wdstep < 0:
        for t in range(5): wd_issue(t)
    HG = 48
    def ld_gu():
        A(f"s_mov_b32 {sT0}, 0")
        for i in range(5):
            A(f"buffer_load_dwordx4 v[{HG+4*i}:{HG+4*i+3}], v{124 if i < 4 else 125}, {srd(rWS)}, {sT0} offen sc1")
            if i < 4: A(f"s_add_u32 {sT0}, {sT0}, {7*GU_ROW}")
    def ck_gu():
        A(f"v_mov_b32 v14, {sTAG}")
        A(f"v_cndmask_b32 v{HG+17}, v14, v{HG+17}, s[66:67]")
        A(f"v_cndmask_b32 v{HG+19}, v14, v{HG+19}, s[66:67]")
        tagcheck([HG + 2 * k + 1 for k in range(10)])
    if htail == 2 and hstep >= 32:
        A(f"v_mov_b32 v8, {LDS_CNT}")
        A("v_mov_b32 v9, 1")
        A("ds_write_b32 v8, v9 offset:4")
    if htail in (1, 3):
        A("s_mov_b32 exec_hi, 0x7fffffff")
        ld_gu()
        A("s_mov_b32 exec_hi, -1")
    A(f"s_lshl_b32 {sT0}, {sWV}, 9")
    A(f"v_lshlrev_b32 v8, 5, v{vN}")
    A(f"v_lshl_add_u32 v8, v{vG}, 4, v8")
    A(f"v_add_u32 v82, {sT0}, v8")
    A(f"s_mul_i32 {sT0}, {sWV}, 576")
    A(f"v_add_u32 v36, {sT0}, v8")
    A(f"s_lshl_b32 {sT0}, {sWV}, 3")
    A(f"v_mov_b32 v83, {sT0}")
    A(f"v_mov_b32 v44, {sM}")
    A(f"v_lshlrev_b32 v37, 2, v{vLANE}")
    A(f"s_and_b32 {sT0}, {sID}, {R - 1}")
    A(f"s_lshl_b32 {sT0}, {sT0}, {8 + mlsh}")
    for k in range(4): A(f"s_add_u32 s{64+k}, {sT0}, {ML_BASE + (k*64 << mlsh)}")
    A(f"s_cmp_eq_u32 {sWV}, 3")
    A(f"s_cselect_b32 {sT0}, 144, 0")
    A(f"s_cmp_lt_u32 {sID}, {sT0}")
    A(f"s_cselect_b32 {sT0}, 0, {OOB}")
    A(f"v_lshl_add_u32 v79, v{vLANE}, {mlsh}, {sT0}")
    def lidx(n):
        L = n % 16
        return 4 * (L % 4) + L // 4
    ptile()
    a = sel(vP, lidx(0))
    for n in range(32):
        if n + 1 == 16: ptile()
        if n + 1 < 32: a_next = sel(vP, lidx(n + 1))
        else: A("s_nop 0")
        nwd = NWD if wdstep < 0 else (NWD - 10) + 2 * max(0, min(5, n - wdstep))
        if n >= 32 - max(D, D2, D3) - 1:
            A(f"s_waitcnt vmcnt({nwd + 31 - n})")
        mfma(vACC, a, RING + 4 * n)
        if wdstep >= 0 and wdstep <= n < wdstep + 5: wd_issue(n - wdstep)
        a = a_next
        if n == 17:
            dpp_reduce([vL], "v_add_f32")
            A(f"v_mov_b32 v45, v{vL}")
            A("s_mov_b32 exec_lo, 0")
            A("s_mov_b32 exec_hi, 0x80000000")
            A(f"ds_write_b64 v83, v[44:45] offset:{LDS_ML}")
            A("s_mov_b64 exec, -1")
            record_addr_setup()
    if wdstep >= 0:
        for t in range(max(0, 32 - wdstep), 5): wd_issue(t)
    A("s_nop 7")
    A("s_mov_b32 exec_hi, 0")
    A(f"ds_write_b128 v82, v[{vACC}:{vACC+3}] offset:{LDS_O}")
    A("s_mov_b32 exec_hi, -1")
    A("s_waitcnt lgkmcnt(0)")
    stamp(2)
    A("s_barrier")
    if ts: stamp(4)
    if htail == 3:
        A(f"s_cmp_lg_u32 {sWV}, 0")
        A("s_cbranch_scc1 L_hothers")
    if htail in (1, 3):
        A("v_cmp_gt_u32 s[66:67], 4, v127")
        A("s_mov_b32 exec_hi, 0x7fffffff")
        A(f"s_mov_b32 {sSPIN}, 0")
        A("s_branch L_hchk")
        A.lab("L_hpoll")
        A(f"s_sleep {hsleep}")
        ld_gu()
        A.lab("L_hchk")
        A("s_waitcnt vmcnt(0)")
        ck_gu()
        A(f"s_add_u32 {sSPIN}, {sSPIN}, 1")
        A("v_cmp_ne_u32 vcc, 0, v9")
        A(f"s_cmp_ge_u32 {sSPIN}, {spin}")
        A("s_cbranch_scc1 L_hdone")
        A("s_and_b64 exec, exec, vcc")
        A("s_cbranch_execnz L_hpoll")
        A.lab("L_hdone")
        A("s_mov_b32 exec_lo, -1")
        A("s_mov_b32 exec_hi, 0x7fffffff")
        for i in range(4):
            A(f"ds_write2_b32 v126, v{HG+4*i}, v{HG+4*i+2} offset0:{i*126} offset1:{i*126+1}" if i * 126 + 1 < 256 else f"ds_write2_b32 v127, v{HG+4*i}, v{HG+4*i+2} offset0:{(i-2)*126} offset1:{(i-2)*126+1}")
            if i == 0: A(f"v_add_u32 v127, {2*504}, v126")
        A(f"v_add_u32 v126, {4*504}, v126")
        A("s_and_b64 exec, exec, s[66:67]")
        A(f"ds_write2_b32 v126, v{HG+16}, v{HG+18} offset0:0 offset1:1")
        A("s_mov_b64 exec, -1")
        A(f"v_lshl_add_u32 v8, v{vN}, 2, v{vG}")
        A("v_cmp_gt_u32 vcc, 18, v8")
        A(f"s_mul_i32 {sT0}, {sWV}, 2304")
        A(f"v_lshl_add_u32 v8, v8, 2, {sT0}")
        A("s_waitcnt lgkmcnt(0)")
        HR = RING
        for r in range(32):
            A(f"ds_read_b32 v{HR+r}, v8 offset:{LDS_G + r*72}")
            if r in (11, 22): A("s_waitcnt lgkmcnt(4)")
        for st in (8, 4, 2, 1):
            for r in range(st): A(f"v_add_f32 v{HR+r}, v{HR+r}, v{HR+r+st}")
        A("s_waitcnt lgkmcnt(0)")
        for st in (8, 4, 2, 1):
            for r in range(st): A(f"v_add_f32 v{HR+16+r}, v{HR+16+r}, v{HR+16+r+st}")
        bf16_round(HR, HR); bf16_round(HR + 16, HR + 16)
        A(f"v_mul_f32 v{vP}, v{HR}, v{HR+16}")
        A(f"v_cvt_pk_bf16_f32 v{vP}, v{vP}, v{vP}")
        A(f"v_cndmask_b32 v{vP}, 0, v{vP}, vcc")
        if htail == 3:
            A(f"ds_write_b32 v37, v{vP} offset:{LDS_H}")
            A("s_waitcnt lgkmcnt(0)")
            A("ds_write_b32 v71, v72 offset:4")
            A("s_branch L_hready")
            A.lab("L_hothers")
            A(f"s_mov_b32 {sSPIN}, 0")
            A.lab("L_hw2")
            A("ds_read_b32 v9, v71 offset:4")
            A(f"ds_read_b32 v{vP}, v37 offset:{LDS_H}")
            A(f"s_add_u32 {sSPIN}, {sSPIN}, 1")
            A("s_waitcnt lgkmcnt(0)")
            A(f"v_readfirstlane_b32 {sT0}, v9")
            A(f"s_cmp_ge_u32 {sSPIN}, {spin}")
            A("s_cbranch_scc1 L_hready")
            A(f"s_cmp_eq_u32 {sT0}, 0")
            A("s_cbranch_scc1 L_hw2")
            A.lab("L_hready")
            if ts: stamp(5)
        A("s_nop 1")
    else:
        A(f"ds_read_b32 v{vP}, v37 offset:{LDS_H}")
        if pre:
            A(f"s_sleep {pre}")
            for k in range(4):
                A(f"buffer_load_dwordx4 v[{GM+4*k}:{GM+4*k+3}], v79, {srd(rWS)}, s{64+k} offen sc1")
        A("s_waitcnt lgkmcnt(0)")
    for t in range(5):
        a = sel(vP, t)
        A(f"s_waitcnt vmcnt({2*(4 - t) + (4 if pre else 0)})")
        A("s_nop 0")
        mfma(vACC, a, WDB + 8 * t, first=(t == 0))
        mfma(vACC + 4, a, WDB + 8 * t + 4, first=(t == 0))
    A("s_nop 7")
    two_group_to_lds(vACC, vACC + 4, 36)
    if not bar4:
        A("s_mov_b64 exec, 1")
        A("s_waitcnt lgkmcnt(0)")
        A("ds_add_u32 v71, v72")
        A("s_mov_b64 exec, -1")
    mk_srd(rO, pOUT, 1152)
    A(f"v_lshrrev_b32 v8, 2, v{vLANE}")
    A(f"v_and_b32 v11, 3, v{vLANE}")
    A("v_lshlrev_b32 v12, 14, v8")
    A("v_lshl_add_u32 v12, v11, 4, v12")
    A(f"s_lshl_b32 {sT0}, {sID}, 6")
    A(f"v_add_u32 v12, {sT0}, v12")
    if rt:
        A(f"s_lshl_b32 {sT0}, {sID}, 14")
        A(f"s_add_u32 {sT0}, {sT0}, {REC_BASE}")
        A(f"v_add_u32 v12, {sT0}, v69")
    A("v_lshlrev_b32 v13, 2, v8")
    A(f"v_add_u32 v13, {LDS_W}, v13")
    A(f"v_and_b32 v14, 1, v{vLANE}")
    A("v_cmp_eq_u32 vcc, 1, v14")
    A(f"s_lshl_b32 {sT0}, {sID}, 3")
    A(f"v_lshl_add_u32 v10, v14, 2, {sT0}")
    A(f"v_cndmask_b32 v92, v{vX4}, v{vX4+1}, vcc")
    A("v_and_b32 v93, 0xffff0000, v92")
    A("v_lshlrev_b32 v92, 16, v92")
    A(f"v_mov_b32 v9, {OOB}")
    A(f"v_cmp_gt_u32 vcc, 2, v{vLANE}")
    A(f"s_mov_b32 {sT2}, {LOG2E}")
    A(f"v_lshlrev_b32 v97, {mlsh}, v{vLANE}")
    A("v_cndmask_b32 v96, v9, v10, vcc")
    if ts: stamp(6)
    if early:
        A(f"s_cmp_eq_u32 {sWV}, 3")
        A("s_cbranch_scc1 L_cons")
    if bar4:
        A("s_waitcnt lgkmcnt(0)")
        A("s_barrier")
    else: lds_wait("L_sw", 8)
    record_store()
    stamp(8)
    if early:
        A("s_branch L_fin")
        A.lab("L_cons")
    else:
        A(f"s_cmp_lg_u32 {sWV}, 3")
        A("s_cbranch_scc1 L_fin")
    A(f"s_cmp_ge_u32 {sID}, 144")
    A("s_cbranch_scc1 L_fin")
    A.c("---- wave 3: final reduction for columns 4*id .. 4*id+3")
    mM, mR = "s[44:45]", "s[46:47]"
    if cdelay: A(f"s_sleep {cdelay}")
    for m in (mM, mR): A(f"s_mov_b64 {m}, -1")
    A(f"s_mov_b32 {sSPIN}, 0")
    def ld_ml():
        for k in range(4):
            A(f"buffer_load_dwordx4 v[{GM+4*k}:{GM+4*k+3}], v97, {srd(rWS)}, s{64+k} offen {mlld}")
    def ld_rec():
        A(f"s_mov_b32 {sT0}, 0")
        for i in range(16):
            A(f"buffer_load_dwordx4 v[{GR+4*i}:{GR+4*i+3}], v12, {srd(rWS)}, {sT0} offen {rld}")
            if i < 15: A(f"s_add_u32 {sT0}, {sT0}, {1024 if rt else 16*BLK}")
    if pre:
        A("s_waitcnt vmcnt(1)")
        tagcheck([GM + 2 * k + 1 for k in range(8)])
        A("v_cmp_ne_u32 vcc, 0, v9")
        A("s_and_b64 exec, exec, vcc")
        A("s_cbranch_execnz L_fp_m")
        if pdelay: A(f"s_sleep {pdelay}")
        A("s_branch L_fp_m2")
    if late is not None:
        A(f"s_cmp_lt_i32 s75, {late}")
        A("s_cbranch_scc1 L_fp_m")
        if ldelay: A(f"s_sleep {ldelay}")
    if fmode == 0 or late is not None:
        ld_ml()
        ld_rec()
        A("s_waitcnt vmcnt(16)")
        tagcheck([GM + 2 * k + 1 for k in range(8)])
        A(f"v_cmp_ne_u32 {mM}, 0, v9")
        A("s_nop 0")
        A(f"s_cmp_eq_u64 {mM}, 0")
        A("s_cbranch_scc1 L_fp_w")
        A("s_waitcnt vmcnt(0)")
        tagcheck([GR + 2 * k + 1 for k in range(32)])
        A(f"v_cmp_ne_u32 {mR}, 0, v9")
        A(f"s_mov_b64 exec, {mM}")
    A.lab("L_fp_m")
    if mlsleep: A(f"s_sleep {mlsleep}")
    ld_ml()
    A(f"s_add_u32 {sSPIN}, {sSPIN}, 1")
    A("s_waitcnt vmcnt(0)")
    tagcheck([GM + 2 * k + 1 for k in range(8)])
    A("v_cmp_ne_u32 vcc, 0, v9")
    A(f"s_cmp_ge_u32 {sSPIN}, {spin}")
    A("s_cbranch_scc1 L_fp_m2")
    A("s_and_b64 exec, exec, vcc")
    A("s_cbranch_execnz L_fp_m")
    A.lab("L_fp_m2")
    if rdelay: A(f"s_sleep {rdelay}")
    A(f"s_mov_b64 exec, {mR}")
    A("s_cbranch_execz L_fp_w")
    ld_rec()
    A.lab("L_fp_w")
    A("s_mov_b64 exec, -1")
    stamp(1)
    grp8 = ("quad_perm:[1,0,3,2]", "quad_perm:[2,3,0,1]", "row_half_mirror")
    for k in range(4): A(f"v_mov_b32 v{GM+4*k+1}, v{GM+4*k}")
    for d in grp8:
        for k in range(4): A(f"v_max_f32_dpp v{GM+4*k+1}, v{GM+4*k+1}, v{GM+4*k+1} {d} row_mask:0xf bank_mask:0xf")
    for k in range(4): A(f"v_sub_f32 v{GM+4*k}, v{GM+4*k}, v{GM+4*k+1}")
    for k in range(4): A(f"v_mul_f32 v{GM+4*k}, {sT2}, v{GM+4*k}")
    for k in range(4): A(f"v_exp_f32 v{GM+4*k}, v{GM+4*k}")
    for k in range(4): A(f"v_mul_f32 v{GM+4*k+2}, v{GM+4*k}, v{GM+4*k+2}")
    for d in grp8:
        for k in range(4): A(f"v_add_f32_dpp v{GM+4*k+2}, v{GM+4*k+2}, v{GM+4*k+2} {d} row_mask:0xf bank_mask:0xf")
    for k in range(4): A(f"v_rcp_f32 v{GM+4*k+2}, v{GM+4*k+2}")
    for k in range(4): A(f"v_mul_f32 v{GM+4*k}, v{GM+4*k}, v{GM+4*k+2}")
    for k in range(4): A(f"ds_write_b32 v37, v{GM+4*k} offset:{LDS_W + k*256}")
    A("s_waitcnt lgkmcnt(0)")
    for i in range(16):
        A(f"ds_read_b32 v{GW+i}, v13 offset:{i*64}")
        if i == 11: A("s_waitcnt lgkmcnt(8)")
    A("s_waitcnt lgkmcnt(0)")
    for i in range(16): A(f"v_cndmask_b32 v{GW+i}, 1.0, v{GW+i}, s[62:63]")
    if fpipe and fmode == 1 and late is None and not pre:
        for g4 in range(4):
            A(f"s_waitcnt vmcnt({12 - 4*g4})")
            tagcheck([GR + 16 * g4 + 2 * k + 1 for k in range(8)], dst=9 if g4 == 0 else 14)
            if g4: A("v_or_b32 v9, v9, v14")
            for k in range(4):
                i = 4 * g4 + k
                for j in range(2):
                    d = 88 + 2 * (k % 2) + j
                    if i < 2: A(f"v_mul_f32 v{d}, v{GW+i}, v{GR+4*i+2*j}")
                    else: A(f"v_fmac_f32 v{d}, v{GW+i}, v{GR+4*i+2*j}")
        A("v_cmp_ne_u32 vcc, 0, v9")
        A("s_and_b64 exec, exec, vcc")
        A("s_cbranch_execnz L_fp_r")
        A("s_mov_b64 exec, -1")
        stamp(10)
        A("s_branch L_fp_sum")
    else:
        A(f"s_mov_b64 exec, {mR}")
        A("s_cbranch_execz L_fp_done")
        A("s_branch L_fp_c")
    A.lab("L_fp_r")
    if fsleep: A(f"s_sleep {fsleep}")
    ld_rec()
    A.lab("L_fp_c")
    A(f"s_add_u32 {sSPIN}, {sSPIN}, 1")
    A("s_waitcnt vmcnt(0)")
    tagcheck([GR + 2 * k + 1 for k in range(32)])
    A("v_cmp_ne_u32 vcc, 0, v9")
    A(f"s_cmp_ge_u32 {sSPIN}, {spin}")
    A("s_cbranch_scc1 L_fp_done")
    A("s_and_b64 exec, exec, vcc")
    A("s_cbranch_execnz L_fp_r")
    A.lab("L_fp_done")
    A("s_mov_b64 exec, -1")
    stamp(10)
    for i in range(16):
        for j in range(2):
            d = 88 + 2 * (i % 2) + j
            if i < 2: A(f"v_mul_f32 v{d}, v{GW+i}, v{GR+4*i+2*j}")
            else: A(f"v_fmac_f32 v{d}, v{GW+i}, v{GR+4*i+2*j}")
    A.lab("L_fp_sum")
    A("v_add_f32 v88, v88, v90")
    A("v_add_f32 v89, v89, v91")
    A("s_nop 0")
    for d in ("row_ror:4", "row_ror:8"):
        A(f"v_add_f32_dpp v88, v88, v88 {d} row_mask:0xf bank_mask:0xf")
        A(f"v_add_f32_dpp v89, v89, v89 {d} row_mask:0xf bank_mask:0xf")
        A("s_nop 0")
    for op in ("v_permlane16_swap_b32", "v_permlane32_swap_b32"):
        A("v_mov_b32 v14, v88")
        A("v_mov_b32 v15, v89")
        A("s_nop 1")
        A(f"{op} v14, v88")
        A(f"{op} v15, v89")
        A("v_add_f32 v88, v88, v14")
        A("v_add_f32 v89, v89, v15")
    for i in range(2): A(f"v_cvt_pk_bf16_f32 v{88+i}, v{88+i}, v{88+i}")
    for i in range(2): A(f"v_lshlrev_b32 v{88+i}, 16, v{88+i}")
    for i in range(2): A(f"v_add_f32 v{90+i}, v{92+i}, v{88+i}")
    for i in range(2): A(f"v_cvt_pk_bf16_f32 v{90+i}, v{90+i}, v{90+i}")
    for i in range(2): A(f"v_lshlrev_b32 v{90+i}, 16, v{90+i}")
    for i in range(2): A(f"v_add_f32_dpp v{90+i}, v{88+i}, v{90+i} quad_perm:[2,3,2,3] row_mask:0xf bank_mask:0xf")
    A("v_cvt_pk_bf16_f32 v12, v90, v91")
    A(f"buffer_store_dword v12, v96, {srd(rO)}, 0 offen {ost}")
    stamp(3)
    stampval(9, sSPIN)
    A(f"s_cmp_lg_u32 {sID}, 0")
    A("s_cbranch_scc1 L_fin")
    A(f"v_mov_b32 v10, {sTAG}")
    A(f"v_mov_b32 v11, {EPOCH_OFF}")
    A("s_mov_b64 exec, 1")
    A(f"buffer_store_dword v10, v11, {srd(rWS)}, 0 offen {ost}")
    if pad_to:
        A.lab("L_pad")
        A("s_memrealtime s[96:97]")
        A("s_waitcnt lgkmcnt(0)")
        A("s_sub_u32 s96, s96, s98")
        A(f"s_cmp_lt_u32 s96, {pad_to}")
        A("s_cbranch_scc1 L_pad")
    if stamps: A("s_branch L_fin")
    else: A("s_endpgm")

    mark_helper = len(A.L)
    A.lab("L_helper")
    A.c("---- helper waves 4..7")
    A(f"s_sub_u32 {sHW}, {sWV}, 4")
    A(f"v_lshlrev_b32 v8, 2, v{vLANE}")
    A(f"v_lshl_add_u32 v9, v{vN}, 2, v{vG}")
    A("v_and_b32 v9, -2, v9")
    A("v_lshlrev_b32 v9, 1, v9")
    A(f"s_mul_i32 {sT0}, {sS}, 144")
    A(f"s_and_b32 {sT1}, {sS}, 3")
    A(f"s_lshl_b32 {sT1}, {sT1}, 2")
    A(f"s_add_u32 s74, {sT1}, {sHW}")
    A(f"s_mul_i32 {sT1}, s74, 72")
    A(f"s_mov_b32 {sT2}, {EPOCH_OFF}")
    A("s_waitcnt lgkmcnt(0)")
    A(f"s_load_dword {sTAG}, s[{pWS}:{pWS+1}], {sT2}")
    if cal and not rot: A("s_memrealtime s[78:79]")
    mk_srd(rX, pX, 1152)
    for k in range(5):
        A(f"buffer_load_dword v{vXA+k}, v8, {srd(rX)}, 0 offen offset:{k*256} {xld}")
    for T in range(2):
        A(f"buffer_load_dword v{vXC+T}, v9, {srd(rX)}, {sT0} offen offset:{T*128} {xld}")
    A(f"buffer_load_dword v{vXC+2}, v9, {srd(rX)}, {sT1} offen {xld}")
    GUB = WBUF + 72
    A(f"s_cmp_lg_u32 {sHW}, 0")
    A("s_cbranch_scc1 L_x13")
    mk_srd(rW, pWQ, 0 if "w" in abl else 576 * 4096 * 2)
    A(f"s_mul_i32 {sT0}, {sS}, {72*8192}")
    A(f"s_lshl_b32 {sT1}, {sH}, 8")
    A(f"s_add_u32 {sOFF}, {sT0}, {sT1}")
    A(f"v_lshlrev_b32 v8, 13, v{vG}")
    A(f"v_lshl_add_u32 v10, v{vN}, 4, v8")
    for t in range(0 if "W" in abl else 18):
        r = WBUF + 4 * t
        A(f"buffer_load_dwordx4 v[{r}:{r+3}], v10, {srd(rW)}, {sOFF} offen nt")
        A(f"s_add_u32 {sOFF}, {sOFF}, 32768")
    A.lab("L_x13")
    if bar0: A("s_barrier")
    if codepf:
        A(f"s_cmp_lg_u32 {sHW}, 3")
        A("s_cbranch_scc1 L_nopf")
        A(f"s_cmp_ge_u32 {sID}, {codepf}")
        A("s_cbranch_scc1 L_nopf")
        A("s_getpc_b64 s[76:77]")
        A.lab("L_pfbase")
        A(f"s_sub_u32 s76, s76, L_pfbase-{KNAME}")
        A("s_subb_u32 s77, s77, 0")
        A(f"v_lshlrev_b32 v8, 7, v{vLANE}")
        A(f"global_load_dword v12, v8, s[76:77] {pfld}")
        for k in (1, 2):
            A("v_add_u32 v8, 0x2000, v8")
            A(f"v_cmp_gt_i32 vcc, (L_codeend-{KNAME}-{k*8192})/128, v{vLANE}")
            A("s_and_saveexec_b64 s[72:73], vcc")
            A("s_cbranch_execz L_pf2")
            A(f"global_load_dword v{12+k}, v8, s[76:77] {pfld}")
        A.lab("L_pf2")
        A("s_mov_b64 exec, -1")
        A("s_waitcnt vmcnt(0)")
        A.lab("L_nopf")
    A(f"s_cmp_lt_u32 {sID}, 128")
    A(f"s_cselect_b32 s{rO}, s{pWG}, s{pWU}")
    A(f"s_cselect_b32 s{rO+1}, s{pWG+1}, s{pWU+1}")
    A(f"s_mov_b32 s{rO+2}, {0 if 'g' in abl else 576*4608*2}")
    A(f"s_mov_b32 s{rO+3}, 0x20000")
    two_group_offsets(9216, "0", vOA, vOB)
    A(f"s_mul_i32 {sOFF}, s74, {36*9216}")
    A(f"s_mul_i32 {sT0}, {sH}, 288")
    A(f"s_add_u32 {sOFF}, {sOFF}, {sT0}")
    def gu_issue(t):
        if "u" in abl: return
        r = GUB + 8 * t
        A(f"buffer_load_dwordx4 v[{r}:{r+3}], v{vOA}, {srd(rO)}, {sOFF} offen nt")
        A(f"buffer_load_dwordx4 v[{r+4}:{r+7}], v{vOB}, {srd(rO)}, {sOFF} offen nt")
        A(f"s_add_u32 {sOFF}, {sOFF}, {4*9216}")
    GE = guearly
    for t in range(GE): gu_issue(t)
    stamp_init()
    mk_srd(rWS, pWS, WS_SIZE)
    masks()
    A(f"s_cmp_lg_u32 {sHW}, 0")
    A("s_cbranch_scc1 L_x13b")
    A(f"s_waitcnt vmcnt({18 + 2*GE})")
    A("s_branch L_ln")
    A.lab("L_x13b")
    A(f"s_waitcnt vmcnt({2*GE})")
    A.lab("L_ln")
    GE0 = GE
    GE = max(GE, gumid)
    for t in range(GE0, GE): gu_issue(t)
    stamp(8)
    XF = 68
    for k in range(5):
        A(f"v_lshlrev_b32 v{XF+2*k}, 16, v{vXA+k}")
        A(f"v_and_b32 v{XF+2*k+1}, 0xffff0000, v{vXA+k}")
    A(f"v_add_f32 v8, v{XF}, v{XF+1}")
    for k in range(2, 10): A(f"v_add_f32 v8, v8, v{XF+k}")
    dpp_reduce([8], "v_add_f32")
    A(f"v_mul_f32 v8, {f2u(1.0/576)}, v8")
    A(f"v_cmp_gt_u32 vcc, 32, v{vLANE}")
    A(f"v_readlane_b32 {sT0}, v8, 63")
    A("s_nop 1")
    for k in range(10): A(f"v_subrev_f32 v{XF+k}, {sT0}, v{XF+k}")
    A(f"v_cndmask_b32 v{XF+8}, 0, v{XF+8}, vcc")
    A(f"v_cndmask_b32 v{XF+9}, 0, v{XF+9}, vcc")
    A(f"v_mul_f32 v9, v{XF}, v{XF}")
    for k in range(1, 10): A(f"v_fmac_f32 v9, v{XF+k}, v{XF+k}")
    dpp_reduce([9], "v_add_f32")
    A(f"v_mul_f32 v9, {f2u(1.0/576)}, v9")
    bf16_round(9, 9)
    A(f"v_add_f32 v9, {f2u(1e-5)}, v9")
    bf16_round(9, 9)
    A("v_sqrt_f32 v9, v9")
    A("s_nop 0")
    bf16_round(9, 9)
    A("v_rcp_f32 v9, v9")
    bf16_round(8, 8)
    A("s_nop 0")
    A(f"v_readlane_b32 {sT0}, v8, 63")
    A(f"v_readlane_b32 {sT1}, v9, 63")
    A(f"v_and_b32 v10, 1, v{vG}")
    A("v_lshlrev_b32 v10, 4, v10")
    for k in range(3):
        r = vXC + k
        A(f"v_lshrrev_b32 v{r}, v10, v{r}")
        A(f"v_lshlrev_b32 v{r}, 16, v{r}")
        A(f"v_subrev_f32 v{r}, {sT0}, v{r}")
        bf16_round(r, r)
        A(f"v_mul_f32 v{r}, {sT1}, v{r}")
        A(f"v_cvt_pk_bf16_f32 v{r}, v{r}, v{r}")
    A("s_waitcnt lgkmcnt(0)")
    A(f"s_add_u32 {sTAG}, {sTAG}, {TAG_STEP}")
    A(f"s_getreg_b32 {sTAGX}, hwreg(HW_REG_XCC_ID)")
    A(f"s_and_b32 {sTAGX}, {sTAGX}, 7")
    A(f"s_and_b32 s46, {sID}, 7")
    A(f"s_xor_b32 s46, s46, {sTAGX}")
    A(f"s_xor_b32 {sTAGX}, {sTAGX}, {sTAG}")
    stamp(1)
    A(f"s_cmp_lg_u32 {sHW}, 0")
    A("s_cbranch_scc1 L_noq")
    for t in range(18):
        a = sel(vXC + t // 16, t % 16)
        A(f"s_waitcnt vmcnt({17 - t + 2*GE})")
        A("s_nop 0")
        mfma(vACC, a, WBUF + 4 * t, first=(t == 0))
    A(f"v_lshlrev_b32 v8, 4, v{vLANE}")
    A(f"s_lshl_b32 {sT0}, {sB}, 14")
    A(f"s_add_u32 {sT0}, {sT0}, {OFF_Q}")
    A(f"s_lshl_b32 {sT1}, {sH}, 17")
    A(f"s_add_u32 {sT1}, {sT1}, {OFF_Q}")
    for k in range(8):
        A(f"s_add_u32 s{60+k}, {sT1}, {k*BLK}")
    A(f"v_mov_b32 v29, {sTAGX}")
    A(f"v_mov_b32 v31, {sTAGX}")
    A(f"v_mov_b32 v28, v{vACC}")
    A(f"v_mov_b32 v30, v{vACC+1}")
    A("s_nop 1")
    A(f"v_permlane32_swap_b32 v28, v{vACC+2}")
    A(f"v_permlane32_swap_b32 v30, v{vACC+3}")
    QG = WBUF
    def ld_q(fl):
        for k in range(8):
            A(f"buffer_load_dwordx4 v[{QG+4*k}:{QG+4*k+3}], v8, {srd(rWS)}, s{60+k} offen {fl}")
    qtags = [QG + 2 * k + 1 for k in range(16)]
    def exchange(name, store, load, tags, check, first_delay, slp, limit, preloaded=False):
        A("s_mov_b64 s[44:45], 0")
        if not preloaded:
            A("s_cmp_lg_u32 s46, 0")
            A(f"s_cbranch_scc1 {name}_wt")
            store("")
            stamp(9)
            if first_delay: A(f"s_sleep {first_delay}")
            load(qld)
        A("s_waitcnt vmcnt(0)")
        verdict(tags, check, True)
        A("s_and_b64 exec, exec, vcc")
        A(f"s_cbranch_execz {name}_chk")
        A("s_cmp_lg_u64 s[44:45], 0")
        A(f"s_cbranch_scc1 {name}_wt")
        poll(f"{name}_p1", lambda: load(qrt), tags, slp, check=check, limit=limit, keep=True, die=True, bail=f"{name}_wt")
        A.lab(f"{name}_chk")
        A("s_or_b64 s[44:45], s[44:45], exec")
        A(f"s_cbranch_scc0 {name}_ok")
        A.lab(f"{name}_wt")
        A("s_mov_b64 s[44:45], exec")
        store("sc1")
        A("s_mov_b64 exec, s[44:45]")
        A(f"s_cbranch_execz {name}_ok")
        poll(f"{name}_p2", lambda: load("sc1"), tags, slp, check=check, die=True)
        A.lab(f"{name}_ok")
        A("s_mov_b64 exec, -1")
    def q_store(fl):
        A("s_mov_b64 exec, -1")
        A(f"buffer_store_dwordx4 v[28:31], v8, {srd(rWS)}, {sT0} offen {fl}")
    if "q" not in abl:
        exchange("L_q", q_store, ld_q, qtags, None, qdelay, qsleep, qfall)
    for i in range(2):
        for k in range(4):
            A(f"v_add_f32 v{QG+8*k+2*i}, v{QG+8*k+2*i}, v{QG+8*k+4+2*i}")
        A(f"v_add_f32 v{QG+2*i}, v{QG+2*i}, v{QG+8+2*i}")
        A(f"v_add_f32 v{QG+16+2*i}, v{QG+16+2*i}, v{QG+24+2*i}")
        A(f"v_add_f32 v{28+i}, v{QG+2*i}, v{QG+16+2*i}")
    A(f"v_lshlrev_b32 v8, 5, v{vN}")
    A(f"v_and_b32 v9, 1, v{vG}")
    A("v_lshl_add_u32 v8, v9, 4, v8")
    A(f"v_lshrrev_b32 v9, 1, v{vG}")
    A("v_lshl_add_u32 v8, v9, 3, v8")
    A(f"ds_write_b64 v8, v[28:29] offset:{LDS_Q}")
    if tbase:
        A(f"v_subrev_u32 v12, s78, v{QG+32}")
        for d in ("quad_perm:[1,0,3,2]", "quad_perm:[2,3,0,1]", "row_half_mirror"):
            A("s_nop 1")
            A(f"v_min_i32_dpp v12, v12, v12 {d} row_mask:0xf bank_mask:0xf")
        A("v_add_u32 v12, s78, v12")
    A(f"v_mov_b32 v9, {LDS_CNT}")
    A("v_mov_b32 v10, 0")
    A("ds_write_b32 v9, v10")
    A("ds_write_b32 v9, v10 offset:4")
    A("ds_write_b32 v9, v10 offset:12")
    if tbase: A("ds_write_b32 v9, v12 offset:8")
    if cal:
        A("s_add_u32 s79, s78, 0x40000000")
        A("v_mov_b32 v11, s79")
        A("ds_write_b32 v9, v11 offset:8")
        A("ds_write_b32 v9, v10 offset:20")
    if prew:
        A("v_mov_b32 v11, -1.0")
        for w in range(4): A(f"ds_write_b32 v10, v11 offset:{LDS_ML + 8*w + 4}")
    stampval(10, sSPIN)
    A("s_waitcnt lgkmcnt(0)")
    stamp(2)
    A("s_barrier")
    A.lab("L_noq")
    for t in range(GE, min(max(GE, DG), 9)): gu_issue(t)
    DGE = min(max(GE, DG), 9)
    A(f"v_lshlrev_b32 v8, 5, v{vN}")
    A(f"v_lshl_add_u32 v8, v{vG}, 4, v8")
    A(f"s_mul_i32 {sT0}, {sHW}, 576")
    A(f"v_add_u32 v66, {sT0}, v8")
    A(f"s_mul_i32 {sT0}, {sHW}, 2304")
    A(f"v_add_u32 v67, {sT0}, v8")
    for t in range(9):
        a = sel(vXC + 2, t)
        A(f"s_waitcnt vmcnt({2*(min(DGE + t, 9) - (t + 1))})")
        A("s_nop 0")
        mfma(vACC, a, GUB + 8 * t, first=(t == 0))
        mfma(vACC + 4, a, GUB + 8 * t + 4, first=(t == 0))
        if DGE + t < 9: gu_issue(DGE + t)
    A(f"s_mul_i32 {sT0}, {sS}, {GU_ROW}")
    A(f"s_mul_i32 {sT1}, {sH}, 1152")
    A(f"s_add_u32 {sT0}, {sT0}, {sT1}")
    A(f"s_add_u32 s68, {sT0}, {GU_BASE}")
    A("s_nop 3")
    two_group_to_lds(vACC, vACC + 4, 66)
    def gu_publish():
        A(f"v_lshlrev_b32 v8, 3, v{vLANE}")
        for w in range(4):
            A(f"ds_read_b64 v[{24+2*w}:{25+2*w}], v8 offset:{LDS_B + w*576}")
            A(f"ds_read_b64 v[{32+2*w}:{33+2*w}], v8 offset:{LDS_B + w*576 + 512}")
        for r in (49, 51, 53, 55): A(f"v_mov_b32 v{r}, {sTAGX}")
        A("s_waitcnt lgkmcnt(0)")
        for b0, d in ((24, 48), (32, 52)):
            for i in range(2):
                A(f"v_add_f32 v{b0+i}, v{b0+i}, v{b0+2+i}")
                A(f"v_add_f32 v{b0+4+i}, v{b0+4+i}, v{b0+6+i}")
                A(f"v_add_f32 v{d+2*i}, v{b0+i}, v{b0+4+i}")
        A("s_cmp_lg_u32 s46, 0")
        A("s_cbranch_scc1 L_gu_wt")
        gu_store("")
        A("s_branch L_gu_pub")
        A.lab("L_gu_wt")
        gu_store("sc1")
        A.lab("L_gu_pub")
    def gu_store(fl):
        A("s_mov_b64 exec, -1")
        A(f"buffer_store_dwordx4 v[48:51], v69, {srd(rWS)}, s68 offen {fl}")
        A("s_mov_b64 exec, 0xff")
        A(f"buffer_store_dwordx4 v[52:55], v69, {srd(rWS)}, s68 offen offset:1024 {fl}")
        A("s_mov_b64 exec, -1")
    stamp(3)
    A(f"s_cmp_eq_u32 {sHW}, 0")
    A("s_cbranch_scc1 L_b1done")
    A("s_barrier")
    A.lab("L_b1done")
    A(f"v_mov_b32 v8, {LDS_CNT}")
    A("v_mov_b32 v9, 1")
    A("s_mov_b64 exec, 1")
    A("s_waitcnt lgkmcnt(0)")
    A("ds_add_u32 v8, v9 offset:12")
    A("s_mov_b64 exec, -1")
    mk_srd(rW, pWO, 0 if "O" in abl else 4096 * 576 * 2)
    A(f"v_mul_u32_u24 v8, 1152, v{vG}")
    A(f"v_lshl_add_u32 v{vOA}, v{vN}, 4, v8")
    A(f"v_mov_b32 v9, {OOB}")
    A(f"v_cmp_gt_u32 vcc, 8, v{vN}")
    A(f"s_lshl_b32 {sT0}, {sH}, 2")
    A(f"s_add_u32 {sT0}, {sT0}, {sHW}")
    if pack36:
        A(f"v_add_u32 v9, {4*1152 - 128}, v{vOA}")
    A(f"v_cndmask_b32 v{vOB}, v9, v{vOA}, vcc")
    A(f"s_mul_i32 {sOFF}, {sT0}, {32*1152}")
    for t in range(0 if "o" in abl else 8):
        for cg in range(5):
            if pack36 and cg == 4 and t % 2: continue
            A(f"s_waitcnt vmcnt({DW-1})")
            r = WBUF + 20 * t + 4 * cg
            A(f"buffer_load_dwordx4 v[{r}:{r+3}], v{vOA if cg < 4 else vOB}, {srd(rW)}, {sOFF} offen offset:{cg*256} {wold}")
        A(f"s_add_u32 {sOFF}, {sOFF}, {4*1152}")
    A(f"v_and_b32 v8, 7, v{vN}")
    A(f"v_lshl_add_u32 v8, v8, 2, v{vG}")
    A(f"s_lshl_b32 {sT0}, {sHW}, 7")
    A(f"v_lshl_add_u32 v66, v8, 2, {sT0}")
    record_addr_setup()
    A("v_mov_b32 v70, 0")
    A(f"v_lshlrev_b32 v65, {8 + mlsh}, v{vLANE}")
    for r in (81, 83): A(f"v_mov_b32 v{r}, {sTAG}")
    A(f"s_lshl_b32 {sCNT}, {sB}, {mlsh}")
    A(f"s_add_u32 {sCNT}, {sCNT}, {ML_BASE}")
    A(f"s_mov_b32 {sT2}, {LOG2E}")
    A(f"s_cmp_lg_u32 {sHW}, 3")
    A("s_cbranch_scc1 L_nocal")
    A(f"s_and_b32 s64, {sID}, {256 - NS}")
    A("s_lshl_b32 s64, s64, 7")
    A(f"v_lshlrev_b32 v44, 7, v{vLANE}")
    A(f"v_mov_b32 v93, {sTAG}")
    A(f"v_mov_b32 v95, {sTAG}")
    HG = 24
    A(f"v_mul_u32_u24 v8, 57, v{vLANE}")
    A("v_lshrrev_b32 v8, 9, v8")
    A("v_mul_u32_u24 v9, 9, v8")
    A(f"v_sub_u32 v9, v{vLANE}, v9")
    A(f"v_mul_u32_u24 v11, {GU_ROW}, v8")
    A("v_lshl_add_u32 v11, v9, 4, v11")
    A(f"s_mul_i32 {sT0}, {sB}, 144")
    A(f"s_add_u32 {sT0}, {sT0}, {GU_BASE}")
    A(f"v_add_u32 v11, {sT0}, v11")
    A("v_mul_u32_u24 v12, 72, v8")
    A("v_lshl_add_u32 v12, v9, 3, v12")
    A(f"v_add_u32 v12, {LDS_G}, v12")
    A(f"v_mov_b32 v13, {OOB}")
    A("v_cmp_gt_u32 s[70:71], 1, v8")
    A(f"v_lshl_add_u32 v75, v{vN}, 2, v{vG}")
    A("v_cmp_gt_u32 s[72:73], 18, v75")
    A("v_lshlrev_b32 v75, 2, v75")
    A("v_cndmask_b32 v13, v13, v11, s[70:71]")
    A(f"v_lshlrev_b32 v76, 2, v{vLANE}")
    def wait_seq(seq, tile=False):
        l = newlab("cw")
        A(f"s_mov_b32 {sSPIN}, 0")
        A.lab(l)
        A("s_sleep 4")
        A("ds_read_b64 v[8:9], v71 offset:16")
        if tile: A("ds_read_b32 v10, v71 offset:12")
        A(f"s_add_u32 {sSPIN}, {sSPIN}, 1")
        A("s_waitcnt lgkmcnt(0)")
        A("v_readfirstlane_b32 s67, v9")
        if tile: A("v_readfirstlane_b32 s66, v10")
        A(f"s_cmp_ge_u32 {sSPIN}, {spin}")
        A(f"s_cbranch_scc1 {l}x")
        A(f"s_cmp_lt_u32 s67, {seq}")
        A(f"s_cbranch_scc1 {l}")
        if tile:
            A("s_cmp_lt_u32 s66, 4")
            A(f"s_cbranch_scc1 {l}")
        A.lab(l + "x")
    for k, c in enumerate(CP):
        nominal = sum(2 * (TK if i < 4 else TV) for i in range(c))
        wait_seq(c + 1, tile=(k == gck))
        l2 = newlab("cs")
        A(f"s_cmp_lg_u32 s67, {c + 1}")
        A(f"s_cbranch_scc1 {l2}")
        A("v_mov_b32 v92, v8")
        A("v_mov_b32 v94, v8")
        A(f"s_lshl_b32 {sT0}, {sID}, 7")
        A(f"s_add_u32 {sT0}, {sT0}, {TS_BASE + k*32768}")
        A("s_mov_b64 exec, 0xff")
        A(f"buffer_store_dwordx4 v[92:95], v69, {srd(rWS)}, {sT0} offen {tst}")
        A("s_mov_b64 exec, -1")
        A.lab(l2)
        if k == gck and "G" not in abl: gu_publish()
        wait_seq(c + 2)
        A(f"s_add_u32 {sT0}, s64, {TS_BASE + k*32768}")
        A("v_mov_b32 v79, 0")
        A("v_mov_b32 v78, 0")
        if NS == 32: A("s_mov_b32 exec_hi, 0")
        elif NS == 16: A("s_mov_b64 exec, 0xffff")
        A(f"buffer_load_dwordx2 v[78:79], v44, {srd(rWS)}, {sT0} offen {tld}")
        hh = (k == gck and "G" not in abl and "h" not in abl)
        def ld_gu2(fl=hld):
            A(f"s_mov_b32 {sT0}, {7*GU_ROW}")
            A(f"buffer_load_dwordx4 v[24:27], v11, {srd(rWS)}, 0 offen {fl}")
            A(f"buffer_load_dwordx4 v[28:31], v13, {srd(rWS)}, {sT0} offen {fl}")
        def ck_gu2():
            A(f"v_mov_b32 v14, {sTAGX}")
            A("v_cndmask_b32 v29, v14, v29, s[70:71]")
            A("v_cndmask_b32 v31, v14, v31, s[70:71]")
            tagcheck([25, 27, 29, 31], sTAG=sTAGX)
        if hh:
            A("s_mov_b32 exec_lo, -1")
            A("s_mov_b32 exec_hi, 0x7fffffff")
            ld_gu2()
        A("s_mov_b64 exec, -1")
        A(f"s_waitcnt vmcnt({2 if hh else 0})")
        A(f"v_cmp_eq_u32 vcc, {sTAG}, v79")
        A("v_sub_u32 v78, v78, v8")
        A("v_cvt_f32_i32 v78, v78")
        A("s_bcnt1_i32_b64 s65, vcc")
        A("v_cndmask_b32 v78, 0, v78, vcc")
        dpp_reduce([78], "v_add_f32")
        l3 = newlab("cf")
        A(f"s_cmp_lt_u32 s65, {NS // 2}")
        A(f"s_cbranch_scc1 {l3}")
        A("v_cvt_f32_u32 v9, s65")
        A("v_rcp_f32 v9, v9")
        A("s_nop 0")
        A("v_mul_f32 v78, v78, v9")
        A("v_cvt_i32_f32 v78, v78")
        A("v_add_u32 v78, v78, v8")
        A(f"v_subrev_u32 v78, {(nominal - MG) & 0xffffffff}, v78")
        A("s_mov_b32 exec_lo, 0")
        A("s_mov_b32 exec_hi, 0x80000000")
        A("ds_write_b32 v71, v78 offset:8")
        A("s_mov_b64 exec, -1")
        A.lab(l3)
        if hh:
            A("s_mov_b32 exec_hi, 0x7fffffff")
            exchange("L_h", gu_store, ld_gu2, None, ck_gu2, 0, hsleep, 4, preloaded=True)
            A("s_mov_b32 exec_lo, -1")
            A("s_mov_b32 exec_hi, 0x7fffffff")
            A("ds_write2_b32 v12, v24, v26 offset0:0 offset1:1")
            A("s_mov_b64 exec, s[70:71]")
            A("ds_write2_b32 v12, v28, v30 offset0:126 offset1:127")
            A("s_mov_b64 exec, -1")
            A("s_waitcnt lgkmcnt(0)")
            for r in range(8):
                A(f"ds_read_b32 v{24+r}, v75 offset:{LDS_G + r*72}")
            A("s_waitcnt lgkmcnt(0)")
            for m in range(2):
                A(f"v_add_f32 v{24+4*m}, v{24+4*m}, v{25+4*m}")
                A(f"v_add_f32 v{26+4*m}, v{26+4*m}, v{27+4*m}")
                A(f"v_add_f32 v{88+m}, v{24+4*m}, v{26+4*m}")
            bf16_round(88, 88); bf16_round(89, 89)
            A(f"v_mul_f32 v{vCO}, v88, v89")
            A(f"v_cvt_pk_bf16_f32 v{vCO}, v{vCO}, v{vCO}")
            A(f"v_cndmask_b32 v{vCO}, 0, v{vCO}, s[72:73]")
            A(f"ds_write_b32 v76, v{vCO} offset:{LDS_H}")
            stamp(4)
    A.lab("L_nocal")
    A("s_waitcnt vmcnt(0) lgkmcnt(0)")
    stamp(5)
    def weights():
        A("v_max3_f32 v80, v48, v50, v52")
        A("v_max_f32 v80, v80, v54")
        for w in range(4): A(f"v_sub_f32 v{48+2*w}, v{48+2*w}, v80")
        for w in range(4): A(f"v_mul_f32 v{48+2*w}, {sT2}, v{48+2*w}")
        for w in range(4): A(f"v_exp_f32 v{48+2*w}, v{48+2*w}")
        A("s_nop 0")
        A("v_mul_f32 v82, v48, v49")
        for w in range(1, 4): A(f"v_fmac_f32 v82, v{48+2*w}, v{49+2*w}")
    if prew:
        A(f"s_mov_b32 {sSPIN}, 0")
        A.lab("L_mlw")
        A(f"s_sleep {wsleep}")
        A(f"ds_read_b128 v[48:51], v70 offset:{LDS_ML}")
        A(f"ds_read_b128 v[52:55], v70 offset:{LDS_ML+16}")
        A(f"s_add_u32 {sSPIN}, {sSPIN}, 1")
        A("s_waitcnt lgkmcnt(0)")
        A("v_or3_b32 v9, v49, v51, v53")
        A("v_or_b32 v9, v9, v55")
        A("s_nop 0")
        A(f"v_readfirstlane_b32 {sT0}, v9")
        A(f"s_cmp_ge_u32 {sSPIN}, {spin*4}")
        A("s_cbranch_scc1 L_mlw2")
        A(f"s_cmp_lt_i32 {sT0}, 0")
        A("s_cbranch_scc1 L_mlw")
        A.lab("L_mlw2")
        weights()
        if prew == 2:
            A(f"s_cmp_lg_u32 {sHW}, 2")
            A("s_cbranch_scc1 L_noml0")
            A(f"s_mov_b64 exec, {(1 << R) - 1}")
            A(f"buffer_store_dwordx4 v[80:83], v65, {srd(rWS)}, {sCNT} offen {mlst}")
            A("s_mov_b64 exec, -1")
            A.lab("L_noml0")
    if hprio: A(f"s_setprio {hprio}")
    A("s_barrier")
    if ts: stamp(1)
    if not prew:
        A(f"ds_read_b128 v[48:51], v70 offset:{LDS_ML}")
        A(f"ds_read_b128 v[52:55], v70 offset:{LDS_ML+16}")
    for w in range(4):
        A(f"ds_read_b32 v{56+w}, v66 offset:{LDS_O + w*512}")
    if not prew:
        A("s_waitcnt lgkmcnt(4)")
        weights()
    A("s_waitcnt lgkmcnt(0)")
    A("v_mul_f32 v10, v48, v56")
    for w in range(1, 4):
        A(f"v_fmac_f32 v10, v{48+2*w}, v{56+w}")
    A(f"v_cvt_pk_bf16_f32 v{vCO}, v10, v10")
    A(f"s_cmp_lg_u32 {sHW}, {99 if prew == 2 else 2}")
    A("s_cbranch_scc1 L_noml")
    A(f"s_mov_b64 exec, {(1 << R) - 1}")
    A(f"buffer_store_dwordx4 v[80:83], v65, {srd(rWS)}, {sCNT} offen {mlst}")
    A("s_mov_b64 exec, -1")
    A.lab("L_noml")
    if ts: stamp(2)
    if pack36:
        for i in range(4):
            A(f"v_mov_b32_dpp v{12+i}, v{vMK[i]} row_shr:8 row_mask:0xf bank_mask:0xc")
    a = sel(vCO, 0)
    A("s_nop 1")
    for t in range(8):
        an = vAop[aop_flip[0]]; aop_flip[0] ^= 1
        for cg in range(4 if pack36 else 5):
            mfma(vACC + 4 * cg if cg < 4 else 84, a, WBUF + 20 * t + 4 * cg, first=(t == 0))
            if t < 7 and cg < 2:
                for i in (2 * cg, 2 * cg + 1):
                    A(f"v_and_b32_dpp v{an+i}, v{vCO}, v{vMK[i]} row_newbcast:{t+1} row_mask:0xf bank_mask:0xf")
            if pack36 and t % 2 == 0 and cg >= 2:
                for i in (2 * (cg - 2), 2 * (cg - 2) + 1):
                    A(f"v_mov_b32 v{44+i}, v{a+i}")
        if pack36 and t % 2 == 0:
            for i in range(4):
                A(f"v_and_b32_dpp v{44+i}, v{vCO}, v{12+i} row_newbcast:{t+1} row_mask:0xf bank_mask:0xc")
            A("s_nop 1")
            mfma(84, 44, WBUF + 20 * t + 16, first=(t == 0))
        a = an
    A("s_nop 3")
    A("s_mov_b32 exec_hi, 0")
    for cg in range(4):
        A(f"ds_write_b128 v67, v[{vACC+4*cg}:{vACC+4*cg+3}] offset:{LDS_A + cg*512}")
    if pack36:
        A("s_mov_b64 exec, -1")
        A("s_nop 4")
        for i in range(4): A(f"v_mov_b32 v{44+i}, v{84+i}")
        A("s_nop 1")
        for i in range(4): A(f"v_permlane32_swap_b32 v{44+i}, v{84+i}")
        A("s_nop 1")
        for i in range(4): A(f"v_add_f32_dpp v{44+i}, v{84+i}, v{44+i} row_shl:8 row_mask:0xf bank_mask:0x3")
        A("s_mov_b32 exec_hi, 0")
        A("s_mov_b32 exec_lo, 0x00ff00ff")
        A(f"ds_write_b128 v67, v[44:47] offset:{LDS_A + 2048}")
    else:
        A("s_mov_b32 exec_lo, 0x00ff00ff")
        A(f"ds_write_b128 v67, v[84:87] offset:{LDS_A + 2048}")
    if bar4:
        A("s_mov_b64 exec, -1")
        A("s_waitcnt lgkmcnt(0)")
        if ts: stamp(4)
        A("s_barrier")
    else:
        A("s_mov_b64 exec, 1")
        A("s_waitcnt lgkmcnt(0)")
        A("ds_add_u32 v71, v72")
        A("s_mov_b64 exec, -1")
        if ts: stamp(4)
        lds_wait("L_hw", 8)
    if ts: stamp(7)
    record_store()
    A(f"s_cmp_lg_u32 {sHW}, 3")
    A("s_cbranch_scc1 L_nox")
    A("s_nop 1")
    record_store(extra=1)
    A.lab("L_nox")
    if early:
        A(f"s_cmp_lg_u32 {sHW}, 2")
        A("s_cbranch_scc1 L_nox2")
        record_store(back=3)
        A.lab("L_nox2")
    stamp(6)
    if relayout:
        A("s_branch L_fin" if stamps else "s_endpgm")
        hl = A.L[mark_helper:]
        del A.L[mark_helper:]
        i = A.L.index("@@HELPER@@")
        A.L[i:i+1] = hl
    A.lab("L_fin")
    stamp_flush()
    A.lab("L_end")
    A("s_endpgm")
    A.lab("L_codeend")

    out = HEADER + DOC
    out += f"; @launch grid=(256,1,1) block=(512,1,1) lds={LDS_BYTES}\n"
    out += '.amdgcn_target "amdgcn-amd-amdhsa--gfx950"\n.text\n'
    out += f".globl {KNAME}\n.p2align 8\n.type {KNAME},@function\n"
    out += "\n".join(A.L) + "\n"
    out += '.section .rodata,"a"\n.p2align 6\n'
    out += f""".amdhsa_kernel {KNAME}
  .amdhsa_next_free_vgpr 256
  .amdhsa_next_free_sgpr 102
  .amdhsa_accum_offset 256
  .amdhsa_group_segment_fixed_size 0
  .amdhsa_kernarg_size 96
  .amdhsa_user_sgpr_count 2
  .amdhsa_user_sgpr_kernarg_segment_ptr 1
  .amdhsa_system_sgpr_workgroup_id_x 1
.end_amdhsa_kernel
"""
    return out

if __name__ == "__main__":
    import json
    kw = json.loads(sys.argv[1]) if len(sys.argv) > 1 else {}
    sys.stdout.write(gen(**kw))
```

```python
import sys, struct

KNAME = "parallel_sum__mha_block_cached__glu_gated_bilinear__decode_kernel"

HEADER = """; Kernarg layout for this problem (96 bytes, ptrs only, base s[0:1]):
"""

DOC = """; ---------------------------------------------------------------------------------------------------------
; Hand-offs between workgroups are {data, tag} granules in d_ws; tag = epoch word of d_ws + constant, the epoch
; ---------------------------------------------------------------------------------------------------------
"""

def f2u(x):
    return struct.unpack("<I", struct.pack("<f", x))[0]

BLK = 16384
OFF_R, OFF_Q = 0, 9216
GU_BASE = 256 * BLK
GU_ROW = 4608 * 8
ML_BASE = GU_BASE + 32 * GU_ROW
EPOCH_OFF = ML_BASE + 16 * 32768
TS_BASE = EPOCH_OFF + 4096
STAMP_BASE = 6 << 20
REC_BASE = 8 << 20
WS_SIZE = 12 << 20
OOB = 0x40000000
TAG_STEP = 0x9E3779B9
LOG2E = f2u(1.4426950408889634)
LDS_Q = 0
LDS_CNT = 512
LDS_H = 768
LDS_ML = 1024
LDS_O = 1280
LDS_B = 3328
LDS_W = 5632
LDS_A = 8192
LDS_G = 8192 + 4 * 2304 + 512
LDS_BYTES = LDS_G + 2304 + 256

class G:
    def __init__(self):
        self.L = []
    def __call__(self, s):
        self.L.append("  " + s)
    def lab(self, s):
        self.L.append(s + ":")
    def c(self, s):
        self.L.append("  ; " + s)

def gen(D=5, INIT=6, stamps=False, DG=5, DW=3, spin=1 << 18, codepf=16, fsleep=0, qdelay=8, abl="",
        hsleep=40, D2=6, T0=800, TK=236, TV=219, mlsleep=2, warm="", cdelay=0, dbg=0, ts=0, cal=1, MG=30, CP=(2, 4), NS=16, tbase=0, guearly=0, htail=2, hstep=16, wdstep=8, apipe=1, D3=8, L3=50, D0=4, L0=60, rot=0, CI=8, FK=0, FV=0, FP=0, clk=0, qld="nt", hld="nt", tld="", qst="", gust="", tst="sc1", gupub=1, gck=1, fmode=1, rdelay=5, mlsh=6, early=0, INIT0=0, XS=0, late=None, ldelay=6, bar4=1, prew=1, endb=100, endstep=24, rt=0, pre=0, pdelay=4, wsleep=4, R=1, ost="", prio=0, hprio=2, fpipe=1, kvtrim=0, pack36=0, rld1="sc1", cmap=1, pubmask=15, pubsel=8, align=0, inst=0, TX=None, TMIN=6, TF=72, qrt="sc1", pfld="", xld="", wold="nt", rld="sc1", mlld="sc1", rst="sc1", mlst="sc1", swap=0, relayout=1, bar0=0, qfall=6, pad_to=0, gumid=0, qsleep=16):
    if dbg: stamps = True
    A = G()
    sID = "s2"
    pX, pK, pV, pWQ, pWO, pWG, pWU, pWD, pOUT, pDBG, pWS = 16, 18, 20, 22, 24, 28, 30, 32, 34, 36, 38
    rX, rST, rW, rWS, rO = 40, 44, 48, 52, 56
    sWV, sH, sS, sB, sHW = "s3", "s4", "s5", "s6", "s7"
    sOFF, sCNT, sT0, sT1, sT2, sM = "s8", "s9", "s10", "s11", "s12", "s13"
    sSPIN, sTAG = "s14", "s15"
    mU = ["s[60:61]", "s[62:63]", "s[64:65]", "s[66:67]"]
    mT = ["s[68:69]", "s[70:71]", "s[72:73]", "s[74:75]"]
    def srd(r): return f"s[{r}:{r+3}]"
    def mk_srd(r, p, size):
        A(f"s_mov_b32 s{r}, s{p}"); A(f"s_mov_b32 s{r+1}, s{p+1}"); A(f"s_mov_b32 s{r+2}, {size}"); A(f"s_mov_b32 s{r+3}, 0x20000")
    SB = 80
    def stamp(idx):
        if not stamps: return
        assert idx < 11
        A(f"s_memrealtime s[{SB+2*idx}:{SB+2*idx+1}]")
    def stampval(idx, sreg):
        if not stamps: return
        A(f"s_mov_b32 s{SB+2*idx}, {sreg}")
    def stamp_init():
        if stamps:
            for i in range(1, 11): A(f"s_mov_b32 s{SB+2*i}, 0")
    def stamp_flush():
        if not stamps: return
        A("s_waitcnt vmcnt(0) lgkmcnt(0)")
        A("s_mov_b64 exec, -1")
        A(f"s_lshl_b32 s8, {sID}, 3")
        A(f"s_add_u32 s8, s8, {sWV}")
        A("s_lshl_b32 s8, s8, 6")
        A(f"s_add_u32 s8, s8, {STAMP_BASE}")
        A("v_mov_b32 v8, 0")
        for i in range(11):
            A(f"v_writelane_b32 v8, s{SB+2*i}, {i}")
        A(f"v_lshlrev_b32 v9, 2, v{vLANE}")
        A(f"v_mov_b32 v10, {OOB}")
        A(f"v_cmp_gt_u32 vcc, 16, v{vLANE}")
        A("s_nop 1")
        A("v_cndmask_b32 v9, v10, v9, vcc")
        A(f"buffer_store_dword v8, v9, {srd(rWS)}, s8 offen")
        if dbg:
            A(f"s_cmp_lg_u32 {sID}, {dbg-1}")
            A("s_cbranch_scc1 L_end")
            A(f"s_cmp_lg_u32 {sWV}, 3")
            A("s_cbranch_scc1 L_end")
            mk_srd(rO, pDBG, 256)
            A(f"v_subrev_u32 v8, s{SB}, v8")
            A(f"buffer_store_dword v8, v9, {srd(rO)}, 0 offen")
    vLANE, vG, vN = 1, 2, 3
    vMK = [4, 5, 6, 7]
    vAop = [16, 20]
    vACC = 24
    vOFFC, vOFFV = 46, 47
    vBQ = 48
    vDK = 64
    vS = 68
    vSN, vP, vL = 76, 77, 78
    vX4 = 80
    WDB = 84
    RING = 128
    vXA = 48
    vXC = 56
    vOA, vOB = 60, 61
    vCO = 64
    WBUF = 96
    uid = [0]
    def newlab(p):
        uid[0] += 1
        return f"L_{p}{uid[0]}"

    def dpp_reduce(regs, op):
        pad = "s_nop 1" if len(regs) == 1 else ("s_nop 0" if len(regs) == 2 else None)
        A("s_nop 1")
        for d, rm in (("row_shr:1", "0xf"), ("row_shr:2", "0xf"), ("row_shr:4", "0xf"), ("row_shr:8", "0xf"), ("row_bcast:15", "0xa"), ("row_bcast:31", "0xc")):
            for r in regs: A(f"{op}_dpp v{r}, v{r}, v{r} {d} row_mask:{rm} bank_mask:0xf")
            if pad: A(pad)
        if not pad: A("s_nop 0")
    aop_flip = [0]
    def sel(coef, idx):
        a = vAop[aop_flip[0]]; aop_flip[0] ^= 1
        for i in range(4):
            A(f"v_and_b32_dpp v{a+i}, v{coef}, v{vMK[i]} row_newbcast:{idx} row_mask:0xf bank_mask:0xf")
        return a
    def mfma(d, a, b, first=False):
        c = "0" if first else f"v[{d}:{d+3}]"
        A(f"v_mfma_f32_16x16x32_bf16 v[{d}:{d+3}], v[{a}:{a+3}], v[{b}:{b+3}], {c}")
    def bf16_round(dst, src):
        A(f"v_cvt_pk_bf16_f32 v{dst}, v{src}, v{src}")
        A(f"v_lshlrev_b32 v{dst}, 16, v{dst}")
    sTAGX = "s75"
    def tagcheck(regs, dst=9, tmp=10, tmp2=15, sTAG=sTAG):
        regs = list(regs)
        lv = [(regs[i], regs[i+1]) for i in range(0, len(regs), 2)]
        A(f"v_bitop3_b32 v{dst}, v{lv[0][0]}, v{lv[0][1]}, {sTAG} bitop3:0x7e")
        rest = lv[1:]; k = 0
        while k < len(rest):
            A(f"v_bitop3_b32 v{tmp}, v{rest[k][0]}, v{rest[k][1]}, {sTAG} bitop3:0x7e")
            if k + 1 < len(rest):
                A(f"v_bitop3_b32 v{tmp2}, v{rest[k+1][0]}, v{rest[k+1][1]}, {sTAG} bitop3:0x7e")
                A(f"v_or3_b32 v{dst}, v{dst}, v{tmp}, v{tmp2}")
            else:
                A(f"v_or_b32 v{dst}, v{dst}, v{tmp}")
            k += 2
    def poll(label, loads, tagregs, slp, check=None, limit=None, keep=False, die=False, bail=None):
        A(f"s_mov_b32 {sSPIN}, 0")
        A.lab(label)
        loads()
        A("s_waitcnt vmcnt(0)")
        verdict(tagregs, check, die)
        A(f"s_add_u32 {sSPIN}, {sSPIN}, 1")
        A("s_and_b64 exec, exec, vcc")
        A(f"s_cbranch_execz {label}_done")
        if bail:
            A("s_cmp_lg_u64 s[44:45], 0")
            A(f"s_cbranch_scc1 {bail}")
        if slp: A(f"s_sleep {slp}")
        A(f"s_cmp_lt_u32 {sSPIN}, {limit or spin}")
        A(f"s_cbranch_scc1 {label}")
        A.lab(f"{label}_done")
        if not keep: A("s_mov_b64 exec, -1")
    def verdict(tagregs, check, die):
        if check: check()
        else: tagcheck(tagregs, sTAG=sTAGX if die else sTAG)
        if die:
            A("v_cmp_ne_u32 vcc, 0, v9")
            A("s_or_b64 s[44:45], s[44:45], vcc")
            A("v_cmp_lt_u32 vcc, 7, v9")
            A("s_andn2_b64 s[44:45], s[44:45], vcc")
        else:
            A("v_cmp_ne_u32 vcc, 0, v9")
    def two_group_offsets(rowstride, sw, oa, ob):
        A(f"s_mul_i32 {sT2}, {sw}, 288")
        A(f"v_mul_u32_u24 v8, {rowstride}, v{vG}")
        A(f"v_lshl_add_u32 v8, v{vN}, 4, v8")
        A(f"v_add_u32 v{oa}, {sT2}, v8")
        A(f"v_add_u32 v8, 256, v{oa}")
        A(f"v_mov_b32 v9, {OOB}")
        A(f"v_cmp_gt_u32 vcc, 2, v{vN}")
        A("s_nop 1")
        A(f"v_cndmask_b32 v{ob}, v9, v8, vcc")
    def two_group_to_lds(accA, accB, vaddr):
        A("s_mov_b32 exec_hi, 0")
        A(f"ds_write_b128 v{vaddr}, v[{accA}:{accA+3}] offset:{LDS_B}")
        A("s_mov_b32 exec_lo, 0x00030003")
        A(f"ds_write_b128 v{vaddr}, v[{accB}:{accB+3}] offset:{LDS_B+512}")
        A("s_mov_b64 exec, -1")
    def masks():
        A(f"v_and_b32 v8, 1, v{vN}")
        A("v_lshlrev_b32 v8, 4, v8")
        A(f"s_mov_b32 {sT0}, 0xffff")
        A(f"v_lshlrev_b32 v8, v8, {sT0}")
        A(f"v_lshrrev_b32 v11, 1, v{vN}")
        for i in range(4):
            A(f"v_cmp_eq_u32 vcc, {i}, v11")
            A("s_nop 1")
            A(f"v_cndmask_b32 v{vMK[i]}, 0, v8, vcc")
    def tail_store_setup():
        pass
    def lds_wait(label, target):
        A(f"s_mov_b32 {sSPIN}, 0")
        A.lab(label)
        A("ds_read_b32 v9, v71")
        A(f"s_add_u32 {sSPIN}, {sSPIN}, 1")
        A("s_waitcnt lgkmcnt(0)")
        A(f"v_readfirstlane_b32 {sT0}, v9")
        A(f"s_cmp_ge_u32 {sSPIN}, {spin}")
        A(f"s_cbranch_scc1 {label}_done")
        A(f"s_cmp_lt_u32 {sT0}, {target}")
        A(f"s_cbranch_scc1 {label}")
        A.lab(f"{label}_done")
    def record_addr_setup():
        A(f"v_and_b32 v8, 1, v{vLANE}")
        A(f"v_lshrrev_b32 v9, 2, v{vLANE}")
        A("v_lshlrev_b32 v9, 4, v9")
        A("v_lshl_add_u32 v8, v8, 3, v9")
        A(f"s_lshl_b32 {sT0}, {sWV}, 8")
        A(f"v_add_u32 v68, {sT0}, v8")
        A(f"v_lshlrev_b32 v69, 4, v{vLANE}")
        A(f"v_and_b32 v8, 2, v{vLANE}")
        A("v_cmp_eq_u32 s[62:63], 0, v8")
        A(f"v_mov_b32 v71, {LDS_CNT}")
        A("v_mov_b32 v72, 1")
        A(f"v_mov_b32 v41, {sTAG}")
        A(f"v_mov_b32 v43, {sTAG}")
        if rt:
            A(f"v_lshrrev_b32 v8, 2, v{vLANE}")
            A(f"v_and_b32 v9, 3, v{vLANE}")
            A("v_lshlrev_b32 v9, 4, v9")
            A("v_lshl_add_u32 v65, v8, 14, v9")
            A(f"s_lshl_b32 s60, {sB}, 6")
            A(f"s_lshl_b32 {sT0}, {sWV}, 18")
            A(f"s_add_u32 s60, s60, {sT0}")
            A(f"s_add_u32 s60, s60, {REC_BASE}")
            A(f"s_add_u32 s61, s60, {1 << 18}")
        else:
            A(f"s_lshl_b32 s60, {sB}, 14")
            A(f"s_lshl_b32 {sT0}, {sWV}, 10")
            A(f"s_add_u32 s60, s60, {sT0}")
    def record_store(extra=0, base=48, back=0):
        lo = 256 * extra
        if back:
            A(f"v_subrev_u32 v68, {256*back}, v68")
            A(f"s_sub_u32 s60, s60, {1024*back}")
        for w in range(4):
            A(f"ds_read_b64 v[{base+2*w}:{base+2*w+1}], v68 offset:{LDS_A + w*2304 + lo}")
        A(f"ds_read_b64 v[{base+8}:{base+9}], v68 offset:{LDS_B + lo}")
        A("s_waitcnt lgkmcnt(1)")
        for i in range(2):
            A(f"v_add_f32 v{base+i}, v{base+i}, v{base+2+i}")
            A(f"v_add_f32 v{base+4+i}, v{base+4+i}, v{base+6+i}")
        for i in range(2):
            A(f"v_add_f32 v{base+i}, v{base+i}, v{base+4+i}")
        A("s_waitcnt lgkmcnt(0)")
        A(f"v_cndmask_b32 v40, v{base+8}, v{base}, s[62:63]")
        A(f"v_cndmask_b32 v42, v{base+9}, v{base+1}, s[62:63]")
        if rt: A(f"buffer_store_dwordx4 v[40:43], v65, {srd(rWS)}, s{60+extra} offen sc1")
        else: A(f"buffer_store_dwordx4 v[40:43], v69, {srd(rWS)}, s60 offen offset:{1024*extra} {rst}")

    A.lab(KNAME)
    A(f"s_cmp_ge_u32 {sID}, 256")
    A("s_cbranch_scc1 L_end")
    A("s_load_dwordx16 s[16:31], s[0:1], 0")
    A("s_load_dwordx8 s[32:39], s[0:1], 64")
    if rot or not cal: A("s_memrealtime s[78:79]")
    if pad_to: A("s_memrealtime s[98:99]")
    stamp(0)
    A("v_lshrrev_b32 v8, 6, v0")
    A(f"v_and_b32 v{vLANE}, 63, v0")
    A(f"v_readfirstlane_b32 {sWV}, v8")
    A(f"v_lshrrev_b32 v{vG}, 4, v{vLANE}")
    A(f"v_and_b32 v{vN}, 15, v{vLANE}")
    A(f"s_and_b32 {sT0}, {sID}, 7")
    A(f"s_lshr_b32 {sT1}, {sID}, 3")
    A(f"s_and_b32 {sH}, {sT1}, 3")
    A(f"s_lshr_b32 {sS}, {sT1}, 2")
    A(f"s_lshl_b32 {sT0}, {sT0}, 2")
    A(f"s_add_u32 {sH}, {sH}, {sT0}")
    A(f"s_lshl_b32 {sB}, {sH}, 3")
    A(f"s_add_u32 {sB}, {sB}, {sS}")
    if swap: A(f"s_xor_b32 {sWV}, {sWV}, 4")
    A(f"s_cmp_ge_u32 {sWV}, 4")
    A("s_cbranch_scc1 L_helper")

    A.c("---- streamer waves 0..3")
    A(f"s_lshl_b32 {sT0}, {sB}, 19")
    A(f"s_lshl_b32 {sT1}, {sWV}, 10")
    A(f"s_add_u32 {sT0}, {sT0}, {sT1}")
    A(f"v_lshrrev_b32 v8, 2, v{vN}")
    A("v_lshlrev_b32 v8, 8, v8")
    A(f"v_and_b32 v11, 3, v{vN}")
    A("v_lshlrev_b32 v11, 4, v11")
    A(f"v_lshlrev_b32 v12, 6, v{vG}")
    A("v_add3_u32 v8, v8, v11, v12")
    if "n" in abl: A(f"v_lshlrev_b32 v8, 4, v{vLANE}")
    A(f"v_add_u32 v{vOFFC}, {sT0}, v8")
    A(f"s_mov_b32 {sOFF}, 0")
    A(f"s_mov_b32 s{rST+2}, 0x8000000")
    A(f"s_mov_b32 s{rST+3}, 0x20000")
    A("s_waitcnt lgkmcnt(0)")
    A(f"s_mov_b32 s{rST}, s{pK}")
    A(f"s_mov_b32 s{rST+1}, s{pK+1}")
    if rot:
        A(f"s_mul_hi_u32 {sOFF}, s78, {int(2**32 / rot)}")
        A(f"s_lshl_b32 {sOFF}, {sOFF}, 12")
        A(f"s_and_b32 {sOFF}, {sOFF}, 0x7ffff")
    def pace(d):
        if T0:
            l = newlab("pc")
            if D3:
                A(f"s_cmp_gt_i32 s75, {L3}")
                A(f"s_cbranch_scc1 {l}b")
            A(f"s_cbranch_vccnz {l}")
            if D0:
                A(f"s_cmp_gt_i32 s75, {-L0}")
                A(f"s_cbranch_scc1 {l}a")
                A(f"s_waitcnt vmcnt({D0-1})")
                A.lab(l + "a")
            A(f"s_waitcnt vmcnt({d-1})")
            A.lab(l)
            A(f"s_waitcnt vmcnt({D2-1})")
            if D3:
                A.lab(l + "b")
                A(f"s_waitcnt vmcnt({D3-1})")
        else:
            A(f"s_waitcnt vmcnt({d-1})")
    def control(n, step):
        if not T0: return
        if n % CI == 0:
            A("s_memrealtime s[76:77]")
            if cal: A("ds_read_b32 v123, v122 offset:8")
        if n % CI == 2:
            A("s_waitcnt lgkmcnt(0)")
            if cal:
                A("v_readfirstlane_b32 s79, v123")
                if n == 2:
                    l = newlab("ck")
                    A(f"s_cmp_lg_u32 {sWV}, 0")
                    A(f"s_cbranch_scc1 {l}")
                    A("v_mov_b32 v120, s76")
                    A("v_add_u32 v121, 1, v121")
                    A("v_lshl_add_u32 v119, v121, 2, v122")
                    A("ds_write_b32 v119, v120 offset:28")
                    A("ds_write_b64 v122, v[120:121] offset:16")
                    A.lab(l)
                A("s_sub_u32 s76, s76, s79")
            A("s_sub_u32 s76, s76, s78")
            A("s_abs_i32 s77, s76")
            A("s_cmp_gt_u32 s77, 100000")
            A("s_cselect_b32 s75, 0, s76")
            A("s_cmp_gt_i32 s75, 0")
            A("s_cselect_b64 vcc, -1, 0")
            k = (n % 16) // CI; parts = 16 // CI
            A(f"s_add_u32 s78, s78, {step * (k + 1) // parts - step * k // parts}")
    def issue(slot):
        r = RING + 4 * slot
        A(f"buffer_load_dwordx4 v[{r}:{r+3}], v{vOFFC}, {srd(rST)}, {sOFF} offen nt")
        A(f"s_add_u32 {sOFF}, {sOFF}, 4096")
        if rot: A(f"s_and_b32 {sOFF}, {sOFF}, 0x7ffff")
    if bar0: A("s_barrier")
    for n in range(INIT0 or INIT): issue(n)
    if relayout:
        A("s_branch L_stream2")
        A.L.append("@@HELPER@@")
        A.lab("L_stream2")
    if prio: A(f"s_setprio {prio}")
    stamp_init()
    A(f"s_mov_b32 {sT1}, {EPOCH_OFF}")
    A(f"s_load_dword {sTAG}, s[{pWS}:{pWS+1}], {sT1}")
    A(f"v_lshlrev_b32 v8, 4, v{vLANE}")
    A(f"v_add_u32 v{vOFFV}, {sT0}, v8")
    mk_srd(rX, pX, 1152)
    mk_srd(rWS, pWS, WS_SIZE)
    mk_srd(rW, pWD, 4608 * 576 * 2)
    masks()
    two_group_offsets(1152, sWV, 32, 33)
    A(f"v_cmp_gt_u32 vcc, 32, v{vLANE}")
    if cmap:
        A(f"s_and_b32 s0, {sID}, 7")
        A("s_mul_i32 s0, s0, 18")
        A(f"s_lshr_b32 s1, {sID}, 3")
        A("s_add_u32 s0, s0, s1")
    else:
        A(f"s_mov_b32 s0, {sID}")
    A(f"s_lshl_b32 {sT0}, s0, 3")
    A(f"v_mov_b32 v10, {sT0}")
    A("v_cndmask_b32 v34, v9, v32, vcc")
    A("v_cndmask_b32 v35, v9, v33, vcc")
    A(f"v_and_b32 v8, 3, v{vN}")
    A(f"v_lshrrev_b32 v9, 2, v{vN}")
    for u in range(4):
        A(f"v_cmp_eq_u32 {mU[u]}, {u}, v8")
        A(f"v_cmp_eq_u32 {mT[u]}, {u}, v9")
    A(f"v_lshlrev_b32 v9, 2, v{vG}")
    A("v_add_u32 v8, v8, v9")
    A("v_lshlrev_b32 v8, 5, v8")
    A(f"buffer_load_dwordx2 v[{vX4}:{vX4+1}], v10, {srd(rX)}, 0 offen {xld}")
    if kvtrim:
        A(f"v_mov_b32 v{vL}, 0xff800000")
        for i in range(4): A(f"v_mov_b32 v{vACC+i}, 0")
    if htail in (1, 3):
        A(f"v_mul_u32_u24 v10, 57, v{vLANE}")
        A("v_lshrrev_b32 v127, 9, v10")
        A("v_mul_u32_u24 v9, 9, v127")
        A(f"v_sub_u32 v9, v{vLANE}, v9")
        A(f"v_mul_u32_u24 v11, {GU_ROW}, v127")
        A("v_lshl_add_u32 v11, v9, 4, v11")
        A(f"s_mul_i32 {sT0}, {sB}, 144")
        A(f"s_add_u32 {sT0}, {sT0}, {GU_BASE}")
        A(f"v_add_u32 v124, {sT0}, v11")
        A("v_mul_u32_u24 v12, 72, v127")
        A("v_lshl_add_u32 v12, v9, 3, v12")
        A(f"s_mul_i32 {sT0}, {sWV}, 2304")
        A(f"s_add_u32 {sT0}, {sT0}, {LDS_G}")
        A(f"v_add_u32 v126, {sT0}, v12")
        A(f"v_mov_b32 v13, {OOB}")
        A("v_cmp_gt_u32 vcc, 4, v127")
        A("s_nop 1")
        A("v_cndmask_b32 v125, v13, v124, vcc")
        if htail == 3:
            A(f"s_cmp_eq_u32 {sWV}, 0")
            A("s_cselect_b64 vcc, -1, 0")
            A("v_cndmask_b32 v124, v13, v124, vcc")
            A("v_cndmask_b32 v125, v13, v125, vcc")
    for n in range(INIT0 or INIT, INIT): issue(n)
    for n in range(INIT, 32):
        A(f"s_waitcnt vmcnt({D-1 + (1 if (n % 4) < FP else 0)})")
        issue(n)
    XB = 88
    for n in range(XS):
        A(f"s_waitcnt vmcnt({D-1})")
        r = 96 + 4 * n
        A(f"buffer_load_dwordx4 v[{r}:{r+3}], v{vOFFC}, {srd(rST)}, {sOFF} offen nt")
        A(f"s_add_u32 {sOFF}, {sOFF}, 4096")
    A("s_waitcnt lgkmcnt(0)")
    A(f"s_add_u32 {sTAG}, {sTAG}, {TAG_STEP}")
    if not ts: stamp(4)
    A("s_barrier")
    if not ts: stamp(5)
    if clk: A(f"s_memtime s[{SB+2}:{SB+3}]")
    QT = 84
    A(f"ds_read_b128 v[{QT}:{QT+3}], v8 offset:{LDS_Q}")
    A(f"ds_read_b128 v[{QT+4}:{QT+7}], v8 offset:{LDS_Q+16}")
    if tbase:
        A("v_mov_b32 v9, 0")
        A(f"ds_read_b32 v9, v9 offset:{LDS_CNT+8}")
    A("s_waitcnt lgkmcnt(0)")
    if tbase:
        A("v_readfirstlane_b32 s78, v9")
    for i in range(4):
        A(f"v_cvt_pk_bf16_f32 v{QT+8+i}, v{QT+2*i}, v{QT+2*i+1}")
    for t in range(4):
        for i in range(4):
            A(f"v_cndmask_b32 v{vBQ+4*t+i}, 0, v{QT+8+i}, {mT[t]}")
    if cal:
        A("s_mov_b32 s78, 0")
        A("v_mov_b32 v121, 0")
        A(f"v_mov_b32 v122, {LDS_CNT}")
    else:
        A(f"s_add_u32 s78, s78, {T0}")
    A("s_mov_b64 vcc, 0")
    A("s_mov_b32 s75, 0")
    A(f"s_mov_b32 {sT2}, {f2u(128 ** -0.5)}")
    A(f"s_mov_b32 {sCNT}, 0")
    if align: A(f".p2align {align}")
    A.lab("L_kloop")
    A(f"s_cmp_eq_u32 {sCNT}, 3")
    A("s_cbranch_scc0 L_kbody")
    A(f"s_mov_b32 s{rST}, s{pV}")
    A(f"s_mov_b32 s{rST+1}, s{pV+1}")
    if not rot: A(f"s_mov_b32 {sOFF}, 0")
    A(f"v_mov_b32 v{vOFFC}, v{vOFFV}")
    A.lab("L_kbody")
    for n in range(32):
        t, u = n % 4, (n // 4) % 4
        if "m" not in abl: mfma(vDK, RING + 4 * n, vBQ + 4 * t, first=(t == 0))
        if n < XS:
            l = newlab("xs")
            A(f"s_cmp_eq_u32 {sCNT}, 0")
            A(f"s_cbranch_scc1 {l}")
        pace(D + (1 if (n % 4) < FK else 0))
        issue(n)
        if n < XS: A.lab(l)
        if XS and 20 <= n < 20 + XS:
            l = newlab("xc")
            A(f"s_cmp_lg_u32 {sCNT}, 0")
            A(f"s_cbranch_scc1 {l}")
            for j in range(4): A(f"v_mov_b32 v{RING+4*(n-20)+j}, v{96+4*(n-20)+j}")
            A.lab(l)
        control(n, TK)
        if t == 3:
            A("s_nop 5")
            A(f"v_mov_b32_dpp v8, v{vDK} quad_perm:[0,0,0,0] row_mask:0xf bank_mask:0xf")
            for cidx in range(1, 4):
                A(f"v_add_f32_dpp v8, v{vDK+cidx}, v8 quad_perm:[{cidx},{cidx},{cidx},{cidx}] row_mask:0xf bank_mask:0xf")
            if u == 0:
                A(f"v_mov_b32 v{vSN}, v8")
            else:
                A(f"v_cndmask_b32 v{vSN}, v{vSN}, v8, {mU[u]}")
            if u == 3:
                bf16_round(vSN, vSN)
                A(f"v_mul_f32 v{vSN}, {sT2}, v{vSN}")
                bf16_round(vSN, vSN)
                for k in range(7):
                    A(f"v_mov_b32 v{vS+k}, v{vS+k+1}")
                A(f"v_mov_b32 v{vS+7}, v{vSN}")
                if kvtrim: A(f"v_max_f32 v{vL}, v{vL}, v{vSN}")
    A(f"s_add_u32 {sCNT}, {sCNT}, 1")
    A(f"s_cmp_lt_u32 {sCNT}, 4")
    A("s_cbranch_scc1 L_kloop")
    if not ts: stamp(6)
    if kvtrim:
        dpp_reduce([vL], "v_max_f32")
        A(f"v_readlane_b32 {sM}, v{vL}, 63")
        A(f"s_mov_b32 {sT2}, {LOG2E}")
        A(f"v_mov_b32 v{vL}, 0")
    else:
        A(f"v_max3_f32 v8, v{vS}, v{vS+1}, v{vS+2}")
        A(f"v_max3_f32 v8, v8, v{vS+3}, v{vS+4}")
        A(f"v_max3_f32 v8, v8, v{vS+5}, v{vS+6}")
        A(f"v_max_f32 v8, v8, v{vS+7}")
        dpp_reduce([8], "v_max_f32")
        A(f"v_readlane_b32 {sM}, v8, 63")
        A(f"s_mov_b32 {sT2}, {LOG2E}")
        A(f"v_mov_b32 v{vL}, 0")
        for i in range(4): A(f"v_mov_b32 v{vACC+i}, 0")
    A(f"s_mov_b32 {sCNT}, 0")
    def ptile():
        A(f"v_subrev_f32 v8, {sM}, v{vS}")
        A(f"v_mul_f32 v8, {sT2}, v8")
        A("v_exp_f32 v8, v8")
        for k in range(7):
            A(f"v_mov_b32 v{vS+k}, v{vS+k+1}")
        A(f"v_add_f32 v{vL}, v{vL}, v8")
        A(f"v_cvt_pk_bf16_f32 v{vP}, v8, v8")
        A("s_nop 1")
    NWD = 15 if htail in (1, 3) else 10
    GM, GW, GR = RING + 80, RING, RING + 16
    def vstep(n, last):
        if n % 16 == 0: ptile()
        if last and n == 17:
            dpp_reduce([vL], "v_add_f32")
            A(f"v_mov_b32 v45, v{vL}")
            A("s_mov_b32 exec_lo, 0")
            A("s_mov_b32 exec_hi, 0x80000000")
            A(f"ds_write_b64 v83, v[44:45] offset:{LDS_ML}")
            A("s_mov_b64 exec, -1")
            record_addr_setup()
        L = n % 16; t, u = L % 4, L // 4
        if "m" in abl:
            pace(D); issue(n); control(n, TV)
            return
        a = sel(vP, 4 * t + u)
        if last and n >= 32 - max(D, D2) - 1:
            A(f"s_waitcnt vmcnt({NWD + 31 - n})")
            A("s_nop 0")
        else:
            A("s_nop 1")
        mfma(vACC, a, RING + 4 * n)
        if not last:
            pace(D + (1 if (n % 4) < FV else 0))
            issue(n)
            control(n, TV)
    if align: A(f".p2align {align}")
    A.lab("L_vloop")
    for n in range(32):
        vstep(n, False)
        if endb and n == endstep - 1:
            A(f"s_cmp_eq_u32 {sCNT}, 2")
            A(f"s_cselect_b32 s77, {endb}, 0")
            A("s_sub_u32 s78, s78, s77")
    A(f"s_add_u32 {sCNT}, {sCNT}, 1")
    A(f"s_cmp_lt_u32 {sCNT}, 3")
    A("s_cbranch_scc1 L_vloop")
    stamp(7)
    if clk: A(f"s_memtime s[{SB+20}:{SB+21}]")
    A(f"s_mul_i32 {sOFF}, {sB}, {18*1152}")
    def wd_issue(t):
        r = WDB + 8 * t
        oa, ob = (32, 33) if t < 4 else (34, 35)
        A(f"buffer_load_dwordx4 v[{r}:{r+3}], v{oa}, {srd(rW)}, {sOFF} offen nt")
        A(f"buffer_load_dwordx4 v[{r+4}:{r+7}], v{ob}, {srd(rW)}, {sOFF} offen nt")
        A(f"s_add_u32 {sOFF}, {sOFF}, {4*1152}")
    if wdstep < 0:
        for t in range(5): wd_issue(t)
    HG = 48
    def ld_gu():
        A(f"s_mov_b32 {sT0}, 0")
        for i in range(5):
            A(f"buffer_load_dwordx4 v[{HG+4*i}:{HG+4*i+3}], v{124 if i < 4 else 125}, {srd(rWS)}, {sT0} offen sc1")
            if i < 4: A(f"s_add_u32 {sT0}, {sT0}, {7*GU_ROW}")
    def ck_gu():
        A(f"v_mov_b32 v14, {sTAG}")
        A(f"v_cndmask_b32 v{HG+17}, v14, v{HG+17}, s[66:67]")
        A(f"v_cndmask_b32 v{HG+19}, v14, v{HG+19}, s[66:67]")
        tagcheck([HG + 2 * k + 1 for k in range(10)])
    if htail == 2 and hstep >= 32:
        A(f"v_mov_b32 v8, {LDS_CNT}")
        A("v_mov_b32 v9, 1")
        A("ds_write_b32 v8, v9 offset:4")
    if htail in (1, 3):
        A("s_mov_b32 exec_hi, 0x7fffffff")
        ld_gu()
        A("s_mov_b32 exec_hi, -1")
    A(f"s_lshl_b32 {sT0}, {sWV}, 9")
    A(f"v_lshlrev_b32 v8, 5, v{vN}")
    A(f"v_lshl_add_u32 v8, v{vG}, 4, v8")
    A(f"v_add_u32 v82, {sT0}, v8")
    A(f"s_mul_i32 {sT0}, {sWV}, 576")
    A(f"v_add_u32 v36, {sT0}, v8")
    A(f"s_lshl_b32 {sT0}, {sWV}, 3")
    A(f"v_mov_b32 v83, {sT0}")
    A(f"v_mov_b32 v44, {sM}")
    A(f"v_lshlrev_b32 v37, 2, v{vLANE}")
    A(f"s_and_b32 {sT0}, {sID}, {R - 1}")
    A(f"s_lshl_b32 {sT0}, {sT0}, {8 + mlsh}")
    for k in range(4): A(f"s_add_u32 s{64+k}, {sT0}, {ML_BASE + (k*64 << mlsh)}")
    A(f"s_cmp_eq_u32 {sWV}, 3")
    A(f"s_cselect_b32 {sT0}, 144, 0")
    A(f"s_cmp_lt_u32 {sID}, {sT0}")
    A(f"s_cselect_b32 {sT0}, 0, {OOB}")
    A(f"v_lshl_add_u32 v79, v{vLANE}, {mlsh}, {sT0}")
    def lidx(n):
        L = n % 16
        return 4 * (L % 4) + L // 4
    ptile()
    a = sel(vP, lidx(0))
    for n in range(32):
        if n + 1 == 16: ptile()
        if n + 1 < 32: a_next = sel(vP, lidx(n + 1))
        else: A("s_nop 0")
        nwd = NWD if wdstep < 0 else (NWD - 10) + 2 * max(0, min(5, n - wdstep))
        if n >= 32 - max(D, D2, D3) - 1:
            A(f"s_waitcnt vmcnt({nwd + 31 - n})")
        mfma(vACC, a, RING + 4 * n)
        if wdstep >= 0 and wdstep <= n < wdstep + 5: wd_issue(n - wdstep)
        a = a_next
        if n == 17:
            dpp_reduce([vL], "v_add_f32")
            A(f"v_mov_b32 v45, v{vL}")
            A("s_mov_b32 exec_lo, 0")
            A("s_mov_b32 exec_hi, 0x80000000")
            A(f"ds_write_b64 v83, v[44:45] offset:{LDS_ML}")
            A("s_mov_b64 exec, -1")
            record_addr_setup()
    if wdstep >= 0:
        for t in range(max(0, 32 - wdstep), 5): wd_issue(t)
    A("s_nop 7")
    A("s_mov_b32 exec_hi, 0")
    A(f"ds_write_b128 v82, v[{vACC}:{vACC+3}] offset:{LDS_O}")
    A("s_mov_b32 exec_hi, -1")
    A("s_waitcnt lgkmcnt(0)")
    stamp(2)
    A("s_barrier")
    if ts: stamp(4)
    if htail == 3:
        A(f"s_cmp_lg_u32 {sWV}, 0")
        A("s_cbranch_scc1 L_hothers")
    if htail in (1, 3):
        A("v_cmp_gt_u32 s[66:67], 4, v127")
        A("s_mov_b32 exec_hi, 0x7fffffff")
        A(f"s_mov_b32 {sSPIN}, 0")
        A("s_branch L_hchk")
        A.lab("L_hpoll")
        A(f"s_sleep {hsleep}")
        ld_gu()
        A.lab("L_hchk")
        A("s_waitcnt vmcnt(0)")
        ck_gu()
        A(f"s_add_u32 {sSPIN}, {sSPIN}, 1")
        A("v_cmp_ne_u32 vcc, 0, v9")
        A(f"s_cmp_ge_u32 {sSPIN}, {spin}")
        A("s_cbranch_scc1 L_hdone")
        A("s_and_b64 exec, exec, vcc")
        A("s_cbranch_execnz L_hpoll")
        A.lab("L_hdone")
        A("s_mov_b32 exec_lo, -1")
        A("s_mov_b32 exec_hi, 0x7fffffff")
        for i in range(4):
            A(f"ds_write2_b32 v126, v{HG+4*i}, v{HG+4*i+2} offset0:{i*126} offset1:{i*126+1}" if i * 126 + 1 < 256 else f"ds_write2_b32 v127, v{HG+4*i}, v{HG+4*i+2} offset0:{(i-2)*126} offset1:{(i-2)*126+1}")
            if i == 0: A(f"v_add_u32 v127, {2*504}, v126")
        A(f"v_add_u32 v126, {4*504}, v126")
        A("s_and_b64 exec, exec, s[66:67]")
        A(f"ds_write2_b32 v126, v{HG+16}, v{HG+18} offset0:0 offset1:1")
        A("s_mov_b64 exec, -1")
        A(f"v_lshl_add_u32 v8, v{vN}, 2, v{vG}")
        A("v_cmp_gt_u32 vcc, 18, v8")
        A(f"s_mul_i32 {sT0}, {sWV}, 2304")
        A(f"v_lshl_add_u32 v8, v8, 2, {sT0}")
        A("s_waitcnt lgkmcnt(0)")
        HR = RING
        for r in range(32):
            A(f"ds_read_b32 v{HR+r}, v8 offset:{LDS_G + r*72}")
            if r in (11, 22): A("s_waitcnt lgkmcnt(4)")
        for st in (8, 4, 2, 1):
            for r in range(st): A(f"v_add_f32 v{HR+r}, v{HR+r}, v{HR+r+st}")
        A("s_waitcnt lgkmcnt(0)")
        for st in (8, 4, 2, 1):
            for r in range(st): A(f"v_add_f32 v{HR+16+r}, v{HR+16+r}, v{HR+16+r+st}")
        bf16_round(HR, HR); bf16_round(HR + 16, HR + 16)
        A(f"v_mul_f32 v{vP}, v{HR}, v{HR+16}")
        A(f"v_cvt_pk_bf16_f32 v{vP}, v{vP}, v{vP}")
        A(f"v_cndmask_b32 v{vP}, 0, v{vP}, vcc")
        if htail == 3:
            A(f"ds_write_b32 v37, v{vP} offset:{LDS_H}")
            A("s_waitcnt lgkmcnt(0)")
            A("ds_write_b32 v71, v72 offset:4")
            A("s_branch L_hready")
            A.lab("L_hothers")
            A(f"s_mov_b32 {sSPIN}, 0")
            A.lab("L_hw2")
            A("ds_read_b32 v9, v71 offset:4")
            A(f"ds_read_b32 v{vP}, v37 offset:{LDS_H}")
            A(f"s_add_u32 {sSPIN}, {sSPIN}, 1")
            A("s_waitcnt lgkmcnt(0)")
            A(f"v_readfirstlane_b32 {sT0}, v9")
            A(f"s_cmp_ge_u32 {sSPIN}, {spin}")
            A("s_cbranch_scc1 L_hready")
            A(f"s_cmp_eq_u32 {sT0}, 0")
            A("s_cbranch_scc1 L_hw2")
            A.lab("L_hready")
            if ts: stamp(5)
        A("s_nop 1")
    else:
        A(f"ds_read_b32 v{vP}, v37 offset:{LDS_H}")
        if pre:
            A(f"s_sleep {pre}")
            for k in range(4):
                A(f"buffer_load_dwordx4 v[{GM+4*k}:{GM+4*k+3}], v79, {srd(rWS)}, s{64+k} offen sc1")
        A("s_waitcnt lgkmcnt(0)")
    for t in range(5):
        a = sel(vP, t)
        A(f"s_waitcnt vmcnt({2*(4 - t) + (4 if pre else 0)})")
        A("s_nop 0")
        mfma(vACC, a, WDB + 8 * t, first=(t == 0))
        mfma(vACC + 4, a, WDB + 8 * t + 4, first=(t == 0))
    A("s_nop 7")
    two_group_to_lds(vACC, vACC + 4, 36)
    if not bar4:
        A("s_mov_b64 exec, 1")
        A("s_waitcnt lgkmcnt(0)")
        A("ds_add_u32 v71, v72")
        A("s_mov_b64 exec, -1")
    mk_srd(rO, pOUT, 1152)
    A(f"v_lshrrev_b32 v8, 2, v{vLANE}")
    A(f"v_and_b32 v11, 3, v{vLANE}")
    A("v_lshlrev_b32 v12, 14, v8")
    A("v_lshl_add_u32 v12, v11, 4, v12")
    A(f"s_lshl_b32 {sT0}, s0, 6")
    A(f"v_add_u32 v12, {sT0}, v12")
    if rt:
        A(f"s_lshl_b32 {sT0}, {sID}, 14")
        A(f"s_add_u32 {sT0}, {sT0}, {REC_BASE}")
        A(f"v_add_u32 v12, {sT0}, v69")
    A("v_lshlrev_b32 v13, 2, v8")
    A(f"v_add_u32 v13, {LDS_W}, v13")
    A(f"v_and_b32 v14, 1, v{vLANE}")
    A("v_cmp_eq_u32 vcc, 1, v14")
    A(f"s_lshl_b32 {sT0}, s0, 3")
    A(f"v_lshl_add_u32 v10, v14, 2, {sT0}")
    A(f"v_cndmask_b32 v92, v{vX4}, v{vX4+1}, vcc")
    A("v_and_b32 v93, 0xffff0000, v92")
    A("v_lshlrev_b32 v92, 16, v92")
    A(f"v_mov_b32 v9, {OOB}")
    A(f"v_cmp_gt_u32 vcc, 2, v{vLANE}")
    A(f"s_mov_b32 {sT2}, {LOG2E}")
    A(f"v_lshlrev_b32 v97, {mlsh}, v{vLANE}")
    A("v_cndmask_b32 v96, v9, v10, vcc")
    if ts: stamp(6)
    if early:
        A(f"s_cmp_eq_u32 {sWV}, 3")
        A("s_cbranch_scc1 L_cons")
    if bar4:
        A("s_waitcnt lgkmcnt(0)")
        A("s_barrier")
    else: lds_wait("L_sw", 8)
    record_store()
    stamp(8)
    if early:
        A("s_branch L_fin")
        A.lab("L_cons")
    else:
        A(f"s_cmp_lg_u32 {sWV}, 3")
        A("s_cbranch_scc1 L_fin")
    A(f"s_cmp_ge_u32 {sID}, 144")
    A("s_cbranch_scc1 L_fin")
    A.c("---- wave 3: final reduction for columns 4*id .. 4*id+3")
    mM, mR = "s[44:45]", "s[46:47]"
    if cdelay: A(f"s_sleep {cdelay}")
    for m in (mM, mR): A(f"s_mov_b64 {m}, -1")
    A(f"s_mov_b32 {sSPIN}, 0")
    def ld_ml():
        for k in range(4):
            A(f"buffer_load_dwordx4 v[{GM+4*k}:{GM+4*k+3}], v97, {srd(rWS)}, s{64+k} offen {mlld}")
    def ld_rec(rld=rld):
        A(f"s_mov_b32 {sT0}, 0")
        for i in range(16):
            A(f"buffer_load_dwordx4 v[{GR+4*i}:{GR+4*i+3}], v12, {srd(rWS)}, {sT0} offen {rld}")
            if i < 15: A(f"s_add_u32 {sT0}, {sT0}, {1024 if rt else 16*BLK}")
    if pre:
        A("s_waitcnt vmcnt(1)")
        tagcheck([GM + 2 * k + 1 for k in range(8)])
        A("v_cmp_ne_u32 vcc, 0, v9")
        A("s_and_b64 exec, exec, vcc")
        A("s_cbranch_execnz L_fp_m")
        if pdelay: A(f"s_sleep {pdelay}")
        A("s_branch L_fp_m2")
    if late is not None:
        A(f"s_cmp_lt_i32 s75, {late}")
        A("s_cbranch_scc1 L_fp_m")
        if ldelay: A(f"s_sleep {ldelay}")
    if TX is not None:
        A("s_memrealtime s[76:77]")
        A("s_add_u32 s78, s78, s79")
        A(f"s_add_u32 s78, s78, {TX & 0xffffffff}")
        A("s_waitcnt lgkmcnt(0)")
        A("s_sub_u32 s76, s78, s76")
        A("s_max_i32 s76, s76, 0")
        A("s_min_u32 s76, s76, 400")
        A(f"s_mul_i32 s76, s76, {TF}")
        A("s_lshr_b32 s76, s76, 8")
        A(f"s_max_u32 s76, s76, {TMIN}")
        A.lab("L_bo")
        A("s_sleep 1")
        A("s_sub_u32 s76, s76, 1")
        A("s_cmp_gt_i32 s76, 0")
        A("s_cbranch_scc1 L_bo")
    if fmode == 0 or late is not None or TX is not None:
        ld_ml()
        ld_rec()
        A("s_waitcnt vmcnt(16)")
        tagcheck([GM + 2 * k + 1 for k in range(8)])
        A(f"v_cmp_ne_u32 {mM}, 0, v9")
        A("s_nop 0")
        A(f"s_cmp_eq_u64 {mM}, 0")
        A("s_cbranch_scc1 L_fp_w")
        A("s_waitcnt vmcnt(0)")
        tagcheck([GR + 2 * k + 1 for k in range(32)])
        A(f"v_cmp_ne_u32 {mR}, 0, v9")
        A(f"s_mov_b64 exec, {mM}")
    A.lab("L_fp_m")
    if mlsleep: A(f"s_sleep {mlsleep}")
    ld_ml()
    A(f"s_add_u32 {sSPIN}, {sSPIN}, 1")
    A("s_waitcnt vmcnt(0)")
    tagcheck([GM + 2 * k + 1 for k in range(8)])
    A("v_cmp_ne_u32 vcc, 0, v9")
    A(f"s_cmp_ge_u32 {sSPIN}, {spin}")
    A("s_cbranch_scc1 L_fp_m2")
    A("s_and_b64 exec, exec, vcc")
    A("s_cbranch_execnz L_fp_m")
    A.lab("L_fp_m2")
    if rdelay: A(f"s_sleep {rdelay}")
    A(f"s_mov_b64 exec, {mR}")
    A("s_cbranch_execz L_fp_w")
    ld_rec(rld1)
    A.lab("L_fp_w")
    A("s_mov_b64 exec, -1")
    stamp(1)
    grp8 = ("quad_perm:[1,0,3,2]", "quad_perm:[2,3,0,1]", "row_half_mirror")
    for k in range(4): A(f"v_mov_b32 v{GM+4*k+1}, v{GM+4*k}")
    for d in grp8:
        for k in range(4): A(f"v_max_f32_dpp v{GM+4*k+1}, v{GM+4*k+1}, v{GM+4*k+1} {d} row_mask:0xf bank_mask:0xf")
    for k in range(4): A(f"v_sub_f32 v{GM+4*k}, v{GM+4*k}, v{GM+4*k+1}")
    for k in range(4): A(f"v_mul_f32 v{GM+4*k}, {sT2}, v{GM+4*k}")
    for k in range(4): A(f"v_exp_f32 v{GM+4*k}, v{GM+4*k}")
    for k in range(4): A(f"v_mul_f32 v{GM+4*k+2}, v{GM+4*k}, v{GM+4*k+2}")
    for d in grp8:
        for k in range(4): A(f"v_add_f32_dpp v{GM+4*k+2}, v{GM+4*k+2}, v{GM+4*k+2} {d} row_mask:0xf bank_mask:0xf")
    for k in range(4): A(f"v_rcp_f32 v{GM+4*k+2}, v{GM+4*k+2}")
    for k in range(4): A(f"v_mul_f32 v{GM+4*k}, v{GM+4*k}, v{GM+4*k+2}")
    for k in range(4): A(f"ds_write_b32 v37, v{GM+4*k} offset:{LDS_W + k*256}")
    A("s_waitcnt lgkmcnt(0)")
    for i in range(16):
        A(f"ds_read_b32 v{GW+i}, v13 offset:{i*64}")
        if i == 11: A("s_waitcnt lgkmcnt(8)")
    A("s_waitcnt lgkmcnt(0)")
    for i in range(16): A(f"v_cndmask_b32 v{GW+i}, 1.0, v{GW+i}, s[62:63]")
    if fpipe and fmode == 1 and late is None and not pre and TX is None:
        for g4 in range(4):
            A(f"s_waitcnt vmcnt({12 - 4*g4})")
            tagcheck([GR + 16 * g4 + 2 * k + 1 for k in range(8)], dst=9 if g4 == 0 else 14)
            if g4: A("v_or_b32 v9, v9, v14")
            for k in range(4):
                i = 4 * g4 + k
                for j in range(2):
                    d = 88 + 2 * (k % 2) + j
                    if i < 2: A(f"v_mul_f32 v{d}, v{GW+i}, v{GR+4*i+2*j}")
                    else: A(f"v_fmac_f32 v{d}, v{GW+i}, v{GR+4*i+2*j}")
        A("v_cmp_ne_u32 vcc, 0, v9")
        A("s_and_b64 exec, exec, vcc")
        A("s_cbranch_execnz L_fp_r")
        A("s_mov_b64 exec, -1")
        stamp(10)
        A("s_branch L_fp_sum")
    else:
        A(f"s_mov_b64 exec, {mR}")
        A("s_cbranch_execz L_fp_done")
        A("s_branch L_fp_c")
    A.lab("L_fp_r")
    if fsleep: A(f"s_sleep {fsleep}")
    ld_rec()
    A.lab("L_fp_c")
    A(f"s_add_u32 {sSPIN}, {sSPIN}, 1")
    A("s_waitcnt vmcnt(0)")
    tagcheck([GR + 2 * k + 1 for k in range(32)])
    A("v_cmp_ne_u32 vcc, 0, v9")
    A(f"s_cmp_ge_u32 {sSPIN}, {spin}")
    A("s_cbranch_scc1 L_fp_done")
    A("s_and_b64 exec, exec, vcc")
    A("s_cbranch_execnz L_fp_r")
    A.lab("L_fp_done")
    A("s_mov_b64 exec, -1")
    stamp(10)
    for i in range(16):
        for j in range(2):
            d = 88 + 2 * (i % 2) + j
            if i < 2: A(f"v_mul_f32 v{d}, v{GW+i}, v{GR+4*i+2*j}")
            else: A(f"v_fmac_f32 v{d}, v{GW+i}, v{GR+4*i+2*j}")
    A.lab("L_fp_sum")
    A("v_add_f32 v88, v88, v90")
    A("v_add_f32 v89, v89, v91")
    A("s_nop 0")
    for d in ("row_ror:4", "row_ror:8"):
        A(f"v_add_f32_dpp v88, v88, v88 {d} row_mask:0xf bank_mask:0xf")
        A(f"v_add_f32_dpp v89, v89, v89 {d} row_mask:0xf bank_mask:0xf")
        A("s_nop 0")
    for op in ("v_permlane16_swap_b32", "v_permlane32_swap_b32"):
        A("v_mov_b32 v14, v88")
        A("v_mov_b32 v15, v89")
        A("s_nop 1")
        A(f"{op} v14, v88")
        A(f"{op} v15, v89")
        A("v_add_f32 v88, v88, v14")
        A("v_add_f32 v89, v89, v15")
    for i in range(2): A(f"v_cvt_pk_bf16_f32 v{88+i}, v{88+i}, v{88+i}")
    for i in range(2): A(f"v_lshlrev_b32 v{88+i}, 16, v{88+i}")
    for i in range(2): A(f"v_add_f32 v{90+i}, v{92+i}, v{88+i}")
    for i in range(2): A(f"v_cvt_pk_bf16_f32 v{90+i}, v{90+i}, v{90+i}")
    for i in range(2): A(f"v_lshlrev_b32 v{90+i}, 16, v{90+i}")
    for i in range(2): A(f"v_add_f32_dpp v{90+i}, v{88+i}, v{90+i} quad_perm:[2,3,2,3] row_mask:0xf bank_mask:0xf")
    A("v_cvt_pk_bf16_f32 v12, v90, v91")
    A(f"buffer_store_dword v12, v96, {srd(rO)}, 0 offen {ost}")
    stamp(3)
    stampval(9, sSPIN)
    A(f"s_cmp_lg_u32 {sID}, 0")
    A("s_cbranch_scc1 L_fin")
    A(f"v_mov_b32 v10, {sTAG}")
    A(f"v_mov_b32 v11, {EPOCH_OFF}")
    A("s_mov_b64 exec, 1")
    A(f"buffer_store_dword v10, v11, {srd(rWS)}, 0 offen {ost}")
    if pad_to:
        A.lab("L_pad")
        A("s_memrealtime s[96:97]")
        A("s_waitcnt lgkmcnt(0)")
        A("s_sub_u32 s96, s96, s98")
        A(f"s_cmp_lt_u32 s96, {pad_to}")
        A("s_cbranch_scc1 L_pad")
    if stamps: A("s_branch L_fin")
    else: A("s_endpgm")

    mark_helper = len(A.L)
    A.lab("L_helper")
    A.c("---- helper waves 4..7")
    A(f"s_sub_u32 {sHW}, {sWV}, 4")
    A(f"v_lshlrev_b32 v8, 2, v{vLANE}")
    A(f"v_lshl_add_u32 v9, v{vN}, 2, v{vG}")
    A("v_and_b32 v9, -2, v9")
    A("v_lshlrev_b32 v9, 1, v9")
    A(f"s_mul_i32 {sT0}, {sS}, 144")
    A(f"s_and_b32 {sT1}, {sS}, 3")
    A(f"s_lshl_b32 {sT1}, {sT1}, 2")
    A(f"s_add_u32 s74, {sT1}, {sHW}")
    A(f"s_mul_i32 {sT1}, s74, 72")
    A(f"s_mov_b32 {sT2}, {EPOCH_OFF}")
    A("s_waitcnt lgkmcnt(0)")
    A(f"s_load_dword {sTAG}, s[{pWS}:{pWS+1}], {sT2}")
    if cal and not rot: A("s_memrealtime s[78:79]")
    mk_srd(rX, pX, 1152)
    for k in range(5):
        A(f"buffer_load_dword v{vXA+k}, v8, {srd(rX)}, 0 offen offset:{k*256} {xld}")
    for T in range(2):
        A(f"buffer_load_dword v{vXC+T}, v9, {srd(rX)}, {sT0} offen offset:{T*128} {xld}")
    A(f"buffer_load_dword v{vXC+2}, v9, {srd(rX)}, {sT1} offen {xld}")
    GUB = WBUF + 72
    A(f"s_cmp_lg_u32 {sHW}, 0")
    A("s_cbranch_scc1 L_x13")
    mk_srd(rW, pWQ, 0 if "w" in abl else 576 * 4096 * 2)
    A(f"s_mul_i32 {sT0}, {sS}, {72*8192}")
    A(f"s_lshl_b32 {sT1}, {sH}, 8")
    A(f"s_add_u32 {sOFF}, {sT0}, {sT1}")
    A(f"v_lshlrev_b32 v8, 13, v{vG}")
    A(f"v_lshl_add_u32 v10, v{vN}, 4, v8")
    for t in range(0 if "W" in abl else 18):
        r = WBUF + 4 * t
        A(f"buffer_load_dwordx4 v[{r}:{r+3}], v10, {srd(rW)}, {sOFF} offen nt")
        A(f"s_add_u32 {sOFF}, {sOFF}, 32768")
    A.lab("L_x13")
    if bar0: A("s_barrier")
    if codepf:
        A(f"s_cmp_lg_u32 {sHW}, 3")
        A("s_cbranch_scc1 L_nopf")
        A(f"s_cmp_ge_u32 {sID}, {codepf}")
        A("s_cbranch_scc1 L_nopf")
        A("s_getpc_b64 s[76:77]")
        A.lab("L_pfbase")
        A(f"s_sub_u32 s76, s76, L_pfbase-{KNAME}")
        A("s_subb_u32 s77, s77, 0")
        A(f"v_lshlrev_b32 v8, 7, v{vLANE}")
        A(f"global_load_dword v12, v8, s[76:77] {pfld}")
        for k in (1, 2):
            A("v_add_u32 v8, 0x2000, v8")
            A(f"v_cmp_gt_i32 vcc, (L_codeend-{KNAME}-{k*8192})/128, v{vLANE}")
            A("s_and_saveexec_b64 s[72:73], vcc")
            A("s_cbranch_execz L_pf2")
            A(f"global_load_dword v{12+k}, v8, s[76:77] {pfld}")
        A.lab("L_pf2")
        A("s_mov_b64 exec, -1")
        A("s_waitcnt vmcnt(0)")
        A.lab("L_nopf")
    A(f"s_cmp_lt_u32 {sID}, 128")
    A(f"s_cselect_b32 s{rO}, s{pWG}, s{pWU}")
    A(f"s_cselect_b32 s{rO+1}, s{pWG+1}, s{pWU+1}")
    A(f"s_mov_b32 s{rO+2}, {0 if 'g' in abl else 576*4608*2}")
    A(f"s_mov_b32 s{rO+3}, 0x20000")
    two_group_offsets(9216, "0", vOA, vOB)
    A(f"s_mul_i32 {sOFF}, s74, {36*9216}")
    A(f"s_mul_i32 {sT0}, {sH}, 288")
    A(f"s_add_u32 {sOFF}, {sOFF}, {sT0}")
    def gu_issue(t):
        if "u" in abl: return
        r = GUB + 8 * t
        A(f"buffer_load_dwordx4 v[{r}:{r+3}], v{vOA}, {srd(rO)}, {sOFF} offen nt")
        A(f"buffer_load_dwordx4 v[{r+4}:{r+7}], v{vOB}, {srd(rO)}, {sOFF} offen nt")
        A(f"s_add_u32 {sOFF}, {sOFF}, {4*9216}")
    GE = guearly
    for t in range(GE): gu_issue(t)
    stamp_init()
    mk_srd(rWS, pWS, WS_SIZE)
    masks()
    A(f"s_cmp_lg_u32 {sHW}, 0")
    A("s_cbranch_scc1 L_x13b")
    A(f"s_waitcnt vmcnt({18 + 2*GE})")
    A("s_branch L_ln")
    A.lab("L_x13b")
    A(f"s_waitcnt vmcnt({2*GE})")
    A.lab("L_ln")
    GE0 = GE
    GE = max(GE, gumid)
    for t in range(GE0, GE): gu_issue(t)
    stamp(8)
    XF = 68
    for k in range(5):
        A(f"v_lshlrev_b32 v{XF+2*k}, 16, v{vXA+k}")
        A(f"v_and_b32 v{XF+2*k+1}, 0xffff0000, v{vXA+k}")
    A(f"v_add_f32 v8, v{XF}, v{XF+1}")
    for k in range(2, 10): A(f"v_add_f32 v8, v8, v{XF+k}")
    dpp_reduce([8], "v_add_f32")
    A(f"v_mul_f32 v8, {f2u(1.0/576)}, v8")
    A(f"v_cmp_gt_u32 vcc, 32, v{vLANE}")
    A(f"v_readlane_b32 {sT0}, v8, 63")
    A("s_nop 1")
    for k in range(10): A(f"v_subrev_f32 v{XF+k}, {sT0}, v{XF+k}")
    A(f"v_cndmask_b32 v{XF+8}, 0, v{XF+8}, vcc")
    A(f"v_cndmask_b32 v{XF+9}, 0, v{XF+9}, vcc")
    A(f"v_mul_f32 v9, v{XF}, v{XF}")
    for k in range(1, 10): A(f"v_fmac_f32 v9, v{XF+k}, v{XF+k}")
    dpp_reduce([9], "v_add_f32")
    A(f"v_mul_f32 v9, {f2u(1.0/576)}, v9")
    bf16_round(9, 9)
    A(f"v_add_f32 v9, {f2u(1e-5)}, v9")
    bf16_round(9, 9)
    A("v_sqrt_f32 v9, v9")
    A("s_nop 0")
    bf16_round(9, 9)
    A("v_rcp_f32 v9, v9")
    bf16_round(8, 8)
    A("s_nop 0")
    A(f"v_readlane_b32 {sT0}, v8, 63")
    A(f"v_readlane_b32 {sT1}, v9, 63")
    A(f"v_and_b32 v10, 1, v{vG}")
    A("v_lshlrev_b32 v10, 4, v10")
    for k in range(3):
        r = vXC + k
        A(f"v_lshrrev_b32 v{r}, v10, v{r}")
        A(f"v_lshlrev_b32 v{r}, 16, v{r}")
        A(f"v_subrev_f32 v{r}, {sT0}, v{r}")
        bf16_round(r, r)
        A(f"v_mul_f32 v{r}, {sT1}, v{r}")
        A(f"v_cvt_pk_bf16_f32 v{r}, v{r}, v{r}")
    A("s_waitcnt lgkmcnt(0)")
    A(f"s_add_u32 {sTAG}, {sTAG}, {TAG_STEP}")
    A(f"s_getreg_b32 {sTAGX}, hwreg(HW_REG_XCC_ID)")
    A(f"s_and_b32 {sTAGX}, {sTAGX}, 7")
    A(f"s_and_b32 s46, {sID}, 7")
    A(f"s_xor_b32 s46, s46, {sTAGX}")
    A(f"s_xor_b32 {sTAGX}, {sTAGX}, {sTAG}")
    stamp(1)
    A(f"s_cmp_lg_u32 {sHW}, 0")
    A("s_cbranch_scc1 L_noq")
    for t in range(18):
        a = sel(vXC + t // 16, t % 16)
        A(f"s_waitcnt vmcnt({17 - t + 2*GE})")
        A("s_nop 0")
        mfma(vACC, a, WBUF + 4 * t, first=(t == 0))
    A(f"v_lshlrev_b32 v8, 4, v{vLANE}")
    A(f"s_lshl_b32 {sT0}, {sB}, 14")
    A(f"s_add_u32 {sT0}, {sT0}, {OFF_Q}")
    A(f"s_lshl_b32 {sT1}, {sH}, 17")
    A(f"s_add_u32 {sT1}, {sT1}, {OFF_Q}")
    for k in range(8):
        A(f"s_add_u32 s{60+k}, {sT1}, {k*BLK}")
    A(f"v_mov_b32 v29, {sTAGX}")
    A(f"v_mov_b32 v31, {sTAGX}")
    A(f"v_mov_b32 v28, v{vACC}")
    A(f"v_mov_b32 v30, v{vACC+1}")
    A("s_nop 1")
    A(f"v_permlane32_swap_b32 v28, v{vACC+2}")
    A(f"v_permlane32_swap_b32 v30, v{vACC+3}")
    QG = WBUF
    def ld_q(fl):
        for k in range(8):
            A(f"buffer_load_dwordx4 v[{QG+4*k}:{QG+4*k+3}], v8, {srd(rWS)}, s{60+k} offen {fl}")
    qtags = [QG + 2 * k + 1 for k in range(16)]
    def exchange(name, store, load, tags, check, first_delay, slp, limit, preloaded=False):
        A("s_mov_b64 s[44:45], 0")
        if not preloaded:
            A("s_cmp_lg_u32 s46, 0")
            A(f"s_cbranch_scc1 {name}_wt")
            store("")
            stamp(9)
            if first_delay: A(f"s_sleep {first_delay}")
            load(qld)
        A("s_waitcnt vmcnt(0)")
        verdict(tags, check, True)
        A("s_and_b64 exec, exec, vcc")
        A(f"s_cbranch_execz {name}_chk")
        A("s_cmp_lg_u64 s[44:45], 0")
        A(f"s_cbranch_scc1 {name}_wt")
        poll(f"{name}_p1", lambda: load(qrt), tags, slp, check=check, limit=limit, keep=True, die=True, bail=f"{name}_wt")
        A.lab(f"{name}_chk")
        A("s_or_b64 s[44:45], s[44:45], exec")
        A(f"s_cbranch_scc0 {name}_ok")
        A.lab(f"{name}_wt")
        A("s_mov_b64 s[44:45], exec")
        store("sc1")
        A("s_mov_b64 exec, s[44:45]")
        A(f"s_cbranch_execz {name}_ok")
        poll(f"{name}_p2", lambda: load("sc1"), tags, slp, check=check, die=True)
        A.lab(f"{name}_ok")
        A("s_mov_b64 exec, -1")
    def q_store(fl):
        A("s_mov_b64 exec, -1")
        A(f"buffer_store_dwordx4 v[28:31], v8, {srd(rWS)}, {sT0} offen {fl}")
    if "q" not in abl:
        exchange("L_q", q_store, ld_q, qtags, None, qdelay, qsleep, qfall)
    for i in range(2):
        for k in range(4):
            A(f"v_add_f32 v{QG+8*k+2*i}, v{QG+8*k+2*i}, v{QG+8*k+4+2*i}")
        A(f"v_add_f32 v{QG+2*i}, v{QG+2*i}, v{QG+8+2*i}")
        A(f"v_add_f32 v{QG+16+2*i}, v{QG+16+2*i}, v{QG+24+2*i}")
        A(f"v_add_f32 v{28+i}, v{QG+2*i}, v{QG+16+2*i}")
    A(f"v_lshlrev_b32 v8, 5, v{vN}")
    A(f"v_and_b32 v9, 1, v{vG}")
    A("v_lshl_add_u32 v8, v9, 4, v8")
    A(f"v_lshrrev_b32 v9, 1, v{vG}")
    A("v_lshl_add_u32 v8, v9, 3, v8")
    A(f"ds_write_b64 v8, v[28:29] offset:{LDS_Q}")
    if tbase:
        A(f"v_subrev_u32 v12, s78, v{QG+32}")
        for d in ("quad_perm:[1,0,3,2]", "quad_perm:[2,3,0,1]", "row_half_mirror"):
            A("s_nop 1")
            A(f"v_min_i32_dpp v12, v12, v12 {d} row_mask:0xf bank_mask:0xf")
        A("v_add_u32 v12, s78, v12")
    A(f"v_mov_b32 v9, {LDS_CNT}")
    A("v_mov_b32 v10, 0")
    A("ds_write_b32 v9, v10")
    A("ds_write_b32 v9, v10 offset:4")
    A("ds_write_b32 v9, v10 offset:12")
    if tbase: A("ds_write_b32 v9, v12 offset:8")
    if cal:
        A("s_add_u32 s79, s78, 0x40000000")
        A("v_mov_b32 v11, s79")
        A("ds_write_b32 v9, v11 offset:8")
        A("ds_write_b32 v9, v10 offset:20")
    if prew:
        A("v_mov_b32 v11, -1.0")
        for w in range(4): A(f"ds_write_b32 v10, v11 offset:{LDS_ML + 8*w + 4}")
    stampval(10, sSPIN)
    A("s_waitcnt lgkmcnt(0)")
    stamp(2)
    A("s_barrier")
    A.lab("L_noq")
    for t in range(GE, min(max(GE, DG), 9)): gu_issue(t)
    DGE = min(max(GE, DG), 9)
    A(f"v_lshlrev_b32 v8, 5, v{vN}")
    A(f"v_lshl_add_u32 v8, v{vG}, 4, v8")
    A(f"s_mul_i32 {sT0}, {sHW}, 576")
    A(f"v_add_u32 v66, {sT0}, v8")
    A(f"s_mul_i32 {sT0}, {sHW}, 2304")
    A(f"v_add_u32 v67, {sT0}, v8")
    for t in range(9):
        a = sel(vXC + 2, t)
        A(f"s_waitcnt vmcnt({2*(min(DGE + t, 9) - (t + 1))})")
        A("s_nop 0")
        mfma(vACC, a, GUB + 8 * t, first=(t == 0))
        mfma(vACC + 4, a, GUB + 8 * t + 4, first=(t == 0))
        if DGE + t < 9: gu_issue(DGE + t)
    A(f"s_mul_i32 {sT0}, {sS}, {GU_ROW}")
    A(f"s_mul_i32 {sT1}, {sH}, 1152")
    A(f"s_add_u32 {sT0}, {sT0}, {sT1}")
    A(f"s_add_u32 s68, {sT0}, {GU_BASE}")
    A("s_nop 3")
    two_group_to_lds(vACC, vACC + 4, 66)
    def gu_publish():
        A(f"v_lshlrev_b32 v8, 3, v{vLANE}")
        for w in range(4):
            A(f"ds_read_b64 v[{24+2*w}:{25+2*w}], v8 offset:{LDS_B + w*576}")
            A(f"ds_read_b64 v[{32+2*w}:{33+2*w}], v8 offset:{LDS_B + w*576 + 512}")
        for r in (49, 51, 53, 55): A(f"v_mov_b32 v{r}, {sTAGX}")
        A("s_waitcnt lgkmcnt(0)")
        for b0, d in ((24, 48), (32, 52)):
            for i in range(2):
                A(f"v_add_f32 v{b0+i}, v{b0+i}, v{b0+2+i}")
                A(f"v_add_f32 v{b0+4+i}, v{b0+4+i}, v{b0+6+i}")
                A(f"v_add_f32 v{d+2*i}, v{b0+i}, v{b0+4+i}")
        A("s_cmp_lg_u32 s46, 0")
        A("s_cbranch_scc1 L_gu_wt")
        gu_store("")
        A("s_branch L_gu_pub")
        A.lab("L_gu_wt")
        gu_store("sc1")
        A.lab("L_gu_pub")
    def gu_store(fl):
        A("s_mov_b64 exec, -1")
        A(f"buffer_store_dwordx4 v[48:51], v69, {srd(rWS)}, s68 offen {fl}")
        A("s_mov_b64 exec, 0xff")
        A(f"buffer_store_dwordx4 v[52:55], v69, {srd(rWS)}, s68 offen offset:1024 {fl}")
        A("s_mov_b64 exec, -1")
    stamp(3)
    A(f"s_cmp_eq_u32 {sHW}, 0")
    A("s_cbranch_scc1 L_b1done")
    A("s_barrier")
    A.lab("L_b1done")
    A(f"v_mov_b32 v8, {LDS_CNT}")
    A("v_mov_b32 v9, 1")
    A("s_mov_b64 exec, 1")
    A("s_waitcnt lgkmcnt(0)")
    A("ds_add_u32 v8, v9 offset:12")
    A("s_mov_b64 exec, -1")
    mk_srd(rW, pWO, 0 if "O" in abl else 4096 * 576 * 2)
    A(f"v_mul_u32_u24 v8, 1152, v{vG}")
    A(f"v_lshl_add_u32 v{vOA}, v{vN}, 4, v8")
    A(f"v_mov_b32 v9, {OOB}")
    A(f"v_cmp_gt_u32 vcc, 8, v{vN}")
    A(f"s_lshl_b32 {sT0}, {sH}, 2")
    A(f"s_add_u32 {sT0}, {sT0}, {sHW}")
    if pack36:
        A(f"v_add_u32 v9, {4*1152 - 128}, v{vOA}")
    A(f"v_cndmask_b32 v{vOB}, v9, v{vOA}, vcc")
    A(f"s_mul_i32 {sOFF}, {sT0}, {32*1152}")
    for t in range(0 if "o" in abl else 8):
        for cg in range(5):
            if pack36 and cg == 4 and t % 2: continue
            A(f"s_waitcnt vmcnt({DW-1})")
            r = WBUF + 20 * t + 4 * cg
            A(f"buffer_load_dwordx4 v[{r}:{r+3}], v{vOA if cg < 4 else vOB}, {srd(rW)}, {sOFF} offen offset:{cg*256} {wold}")
        A(f"s_add_u32 {sOFF}, {sOFF}, {4*1152}")
    A(f"v_and_b32 v8, 7, v{vN}")
    A(f"v_lshl_add_u32 v8, v8, 2, v{vG}")
    A(f"s_lshl_b32 {sT0}, {sHW}, 7")
    A(f"v_lshl_add_u32 v66, v8, 2, {sT0}")
    record_addr_setup()
    A("v_mov_b32 v70, 0")
    A(f"v_lshlrev_b32 v65, {8 + mlsh}, v{vLANE}")
    for r in (81, 83): A(f"v_mov_b32 v{r}, {sTAG}")
    A(f"s_lshl_b32 {sCNT}, {sB}, {mlsh}")
    A(f"s_add_u32 {sCNT}, {sCNT}, {ML_BASE}")
    A(f"s_mov_b32 {sT2}, {LOG2E}")
    A(f"s_cmp_lg_u32 {sHW}, 3")
    A("s_cbranch_scc1 L_nocal")
    if pubmask:
        span = NS * (pubmask + 1)
        A(f"s_and_b32 s64, {sID}, {(256 - span) & 0xff}")
        A("s_lshl_b32 s64, s64, 7")
        A(f"v_lshrrev_b32 v8, 3, v{vLANE}")
        A(f"v_mul_u32_u24 v8, {8 * (pubmask + 1)}, v8")
        A(f"v_and_b32 v9, 7, v{vLANE}")
        A(f"v_add3_u32 v8, v8, v9, {8 * pubsel}" if 8 * pubsel <= 64 else "ERR")
        A("v_lshlrev_b32 v44, 7, v8")
    else:
        A(f"s_and_b32 s64, {sID}, {256 - NS}")
        A("s_lshl_b32 s64, s64, 7")
        A(f"v_lshlrev_b32 v44, 7, v{vLANE}")
    A(f"v_mov_b32 v93, {sTAG}")
    A(f"v_mov_b32 v95, {sTAG}")
    HG = 24
    A(f"v_mul_u32_u24 v8, 57, v{vLANE}")
    A("v_lshrrev_b32 v8, 9, v8")
    A("v_mul_u32_u24 v9, 9, v8")
    A(f"v_sub_u32 v9, v{vLANE}, v9")
    A(f"v_mul_u32_u24 v11, {GU_ROW}, v8")
    A("v_lshl_add_u32 v11, v9, 4, v11")
    A(f"s_mul_i32 {sT0}, {sB}, 144")
    A(f"s_add_u32 {sT0}, {sT0}, {GU_BASE}")
    A(f"v_add_u32 v11, {sT0}, v11")
    A("v_mul_u32_u24 v12, 72, v8")
    A("v_lshl_add_u32 v12, v9, 3, v12")
    A(f"v_add_u32 v12, {LDS_G}, v12")
    A(f"v_mov_b32 v13, {OOB}")
    A("v_cmp_gt_u32 s[70:71], 1, v8")
    A(f"v_lshl_add_u32 v75, v{vN}, 2, v{vG}")
    A("v_cmp_gt_u32 s[72:73], 18, v75")
    A("v_lshlrev_b32 v75, 2, v75")
    A("v_cndmask_b32 v13, v13, v11, s[70:71]")
    A(f"v_lshlrev_b32 v76, 2, v{vLANE}")
    def wait_seq(seq, tile=False):
        l = newlab("cw")
        A(f"s_mov_b32 {sSPIN}, 0")
        A.lab(l)
        A("s_sleep 4")
        A("ds_read_b64 v[8:9], v71 offset:16")
        if tile: A("ds_read_b32 v10, v71 offset:12")
        A(f"s_add_u32 {sSPIN}, {sSPIN}, 1")
        A("s_waitcnt lgkmcnt(0)")
        A("v_readfirstlane_b32 s67, v9")
        if tile: A("v_readfirstlane_b32 s66, v10")
        A(f"s_cmp_ge_u32 {sSPIN}, {spin}")
        A(f"s_cbranch_scc1 {l}x")
        A(f"s_cmp_lt_u32 s67, {seq}")
        A(f"s_cbranch_scc1 {l}")
        if tile:
            A("s_cmp_lt_u32 s66, 4")
            A(f"s_cbranch_scc1 {l}")
        A.lab(l + "x")
    for k, c in enumerate(CP):
        nominal = sum(2 * (TK if i < 4 else TV) for i in range(c))
        wait_seq(c + 1, tile=(k == gck))
        l2 = newlab("cs")
        if pubmask:
            A(f"s_and_b32 {sT0}, {sID}, {pubmask << 3}")
            A(f"s_cmp_lg_u32 {sT0}, {pubsel << 3}")
            A(f"s_cbranch_scc1 {l2}")
        A(f"ds_read_b32 v92, v71 offset:{32 + 4*c}")
        A("s_waitcnt lgkmcnt(0)")
        A("v_mov_b32 v94, v92")
        A(f"s_lshl_b32 {sT0}, {sID}, 7")
        A(f"s_add_u32 {sT0}, {sT0}, {TS_BASE + k*32768}")
        A("s_mov_b64 exec, 0xff")
        A(f"buffer_store_dwordx4 v[92:95], v69, {srd(rWS)}, {sT0} offen {tst}")
        A("s_mov_b64 exec, -1")
        A.lab(l2)
        if k == gck and "G" not in abl: gu_publish()
        wait_seq(c + 2)
        A(f"s_add_u32 {sT0}, s64, {TS_BASE + k*32768}")
        A("v_mov_b32 v79, 0")
        A("v_mov_b32 v78, 0")
        if NS == 32: A("s_mov_b32 exec_hi, 0")
        elif NS < 32: A(f"s_mov_b64 exec, {(1 << NS) - 1}")
        A(f"buffer_load_dwordx2 v[78:79], v44, {srd(rWS)}, {sT0} offen {tld}")
        hh = (k == gck and "G" not in abl and "h" not in abl)
        def ld_gu2(fl=hld):
            A(f"s_mov_b32 {sT0}, {7*GU_ROW}")
            A(f"buffer_load_dwordx4 v[24:27], v11, {srd(rWS)}, 0 offen {fl}")
            A(f"buffer_load_dwordx4 v[28:31], v13, {srd(rWS)}, {sT0} offen {fl}")
        def ck_gu2():
            A(f"v_mov_b32 v14, {sTAGX}")
            A("v_cndmask_b32 v29, v14, v29, s[70:71]")
            A("v_cndmask_b32 v31, v14, v31, s[70:71]")
            tagcheck([25, 27, 29, 31], sTAG=sTAGX)
        if hh:
            A("s_mov_b32 exec_lo, -1")
            A("s_mov_b32 exec_hi, 0x7fffffff")
            ld_gu2()
        A("s_mov_b64 exec, -1")
        A(f"s_waitcnt vmcnt({2 if hh else 0})")
        A(f"v_cmp_eq_u32 vcc, {sTAG}, v79")
        A("v_sub_u32 v78, v78, v8")
        A("v_cvt_f32_i32 v78, v78")
        A("s_bcnt1_i32_b64 s65, vcc")
        A("v_cndmask_b32 v78, 0, v78, vcc")
        dpp_reduce([78], "v_add_f32")
        l3 = newlab("cf")
        A(f"s_cmp_lt_u32 s65, {NS // 2}")
        A(f"s_cbranch_scc1 {l3}")
        A("v_cvt_f32_u32 v9, s65")
        A("v_rcp_f32 v9, v9")
        A("s_nop 0")
        A("v_mul_f32 v78, v78, v9")
        A("v_cvt_i32_f32 v78, v78")
        A("v_add_u32 v78, v78, v8")
        A(f"v_subrev_u32 v78, {(nominal - MG) & 0xffffffff}, v78")
        A("s_mov_b32 exec_lo, 0")
        A("s_mov_b32 exec_hi, 0x80000000")
        A("ds_write_b32 v71, v78 offset:8")
        A("s_mov_b64 exec, -1")
        A.lab(l3)
        if hh:
            A("s_mov_b32 exec_hi, 0x7fffffff")
            exchange("L_h", gu_store, ld_gu2, None, ck_gu2, 0, hsleep, 4, preloaded=True)
            A("s_mov_b32 exec_lo, -1")
            A("s_mov_b32 exec_hi, 0x7fffffff")
            A("ds_write2_b32 v12, v24, v26 offset0:0 offset1:1")
            A("s_mov_b64 exec, s[70:71]")
            A("ds_write2_b32 v12, v28, v30 offset0:126 offset1:127")
            A("s_mov_b64 exec, -1")
            A("s_waitcnt lgkmcnt(0)")
            for r in range(8):
                A(f"ds_read_b32 v{24+r}, v75 offset:{LDS_G + r*72}")
            A("s_waitcnt lgkmcnt(0)")
            for m in range(2):
                A(f"v_add_f32 v{24+4*m}, v{24+4*m}, v{25+4*m}")
                A(f"v_add_f32 v{26+4*m}, v{26+4*m}, v{27+4*m}")
                A(f"v_add_f32 v{88+m}, v{24+4*m}, v{26+4*m}")
            bf16_round(88, 88); bf16_round(89, 89)
            A(f"v_mul_f32 v{vCO}, v88, v89")
            A(f"v_cvt_pk_bf16_f32 v{vCO}, v{vCO}, v{vCO}")
            A(f"v_cndmask_b32 v{vCO}, 0, v{vCO}, s[72:73]")
            A(f"ds_write_b32 v76, v{vCO} offset:{LDS_H}")
            stamp(4)
    A.lab("L_nocal")
    A("s_waitcnt vmcnt(0) lgkmcnt(0)")
    stamp(5)
    def weights():
        A("v_max3_f32 v80, v48, v50, v52")
        A("v_max_f32 v80, v80, v54")
        for w in range(4): A(f"v_sub_f32 v{48+2*w}, v{48+2*w}, v80")
        for w in range(4): A(f"v_mul_f32 v{48+2*w}, {sT2}, v{48+2*w}")
        for w in range(4): A(f"v_exp_f32 v{48+2*w}, v{48+2*w}")
        A("s_nop 0")
        A("v_mul_f32 v82, v48, v49")
        for w in range(1, 4): A(f"v_fmac_f32 v82, v{48+2*w}, v{49+2*w}")
    if prew:
        A(f"s_mov_b32 {sSPIN}, 0")
        A.lab("L_mlw")
        A(f"s_sleep {wsleep}")
        A(f"ds_read_b128 v[48:51], v70 offset:{LDS_ML}")
        A(f"ds_read_b128 v[52:55], v70 offset:{LDS_ML+16}")
        A(f"s_add_u32 {sSPIN}, {sSPIN}, 1")
        A("s_waitcnt lgkmcnt(0)")
        A("v_or3_b32 v9, v49, v51, v53")
        A("v_or_b32 v9, v9, v55")
        A("s_nop 0")
        A(f"v_readfirstlane_b32 {sT0}, v9")
        A(f"s_cmp_ge_u32 {sSPIN}, {spin*4}")
        A("s_cbranch_scc1 L_mlw2")
        A(f"s_cmp_lt_i32 {sT0}, 0")
        A("s_cbranch_scc1 L_mlw")
        A.lab("L_mlw2")
        weights()
        if prew == 2:
            A(f"s_cmp_lg_u32 {sHW}, 2")
            A("s_cbranch_scc1 L_noml0")
            A(f"s_mov_b64 exec, {(1 << R) - 1}")
            A(f"buffer_store_dwordx4 v[80:83], v65, {srd(rWS)}, {sCNT} offen {mlst}")
            A("s_mov_b64 exec, -1")
            A.lab("L_noml0")
    if hprio: A(f"s_setprio {hprio}")
    A("s_barrier")
    if ts: stamp(1)
    if not prew:
        A(f"ds_read_b128 v[48:51], v70 offset:{LDS_ML}")
        A(f"ds_read_b128 v[52:55], v70 offset:{LDS_ML+16}")
    for w in range(4):
        A(f"ds_read_b32 v{56+w}, v66 offset:{LDS_O + w*512}")
    if not prew:
        A("s_waitcnt lgkmcnt(4)")
        weights()
    A("s_waitcnt lgkmcnt(0)")
    A("v_mul_f32 v10, v48, v56")
    for w in range(1, 4):
        A(f"v_fmac_f32 v10, v{48+2*w}, v{56+w}")
    A(f"v_cvt_pk_bf16_f32 v{vCO}, v10, v10")
    A(f"s_cmp_lg_u32 {sHW}, {99 if prew == 2 else 2}")
    A("s_cbranch_scc1 L_noml")
    A(f"s_mov_b64 exec, {(1 << R) - 1}")
    A(f"buffer_store_dwordx4 v[80:83], v65, {srd(rWS)}, {sCNT} offen {mlst}")
    A("s_mov_b64 exec, -1")
    A.lab("L_noml")
    if ts: stamp(2)
    if pack36:
        for i in range(4):
            A(f"v_mov_b32_dpp v{12+i}, v{vMK[i]} row_shr:8 row_mask:0xf bank_mask:0xc")
    a = sel(vCO, 0)
    A("s_nop 1")
    for t in range(8):
        an = vAop[aop_flip[0]]; aop_flip[0] ^= 1
        for cg in range(4 if pack36 else 5):
            mfma(vACC + 4 * cg if cg < 4 else 84, a, WBUF + 20 * t + 4 * cg, first=(t == 0))
            if t < 7 and cg < 2:
                for i in (2 * cg, 2 * cg + 1):
                    A(f"v_and_b32_dpp v{an+i}, v{vCO}, v{vMK[i]} row_newbcast:{t+1} row_mask:0xf bank_mask:0xf")
            if pack36 and t % 2 == 0 and cg >= 2:
                for i in (2 * (cg - 2), 2 * (cg - 2) + 1):
                    A(f"v_mov_b32 v{44+i}, v{a+i}")
        if pack36 and t % 2 == 0:
            for i in range(4):
                A(f"v_and_b32_dpp v{44+i}, v{vCO}, v{12+i} row_newbcast:{t+1} row_mask:0xf bank_mask:0xc")
            A("s_nop 1")
            mfma(84, 44, WBUF + 20 * t + 16, first=(t == 0))
        a = an
    A("s_nop 3")
    A("s_mov_b32 exec_hi, 0")
    for cg in range(4):
        A(f"ds_write_b128 v67, v[{vACC+4*cg}:{vACC+4*cg+3}] offset:{LDS_A + cg*512}")
    if pack36:
        A("s_mov_b64 exec, -1")
        A("s_nop 4")
        for i in range(4): A(f"v_mov_b32 v{44+i}, v{84+i}")
        A("s_nop 1")
        for i in range(4): A(f"v_permlane32_swap_b32 v{44+i}, v{84+i}")
        A("s_nop 1")
        for i in range(4): A(f"v_add_f32_dpp v{44+i}, v{84+i}, v{44+i} row_shl:8 row_mask:0xf bank_mask:0x3")
        A("s_mov_b32 exec_hi, 0")
        A("s_mov_b32 exec_lo, 0x00ff00ff")
        A(f"ds_write_b128 v67, v[44:47] offset:{LDS_A + 2048}")
    else:
        A("s_mov_b32 exec_lo, 0x00ff00ff")
        A(f"ds_write_b128 v67, v[84:87] offset:{LDS_A + 2048}")
    if bar4:
        A("s_mov_b64 exec, -1")
        A("s_waitcnt lgkmcnt(0)")
        if ts: stamp(4)
        A("s_barrier")
    else:
        A("s_mov_b64 exec, 1")
        A("s_waitcnt lgkmcnt(0)")
        A("ds_add_u32 v71, v72")
        A("s_mov_b64 exec, -1")
        if ts: stamp(4)
        lds_wait("L_hw", 8)
    if ts: stamp(7)
    record_store()
    A(f"s_cmp_lg_u32 {sHW}, 3")
    A("s_cbranch_scc1 L_nox")
    A("s_nop 1")
    record_store(extra=1)
    A.lab("L_nox")
    if early:
        A(f"s_cmp_lg_u32 {sHW}, 2")
        A("s_cbranch_scc1 L_nox2")
        record_store(back=3)
        A.lab("L_nox2")
    stamp(6)
    if relayout:
        A("s_branch L_fin" if stamps else "s_endpgm")
        hl = A.L[mark_helper:]
        del A.L[mark_helper:]
        i = A.L.index("@@HELPER@@")
        A.L[i:i+1] = hl
    A.lab("L_fin")
    stamp_flush()
    A.lab("L_end")
    A("s_endpgm")
    A.lab("L_codeend")

    out = HEADER + DOC
    out += f"; @launch grid=(256,1,1) block=(512,1,1) lds={LDS_BYTES}\n"
    out += '.amdgcn_target "amdgcn-amd-amdhsa--gfx950"\n.text\n'
    out += f".globl {KNAME}\n.p2align 8\n.type {KNAME},@function\n"
    out += "\n".join(A.L) + "\n"
    out += '.section .rodata,"a"\n.p2align 6\n'
    out += f""".amdhsa_kernel {KNAME}
  .amdhsa_next_free_vgpr 256
  .amdhsa_next_free_sgpr 102
  .amdhsa_accum_offset 256
  .amdhsa_group_segment_fixed_size 0
  .amdhsa_kernarg_size 96
  .amdhsa_user_sgpr_count 2
  .amdhsa_user_sgpr_kernarg_segment_ptr 1
  .amdhsa_system_sgpr_workgroup_id_x 1
.end_amdhsa_kernel
"""
    return out

if __name__ == "__main__":
    import json
    kw = json.loads(sys.argv[1]) if len(sys.argv) > 1 else {}
    sys.stdout.write(gen(**kw))
```

```python
import sys, struct

KNAME = "parallel_sum__mha_block_cached__glu_gated_bilinear__decode_kernel"

HEADER = """; Kernarg layout for this problem (96 bytes, ptrs only, base s[0:1]):
"""

DOC = """; ---------------------------------------------------------------------------------------------------------
; Hand-offs between workgroups are {data, tag} granules in d_ws; tag = epoch word of d_ws + constant, the epoch
; ---------------------------------------------------------------------------------------------------------
"""

def f2u(x):
    return struct.unpack("<I", struct.pack("<f", x))[0]

BLK = 16384
OFF_R, OFF_Q = 0, 9216
GU_BASE = 256 * BLK
GU_ROW = 4608 * 8
ML_BASE = GU_BASE + 32 * GU_ROW
EPOCH_OFF = ML_BASE + 16 * 32768
TS_BASE = EPOCH_OFF + 4096
STAMP_BASE = 6 << 20
REC_BASE = 8 << 20
WS_SIZE = 12 << 20
OOB = 0x40000000
TAG_STEP = 0x9E3779B9
LOG2E = f2u(1.4426950408889634)
LDS_Q = 0
LDS_CNT = 512
LDS_H = 768
LDS_ML = 1024
LDS_O = 1280
LDS_B = 3328
LDS_W = 5632
LDS_A = 8192
LDS_G = 8192 + 4 * 2304 + 512
LDS_BYTES = LDS_G + 2304 + 256

class G:
    def __init__(self):
        self.L = []
    def __call__(self, s):
        self.L.append("  " + s)
    def lab(self, s):
        self.L.append(s + ":")
    def c(self, s):
        self.L.append("  ; " + s)

def gen(D=5, INIT=6, stamps=False, DG=5, DW=3, spin=1 << 18, codepf=16, fsleep=0, qdelay=8, abl="",
        hsleep=40, D2=6, T0=800, TK=236, TV=219, mlsleep=4, warm="", cdelay=0, dbg=0, ts=0, cal=1, MG=30, CP=(2, 4), NS=16, tbase=0, guearly=0, htail=2, hstep=16, wdstep=8, apipe=1, D3=8, L3=50, D0=4, L0=60, rot=0, CI=8, FK=0, FV=0, FP=0, clk=0, qld="nt", hld="nt", tld="", qst="", gust="", tst="sc1", gupub=1, gck=1, fmode=1, rdelay=5, mlsh=5, early=0, INIT0=0, XS=0, late=None, ldelay=6, bar4=1, prew=2, endb=100, endstep=24, rt=0, pre=0, pdelay=4, wsleep=3, R=1, ost="", prio=0, hprio=2, fpipe=1, kvtrim=0, pack36=0, tml=100, rld1="sc1", cmap=1, pubmask=15, pubsel=8, align=0, inst=0, TX=None, TMIN=6, TF=72, qrt="sc1", pfld="", xld="", wold="nt", rld="sc1", mlld="sc1", rst="sc1", mlst="sc1", swap=0, relayout=1, bar0=0, qfall=6, pad_to=0, gumid=0, qsleep=16):
    if dbg: stamps = True
    A = G()
    sID = "s2"
    pX, pK, pV, pWQ, pWO, pWG, pWU, pWD, pOUT, pDBG, pWS = 16, 18, 20, 22, 24, 28, 30, 32, 34, 36, 38
    rX, rST, rW, rWS, rO = 40, 44, 48, 52, 56
    sWV, sH, sS, sB, sHW = "s3", "s4", "s5", "s6", "s7"
    sOFF, sCNT, sT0, sT1, sT2, sM = "s8", "s9", "s10", "s11", "s12", "s13"
    sSPIN, sTAG = "s14", "s15"
    mU = ["s[60:61]", "s[62:63]", "s[64:65]", "s[66:67]"]
    mT = ["s[68:69]", "s[70:71]", "s[72:73]", "s[74:75]"]
    def srd(r): return f"s[{r}:{r+3}]"
    def mk_srd(r, p, size):
        A(f"s_mov_b32 s{r}, s{p}"); A(f"s_mov_b32 s{r+1}, s{p+1}"); A(f"s_mov_b32 s{r+2}, {size}"); A(f"s_mov_b32 s{r+3}, 0x20000")
    SB = 80
    def stamp(idx):
        if not stamps: return
        assert idx < 11
        A(f"s_memrealtime s[{SB+2*idx}:{SB+2*idx+1}]")
    def stampval(idx, sreg):
        if not stamps: return
        A(f"s_mov_b32 s{SB+2*idx}, {sreg}")
    def stamp_init():
        if stamps:
            for i in range(1, 11): A(f"s_mov_b32 s{SB+2*i}, 0")
    def stamp_flush():
        if not stamps: return
        A("s_waitcnt vmcnt(0) lgkmcnt(0)")
        A("s_mov_b64 exec, -1")
        A(f"s_lshl_b32 s8, {sID}, 3")
        A(f"s_add_u32 s8, s8, {sWV}")
        A("s_lshl_b32 s8, s8, 6")
        A(f"s_add_u32 s8, s8, {STAMP_BASE}")
        A("v_mov_b32 v8, 0")
        for i in range(11):
            A(f"v_writelane_b32 v8, s{SB+2*i}, {i}")
        A(f"v_lshlrev_b32 v9, 2, v{vLANE}")
        A(f"v_mov_b32 v10, {OOB}")
        A(f"v_cmp_gt_u32 vcc, 16, v{vLANE}")
        A("s_nop 1")
        A("v_cndmask_b32 v9, v10, v9, vcc")
        A(f"buffer_store_dword v8, v9, {srd(rWS)}, s8 offen")
        if dbg:
            A(f"s_cmp_lg_u32 {sID}, {dbg-1}")
            A("s_cbranch_scc1 L_end")
            A(f"s_cmp_lg_u32 {sWV}, 3")
            A("s_cbranch_scc1 L_end")
            mk_srd(rO, pDBG, 256)
            A(f"v_subrev_u32 v8, s{SB}, v8")
            A(f"buffer_store_dword v8, v9, {srd(rO)}, 0 offen")
    vLANE, vG, vN = 1, 2, 3
    vMK = [4, 5, 6, 7]
    vAop = [16, 20]
    vACC = 24
    vOFFC, vOFFV = 46, 47
    vBQ = 48
    vDK = 64
    vS = 68
    vSN, vP, vL = 76, 77, 78
    vX4 = 80
    WDB = 84
    RING = 128
    vXA = 48
    vXC = 56
    vOA, vOB = 60, 61
    vCO = 64
    WBUF = 96
    uid = [0]
    def newlab(p):
        uid[0] += 1
        return f"L_{p}{uid[0]}"

    def dpp_reduce(regs, op):
        pad = "s_nop 1" if len(regs) == 1 else ("s_nop 0" if len(regs) == 2 else None)
        A("s_nop 1")
        for d, rm in (("row_shr:1", "0xf"), ("row_shr:2", "0xf"), ("row_shr:4", "0xf"), ("row_shr:8", "0xf"), ("row_bcast:15", "0xa"), ("row_bcast:31", "0xc")):
            for r in regs: A(f"{op}_dpp v{r}, v{r}, v{r} {d} row_mask:{rm} bank_mask:0xf")
            if pad: A(pad)
        if not pad: A("s_nop 0")
    aop_flip = [0]
    def sel(coef, idx):
        a = vAop[aop_flip[0]]; aop_flip[0] ^= 1
        for i in range(4):
            A(f"v_and_b32_dpp v{a+i}, v{coef}, v{vMK[i]} row_newbcast:{idx} row_mask:0xf bank_mask:0xf")
        return a
    def mfma(d, a, b, first=False):
        c = "0" if first else f"v[{d}:{d+3}]"
        A(f"v_mfma_f32_16x16x32_bf16 v[{d}:{d+3}], v[{a}:{a+3}], v[{b}:{b+3}], {c}")
    def bf16_round(dst, src):
        A(f"v_cvt_pk_bf16_f32 v{dst}, v{src}, v{src}")
        A(f"v_lshlrev_b32 v{dst}, 16, v{dst}")
    sTAGX = "s75"
    def tagcheck(regs, dst=9, tmp=10, tmp2=15, sTAG=sTAG):
        regs = list(regs)
        lv = [(regs[i], regs[i+1]) for i in range(0, len(regs), 2)]
        A(f"v_bitop3_b32 v{dst}, v{lv[0][0]}, v{lv[0][1]}, {sTAG} bitop3:0x7e")
        rest = lv[1:]; k = 0
        while k < len(rest):
            A(f"v_bitop3_b32 v{tmp}, v{rest[k][0]}, v{rest[k][1]}, {sTAG} bitop3:0x7e")
            if k + 1 < len(rest):
                A(f"v_bitop3_b32 v{tmp2}, v{rest[k+1][0]}, v{rest[k+1][1]}, {sTAG} bitop3:0x7e")
                A(f"v_or3_b32 v{dst}, v{dst}, v{tmp}, v{tmp2}")
            else:
                A(f"v_or_b32 v{dst}, v{dst}, v{tmp}")
            k += 2
    def poll(label, loads, tagregs, slp, check=None, limit=None, keep=False, die=False, bail=None):
        A(f"s_mov_b32 {sSPIN}, 0")
        A.lab(label)
        loads()
        A("s_waitcnt vmcnt(0)")
        verdict(tagregs, check, die)
        A(f"s_add_u32 {sSPIN}, {sSPIN}, 1")
        A("s_and_b64 exec, exec, vcc")
        A(f"s_cbranch_execz {label}_done")
        if bail:
            A("s_cmp_lg_u64 s[44:45], 0")
            A(f"s_cbranch_scc1 {bail}")
        if slp: A(f"s_sleep {slp}")
        A(f"s_cmp_lt_u32 {sSPIN}, {limit or spin}")
        A(f"s_cbranch_scc1 {label}")
        A.lab(f"{label}_done")
        if not keep: A("s_mov_b64 exec, -1")
    def verdict(tagregs, check, die):
        if check: check()
        else: tagcheck(tagregs, sTAG=sTAGX if die else sTAG)
        if die:
            A("v_cmp_ne_u32 vcc, 0, v9")
            A("s_or_b64 s[44:45], s[44:45], vcc")
            A("v_cmp_lt_u32 vcc, 7, v9")
            A("s_andn2_b64 s[44:45], s[44:45], vcc")
        else:
            A("v_cmp_ne_u32 vcc, 0, v9")
    def two_group_offsets(rowstride, sw, oa, ob):
        A(f"s_mul_i32 {sT2}, {sw}, 288")
        A(f"v_mul_u32_u24 v8, {rowstride}, v{vG}")
        A(f"v_lshl_add_u32 v8, v{vN}, 4, v8")
        A(f"v_add_u32 v{oa}, {sT2}, v8")
        A(f"v_add_u32 v8, 256, v{oa}")
        A(f"v_mov_b32 v9, {OOB}")
        A(f"v_cmp_gt_u32 vcc, 2, v{vN}")
        A("s_nop 1")
        A(f"v_cndmask_b32 v{ob}, v9, v8, vcc")
    def two_group_to_lds(accA, accB, vaddr):
        A("s_mov_b32 exec_hi, 0")
        A(f"ds_write_b128 v{vaddr}, v[{accA}:{accA+3}] offset:{LDS_B}")
        A("s_mov_b32 exec_lo, 0x00030003")
        A(f"ds_write_b128 v{vaddr}, v[{accB}:{accB+3}] offset:{LDS_B+512}")
        A("s_mov_b64 exec, -1")
    def masks():
        A(f"v_and_b32 v8, 1, v{vN}")
        A("v_lshlrev_b32 v8, 4, v8")
        A(f"s_mov_b32 {sT0}, 0xffff")
        A(f"v_lshlrev_b32 v8, v8, {sT0}")
        A(f"v_lshrrev_b32 v11, 1, v{vN}")
        for i in range(4):
            A(f"v_cmp_eq_u32 vcc, {i}, v11")
            A("s_nop 1")
            A(f"v_cndmask_b32 v{vMK[i]}, 0, v8, vcc")
    def tail_store_setup():
        pass
    def lds_wait(label, target):
        A(f"s_mov_b32 {sSPIN}, 0")
        A.lab(label)
        A("ds_read_b32 v9, v71")
        A(f"s_add_u32 {sSPIN}, {sSPIN}, 1")
        A("s_waitcnt lgkmcnt(0)")
        A(f"v_readfirstlane_b32 {sT0}, v9")
        A(f"s_cmp_ge_u32 {sSPIN}, {spin}")
        A(f"s_cbranch_scc1 {label}_done")
        A(f"s_cmp_lt_u32 {sT0}, {target}")
        A(f"s_cbranch_scc1 {label}")
        A.lab(f"{label}_done")
    def record_addr_setup():
        A(f"v_and_b32 v8, 1, v{vLANE}")
        A(f"v_lshrrev_b32 v9, 2, v{vLANE}")
        A("v_lshlrev_b32 v9, 4, v9")
        A("v_lshl_add_u32 v8, v8, 3, v9")
        A(f"s_lshl_b32 {sT0}, {sWV}, 8")
        A(f"v_add_u32 v68, {sT0}, v8")
        A(f"v_lshlrev_b32 v69, 4, v{vLANE}")
        A(f"v_and_b32 v8, 2, v{vLANE}")
        A("v_cmp_eq_u32 s[62:63], 0, v8")
        A(f"v_mov_b32 v71, {LDS_CNT}")
        A("v_mov_b32 v72, 1")
        A(f"v_mov_b32 v41, {sTAG}")
        A(f"v_mov_b32 v43, {sTAG}")
        if rt:
            A(f"v_lshrrev_b32 v8, 2, v{vLANE}")
            A(f"v_and_b32 v9, 3, v{vLANE}")
            A("v_lshlrev_b32 v9, 4, v9")
            A("v_lshl_add_u32 v65, v8, 14, v9")
            A(f"s_lshl_b32 s60, {sB}, 6")
            A(f"s_lshl_b32 {sT0}, {sWV}, 18")
            A(f"s_add_u32 s60, s60, {sT0}")
            A(f"s_add_u32 s60, s60, {REC_BASE}")
            A(f"s_add_u32 s61, s60, {1 << 18}")
        else:
            A(f"s_lshl_b32 s60, {sB}, 14")
            A(f"s_lshl_b32 {sT0}, {sWV}, 10")
            A(f"s_add_u32 s60, s60, {sT0}")
    def record_store(extra=0, base=48, back=0):
        lo = 256 * extra
        if back:
            A(f"v_subrev_u32 v68, {256*back}, v68")
            A(f"s_sub_u32 s60, s60, {1024*back}")
        for w in range(4):
            A(f"ds_read_b64 v[{base+2*w}:{base+2*w+1}], v68 offset:{LDS_A + w*2304 + lo}")
        A(f"ds_read_b64 v[{base+8}:{base+9}], v68 offset:{LDS_B + lo}")
        A("s_waitcnt lgkmcnt(1)")
        for i in range(2):
            A(f"v_add_f32 v{base+i}, v{base+i}, v{base+2+i}")
            A(f"v_add_f32 v{base+4+i}, v{base+4+i}, v{base+6+i}")
        for i in range(2):
            A(f"v_add_f32 v{base+i}, v{base+i}, v{base+4+i}")
        A("s_waitcnt lgkmcnt(0)")
        A(f"v_cndmask_b32 v40, v{base+8}, v{base}, s[62:63]")
        A(f"v_cndmask_b32 v42, v{base+9}, v{base+1}, s[62:63]")
        if rt: A(f"buffer_store_dwordx4 v[40:43], v65, {srd(rWS)}, s{60+extra} offen sc1")
        else: A(f"buffer_store_dwordx4 v[40:43], v69, {srd(rWS)}, s60 offen offset:{1024*extra} {rst}")

    A.lab(KNAME)
    A(f"s_cmp_ge_u32 {sID}, 256")
    A("s_cbranch_scc1 L_end")
    A("s_load_dwordx16 s[16:31], s[0:1], 0")
    A("s_load_dwordx8 s[32:39], s[0:1], 64")
    if rot or not cal: A("s_memrealtime s[78:79]")
    if pad_to: A("s_memrealtime s[98:99]")
    stamp(0)
    A("v_lshrrev_b32 v8, 6, v0")
    A(f"v_and_b32 v{vLANE}, 63, v0")
    A(f"v_readfirstlane_b32 {sWV}, v8")
    A(f"v_lshrrev_b32 v{vG}, 4, v{vLANE}")
    A(f"v_and_b32 v{vN}, 15, v{vLANE}")
    A(f"s_and_b32 {sT0}, {sID}, 7")
    A(f"s_lshr_b32 {sT1}, {sID}, 3")
    A(f"s_and_b32 {sH}, {sT1}, 3")
    A(f"s_lshr_b32 {sS}, {sT1}, 2")
    A(f"s_lshl_b32 {sT0}, {sT0}, 2")
    A(f"s_add_u32 {sH}, {sH}, {sT0}")
    A(f"s_lshl_b32 {sB}, {sH}, 3")
    A(f"s_add_u32 {sB}, {sB}, {sS}")
    if swap: A(f"s_xor_b32 {sWV}, {sWV}, 4")
    A(f"s_cmp_ge_u32 {sWV}, 4")
    A("s_cbranch_scc1 L_helper")

    A.c("---- streamer waves 0..3")
    A(f"s_lshl_b32 {sT0}, {sB}, 19")
    A(f"s_lshl_b32 {sT1}, {sWV}, 10")
    A(f"s_add_u32 {sT0}, {sT0}, {sT1}")
    A(f"v_lshrrev_b32 v8, 2, v{vN}")
    A("v_lshlrev_b32 v8, 8, v8")
    A(f"v_and_b32 v11, 3, v{vN}")
    A("v_lshlrev_b32 v11, 4, v11")
    A(f"v_lshlrev_b32 v12, 6, v{vG}")
    A("v_add3_u32 v8, v8, v11, v12")
    if "n" in abl: A(f"v_lshlrev_b32 v8, 4, v{vLANE}")
    A(f"v_add_u32 v{vOFFC}, {sT0}, v8")
    A(f"s_mov_b32 {sOFF}, 0")
    A(f"s_mov_b32 s{rST+2}, 0x8000000")
    A(f"s_mov_b32 s{rST+3}, 0x20000")
    A("s_waitcnt lgkmcnt(0)")
    A(f"s_mov_b32 s{rST}, s{pK}")
    A(f"s_mov_b32 s{rST+1}, s{pK+1}")
    if rot:
        A(f"s_mul_hi_u32 {sOFF}, s78, {int(2**32 / rot)}")
        A(f"s_lshl_b32 {sOFF}, {sOFF}, 12")
        A(f"s_and_b32 {sOFF}, {sOFF}, 0x7ffff")
    def pace(d):
        if T0:
            l = newlab("pc")
            if D3:
                A(f"s_cmp_gt_i32 s75, {L3}")
                A(f"s_cbranch_scc1 {l}b")
            A(f"s_cbranch_vccnz {l}")
            if D0:
                A(f"s_cmp_gt_i32 s75, {-L0}")
                A(f"s_cbranch_scc1 {l}a")
                A(f"s_waitcnt vmcnt({D0-1})")
                A.lab(l + "a")
            A(f"s_waitcnt vmcnt({d-1})")
            A.lab(l)
            A(f"s_waitcnt vmcnt({D2-1})")
            if D3:
                A.lab(l + "b")
                A(f"s_waitcnt vmcnt({D3-1})")
        else:
            A(f"s_waitcnt vmcnt({d-1})")
    def control(n, step):
        if not T0: return
        if n % CI == 0:
            A("s_memrealtime s[76:77]")
            if cal: A("ds_read_b32 v123, v122 offset:8")
        if n % CI == 2:
            A("s_waitcnt lgkmcnt(0)")
            if cal:
                A("v_readfirstlane_b32 s79, v123")
                if n == 2:
                    l = newlab("ck")
                    A(f"s_cmp_lg_u32 {sWV}, 0")
                    A(f"s_cbranch_scc1 {l}")
                    A("v_mov_b32 v120, s76")
                    A("v_add_u32 v121, 1, v121")
                    A("v_lshl_add_u32 v119, v121, 2, v122")
                    A("ds_write_b32 v119, v120 offset:28")
                    A("ds_write_b64 v122, v[120:121] offset:16")
                    A.lab(l)
                A("s_sub_u32 s76, s76, s79")
            A("s_sub_u32 s76, s76, s78")
            A("s_abs_i32 s77, s76")
            A("s_cmp_gt_u32 s77, 100000")
            A("s_cselect_b32 s75, 0, s76")
            A("s_cmp_gt_i32 s75, 0")
            A("s_cselect_b64 vcc, -1, 0")
            k = (n % 16) // CI; parts = 16 // CI
            A(f"s_add_u32 s78, s78, {step * (k + 1) // parts - step * k // parts}")
    def issue(slot):
        r = RING + 4 * slot
        A(f"buffer_load_dwordx4 v[{r}:{r+3}], v{vOFFC}, {srd(rST)}, {sOFF} offen nt")
        A(f"s_add_u32 {sOFF}, {sOFF}, 4096")
        if rot: A(f"s_and_b32 {sOFF}, {sOFF}, 0x7ffff")
    if bar0: A("s_barrier")
    for n in range(INIT0 or INIT): issue(n)
    if relayout:
        A("s_branch L_stream2")
        A.L.append("@@HELPER@@")
        A.lab("L_stream2")
    if prio: A(f"s_setprio {prio}")
    stamp_init()
    A(f"s_mov_b32 {sT1}, {EPOCH_OFF}")
    A(f"s_load_dword {sTAG}, s[{pWS}:{pWS+1}], {sT1}")
    A(f"v_lshlrev_b32 v8, 4, v{vLANE}")
    A(f"v_add_u32 v{vOFFV}, {sT0}, v8")
    mk_srd(rX, pX, 1152)
    mk_srd(rWS, pWS, WS_SIZE)
    mk_srd(rW, pWD, 4608 * 576 * 2)
    masks()
    two_group_offsets(1152, sWV, 32, 33)
    A(f"v_cmp_gt_u32 vcc, 32, v{vLANE}")
    if cmap:
        A(f"s_and_b32 s0, {sID}, 7")
        A("s_mul_i32 s0, s0, 18")
        A(f"s_lshr_b32 s1, {sID}, 3")
        A("s_add_u32 s0, s0, s1")
    else:
        A(f"s_mov_b32 s0, {sID}")
    A(f"s_lshl_b32 {sT0}, s0, 3")
    A(f"v_mov_b32 v10, {sT0}")
    A("v_cndmask_b32 v34, v9, v32, vcc")
    A("v_cndmask_b32 v35, v9, v33, vcc")
    A(f"v_and_b32 v8, 3, v{vN}")
    A(f"v_lshrrev_b32 v9, 2, v{vN}")
    for u in range(4):
        A(f"v_cmp_eq_u32 {mU[u]}, {u}, v8")
        A(f"v_cmp_eq_u32 {mT[u]}, {u}, v9")
    A(f"v_lshlrev_b32 v9, 2, v{vG}")
    A("v_add_u32 v8, v8, v9")
    A("v_lshlrev_b32 v8, 5, v8")
    A(f"buffer_load_dwordx2 v[{vX4}:{vX4+1}], v10, {srd(rX)}, 0 offen {xld}")
    if kvtrim:
        A(f"v_mov_b32 v{vL}, 0xff800000")
        for i in range(4): A(f"v_mov_b32 v{vACC+i}, 0")
    if htail in (1, 3):
        A(f"v_mul_u32_u24 v10, 57, v{vLANE}")
        A("v_lshrrev_b32 v127, 9, v10")
        A("v_mul_u32_u24 v9, 9, v127")
        A(f"v_sub_u32 v9, v{vLANE}, v9")
        A(f"v_mul_u32_u24 v11, {GU_ROW}, v127")
        A("v_lshl_add_u32 v11, v9, 4, v11")
        A(f"s_mul_i32 {sT0}, {sB}, 144")
        A(f"s_add_u32 {sT0}, {sT0}, {GU_BASE}")
        A(f"v_add_u32 v124, {sT0}, v11")
        A("v_mul_u32_u24 v12, 72, v127")
        A("v_lshl_add_u32 v12, v9, 3, v12")
        A(f"s_mul_i32 {sT0}, {sWV}, 2304")
        A(f"s_add_u32 {sT0}, {sT0}, {LDS_G}")
        A(f"v_add_u32 v126, {sT0}, v12")
        A(f"v_mov_b32 v13, {OOB}")
        A("v_cmp_gt_u32 vcc, 4, v127")
        A("s_nop 1")
        A("v_cndmask_b32 v125, v13, v124, vcc")
        if htail == 3:
            A(f"s_cmp_eq_u32 {sWV}, 0")
            A("s_cselect_b64 vcc, -1, 0")
            A("v_cndmask_b32 v124, v13, v124, vcc")
            A("v_cndmask_b32 v125, v13, v125, vcc")
    for n in range(INIT0 or INIT, INIT): issue(n)
    for n in range(INIT, 32):
        A(f"s_waitcnt vmcnt({D-1 + (1 if (n % 4) < FP else 0)})")
        issue(n)
    XB = 88
    for n in range(XS):
        A(f"s_waitcnt vmcnt({D-1})")
        r = 96 + 4 * n
        A(f"buffer_load_dwordx4 v[{r}:{r+3}], v{vOFFC}, {srd(rST)}, {sOFF} offen nt")
        A(f"s_add_u32 {sOFF}, {sOFF}, 4096")
    A("s_waitcnt lgkmcnt(0)")
    A(f"s_add_u32 {sTAG}, {sTAG}, {TAG_STEP}")
    if not ts: stamp(4)
    A("s_barrier")
    if not ts: stamp(5)
    if clk: A(f"s_memtime s[{SB+2}:{SB+3}]")
    QT = 84
    A(f"ds_read_b128 v[{QT}:{QT+3}], v8 offset:{LDS_Q}")
    A(f"ds_read_b128 v[{QT+4}:{QT+7}], v8 offset:{LDS_Q+16}")
    if tbase:
        A("v_mov_b32 v9, 0")
        A(f"ds_read_b32 v9, v9 offset:{LDS_CNT+8}")
    A("s_waitcnt lgkmcnt(0)")
    if tbase:
        A("v_readfirstlane_b32 s78, v9")
    for i in range(4):
        A(f"v_cvt_pk_bf16_f32 v{QT+8+i}, v{QT+2*i}, v{QT+2*i+1}")
    for t in range(4):
        for i in range(4):
            A(f"v_cndmask_b32 v{vBQ+4*t+i}, 0, v{QT+8+i}, {mT[t]}")
    if cal:
        A("s_mov_b32 s78, 0")
        A("v_mov_b32 v121, 0")
        A(f"v_mov_b32 v122, {LDS_CNT}")
    else:
        A(f"s_add_u32 s78, s78, {T0}")
    A("s_mov_b64 vcc, 0")
    A("s_mov_b32 s75, 0")
    A(f"s_mov_b32 {sT2}, {f2u(128 ** -0.5)}")
    A(f"s_mov_b32 {sCNT}, 0")
    if align: A(f".p2align {align}")
    A.lab("L_kloop")
    A(f"s_cmp_eq_u32 {sCNT}, 3")
    A("s_cbranch_scc0 L_kbody")
    A(f"s_mov_b32 s{rST}, s{pV}")
    A(f"s_mov_b32 s{rST+1}, s{pV+1}")
    if not rot: A(f"s_mov_b32 {sOFF}, 0")
    A(f"v_mov_b32 v{vOFFC}, v{vOFFV}")
    A.lab("L_kbody")
    for n in range(32):
        t, u = n % 4, (n // 4) % 4
        if "m" not in abl: mfma(vDK, RING + 4 * n, vBQ + 4 * t, first=(t == 0))
        if n < XS:
            l = newlab("xs")
            A(f"s_cmp_eq_u32 {sCNT}, 0")
            A(f"s_cbranch_scc1 {l}")
        pace(D + (1 if (n % 4) < FK else 0))
        issue(n)
        if n < XS: A.lab(l)
        if XS and 20 <= n < 20 + XS:
            l = newlab("xc")
            A(f"s_cmp_lg_u32 {sCNT}, 0")
            A(f"s_cbranch_scc1 {l}")
            for j in range(4): A(f"v_mov_b32 v{RING+4*(n-20)+j}, v{96+4*(n-20)+j}")
            A.lab(l)
        control(n, TK)
        if t == 3:
            A("s_nop 5")
            A(f"v_mov_b32_dpp v8, v{vDK} quad_perm:[0,0,0,0] row_mask:0xf bank_mask:0xf")
            for cidx in range(1, 4):
                A(f"v_add_f32_dpp v8, v{vDK+cidx}, v8 quad_perm:[{cidx},{cidx},{cidx},{cidx}] row_mask:0xf bank_mask:0xf")
            if u == 0:
                A(f"v_mov_b32 v{vSN}, v8")
            else:
                A(f"v_cndmask_b32 v{vSN}, v{vSN}, v8, {mU[u]}")
            if u == 3:
                bf16_round(vSN, vSN)
                A(f"v_mul_f32 v{vSN}, {sT2}, v{vSN}")
                bf16_round(vSN, vSN)
                for k in range(7):
                    A(f"v_mov_b32 v{vS+k}, v{vS+k+1}")
                A(f"v_mov_b32 v{vS+7}, v{vSN}")
                if kvtrim: A(f"v_max_f32 v{vL}, v{vL}, v{vSN}")
    A(f"s_add_u32 {sCNT}, {sCNT}, 1")
    A(f"s_cmp_lt_u32 {sCNT}, 4")
    A("s_cbranch_scc1 L_kloop")
    if not ts: stamp(6)
    if kvtrim:
        dpp_reduce([vL], "v_max_f32")
        A(f"v_readlane_b32 {sM}, v{vL}, 63")
        A(f"s_mov_b32 {sT2}, {LOG2E}")
        A(f"v_mov_b32 v{vL}, 0")
    else:
        A(f"v_max3_f32 v8, v{vS}, v{vS+1}, v{vS+2}")
        A(f"v_max3_f32 v8, v8, v{vS+3}, v{vS+4}")
        A(f"v_max3_f32 v8, v8, v{vS+5}, v{vS+6}")
        A(f"v_max_f32 v8, v8, v{vS+7}")
        dpp_reduce([8], "v_max_f32")
        A(f"v_readlane_b32 {sM}, v8, 63")
        A(f"s_mov_b32 {sT2}, {LOG2E}")
        A(f"v_mov_b32 v{vL}, 0")
        for i in range(4): A(f"v_mov_b32 v{vACC+i}, 0")
    A(f"s_mov_b32 {sCNT}, 0")
    def ptile():
        A(f"v_subrev_f32 v8, {sM}, v{vS}")
        A(f"v_mul_f32 v8, {sT2}, v8")
        A("v_exp_f32 v8, v8")
        for k in range(7):
            A(f"v_mov_b32 v{vS+k}, v{vS+k+1}")
        A(f"v_add_f32 v{vL}, v{vL}, v8")
        A(f"v_cvt_pk_bf16_f32 v{vP}, v8, v8")
        A("s_nop 1")
    NWD = 15 if htail in (1, 3) else 10
    GM, GW, GR = RING + 80, RING, RING + 16
    def vstep(n, last):
        if n % 16 == 0: ptile()
        if last and n == 17:
            dpp_reduce([vL], "v_add_f32")
            A(f"v_mov_b32 v45, v{vL}")
            A("s_mov_b32 exec_lo, 0")
            A("s_mov_b32 exec_hi, 0x80000000")
            A(f"ds_write_b64 v83, v[44:45] offset:{LDS_ML}")
            A("s_mov_b64 exec, -1")
            record_addr_setup()
        L = n % 16; t, u = L % 4, L // 4
        if "m" in abl:
            pace(D); issue(n); control(n, TV)
            return
        a = sel(vP, 4 * t + u)
        if last and n >= 32 - max(D, D2) - 1:
            A(f"s_waitcnt vmcnt({NWD + 31 - n})")
            A("s_nop 0")
        else:
            A("s_nop 1")
        mfma(vACC, a, RING + 4 * n)
        if not last:
            pace(D + (1 if (n % 4) < FV else 0))
            issue(n)
            control(n, TV)
    if align: A(f".p2align {align}")
    A.lab("L_vloop")
    for n in range(32):
        vstep(n, False)
        if endb and n == endstep - 1:
            A(f"s_cmp_eq_u32 {sCNT}, 2")
            A(f"s_cselect_b32 s77, {endb}, 0")
            A("s_sub_u32 s78, s78, s77")
    A(f"s_add_u32 {sCNT}, {sCNT}, 1")
    A(f"s_cmp_lt_u32 {sCNT}, 3")
    A("s_cbranch_scc1 L_vloop")
    stamp(7)
    if clk: A(f"s_memtime s[{SB+20}:{SB+21}]")
    A(f"s_mul_i32 {sOFF}, {sB}, {18*1152}")
    def wd_issue(t):
        r = WDB + 8 * t
        oa, ob = (32, 33) if t < 4 else (34, 35)
        A(f"buffer_load_dwordx4 v[{r}:{r+3}], v{oa}, {srd(rW)}, {sOFF} offen nt")
        A(f"buffer_load_dwordx4 v[{r+4}:{r+7}], v{ob}, {srd(rW)}, {sOFF} offen nt")
        A(f"s_add_u32 {sOFF}, {sOFF}, {4*1152}")
    if wdstep < 0:
        for t in range(5): wd_issue(t)
    HG = 48
    def ld_gu():
        A(f"s_mov_b32 {sT0}, 0")
        for i in range(5):
            A(f"buffer_load_dwordx4 v[{HG+4*i}:{HG+4*i+3}], v{124 if i < 4 else 125}, {srd(rWS)}, {sT0} offen sc1")
            if i < 4: A(f"s_add_u32 {sT0}, {sT0}, {7*GU_ROW}")
    def ck_gu():
        A(f"v_mov_b32 v14, {sTAG}")
        A(f"v_cndmask_b32 v{HG+17}, v14, v{HG+17}, s[66:67]")
        A(f"v_cndmask_b32 v{HG+19}, v14, v{HG+19}, s[66:67]")
        tagcheck([HG + 2 * k + 1 for k in range(10)])
    if htail == 2 and hstep >= 32:
        A(f"v_mov_b32 v8, {LDS_CNT}")
        A("v_mov_b32 v9, 1")
        A("ds_write_b32 v8, v9 offset:4")
    if htail in (1, 3):
        A("s_mov_b32 exec_hi, 0x7fffffff")
        ld_gu()
        A("s_mov_b32 exec_hi, -1")
    A(f"s_lshl_b32 {sT0}, {sWV}, 9")
    A(f"v_lshlrev_b32 v8, 5, v{vN}")
    A(f"v_lshl_add_u32 v8, v{vG}, 4, v8")
    A(f"v_add_u32 v82, {sT0}, v8")
    A(f"s_mul_i32 {sT0}, {sWV}, 576")
    A(f"v_add_u32 v36, {sT0}, v8")
    A(f"s_lshl_b32 {sT0}, {sWV}, 3")
    A(f"v_mov_b32 v83, {sT0}")
    A(f"v_mov_b32 v44, {sM}")
    A(f"v_lshlrev_b32 v37, 2, v{vLANE}")
    A(f"s_and_b32 {sT0}, {sID}, {R - 1}")
    A(f"s_lshl_b32 {sT0}, {sT0}, {8 + mlsh}")
    for k in range(4): A(f"s_add_u32 s{64+k}, {sT0}, {ML_BASE + (k*64 << mlsh)}")
    A(f"s_cmp_eq_u32 {sWV}, 3")
    A(f"s_cselect_b32 {sT0}, 144, 0")
    A(f"s_cmp_lt_u32 {sID}, {sT0}")
    A(f"s_cselect_b32 {sT0}, 0, {OOB}")
    A(f"v_lshl_add_u32 v79, v{vLANE}, {mlsh}, {sT0}")
    def lidx(n):
        L = n % 16
        return 4 * (L % 4) + L // 4
    ptile()
    a = sel(vP, lidx(0))
    for n in range(32):
        if n + 1 == 16: ptile()
        if n + 1 < 32: a_next = sel(vP, lidx(n + 1))
        else: A("s_nop 0")
        nwd = NWD if wdstep < 0 else (NWD - 10) + 2 * max(0, min(5, n - wdstep))
        if n >= 32 - max(D, D2, D3) - 1:
            A(f"s_waitcnt vmcnt({nwd + 31 - n})")
        mfma(vACC, a, RING + 4 * n)
        if wdstep >= 0 and wdstep <= n < wdstep + 5: wd_issue(n - wdstep)
        a = a_next
        if n == 17:
            dpp_reduce([vL], "v_add_f32")
            A(f"v_mov_b32 v45, v{vL}")
            A("s_mov_b32 exec_lo, 0")
            A("s_mov_b32 exec_hi, 0x80000000")
            A(f"ds_write_b64 v83, v[44:45] offset:{LDS_ML}")
            A("s_mov_b64 exec, -1")
            record_addr_setup()
    if wdstep >= 0:
        for t in range(max(0, 32 - wdstep), 5): wd_issue(t)
    A("s_nop 7")
    A("s_mov_b32 exec_hi, 0")
    A(f"ds_write_b128 v82, v[{vACC}:{vACC+3}] offset:{LDS_O}")
    A("s_mov_b32 exec_hi, -1")
    A("s_waitcnt lgkmcnt(0)")
    stamp(2)
    A("s_barrier")
    if ts: stamp(4)
    if htail == 3:
        A(f"s_cmp_lg_u32 {sWV}, 0")
        A("s_cbranch_scc1 L_hothers")
    if htail in (1, 3):
        A("v_cmp_gt_u32 s[66:67], 4, v127")
        A("s_mov_b32 exec_hi, 0x7fffffff")
        A(f"s_mov_b32 {sSPIN}, 0")
        A("s_branch L_hchk")
        A.lab("L_hpoll")
        A(f"s_sleep {hsleep}")
        ld_gu()
        A.lab("L_hchk")
        A("s_waitcnt vmcnt(0)")
        ck_gu()
        A(f"s_add_u32 {sSPIN}, {sSPIN}, 1")
        A("v_cmp_ne_u32 vcc, 0, v9")
        A(f"s_cmp_ge_u32 {sSPIN}, {spin}")
        A("s_cbranch_scc1 L_hdone")
        A("s_and_b64 exec, exec, vcc")
        A("s_cbranch_execnz L_hpoll")
        A.lab("L_hdone")
        A("s_mov_b32 exec_lo, -1")
        A("s_mov_b32 exec_hi, 0x7fffffff")
        for i in range(4):
            A(f"ds_write2_b32 v126, v{HG+4*i}, v{HG+4*i+2} offset0:{i*126} offset1:{i*126+1}" if i * 126 + 1 < 256 else f"ds_write2_b32 v127, v{HG+4*i}, v{HG+4*i+2} offset0:{(i-2)*126} offset1:{(i-2)*126+1}")
            if i == 0: A(f"v_add_u32 v127, {2*504}, v126")
        A(f"v_add_u32 v126, {4*504}, v126")
        A("s_and_b64 exec, exec, s[66:67]")
        A(f"ds_write2_b32 v126, v{HG+16}, v{HG+18} offset0:0 offset1:1")
        A("s_mov_b64 exec, -1")
        A(f"v_lshl_add_u32 v8, v{vN}, 2, v{vG}")
        A("v_cmp_gt_u32 vcc, 18, v8")
        A(f"s_mul_i32 {sT0}, {sWV}, 2304")
        A(f"v_lshl_add_u32 v8, v8, 2, {sT0}")
        A("s_waitcnt lgkmcnt(0)")
        HR = RING
        for r in range(32):
            A(f"ds_read_b32 v{HR+r}, v8 offset:{LDS_G + r*72}")
            if r in (11, 22): A("s_waitcnt lgkmcnt(4)")
        for st in (8, 4, 2, 1):
            for r in range(st): A(f"v_add_f32 v{HR+r}, v{HR+r}, v{HR+r+st}")
        A("s_waitcnt lgkmcnt(0)")
        for st in (8, 4, 2, 1):
            for r in range(st): A(f"v_add_f32 v{HR+16+r}, v{HR+16+r}, v{HR+16+r+st}")
        bf16_round(HR, HR); bf16_round(HR + 16, HR + 16)
        A(f"v_mul_f32 v{vP}, v{HR}, v{HR+16}")
        A(f"v_cvt_pk_bf16_f32 v{vP}, v{vP}, v{vP}")
        A(f"v_cndmask_b32 v{vP}, 0, v{vP}, vcc")
        if htail == 3:
            A(f"ds_write_b32 v37, v{vP} offset:{LDS_H}")
            A("s_waitcnt lgkmcnt(0)")
            A("ds_write_b32 v71, v72 offset:4")
            A("s_branch L_hready")
            A.lab("L_hothers")
            A(f"s_mov_b32 {sSPIN}, 0")
            A.lab("L_hw2")
            A("ds_read_b32 v9, v71 offset:4")
            A(f"ds_read_b32 v{vP}, v37 offset:{LDS_H}")
            A(f"s_add_u32 {sSPIN}, {sSPIN}, 1")
            A("s_waitcnt lgkmcnt(0)")
            A(f"v_readfirstlane_b32 {sT0}, v9")
            A(f"s_cmp_ge_u32 {sSPIN}, {spin}")
            A("s_cbranch_scc1 L_hready")
            A(f"s_cmp_eq_u32 {sT0}, 0")
            A("s_cbranch_scc1 L_hw2")
            A.lab("L_hready")
            if ts: stamp(5)
        A("s_nop 1")
    else:
        A(f"ds_read_b32 v{vP}, v37 offset:{LDS_H}")
        if pre:
            A(f"s_sleep {pre}")
            for k in range(4):
                A(f"buffer_load_dwordx4 v[{GM+4*k}:{GM+4*k+3}], v79, {srd(rWS)}, s{64+k} offen sc1")
        A("s_waitcnt lgkmcnt(0)")
    for t in range(5):
        a = sel(vP, t)
        A(f"s_waitcnt vmcnt({2*(4 - t) + (4 if pre else 0)})")
        A("s_nop 0")
        mfma(vACC, a, WDB + 8 * t, first=(t == 0))
        mfma(vACC + 4, a, WDB + 8 * t + 4, first=(t == 0))
    A("s_nop 7")
    two_group_to_lds(vACC, vACC + 4, 36)
    if not bar4:
        A("s_mov_b64 exec, 1")
        A("s_waitcnt lgkmcnt(0)")
        A("ds_add_u32 v71, v72")
        A("s_mov_b64 exec, -1")
    mk_srd(rO, pOUT, 1152)
    A(f"v_lshrrev_b32 v8, 2, v{vLANE}")
    A(f"v_and_b32 v11, 3, v{vLANE}")
    A("v_lshlrev_b32 v12, 14, v8")
    A("v_lshl_add_u32 v12, v11, 4, v12")
    A(f"s_lshl_b32 {sT0}, s0, 6")
    A(f"v_add_u32 v12, {sT0}, v12")
    if rt:
        A(f"s_lshl_b32 {sT0}, {sID}, 14")
        A(f"s_add_u32 {sT0}, {sT0}, {REC_BASE}")
        A(f"v_add_u32 v12, {sT0}, v69")
    A("v_lshlrev_b32 v13, 2, v8")
    A(f"v_add_u32 v13, {LDS_W}, v13")
    A(f"v_and_b32 v14, 1, v{vLANE}")
    A("v_cmp_eq_u32 vcc, 1, v14")
    A(f"s_lshl_b32 {sT0}, s0, 3")
    A(f"v_lshl_add_u32 v10, v14, 2, {sT0}")
    A(f"v_cndmask_b32 v92, v{vX4}, v{vX4+1}, vcc")
    A("v_and_b32 v93, 0xffff0000, v92")
    A("v_lshlrev_b32 v92, 16, v92")
    A(f"v_mov_b32 v9, {OOB}")
    A(f"v_cmp_gt_u32 vcc, 2, v{vLANE}")
    A(f"s_mov_b32 {sT2}, {LOG2E}")
    A(f"v_lshlrev_b32 v97, {mlsh}, v{vLANE}")
    A("v_cndmask_b32 v96, v9, v10, vcc")
    if ts: stamp(6)
    if early:
        A(f"s_cmp_eq_u32 {sWV}, 3")
        A("s_cbranch_scc1 L_cons")
    if bar4:
        A("s_waitcnt lgkmcnt(0)")
        A("s_barrier")
    else: lds_wait("L_sw", 8)
    record_store()
    stamp(8)
    if early:
        A("s_branch L_fin")
        A.lab("L_cons")
    else:
        A(f"s_cmp_lg_u32 {sWV}, 3")
        A("s_cbranch_scc1 L_fin")
    A(f"s_cmp_ge_u32 {sID}, 144")
    A("s_cbranch_scc1 L_fin")
    A.c("---- wave 3: final reduction for columns 4*id .. 4*id+3")
    mM, mR = "s[44:45]", "s[46:47]"
    if cdelay: A(f"s_sleep {cdelay}")
    for m in (mM, mR): A(f"s_mov_b64 {m}, -1")
    A(f"s_mov_b32 {sSPIN}, 0")
    def ld_ml():
        for k in range(4):
            A(f"buffer_load_dwordx4 v[{GM+4*k}:{GM+4*k+3}], v97, {srd(rWS)}, s{64+k} offen {mlld}")
    def ld_rec(rld=rld):
        A(f"s_mov_b32 {sT0}, 0")
        for i in range(16):
            A(f"buffer_load_dwordx4 v[{GR+4*i}:{GR+4*i+3}], v12, {srd(rWS)}, {sT0} offen {rld}")
            if i < 15: A(f"s_add_u32 {sT0}, {sT0}, {1024 if rt else 16*BLK}")
    if pre:
        A("s_waitcnt vmcnt(1)")
        tagcheck([GM + 2 * k + 1 for k in range(8)])
        A("v_cmp_ne_u32 vcc, 0, v9")
        A("s_and_b64 exec, exec, vcc")
        A("s_cbranch_execnz L_fp_m")
        if pdelay: A(f"s_sleep {pdelay}")
        A("s_branch L_fp_m2")
    if late is not None:
        A(f"s_cmp_lt_i32 s75, {late}")
        A("s_cbranch_scc1 L_fp_m")
        if ldelay: A(f"s_sleep {ldelay}")
    if TX is not None:
        A("s_memrealtime s[76:77]")
        A("s_add_u32 s78, s78, s79")
        A(f"s_add_u32 s78, s78, {TX & 0xffffffff}")
        A("s_waitcnt lgkmcnt(0)")
        A("s_sub_u32 s76, s78, s76")
        A("s_max_i32 s76, s76, 0")
        A("s_min_u32 s76, s76, 400")
        A(f"s_mul_i32 s76, s76, {TF}")
        A("s_lshr_b32 s76, s76, 8")
        A(f"s_max_u32 s76, s76, {TMIN}")
        A.lab("L_bo")
        A("s_sleep 1")
        A("s_sub_u32 s76, s76, 1")
        A("s_cmp_gt_i32 s76, 0")
        A("s_cbranch_scc1 L_bo")
    if fmode == 0 or late is not None or TX is not None:
        ld_ml()
        ld_rec()
        A("s_waitcnt vmcnt(16)")
        tagcheck([GM + 2 * k + 1 for k in range(8)])
        A(f"v_cmp_ne_u32 {mM}, 0, v9")
        A("s_nop 0")
        A(f"s_cmp_eq_u64 {mM}, 0")
        A("s_cbranch_scc1 L_fp_w")
        A("s_waitcnt vmcnt(0)")
        tagcheck([GR + 2 * k + 1 for k in range(32)])
        A(f"v_cmp_ne_u32 {mR}, 0, v9")
        A(f"s_mov_b64 exec, {mM}")
    if mlsleep:
        A("s_branch L_fp_m")
        A.lab("L_fp_ms")
        A(f"s_sleep {mlsleep}")
    A.lab("L_fp_m")
    ld_ml()
    A(f"s_add_u32 {sSPIN}, {sSPIN}, 1")
    A("s_waitcnt vmcnt(0)")
    if tml: A("s_memrealtime s[76:77]")
    tagcheck([GM + 2 * k + 1 for k in range(8)])
    A("v_cmp_ne_u32 vcc, 0, v9")
    A(f"s_cmp_ge_u32 {sSPIN}, {spin}")
    A("s_cbranch_scc1 L_fp_m2")
    A("s_and_b64 exec, exec, vcc")
    A("s_cbranch_execnz L_fp_ms" if mlsleep else "s_cbranch_execnz L_fp_m")
    A.lab("L_fp_m2")
    if tml:
        A("s_mov_b64 exec, -1")
        A("s_waitcnt lgkmcnt(0)")
        for k in range(4):
            A(f"v_sub_u32 v{GM+4*k+1}, s76, v{GM+4*k}")
            A(f"v_and_b32 v{GM+4*k+1}, 0xffff, v{GM+4*k+1}")
            A(f"v_and_b32 v{GM+4*k}, 0xffff0000, v{GM+4*k}")
        A(f"v_min3_u32 v9, v{GM+1}, v{GM+5}, v{GM+9}")
        A(f"v_min_u32 v9, v9, v{GM+13}")
        A(f"v_cmp_gt_u32 vcc, {tml}, v9")
        A("s_cbranch_vccz L_tb2")
        dpp_reduce([9], "v_min_u32")
        A("v_readlane_b32 s76, v9, 63")
        A(f"s_sub_i32 s76, {tml}, s76")
        A(f"s_mul_i32 s76, s76, {TF}")
        A("s_ashr_i32 s76, s76, 8")
        A.lab("L_tb")
        A("s_cmp_gt_i32 s76, 0")
        A("s_cbranch_scc0 L_tb2")
        A("s_sleep 1")
        A("s_sub_u32 s76, s76, 1")
        A("s_branch L_tb")
        A.lab("L_tb2")
    elif rdelay: A(f"s_sleep {rdelay}")
    A(f"s_mov_b64 exec, {mR}")
    A("s_cbranch_execz L_fp_w")
    ld_rec(rld1)
    A.lab("L_fp_w")
    A("s_mov_b64 exec, -1")
    stamp(1)
    grp8 = ("quad_perm:[1,0,3,2]", "quad_perm:[2,3,0,1]", "row_half_mirror")
    for k in range(4): A(f"v_mov_b32 v{GM+4*k+1}, v{GM+4*k}")
    for d in grp8:
        for k in range(4): A(f"v_max_f32_dpp v{GM+4*k+1}, v{GM+4*k+1}, v{GM+4*k+1} {d} row_mask:0xf bank_mask:0xf")
    for k in range(4): A(f"v_sub_f32 v{GM+4*k}, v{GM+4*k}, v{GM+4*k+1}")
    for k in range(4): A(f"v_mul_f32 v{GM+4*k}, {sT2}, v{GM+4*k}")
    for k in range(4): A(f"v_exp_f32 v{GM+4*k}, v{GM+4*k}")
    for k in range(4): A(f"v_mul_f32 v{GM+4*k+2}, v{GM+4*k}, v{GM+4*k+2}")
    for d in grp8:
        for k in range(4): A(f"v_add_f32_dpp v{GM+4*k+2}, v{GM+4*k+2}, v{GM+4*k+2} {d} row_mask:0xf bank_mask:0xf")
    for k in range(4): A(f"v_rcp_f32 v{GM+4*k+2}, v{GM+4*k+2}")
    for k in range(4): A(f"v_mul_f32 v{GM+4*k}, v{GM+4*k}, v{GM+4*k+2}")
    for k in range(4): A(f"ds_write_b32 v37, v{GM+4*k} offset:{LDS_W + k*256}")
    A("s_waitcnt lgkmcnt(0)")
    for i in range(16):
        A(f"ds_read_b32 v{GW+i}, v13 offset:{i*64}")
        if i == 11: A("s_waitcnt lgkmcnt(8)")
    A("s_waitcnt lgkmcnt(0)")
    for i in range(16): A(f"v_cndmask_b32 v{GW+i}, 1.0, v{GW+i}, s[62:63]")
    if fpipe and fmode == 1 and late is None and TX is None:
        for g4 in range(4):
            A(f"s_waitcnt vmcnt({12 - 4*g4})")
            tagcheck([GR + 16 * g4 + 2 * k + 1 for k in range(8)], dst=9 if g4 == 0 else 14)
            if g4: A("v_or_b32 v9, v9, v14")
            for k in range(4):
                i = 4 * g4 + k
                for j in range(2):
                    d = 88 + 2 * (k % 2) + j
                    if i < 2: A(f"v_mul_f32 v{d}, v{GW+i}, v{GR+4*i+2*j}")
                    else: A(f"v_fmac_f32 v{d}, v{GW+i}, v{GR+4*i+2*j}")
        A("v_cmp_ne_u32 vcc, 0, v9")
        A("s_and_b64 exec, exec, vcc")
        A("s_cbranch_execnz L_fp_r")
        A("s_mov_b64 exec, -1")
        stamp(10)
        A("s_branch L_fp_sum")
    else:
        A(f"s_mov_b64 exec, {mR}")
        A("s_cbranch_execz L_fp_done")
        A("s_branch L_fp_c")
    A.lab("L_fp_r")
    if fsleep: A(f"s_sleep {fsleep}")
    ld_rec()
    A.lab("L_fp_c")
    A(f"s_add_u32 {sSPIN}, {sSPIN}, 1")
    A("s_waitcnt vmcnt(0)")
    tagcheck([GR + 2 * k + 1 for k in range(32)])
    A("v_cmp_ne_u32 vcc, 0, v9")
    A(f"s_cmp_ge_u32 {sSPIN}, {spin}")
    A("s_cbranch_scc1 L_fp_done")
    A("s_and_b64 exec, exec, vcc")
    A("s_cbranch_execnz L_fp_r")
    A.lab("L_fp_done")
    A("s_mov_b64 exec, -1")
    stamp(10)
    for i in range(16):
        for j in range(2):
            d = 88 + 2 * (i % 2) + j
            if i < 2: A(f"v_mul_f32 v{d}, v{GW+i}, v{GR+4*i+2*j}")
            else: A(f"v_fmac_f32 v{d}, v{GW+i}, v{GR+4*i+2*j}")
    A.lab("L_fp_sum")
    A("v_add_f32 v88, v88, v90")
    A("v_add_f32 v89, v89, v91")
    A("s_nop 0")
    for d in ("row_ror:4", "row_ror:8"):
        A(f"v_add_f32_dpp v88, v88, v88 {d} row_mask:0xf bank_mask:0xf")
        A(f"v_add_f32_dpp v89, v89, v89 {d} row_mask:0xf bank_mask:0xf")
        A("s_nop 0")
    for op in ("v_permlane16_swap_b32", "v_permlane32_swap_b32"):
        A("v_mov_b32 v14, v88")
        A("v_mov_b32 v15, v89")
        A("s_nop 1")
        A(f"{op} v14, v88")
        A(f"{op} v15, v89")
        A("v_add_f32 v88, v88, v14")
        A("v_add_f32 v89, v89, v15")
    for i in range(2): A(f"v_cvt_pk_bf16_f32 v{88+i}, v{88+i}, v{88+i}")
    for i in range(2): A(f"v_lshlrev_b32 v{88+i}, 16, v{88+i}")
    for i in range(2): A(f"v_add_f32 v{90+i}, v{92+i}, v{88+i}")
    for i in range(2): A(f"v_cvt_pk_bf16_f32 v{90+i}, v{90+i}, v{90+i}")
    for i in range(2): A(f"v_lshlrev_b32 v{90+i}, 16, v{90+i}")
    for i in range(2): A(f"v_add_f32_dpp v{90+i}, v{88+i}, v{90+i} quad_perm:[2,3,2,3] row_mask:0xf bank_mask:0xf")
    A("v_cvt_pk_bf16_f32 v12, v90, v91")
    A(f"buffer_store_dword v12, v96, {srd(rO)}, 0 offen {ost}")
    stamp(3)
    stampval(9, sSPIN)
    A(f"s_cmp_lg_u32 {sID}, 0")
    A("s_cbranch_scc1 L_fin")
    A(f"v_mov_b32 v10, {sTAG}")
    A(f"v_mov_b32 v11, {EPOCH_OFF}")
    A("s_mov_b64 exec, 1")
    A(f"buffer_store_dword v10, v11, {srd(rWS)}, 0 offen {ost}")
    if pad_to:
        A.lab("L_pad")
        A("s_memrealtime s[96:97]")
        A("s_waitcnt lgkmcnt(0)")
        A("s_sub_u32 s96, s96, s98")
        A(f"s_cmp_lt_u32 s96, {pad_to}")
        A("s_cbranch_scc1 L_pad")
    if stamps: A("s_branch L_fin")
    else: A("s_endpgm")

    mark_helper = len(A.L)
    A.lab("L_helper")
    A.c("---- helper waves 4..7")
    A(f"s_sub_u32 {sHW}, {sWV}, 4")
    A(f"v_lshlrev_b32 v8, 2, v{vLANE}")
    A(f"v_lshl_add_u32 v9, v{vN}, 2, v{vG}")
    A("v_and_b32 v9, -2, v9")
    A("v_lshlrev_b32 v9, 1, v9")
    A(f"s_mul_i32 {sT0}, {sS}, 144")
    A(f"s_and_b32 {sT1}, {sS}, 3")
    A(f"s_lshl_b32 {sT1}, {sT1}, 2")
    A(f"s_add_u32 s74, {sT1}, {sHW}")
    A(f"s_mul_i32 {sT1}, s74, 72")
    A(f"s_mov_b32 {sT2}, {EPOCH_OFF}")
    A("s_waitcnt lgkmcnt(0)")
    A(f"s_load_dword {sTAG}, s[{pWS}:{pWS+1}], {sT2}")
    if cal and not rot: A("s_memrealtime s[78:79]")
    mk_srd(rX, pX, 1152)
    for k in range(5):
        A(f"buffer_load_dword v{vXA+k}, v8, {srd(rX)}, 0 offen offset:{k*256} {xld}")
    for T in range(2):
        A(f"buffer_load_dword v{vXC+T}, v9, {srd(rX)}, {sT0} offen offset:{T*128} {xld}")
    A(f"buffer_load_dword v{vXC+2}, v9, {srd(rX)}, {sT1} offen {xld}")
    GUB = WBUF + 72
    A(f"s_cmp_lg_u32 {sHW}, 0")
    A("s_cbranch_scc1 L_x13")
    mk_srd(rW, pWQ, 0 if "w" in abl else 576 * 4096 * 2)
    A(f"s_mul_i32 {sT0}, {sS}, {72*8192}")
    A(f"s_lshl_b32 {sT1}, {sH}, 8")
    A(f"s_add_u32 {sOFF}, {sT0}, {sT1}")
    A(f"v_lshlrev_b32 v8, 13, v{vG}")
    A(f"v_lshl_add_u32 v10, v{vN}, 4, v8")
    for t in range(0 if "W" in abl else 18):
        r = WBUF + 4 * t
        A(f"buffer_load_dwordx4 v[{r}:{r+3}], v10, {srd(rW)}, {sOFF} offen nt")
        A(f"s_add_u32 {sOFF}, {sOFF}, 32768")
    A.lab("L_x13")
    if bar0: A("s_barrier")
    if codepf:
        A(f"s_cmp_lg_u32 {sHW}, 3")
        A("s_cbranch_scc1 L_nopf")
        A(f"s_cmp_ge_u32 {sID}, {codepf}")
        A("s_cbranch_scc1 L_nopf")
        A("s_getpc_b64 s[76:77]")
        A.lab("L_pfbase")
        A(f"s_sub_u32 s76, s76, L_pfbase-{KNAME}")
        A("s_subb_u32 s77, s77, 0")
        A(f"v_lshlrev_b32 v8, 7, v{vLANE}")
        A(f"global_load_dword v12, v8, s[76:77] {pfld}")
        for k in (1, 2):
            A("v_add_u32 v8, 0x2000, v8")
            A(f"v_cmp_gt_i32 vcc, (L_codeend-{KNAME}-{k*8192})/128, v{vLANE}")
            A("s_and_saveexec_b64 s[72:73], vcc")
            A("s_cbranch_execz L_pf2")
            A(f"global_load_dword v{12+k}, v8, s[76:77] {pfld}")
        A.lab("L_pf2")
        A("s_mov_b64 exec, -1")
        A("s_waitcnt vmcnt(0)")
        A.lab("L_nopf")
    A(f"s_cmp_lt_u32 {sID}, 128")
    A(f"s_cselect_b32 s{rO}, s{pWG}, s{pWU}")
    A(f"s_cselect_b32 s{rO+1}, s{pWG+1}, s{pWU+1}")
    A(f"s_mov_b32 s{rO+2}, {0 if 'g' in abl else 576*4608*2}")
    A(f"s_mov_b32 s{rO+3}, 0x20000")
    two_group_offsets(9216, "0", vOA, vOB)
    A(f"s_mul_i32 {sOFF}, s74, {36*9216}")
    A(f"s_mul_i32 {sT0}, {sH}, 288")
    A(f"s_add_u32 {sOFF}, {sOFF}, {sT0}")
    def gu_issue(t):
        if "u" in abl: return
        r = GUB + 8 * t
        A(f"buffer_load_dwordx4 v[{r}:{r+3}], v{vOA}, {srd(rO)}, {sOFF} offen nt")
        A(f"buffer_load_dwordx4 v[{r+4}:{r+7}], v{vOB}, {srd(rO)}, {sOFF} offen nt")
        A(f"s_add_u32 {sOFF}, {sOFF}, {4*9216}")
    GE = guearly
    for t in range(GE): gu_issue(t)
    stamp_init()
    mk_srd(rWS, pWS, WS_SIZE)
    masks()
    A(f"s_cmp_lg_u32 {sHW}, 0")
    A("s_cbranch_scc1 L_x13b")
    A(f"s_waitcnt vmcnt({18 + 2*GE})")
    A("s_branch L_ln")
    A.lab("L_x13b")
    A(f"s_waitcnt vmcnt({2*GE})")
    A.lab("L_ln")
    GE0 = GE
    GE = max(GE, gumid)
    for t in range(GE0, GE): gu_issue(t)
    stamp(8)
    XF = 68
    for k in range(5):
        A(f"v_lshlrev_b32 v{XF+2*k}, 16, v{vXA+k}")
        A(f"v_and_b32 v{XF+2*k+1}, 0xffff0000, v{vXA+k}")
    A(f"v_add_f32 v8, v{XF}, v{XF+1}")
    for k in range(2, 10): A(f"v_add_f32 v8, v8, v{XF+k}")
    dpp_reduce([8], "v_add_f32")
    A(f"v_mul_f32 v8, {f2u(1.0/576)}, v8")
    A(f"v_cmp_gt_u32 vcc, 32, v{vLANE}")
    A(f"v_readlane_b32 {sT0}, v8, 63")
    A("s_nop 1")
    for k in range(10): A(f"v_subrev_f32 v{XF+k}, {sT0}, v{XF+k}")
    A(f"v_cndmask_b32 v{XF+8}, 0, v{XF+8}, vcc")
    A(f"v_cndmask_b32 v{XF+9}, 0, v{XF+9}, vcc")
    A(f"v_mul_f32 v9, v{XF}, v{XF}")
    for k in range(1, 10): A(f"v_fmac_f32 v9, v{XF+k}, v{XF+k}")
    dpp_reduce([9], "v_add_f32")
    A(f"v_mul_f32 v9, {f2u(1.0/576)}, v9")
    bf16_round(9, 9)
    A(f"v_add_f32 v9, {f2u(1e-5)}, v9")
    bf16_round(9, 9)
    A("v_sqrt_f32 v9, v9")
    A("s_nop 0")
    bf16_round(9, 9)
    A("v_rcp_f32 v9, v9")
    bf16_round(8, 8)
    A("s_nop 0")
    A(f"v_readlane_b32 {sT0}, v8, 63")
    A(f"v_readlane_b32 {sT1}, v9, 63")
    A(f"v_and_b32 v10, 1, v{vG}")
    A("v_lshlrev_b32 v10, 4, v10")
    for k in range(3):
        r = vXC + k
        A(f"v_lshrrev_b32 v{r}, v10, v{r}")
        A(f"v_lshlrev_b32 v{r}, 16, v{r}")
        A(f"v_subrev_f32 v{r}, {sT0}, v{r}")
        bf16_round(r, r)
        A(f"v_mul_f32 v{r}, {sT1}, v{r}")
        A(f"v_cvt_pk_bf16_f32 v{r}, v{r}, v{r}")
    A("s_waitcnt lgkmcnt(0)")
    A(f"s_add_u32 {sTAG}, {sTAG}, {TAG_STEP}")
    A(f"s_getreg_b32 {sTAGX}, hwreg(HW_REG_XCC_ID)")
    A(f"s_and_b32 {sTAGX}, {sTAGX}, 7")
    A(f"s_and_b32 s46, {sID}, 7")
    A(f"s_xor_b32 s46, s46, {sTAGX}")
    A(f"s_xor_b32 {sTAGX}, {sTAGX}, {sTAG}")
    stamp(1)
    A(f"s_cmp_lg_u32 {sHW}, 0")
    A("s_cbranch_scc1 L_noq")
    for t in range(18):
        a = sel(vXC + t // 16, t % 16)
        A(f"s_waitcnt vmcnt({17 - t + 2*GE})")
        A("s_nop 0")
        mfma(vACC, a, WBUF + 4 * t, first=(t == 0))
    A(f"v_lshlrev_b32 v8, 4, v{vLANE}")
    A(f"s_lshl_b32 {sT0}, {sB}, 14")
    A(f"s_add_u32 {sT0}, {sT0}, {OFF_Q}")
    A(f"s_lshl_b32 {sT1}, {sH}, 17")
    A(f"s_add_u32 {sT1}, {sT1}, {OFF_Q}")
    for k in range(8):
        A(f"s_add_u32 s{60+k}, {sT1}, {k*BLK}")
    A(f"v_mov_b32 v29, {sTAGX}")
    A(f"v_mov_b32 v31, {sTAGX}")
    A(f"v_mov_b32 v28, v{vACC}")
    A(f"v_mov_b32 v30, v{vACC+1}")
    A("s_nop 1")
    A(f"v_permlane32_swap_b32 v28, v{vACC+2}")
    A(f"v_permlane32_swap_b32 v30, v{vACC+3}")
    QG = WBUF
    def ld_q(fl):
        for k in range(8):
            A(f"buffer_load_dwordx4 v[{QG+4*k}:{QG+4*k+3}], v8, {srd(rWS)}, s{60+k} offen {fl}")
    qtags = [QG + 2 * k + 1 for k in range(16)]
    def exchange(name, store, load, tags, check, first_delay, slp, limit, preloaded=False):
        A("s_mov_b64 s[44:45], 0")
        if not preloaded:
            A("s_cmp_lg_u32 s46, 0")
            A(f"s_cbranch_scc1 {name}_wt")
            store("")
            stamp(9)
            if first_delay: A(f"s_sleep {first_delay}")
            load(qld)
        A("s_waitcnt vmcnt(0)")
        verdict(tags, check, True)
        A("s_and_b64 exec, exec, vcc")
        A(f"s_cbranch_execz {name}_chk")
        A("s_cmp_lg_u64 s[44:45], 0")
        A(f"s_cbranch_scc1 {name}_wt")
        poll(f"{name}_p1", lambda: load(qrt), tags, slp, check=check, limit=limit, keep=True, die=True, bail=f"{name}_wt")
        A.lab(f"{name}_chk")
        A("s_or_b64 s[44:45], s[44:45], exec")
        A(f"s_cbranch_scc0 {name}_ok")
        A.lab(f"{name}_wt")
        A("s_mov_b64 s[44:45], exec")
        store("sc1")
        A("s_mov_b64 exec, s[44:45]")
        A(f"s_cbranch_execz {name}_ok")
        poll(f"{name}_p2", lambda: load("sc1"), tags, slp, check=check, die=True)
        A.lab(f"{name}_ok")
        A("s_mov_b64 exec, -1")
    def q_store(fl):
        A("s_mov_b64 exec, -1")
        A(f"buffer_store_dwordx4 v[28:31], v8, {srd(rWS)}, {sT0} offen {fl}")
    if "q" not in abl:
        exchange("L_q", q_store, ld_q, qtags, None, qdelay, qsleep, qfall)
    for i in range(2):
        for k in range(4):
            A(f"v_add_f32 v{QG+8*k+2*i}, v{QG+8*k+2*i}, v{QG+8*k+4+2*i}")
        A(f"v_add_f32 v{QG+2*i}, v{QG+2*i}, v{QG+8+2*i}")
        A(f"v_add_f32 v{QG+16+2*i}, v{QG+16+2*i}, v{QG+24+2*i}")
        A(f"v_add_f32 v{28+i}, v{QG+2*i}, v{QG+16+2*i}")
    A(f"v_lshlrev_b32 v8, 5, v{vN}")
    A(f"v_and_b32 v9, 1, v{vG}")
    A("v_lshl_add_u32 v8, v9, 4, v8")
    A(f"v_lshrrev_b32 v9, 1, v{vG}")
    A("v_lshl_add_u32 v8, v9, 3, v8")
    A(f"ds_write_b64 v8, v[28:29] offset:{LDS_Q}")
    if tbase:
        A(f"v_subrev_u32 v12, s78, v{QG+32}")
        for d in ("quad_perm:[1,0,3,2]", "quad_perm:[2,3,0,1]", "row_half_mirror"):
            A("s_nop 1")
            A(f"v_min_i32_dpp v12, v12, v12 {d} row_mask:0xf bank_mask:0xf")
        A("v_add_u32 v12, s78, v12")
    A(f"v_mov_b32 v9, {LDS_CNT}")
    A("v_mov_b32 v10, 0")
    A("ds_write_b32 v9, v10")
    A("ds_write_b32 v9, v10 offset:4")
    A("ds_write_b32 v9, v10 offset:12")
    if tbase: A("ds_write_b32 v9, v12 offset:8")
    if cal:
        A("s_add_u32 s79, s78, 0x40000000")
        A("v_mov_b32 v11, s79")
        A("ds_write_b32 v9, v11 offset:8")
        A("ds_write_b32 v9, v10 offset:20")
    if prew:
        A("v_mov_b32 v11, -1.0")
        for w in range(4): A(f"ds_write_b32 v10, v11 offset:{LDS_ML + 8*w + 4}")
    stampval(10, sSPIN)
    A("s_waitcnt lgkmcnt(0)")
    stamp(2)
    A("s_barrier")
    A.lab("L_noq")
    for t in range(GE, min(max(GE, DG), 9)): gu_issue(t)
    DGE = min(max(GE, DG), 9)
    A(f"v_lshlrev_b32 v8, 5, v{vN}")
    A(f"v_lshl_add_u32 v8, v{vG}, 4, v8")
    A(f"s_mul_i32 {sT0}, {sHW}, 576")
    A(f"v_add_u32 v66, {sT0}, v8")
    A(f"s_mul_i32 {sT0}, {sHW}, 2304")
    A(f"v_add_u32 v67, {sT0}, v8")
    for t in range(9):
        a = sel(vXC + 2, t)
        A(f"s_waitcnt vmcnt({2*(min(DGE + t, 9) - (t + 1))})")
        A("s_nop 0")
        mfma(vACC, a, GUB + 8 * t, first=(t == 0))
        mfma(vACC + 4, a, GUB + 8 * t + 4, first=(t == 0))
        if DGE + t < 9: gu_issue(DGE + t)
    A(f"s_mul_i32 {sT0}, {sS}, {GU_ROW}")
    A(f"s_mul_i32 {sT1}, {sH}, 1152")
    A(f"s_add_u32 {sT0}, {sT0}, {sT1}")
    A(f"s_add_u32 s68, {sT0}, {GU_BASE}")
    A("s_nop 3")
    two_group_to_lds(vACC, vACC + 4, 66)
    def gu_publish():
        A(f"v_lshlrev_b32 v8, 3, v{vLANE}")
        for w in range(4):
            A(f"ds_read_b64 v[{24+2*w}:{25+2*w}], v8 offset:{LDS_B + w*576}")
            A(f"ds_read_b64 v[{32+2*w}:{33+2*w}], v8 offset:{LDS_B + w*576 + 512}")
        for r in (49, 51, 53, 55): A(f"v_mov_b32 v{r}, {sTAGX}")
        A("s_waitcnt lgkmcnt(0)")
        for b0, d in ((24, 48), (32, 52)):
            for i in range(2):
                A(f"v_add_f32 v{b0+i}, v{b0+i}, v{b0+2+i}")
                A(f"v_add_f32 v{b0+4+i}, v{b0+4+i}, v{b0+6+i}")
                A(f"v_add_f32 v{d+2*i}, v{b0+i}, v{b0+4+i}")
        A("s_cmp_lg_u32 s46, 0")
        A("s_cbranch_scc1 L_gu_wt")
        gu_store("")
        A("s_branch L_gu_pub")
        A.lab("L_gu_wt")
        gu_store("sc1")
        A.lab("L_gu_pub")
    def gu_store(fl):
        A("s_mov_b64 exec, -1")
        A(f"buffer_store_dwordx4 v[48:51], v69, {srd(rWS)}, s68 offen {fl}")
        A("s_mov_b64 exec, 0xff")
        A(f"buffer_store_dwordx4 v[52:55], v69, {srd(rWS)}, s68 offen offset:1024 {fl}")
        A("s_mov_b64 exec, -1")
    stamp(3)
    A(f"s_cmp_eq_u32 {sHW}, 0")
    A("s_cbranch_scc1 L_b1done")
    A("s_barrier")
    A.lab("L_b1done")
    A(f"v_mov_b32 v8, {LDS_CNT}")
    A("v_mov_b32 v9, 1")
    A("s_mov_b64 exec, 1")
    A("s_waitcnt lgkmcnt(0)")
    A("ds_add_u32 v8, v9 offset:12")
    A("s_mov_b64 exec, -1")
    mk_srd(rW, pWO, 0 if "O" in abl else 4096 * 576 * 2)
    A(f"v_mul_u32_u24 v8, 1152, v{vG}")
    A(f"v_lshl_add_u32 v{vOA}, v{vN}, 4, v8")
    A(f"v_mov_b32 v9, {OOB}")
    A(f"v_cmp_gt_u32 vcc, 8, v{vN}")
    A(f"s_lshl_b32 {sT0}, {sH}, 2")
    A(f"s_add_u32 {sT0}, {sT0}, {sHW}")
    if pack36:
        A(f"v_add_u32 v9, {4*1152 - 128}, v{vOA}")
    A(f"v_cndmask_b32 v{vOB}, v9, v{vOA}, vcc")
    A(f"s_mul_i32 {sOFF}, {sT0}, {32*1152}")
    for t in range(0 if "o" in abl else 8):
        for cg in range(5):
            if pack36 and cg == 4 and t % 2: continue
            A(f"s_waitcnt vmcnt({DW-1})")
            r = WBUF + 20 * t + 4 * cg
            A(f"buffer_load_dwordx4 v[{r}:{r+3}], v{vOA if cg < 4 else vOB}, {srd(rW)}, {sOFF} offen offset:{cg*256} {wold}")
        A(f"s_add_u32 {sOFF}, {sOFF}, {4*1152}")
    A(f"v_and_b32 v8, 7, v{vN}")
    A(f"v_lshl_add_u32 v8, v8, 2, v{vG}")
    A(f"s_lshl_b32 {sT0}, {sHW}, 7")
    A(f"v_lshl_add_u32 v66, v8, 2, {sT0}")
    record_addr_setup()
    A("v_mov_b32 v70, 0")
    A(f"v_lshlrev_b32 v65, {8 + mlsh}, v{vLANE}")
    for r in (81, 83): A(f"v_mov_b32 v{r}, {sTAG}")
    A(f"s_lshl_b32 {sCNT}, {sB}, {mlsh}")
    A(f"s_add_u32 {sCNT}, {sCNT}, {ML_BASE}")
    A(f"s_mov_b32 {sT2}, {LOG2E}")
    A(f"s_cmp_lg_u32 {sHW}, 3")
    A("s_cbranch_scc1 L_nocal")
    if pubmask:
        span = NS * (pubmask + 1)
        A(f"s_and_b32 s64, {sID}, {(256 - span) & 0xff}")
        A("s_lshl_b32 s64, s64, 7")
        A(f"v_lshrrev_b32 v8, 3, v{vLANE}")
        A(f"v_mul_u32_u24 v8, {8 * (pubmask + 1)}, v8")
        A(f"v_and_b32 v9, 7, v{vLANE}")
        A(f"v_add3_u32 v8, v8, v9, {8 * pubsel}" if 8 * pubsel <= 64 else "ERR")
        A("v_lshlrev_b32 v44, 7, v8")
    else:
        A(f"s_and_b32 s64, {sID}, {256 - NS}")
        A("s_lshl_b32 s64, s64, 7")
        A(f"v_lshlrev_b32 v44, 7, v{vLANE}")
    A(f"v_mov_b32 v93, {sTAG}")
    A(f"v_mov_b32 v95, {sTAG}")
    HG = 24
    A(f"v_mul_u32_u24 v8, 57, v{vLANE}")
    A("v_lshrrev_b32 v8, 9, v8")
    A("v_mul_u32_u24 v9, 9, v8")
    A(f"v_sub_u32 v9, v{vLANE}, v9")
    A(f"v_mul_u32_u24 v11, {GU_ROW}, v8")
    A("v_lshl_add_u32 v11, v9, 4, v11")
    A(f"s_mul_i32 {sT0}, {sB}, 144")
    A(f"s_add_u32 {sT0}, {sT0}, {GU_BASE}")
    A(f"v_add_u32 v11, {sT0}, v11")
    A("v_mul_u32_u24 v12, 72, v8")
    A("v_lshl_add_u32 v12, v9, 3, v12")
    A(f"v_add_u32 v12, {LDS_G}, v12")
    A(f"v_mov_b32 v13, {OOB}")
    A("v_cmp_gt_u32 s[70:71], 1, v8")
    A(f"v_lshl_add_u32 v75, v{vN}, 2, v{vG}")
    A("v_cmp_gt_u32 s[72:73], 18, v75")
    A("v_lshlrev_b32 v75, 2, v75")
    A("v_cndmask_b32 v13, v13, v11, s[70:71]")
    A(f"v_lshlrev_b32 v76, 2, v{vLANE}")
    def wait_seq(seq, tile=False):
        l = newlab("cw")
        A(f"s_mov_b32 {sSPIN}, 0")
        A.lab(l)
        A("s_sleep 4")
        A("ds_read_b64 v[8:9], v71 offset:16")
        if tile: A("ds_read_b32 v10, v71 offset:12")
        A(f"s_add_u32 {sSPIN}, {sSPIN}, 1")
        A("s_waitcnt lgkmcnt(0)")
        A("v_readfirstlane_b32 s67, v9")
        if tile: A("v_readfirstlane_b32 s66, v10")
        A(f"s_cmp_ge_u32 {sSPIN}, {spin}")
        A(f"s_cbranch_scc1 {l}x")
        A(f"s_cmp_lt_u32 s67, {seq}")
        A(f"s_cbranch_scc1 {l}")
        if tile:
            A("s_cmp_lt_u32 s66, 4")
            A(f"s_cbranch_scc1 {l}")
        A.lab(l + "x")
    for k, c in enumerate(CP):
        nominal = sum(2 * (TK if i < 4 else TV) for i in range(c))
        wait_seq(c + 1, tile=(k == gck))
        l2 = newlab("cs")
        if pubmask:
            A(f"s_and_b32 {sT0}, {sID}, {pubmask << 3}")
            A(f"s_cmp_lg_u32 {sT0}, {pubsel << 3}")
            A(f"s_cbranch_scc1 {l2}")
        A(f"ds_read_b32 v92, v71 offset:{32 + 4*c}")
        A("s_waitcnt lgkmcnt(0)")
        A("v_mov_b32 v94, v92")
        A(f"s_lshl_b32 {sT0}, {sID}, 7")
        A(f"s_add_u32 {sT0}, {sT0}, {TS_BASE + k*32768}")
        A("s_mov_b64 exec, 0xff")
        A(f"buffer_store_dwordx4 v[92:95], v69, {srd(rWS)}, {sT0} offen {tst}")
        A("s_mov_b64 exec, -1")
        A.lab(l2)
        if k == gck and "G" not in abl: gu_publish()
        wait_seq(c + 2)
        A(f"s_add_u32 {sT0}, s64, {TS_BASE + k*32768}")
        A("v_mov_b32 v79, 0")
        A("v_mov_b32 v78, 0")
        if NS == 32: A("s_mov_b32 exec_hi, 0")
        elif NS < 32: A(f"s_mov_b64 exec, {(1 << NS) - 1}")
        A(f"buffer_load_dwordx2 v[78:79], v44, {srd(rWS)}, {sT0} offen {tld}")
        hh = (k == gck and "G" not in abl and "h" not in abl)
        def ld_gu2(fl=hld):
            A(f"s_mov_b32 {sT0}, {7*GU_ROW}")
            A(f"buffer_load_dwordx4 v[24:27], v11, {srd(rWS)}, 0 offen {fl}")
            A(f"buffer_load_dwordx4 v[28:31], v13, {srd(rWS)}, {sT0} offen {fl}")
        def ck_gu2():
            A(f"v_mov_b32 v14, {sTAGX}")
            A("v_cndmask_b32 v29, v14, v29, s[70:71]")
            A("v_cndmask_b32 v31, v14, v31, s[70:71]")
            tagcheck([25, 27, 29, 31], sTAG=sTAGX)
        if hh:
            A("s_mov_b32 exec_lo, -1")
            A("s_mov_b32 exec_hi, 0x7fffffff")
            ld_gu2()
        A("s_mov_b64 exec, -1")
        A(f"s_waitcnt vmcnt({2 if hh else 0})")
        A(f"v_cmp_eq_u32 vcc, {sTAG}, v79")
        A("v_sub_u32 v78, v78, v8")
        A("v_cvt_f32_i32 v78, v78")
        A("s_bcnt1_i32_b64 s65, vcc")
        A("v_cndmask_b32 v78, 0, v78, vcc")
        dpp_reduce([78], "v_add_f32")
        l3 = newlab("cf")
        A(f"s_cmp_lt_u32 s65, {NS // 2}")
        A(f"s_cbranch_scc1 {l3}")
        A("v_cvt_f32_u32 v9, s65")
        A("v_rcp_f32 v9, v9")
        A("s_nop 0")
        A("v_mul_f32 v78, v78, v9")
        A("v_cvt_i32_f32 v78, v78")
        A("v_add_u32 v78, v78, v8")
        A(f"v_subrev_u32 v78, {(nominal - MG) & 0xffffffff}, v78")
        A("s_mov_b32 exec_lo, 0")
        A("s_mov_b32 exec_hi, 0x80000000")
        A("ds_write_b32 v71, v78 offset:8")
        A("s_mov_b64 exec, -1")
        A.lab(l3)
        if hh:
            A("s_mov_b32 exec_hi, 0x7fffffff")
            exchange("L_h", gu_store, ld_gu2, None, ck_gu2, 0, hsleep, 4, preloaded=True)
            A("s_mov_b32 exec_lo, -1")
            A("s_mov_b32 exec_hi, 0x7fffffff")
            A("ds_write2_b32 v12, v24, v26 offset0:0 offset1:1")
            A("s_mov_b64 exec, s[70:71]")
            A("ds_write2_b32 v12, v28, v30 offset0:126 offset1:127")
            A("s_mov_b64 exec, -1")
            A("s_waitcnt lgkmcnt(0)")
            for r in range(8):
                A(f"ds_read_b32 v{24+r}, v75 offset:{LDS_G + r*72}")
            A("s_waitcnt lgkmcnt(0)")
            for m in range(2):
                A(f"v_add_f32 v{24+4*m}, v{24+4*m}, v{25+4*m}")
                A(f"v_add_f32 v{26+4*m}, v{26+4*m}, v{27+4*m}")
                A(f"v_add_f32 v{88+m}, v{24+4*m}, v{26+4*m}")
            bf16_round(88, 88); bf16_round(89, 89)
            A(f"v_mul_f32 v{vCO}, v88, v89")
            A(f"v_cvt_pk_bf16_f32 v{vCO}, v{vCO}, v{vCO}")
            A(f"v_cndmask_b32 v{vCO}, 0, v{vCO}, s[72:73]")
            A(f"ds_write_b32 v76, v{vCO} offset:{LDS_H}")
            stamp(4)
    A.lab("L_nocal")
    A("s_waitcnt vmcnt(0) lgkmcnt(0)")
    stamp(5)
    def weights():
        A("v_max3_f32 v80, v48, v50, v52")
        A("v_max_f32 v80, v80, v54")
        for w in range(4): A(f"v_sub_f32 v{48+2*w}, v{48+2*w}, v80")
        for w in range(4): A(f"v_mul_f32 v{48+2*w}, {sT2}, v{48+2*w}")
        for w in range(4): A(f"v_exp_f32 v{48+2*w}, v{48+2*w}")
        A("s_nop 0")
        A("v_mul_f32 v82, v48, v49")
        for w in range(1, 4): A(f"v_fmac_f32 v82, v{48+2*w}, v{49+2*w}")
    if prew:
        A(f"s_mov_b32 {sSPIN}, 0")
        A.lab("L_mlw")
        A(f"s_sleep {wsleep}")
        A(f"ds_read_b128 v[48:51], v70 offset:{LDS_ML}")
        A(f"ds_read_b128 v[52:55], v70 offset:{LDS_ML+16}")
        A(f"s_add_u32 {sSPIN}, {sSPIN}, 1")
        A("s_waitcnt lgkmcnt(0)")
        A("v_or3_b32 v9, v49, v51, v53")
        A("v_or_b32 v9, v9, v55")
        A("s_nop 0")
        A(f"v_readfirstlane_b32 {sT0}, v9")
        A(f"s_cmp_ge_u32 {sSPIN}, {spin*4}")
        A("s_cbranch_scc1 L_mlw2")
        A(f"s_cmp_lt_i32 {sT0}, 0")
        A("s_cbranch_scc1 L_mlw")
        A.lab("L_mlw2")
        weights()
        if prew == 2:
            A(f"s_cmp_lg_u32 {sHW}, 2")
            A("s_cbranch_scc1 L_noml0")
            if tml:
                A("s_memrealtime s[76:77]")
                A("s_waitcnt lgkmcnt(0)")
                A("s_and_b32 s76, s76, 0xffff")
                A("v_or_b32 v80, s76, v80")
            A(f"s_mov_b64 exec, {(1 << R) - 1}")
            A(f"buffer_store_dwordx4 v[80:83], v65, {srd(rWS)}, {sCNT} offen {mlst}")
            A("s_mov_b64 exec, -1")
            A.lab("L_noml0")
    if hprio: A(f"s_setprio {hprio}")
    A("s_barrier")
    if ts: stamp(1)
    if not prew:
        A(f"ds_read_b128 v[48:51], v70 offset:{LDS_ML}")
        A(f"ds_read_b128 v[52:55], v70 offset:{LDS_ML+16}")
    for w in range(4):
        A(f"ds_read_b32 v{56+w}, v66 offset:{LDS_O + w*512}")
    if not prew:
        A("s_waitcnt lgkmcnt(4)")
        weights()
    A("s_waitcnt lgkmcnt(0)")
    A("v_mul_f32 v10, v48, v56")
    for w in range(1, 4):
        A(f"v_fmac_f32 v10, v{48+2*w}, v{56+w}")
    A(f"v_cvt_pk_bf16_f32 v{vCO}, v10, v10")
    A(f"s_cmp_lg_u32 {sHW}, {99 if prew == 2 else 2}")
    A("s_cbranch_scc1 L_noml")
    if tml:
        A("s_memrealtime s[76:77]")
        A("s_waitcnt lgkmcnt(0)")
        A("s_and_b32 s76, s76, 0xffff")
        A("v_or_b32 v80, s76, v80")
    A(f"s_mov_b64 exec, {(1 << R) - 1}")
    A(f"buffer_store_dwordx4 v[80:83], v65, {srd(rWS)}, {sCNT} offen {mlst}")
    A("s_mov_b64 exec, -1")
    A.lab("L_noml")
    if ts: stamp(2)
    if pack36:
        for i in range(4):
            A(f"v_mov_b32_dpp v{12+i}, v{vMK[i]} row_shr:8 row_mask:0xf bank_mask:0xc")
    a = sel(vCO, 0)
    A("s_nop 1")
    for t in range(8):
        an = vAop[aop_flip[0]]; aop_flip[0] ^= 1
        for cg in range(4 if pack36 else 5):
            mfma(vACC + 4 * cg if cg < 4 else 84, a, WBUF + 20 * t + 4 * cg, first=(t == 0))
            if t < 7 and cg < 2:
                for i in (2 * cg, 2 * cg + 1):
                    A(f"v_and_b32_dpp v{an+i}, v{vCO}, v{vMK[i]} row_newbcast:{t+1} row_mask:0xf bank_mask:0xf")
            if pack36 and t % 2 == 0 and cg >= 2:
                for i in (2 * (cg - 2), 2 * (cg - 2) + 1):
                    A(f"v_mov_b32 v{44+i}, v{a+i}")
        if pack36 and t % 2 == 0:
            for i in range(4):
                A(f"v_and_b32_dpp v{44+i}, v{vCO}, v{12+i} row_newbcast:{t+1} row_mask:0xf bank_mask:0xc")
            A("s_nop 1")
            mfma(84, 44, WBUF + 20 * t + 16, first=(t == 0))
        a = an
    A("s_nop 3")
    A("s_mov_b32 exec_hi, 0")
    for cg in range(4):
        A(f"ds_write_b128 v67, v[{vACC+4*cg}:{vACC+4*cg+3}] offset:{LDS_A + cg*512}")
    if pack36:
        A("s_mov_b64 exec, -1")
        A("s_nop 4")
        for i in range(4): A(f"v_mov_b32 v{44+i}, v{84+i}")
        A("s_nop 1")
        for i in range(4): A(f"v_permlane32_swap_b32 v{44+i}, v{84+i}")
        A("s_nop 1")
        for i in range(4): A(f"v_add_f32_dpp v{44+i}, v{84+i}, v{44+i} row_shl:8 row_mask:0xf bank_mask:0x3")
        A("s_mov_b32 exec_hi, 0")
        A("s_mov_b32 exec_lo, 0x00ff00ff")
        A(f"ds_write_b128 v67, v[44:47] offset:{LDS_A + 2048}")
    else:
        A("s_mov_b32 exec_lo, 0x00ff00ff")
        A(f"ds_write_b128 v67, v[84:87] offset:{LDS_A + 2048}")
    if bar4:
        A("s_mov_b64 exec, -1")
        A("s_waitcnt lgkmcnt(0)")
        if ts: stamp(4)
        A("s_barrier")
    else:
        A("s_mov_b64 exec, 1")
        A("s_waitcnt lgkmcnt(0)")
        A("ds_add_u32 v71, v72")
        A("s_mov_b64 exec, -1")
        if ts: stamp(4)
        lds_wait("L_hw", 8)
    if ts: stamp(7)
    record_store()
    A(f"s_cmp_lg_u32 {sHW}, 3")
    A("s_cbranch_scc1 L_nox")
    A("s_nop 1")
    record_store(extra=1)
    A.lab("L_nox")
    if early:
        A(f"s_cmp_lg_u32 {sHW}, 2")
        A("s_cbranch_scc1 L_nox2")
        record_store(back=3)
        A.lab("L_nox2")
    stamp(6)
    if relayout:
        A("s_branch L_fin" if stamps else "s_endpgm")
        hl = A.L[mark_helper:]
        del A.L[mark_helper:]
        i = A.L.index("@@HELPER@@")
        A.L[i:i+1] = hl
    A.lab("L_fin")
    stamp_flush()
    A.lab("L_end")
    A("s_endpgm")
    A.lab("L_codeend")

    out = HEADER + DOC
    out += f"; @launch grid=(256,1,1) block=(512,1,1) lds={LDS_BYTES}\n"
    out += '.amdgcn_target "amdgcn-amd-amdhsa--gfx950"\n.text\n'
    out += f".globl {KNAME}\n.p2align 8\n.type {KNAME},@function\n"
    out += "\n".join(A.L) + "\n"
    out += '.section .rodata,"a"\n.p2align 6\n'
    out += f""".amdhsa_kernel {KNAME}
  .amdhsa_next_free_vgpr 256
  .amdhsa_next_free_sgpr 102
  .amdhsa_accum_offset 256
  .amdhsa_group_segment_fixed_size 0
  .amdhsa_kernarg_size 96
  .amdhsa_user_sgpr_count 2
  .amdhsa_user_sgpr_kernarg_segment_ptr 1
  .amdhsa_system_sgpr_workgroup_id_x 1
.end_amdhsa_kernel
"""
    return out

if __name__ == "__main__":
    import json
    kw = json.loads(sys.argv[1]) if len(sys.argv) > 1 else {}
    sys.stdout.write(gen(**kw))
```

```python
import sys, struct

KNAME = "parallel_sum__mha_block_cached__glu_gated_bilinear__decode_kernel"

HEADER = """; Kernarg layout for this problem (96 bytes, ptrs only, base s[0:1]):
"""

DOC = """; ---------------------------------------------------------------------------------------------------------
; Hand-offs between workgroups are {data, tag} granules in d_ws; tag = epoch word of d_ws + constant, the epoch
; ---------------------------------------------------------------------------------------------------------
"""

def f2u(x):
    return struct.unpack("<I", struct.pack("<f", x))[0]

BLK = 16384
OFF_R, OFF_Q = 0, 9216
GU_BASE = 256 * BLK
GU_ROW = 4608 * 8
ML_BASE = GU_BASE + 32 * GU_ROW
EPOCH_OFF = ML_BASE + 16 * 32768
TS_BASE = EPOCH_OFF + 4096
STAMP_BASE = 6 << 20
REC_BASE = 8 << 20
WS_SIZE = 12 << 20
OOB = 0x40000000
TAG_STEP = 0x9E3779B9
LOG2E = f2u(1.4426950408889634)
LDS_Q = 0
LDS_CNT = 512
LDS_H = 768
LDS_ML = 1024
LDS_O = 1280
LDS_B = 3328
LDS_W = 5632
LDS_A = 8192
LDS_G = 8192 + 4 * 2304 + 512
LDS_BYTES = LDS_G + 2304 + 256

class G:
    def __init__(self):
        self.L = []
    def __call__(self, s):
        self.L.append("  " + s)
    def lab(self, s):
        self.L.append(s + ":")
    def c(self, s):
        self.L.append("  ; " + s)

def gen(D=5, INIT=6, stamps=False, DG=5, DW=3, spin=1 << 18, codepf=16, fsleep=0, qdelay=8, abl="",
        hsleep=40, D2=6, T0=800, TK=236, TV=219, mlsleep=4, warm="", cdelay=0, dbg=0, ts=0, cal=1, MG=30, CP=(2, 4), NS=16, tbase=0, guearly=0, htail=2, hstep=16, wdstep=8, apipe=1, D3=8, L3=50, D0=4, L0=60, rot=0, CI=8, FK=0, FV=0, FP=0, clk=0, qld="nt", hld="nt", tld="", qst="", gust="", tst="sc1", gupub=1, gck=1, fmode=1, rdelay=5, mlsh=5, early=0, INIT0=0, XS=0, late=None, ldelay=6, bar4=1, prew=2, endb=100, endstep=24, rt=0, pre=0, pdelay=4, wsleep=3, R=1, ost="", prio=0, hprio=2, fpipe=1, kvtrim=0, pack36=0, qprobe=0, qpfl="nt", tml=100, rld1="sc1", cmap=1, pubmask=15, pubsel=8, align=0, inst=0, TX=None, TMIN=6, TF=72, qrt="sc1", pfld="", xld="", wold="nt", rld="sc1", mlld="sc1", rst="sc1", mlst="sc1", swap=0, relayout=1, bar0=0, qfall=6, pad_to=0, gumid=0, qsleep=16):
    if dbg: stamps = True
    A = G()
    sID = "s2"
    pX, pK, pV, pWQ, pWO, pWG, pWU, pWD, pOUT, pDBG, pWS = 16, 18, 20, 22, 24, 28, 30, 32, 34, 36, 38
    rX, rST, rW, rWS, rO = 40, 44, 48, 52, 56
    sWV, sH, sS, sB, sHW = "s3", "s4", "s5", "s6", "s7"
    sOFF, sCNT, sT0, sT1, sT2, sM = "s8", "s9", "s10", "s11", "s12", "s13"
    sSPIN, sTAG = "s14", "s15"
    mU = ["s[60:61]", "s[62:63]", "s[64:65]", "s[66:67]"]
    mT = ["s[68:69]", "s[70:71]", "s[72:73]", "s[74:75]"]
    def srd(r): return f"s[{r}:{r+3}]"
    def mk_srd(r, p, size):
        A(f"s_mov_b32 s{r}, s{p}"); A(f"s_mov_b32 s{r+1}, s{p+1}"); A(f"s_mov_b32 s{r+2}, {size}"); A(f"s_mov_b32 s{r+3}, 0x20000")
    SB = 80
    def stamp(idx):
        if not stamps: return
        assert idx < 11
        A(f"s_memrealtime s[{SB+2*idx}:{SB+2*idx+1}]")
    def stampval(idx, sreg):
        if not stamps: return
        A(f"s_mov_b32 s{SB+2*idx}, {sreg}")
    def stamp_init():
        if stamps:
            for i in range(1, 11): A(f"s_mov_b32 s{SB+2*i}, 0")
    def stamp_flush():
        if not stamps: return
        A("s_waitcnt vmcnt(0) lgkmcnt(0)")
        A("s_mov_b64 exec, -1")
        A(f"s_lshl_b32 s8, {sID}, 3")
        A(f"s_add_u32 s8, s8, {sWV}")
        A("s_lshl_b32 s8, s8, 6")
        A(f"s_add_u32 s8, s8, {STAMP_BASE}")
        A("v_mov_b32 v8, 0")
        for i in range(11):
            A(f"v_writelane_b32 v8, s{SB+2*i}, {i}")
        A(f"v_lshlrev_b32 v9, 2, v{vLANE}")
        A(f"v_mov_b32 v10, {OOB}")
        A(f"v_cmp_gt_u32 vcc, 16, v{vLANE}")
        A("s_nop 1")
        A("v_cndmask_b32 v9, v10, v9, vcc")
        A(f"buffer_store_dword v8, v9, {srd(rWS)}, s8 offen")
        if dbg:
            A(f"s_cmp_lg_u32 {sID}, {dbg-1}")
            A("s_cbranch_scc1 L_end")
            A(f"s_cmp_lg_u32 {sWV}, 3")
            A("s_cbranch_scc1 L_end")
            mk_srd(rO, pDBG, 256)
            A(f"v_subrev_u32 v8, s{SB}, v8")
            A(f"buffer_store_dword v8, v9, {srd(rO)}, 0 offen")
    vLANE, vG, vN = 1, 2, 3
    vMK = [4, 5, 6, 7]
    vAop = [16, 20]
    vACC = 24
    vOFFC, vOFFV = 46, 47
    vBQ = 48
    vDK = 64
    vS = 68
    vSN, vP, vL = 76, 77, 78
    vX4 = 80
    WDB = 84
    RING = 128
    vXA = 48
    vXC = 56
    vOA, vOB = 60, 61
    vCO = 64
    WBUF = 96
    uid = [0]
    def newlab(p):
        uid[0] += 1
        return f"L_{p}{uid[0]}"

    def dpp_reduce(regs, op):
        pad = "s_nop 1" if len(regs) == 1 else ("s_nop 0" if len(regs) == 2 else None)
        A("s_nop 1")
        for d, rm in (("row_shr:1", "0xf"), ("row_shr:2", "0xf"), ("row_shr:4", "0xf"), ("row_shr:8", "0xf"), ("row_bcast:15", "0xa"), ("row_bcast:31", "0xc")):
            for r in regs: A(f"{op}_dpp v{r}, v{r}, v{r} {d} row_mask:{rm} bank_mask:0xf")
            if pad: A(pad)
        if not pad: A("s_nop 0")
    aop_flip = [0]
    def sel(coef, idx):
        a = vAop[aop_flip[0]]; aop_flip[0] ^= 1
        for i in range(4):
            A(f"v_and_b32_dpp v{a+i}, v{coef}, v{vMK[i]} row_newbcast:{idx} row_mask:0xf bank_mask:0xf")
        return a
    def mfma(d, a, b, first=False):
        c = "0" if first else f"v[{d}:{d+3}]"
        A(f"v_mfma_f32_16x16x32_bf16 v[{d}:{d+3}], v[{a}:{a+3}], v[{b}:{b+3}], {c}")
    def bf16_round(dst, src):
        A(f"v_cvt_pk_bf16_f32 v{dst}, v{src}, v{src}")
        A(f"v_lshlrev_b32 v{dst}, 16, v{dst}")
    sTAGX = "s75"
    def tagcheck(regs, dst=9, tmp=10, tmp2=15, sTAG=sTAG):
        regs = list(regs)
        lv = [(regs[i], regs[i+1]) for i in range(0, len(regs), 2)]
        A(f"v_bitop3_b32 v{dst}, v{lv[0][0]}, v{lv[0][1]}, {sTAG} bitop3:0x7e")
        rest = lv[1:]; k = 0
        while k < len(rest):
            A(f"v_bitop3_b32 v{tmp}, v{rest[k][0]}, v{rest[k][1]}, {sTAG} bitop3:0x7e")
            if k + 1 < len(rest):
                A(f"v_bitop3_b32 v{tmp2}, v{rest[k+1][0]}, v{rest[k+1][1]}, {sTAG} bitop3:0x7e")
                A(f"v_or3_b32 v{dst}, v{dst}, v{tmp}, v{tmp2}")
            else:
                A(f"v_or_b32 v{dst}, v{dst}, v{tmp}")
            k += 2
    def poll(label, loads, tagregs, slp, check=None, limit=None, keep=False, die=False, bail=None):
        A(f"s_mov_b32 {sSPIN}, 0")
        A.lab(label)
        loads()
        A("s_waitcnt vmcnt(0)")
        verdict(tagregs, check, die)
        A(f"s_add_u32 {sSPIN}, {sSPIN}, 1")
        A("s_and_b64 exec, exec, vcc")
        A(f"s_cbranch_execz {label}_done")
        if bail:
            A("s_cmp_lg_u64 s[44:45], 0")
            A(f"s_cbranch_scc1 {bail}")
        if slp: A(f"s_sleep {slp}")
        A(f"s_cmp_lt_u32 {sSPIN}, {limit or spin}")
        A(f"s_cbranch_scc1 {label}")
        A.lab(f"{label}_done")
        if not keep: A("s_mov_b64 exec, -1")
    def verdict(tagregs, check, die):
        if check: check()
        else: tagcheck(tagregs, sTAG=sTAGX if die else sTAG)
        if die:
            A("v_cmp_ne_u32 vcc, 0, v9")
            A("s_or_b64 s[44:45], s[44:45], vcc")
            A("v_cmp_lt_u32 vcc, 7, v9")
            A("s_andn2_b64 s[44:45], s[44:45], vcc")
        else:
            A("v_cmp_ne_u32 vcc, 0, v9")
    def two_group_offsets(rowstride, sw, oa, ob):
        A(f"s_mul_i32 {sT2}, {sw}, 288")
        A(f"v_mul_u32_u24 v8, {rowstride}, v{vG}")
        A(f"v_lshl_add_u32 v8, v{vN}, 4, v8")
        A(f"v_add_u32 v{oa}, {sT2}, v8")
        A(f"v_add_u32 v8, 256, v{oa}")
        A(f"v_mov_b32 v9, {OOB}")
        A(f"v_cmp_gt_u32 vcc, 2, v{vN}")
        A("s_nop 1")
        A(f"v_cndmask_b32 v{ob}, v9, v8, vcc")
    def two_group_to_lds(accA, accB, vaddr):
        A("s_mov_b32 exec_hi, 0")
        A(f"ds_write_b128 v{vaddr}, v[{accA}:{accA+3}] offset:{LDS_B}")
        A("s_mov_b32 exec_lo, 0x00030003")
        A(f"ds_write_b128 v{vaddr}, v[{accB}:{accB+3}] offset:{LDS_B+512}")
        A("s_mov_b64 exec, -1")
    def masks():
        A(f"v_and_b32 v8, 1, v{vN}")
        A("v_lshlrev_b32 v8, 4, v8")
        A(f"s_mov_b32 {sT0}, 0xffff")
        A(f"v_lshlrev_b32 v8, v8, {sT0}")
        A(f"v_lshrrev_b32 v11, 1, v{vN}")
        for i in range(4):
            A(f"v_cmp_eq_u32 vcc, {i}, v11")
            A("s_nop 1")
            A(f"v_cndmask_b32 v{vMK[i]}, 0, v8, vcc")
    def tail_store_setup():
        pass
    def lds_wait(label, target):
        A(f"s_mov_b32 {sSPIN}, 0")
        A.lab(label)
        A("ds_read_b32 v9, v71")
        A(f"s_add_u32 {sSPIN}, {sSPIN}, 1")
        A("s_waitcnt lgkmcnt(0)")
        A(f"v_readfirstlane_b32 {sT0}, v9")
        A(f"s_cmp_ge_u32 {sSPIN}, {spin}")
        A(f"s_cbranch_scc1 {label}_done")
        A(f"s_cmp_lt_u32 {sT0}, {target}")
        A(f"s_cbranch_scc1 {label}")
        A.lab(f"{label}_done")
    def record_addr_setup():
        A(f"v_and_b32 v8, 1, v{vLANE}")
        A(f"v_lshrrev_b32 v9, 2, v{vLANE}")
        A("v_lshlrev_b32 v9, 4, v9")
        A("v_lshl_add_u32 v8, v8, 3, v9")
        A(f"s_lshl_b32 {sT0}, {sWV}, 8")
        A(f"v_add_u32 v68, {sT0}, v8")
        A(f"v_lshlrev_b32 v69, 4, v{vLANE}")
        A(f"v_and_b32 v8, 2, v{vLANE}")
        A("v_cmp_eq_u32 s[62:63], 0, v8")
        A(f"v_mov_b32 v71, {LDS_CNT}")
        A("v_mov_b32 v72, 1")
        A(f"v_mov_b32 v41, {sTAG}")
        A(f"v_mov_b32 v43, {sTAG}")
        if rt:
            A(f"v_lshrrev_b32 v8, 2, v{vLANE}")
            A(f"v_and_b32 v9, 3, v{vLANE}")
            A("v_lshlrev_b32 v9, 4, v9")
            A("v_lshl_add_u32 v65, v8, 14, v9")
            A(f"s_lshl_b32 s60, {sB}, 6")
            A(f"s_lshl_b32 {sT0}, {sWV}, 18")
            A(f"s_add_u32 s60, s60, {sT0}")
            A(f"s_add_u32 s60, s60, {REC_BASE}")
            A(f"s_add_u32 s61, s60, {1 << 18}")
        else:
            A(f"s_lshl_b32 s60, {sB}, 14")
            A(f"s_lshl_b32 {sT0}, {sWV}, 10")
            A(f"s_add_u32 s60, s60, {sT0}")
    def record_store(extra=0, base=48, back=0):
        lo = 256 * extra
        if back:
            A(f"v_subrev_u32 v68, {256*back}, v68")
            A(f"s_sub_u32 s60, s60, {1024*back}")
        for w in range(4):
            A(f"ds_read_b64 v[{base+2*w}:{base+2*w+1}], v68 offset:{LDS_A + w*2304 + lo}")
        A(f"ds_read_b64 v[{base+8}:{base+9}], v68 offset:{LDS_B + lo}")
        A("s_waitcnt lgkmcnt(1)")
        for i in range(2):
            A(f"v_add_f32 v{base+i}, v{base+i}, v{base+2+i}")
            A(f"v_add_f32 v{base+4+i}, v{base+4+i}, v{base+6+i}")
        for i in range(2):
            A(f"v_add_f32 v{base+i}, v{base+i}, v{base+4+i}")
        A("s_waitcnt lgkmcnt(0)")
        A(f"v_cndmask_b32 v40, v{base+8}, v{base}, s[62:63]")
        A(f"v_cndmask_b32 v42, v{base+9}, v{base+1}, s[62:63]")
        if rt: A(f"buffer_store_dwordx4 v[40:43], v65, {srd(rWS)}, s{60+extra} offen sc1")
        else: A(f"buffer_store_dwordx4 v[40:43], v69, {srd(rWS)}, s60 offen offset:{1024*extra} {rst}")

    A.lab(KNAME)
    A(f"s_cmp_ge_u32 {sID}, 256")
    A("s_cbranch_scc1 L_end")
    A("s_load_dwordx16 s[16:31], s[0:1], 0")
    A("s_load_dwordx8 s[32:39], s[0:1], 64")
    if rot or not cal: A("s_memrealtime s[78:79]")
    if pad_to: A("s_memrealtime s[98:99]")
    stamp(0)
    A("v_lshrrev_b32 v8, 6, v0")
    A(f"v_and_b32 v{vLANE}, 63, v0")
    A(f"v_readfirstlane_b32 {sWV}, v8")
    A(f"v_lshrrev_b32 v{vG}, 4, v{vLANE}")
    A(f"v_and_b32 v{vN}, 15, v{vLANE}")
    A(f"s_and_b32 {sT0}, {sID}, 7")
    A(f"s_lshr_b32 {sT1}, {sID}, 3")
    A(f"s_and_b32 {sH}, {sT1}, 3")
    A(f"s_lshr_b32 {sS}, {sT1}, 2")
    A(f"s_lshl_b32 {sT0}, {sT0}, 2")
    A(f"s_add_u32 {sH}, {sH}, {sT0}")
    A(f"s_lshl_b32 {sB}, {sH}, 3")
    A(f"s_add_u32 {sB}, {sB}, {sS}")
    if swap: A(f"s_xor_b32 {sWV}, {sWV}, 4")
    A(f"s_cmp_ge_u32 {sWV}, 4")
    A("s_cbranch_scc1 L_helper")

    A.c("---- streamer waves 0..3")
    A(f"s_lshl_b32 {sT0}, {sB}, 19")
    A(f"s_lshl_b32 {sT1}, {sWV}, 10")
    A(f"s_add_u32 {sT0}, {sT0}, {sT1}")
    A(f"v_lshrrev_b32 v8, 2, v{vN}")
    A("v_lshlrev_b32 v8, 8, v8")
    A(f"v_and_b32 v11, 3, v{vN}")
    A("v_lshlrev_b32 v11, 4, v11")
    A(f"v_lshlrev_b32 v12, 6, v{vG}")
    A("v_add3_u32 v8, v8, v11, v12")
    if "n" in abl: A(f"v_lshlrev_b32 v8, 4, v{vLANE}")
    A(f"v_add_u32 v{vOFFC}, {sT0}, v8")
    A(f"s_mov_b32 {sOFF}, 0")
    A(f"s_mov_b32 s{rST+2}, 0x8000000")
    A(f"s_mov_b32 s{rST+3}, 0x20000")
    A("s_waitcnt lgkmcnt(0)")
    A(f"s_mov_b32 s{rST}, s{pK}")
    A(f"s_mov_b32 s{rST+1}, s{pK+1}")
    if rot:
        A(f"s_mul_hi_u32 {sOFF}, s78, {int(2**32 / rot)}")
        A(f"s_lshl_b32 {sOFF}, {sOFF}, 12")
        A(f"s_and_b32 {sOFF}, {sOFF}, 0x7ffff")
    def pace(d):
        if T0:
            l = newlab("pc")
            if D3:
                A(f"s_cmp_gt_i32 s75, {L3}")
                A(f"s_cbranch_scc1 {l}b")
            A(f"s_cbranch_vccnz {l}")
            if D0:
                A(f"s_cmp_gt_i32 s75, {-L0}")
                A(f"s_cbranch_scc1 {l}a")
                A(f"s_waitcnt vmcnt({D0-1})")
                A.lab(l + "a")
            A(f"s_waitcnt vmcnt({d-1})")
            A.lab(l)
            A(f"s_waitcnt vmcnt({D2-1})")
            if D3:
                A.lab(l + "b")
                A(f"s_waitcnt vmcnt({D3-1})")
        else:
            A(f"s_waitcnt vmcnt({d-1})")
    def control(n, step):
        if not T0: return
        if n % CI == 0:
            A("s_memrealtime s[76:77]")
            if cal: A("ds_read_b32 v123, v122 offset:8")
        if n % CI == 2:
            A("s_waitcnt lgkmcnt(0)")
            if cal:
                A("v_readfirstlane_b32 s79, v123")
                if n == 2:
                    l = newlab("ck")
                    A(f"s_cmp_lg_u32 {sWV}, 0")
                    A(f"s_cbranch_scc1 {l}")
                    A("v_mov_b32 v120, s76")
                    A("v_add_u32 v121, 1, v121")
                    A("v_lshl_add_u32 v119, v121, 2, v122")
                    A("ds_write_b32 v119, v120 offset:28")
                    A("ds_write_b64 v122, v[120:121] offset:16")
                    A.lab(l)
                A("s_sub_u32 s76, s76, s79")
            A("s_sub_u32 s76, s76, s78")
            A("s_abs_i32 s77, s76")
            A("s_cmp_gt_u32 s77, 100000")
            A("s_cselect_b32 s75, 0, s76")
            A("s_cmp_gt_i32 s75, 0")
            A("s_cselect_b64 vcc, -1, 0")
            k = (n % 16) // CI; parts = 16 // CI
            A(f"s_add_u32 s78, s78, {step * (k + 1) // parts - step * k // parts}")
    def issue(slot):
        r = RING + 4 * slot
        A(f"buffer_load_dwordx4 v[{r}:{r+3}], v{vOFFC}, {srd(rST)}, {sOFF} offen nt")
        A(f"s_add_u32 {sOFF}, {sOFF}, 4096")
        if rot: A(f"s_and_b32 {sOFF}, {sOFF}, 0x7ffff")
    if bar0: A("s_barrier")
    for n in range(INIT0 or INIT): issue(n)
    if relayout:
        A("s_branch L_stream2")
        A.L.append("@@HELPER@@")
        A.lab("L_stream2")
    if prio: A(f"s_setprio {prio}")
    stamp_init()
    A(f"s_mov_b32 {sT1}, {EPOCH_OFF}")
    A(f"s_load_dword {sTAG}, s[{pWS}:{pWS+1}], {sT1}")
    A(f"v_lshlrev_b32 v8, 4, v{vLANE}")
    A(f"v_add_u32 v{vOFFV}, {sT0}, v8")
    mk_srd(rX, pX, 1152)
    mk_srd(rWS, pWS, WS_SIZE)
    mk_srd(rW, pWD, 4608 * 576 * 2)
    masks()
    two_group_offsets(1152, sWV, 32, 33)
    A(f"v_cmp_gt_u32 vcc, 32, v{vLANE}")
    if cmap:
        A(f"s_and_b32 s0, {sID}, 7")
        A("s_mul_i32 s0, s0, 18")
        A(f"s_lshr_b32 s1, {sID}, 3")
        A("s_add_u32 s0, s0, s1")
    else:
        A(f"s_mov_b32 s0, {sID}")
    A(f"s_lshl_b32 {sT0}, s0, 3")
    A(f"v_mov_b32 v10, {sT0}")
    A("v_cndmask_b32 v34, v9, v32, vcc")
    A("v_cndmask_b32 v35, v9, v33, vcc")
    A(f"v_and_b32 v8, 3, v{vN}")
    A(f"v_lshrrev_b32 v9, 2, v{vN}")
    for u in range(4):
        A(f"v_cmp_eq_u32 {mU[u]}, {u}, v8")
        A(f"v_cmp_eq_u32 {mT[u]}, {u}, v9")
    A(f"v_lshlrev_b32 v9, 2, v{vG}")
    A("v_add_u32 v8, v8, v9")
    A("v_lshlrev_b32 v8, 5, v8")
    A(f"buffer_load_dwordx2 v[{vX4}:{vX4+1}], v10, {srd(rX)}, 0 offen {xld}")
    if kvtrim:
        A(f"v_mov_b32 v{vL}, 0xff800000")
        for i in range(4): A(f"v_mov_b32 v{vACC+i}, 0")
    if htail in (1, 3):
        A(f"v_mul_u32_u24 v10, 57, v{vLANE}")
        A("v_lshrrev_b32 v127, 9, v10")
        A("v_mul_u32_u24 v9, 9, v127")
        A(f"v_sub_u32 v9, v{vLANE}, v9")
        A(f"v_mul_u32_u24 v11, {GU_ROW}, v127")
        A("v_lshl_add_u32 v11, v9, 4, v11")
        A(f"s_mul_i32 {sT0}, {sB}, 144")
        A(f"s_add_u32 {sT0}, {sT0}, {GU_BASE}")
        A(f"v_add_u32 v124, {sT0}, v11")
        A("v_mul_u32_u24 v12, 72, v127")
        A("v_lshl_add_u32 v12, v9, 3, v12")
        A(f"s_mul_i32 {sT0}, {sWV}, 2304")
        A(f"s_add_u32 {sT0}, {sT0}, {LDS_G}")
        A(f"v_add_u32 v126, {sT0}, v12")
        A(f"v_mov_b32 v13, {OOB}")
        A("v_cmp_gt_u32 vcc, 4, v127")
        A("s_nop 1")
        A("v_cndmask_b32 v125, v13, v124, vcc")
        if htail == 3:
            A(f"s_cmp_eq_u32 {sWV}, 0")
            A("s_cselect_b64 vcc, -1, 0")
            A("v_cndmask_b32 v124, v13, v124, vcc")
            A("v_cndmask_b32 v125, v13, v125, vcc")
    for n in range(INIT0 or INIT, INIT): issue(n)
    for n in range(INIT, 32):
        A(f"s_waitcnt vmcnt({D-1 + (1 if (n % 4) < FP else 0)})")
        issue(n)
    XB = 88
    for n in range(XS):
        A(f"s_waitcnt vmcnt({D-1})")
        r = 96 + 4 * n
        A(f"buffer_load_dwordx4 v[{r}:{r+3}], v{vOFFC}, {srd(rST)}, {sOFF} offen nt")
        A(f"s_add_u32 {sOFF}, {sOFF}, 4096")
    A("s_waitcnt lgkmcnt(0)")
    A(f"s_add_u32 {sTAG}, {sTAG}, {TAG_STEP}")
    if not ts: stamp(4)
    A("s_barrier")
    if not ts: stamp(5)
    if clk: A(f"s_memtime s[{SB+2}:{SB+3}]")
    QT = 84
    A(f"ds_read_b128 v[{QT}:{QT+3}], v8 offset:{LDS_Q}")
    A(f"ds_read_b128 v[{QT+4}:{QT+7}], v8 offset:{LDS_Q+16}")
    if tbase:
        A("v_mov_b32 v9, 0")
        A(f"ds_read_b32 v9, v9 offset:{LDS_CNT+8}")
    A("s_waitcnt lgkmcnt(0)")
    if tbase:
        A("v_readfirstlane_b32 s78, v9")
    for i in range(4):
        A(f"v_cvt_pk_bf16_f32 v{QT+8+i}, v{QT+2*i}, v{QT+2*i+1}")
    for t in range(4):
        for i in range(4):
            A(f"v_cndmask_b32 v{vBQ+4*t+i}, 0, v{QT+8+i}, {mT[t]}")
    if cal:
        A("s_mov_b32 s78, 0")
        A("v_mov_b32 v121, 0")
        A(f"v_mov_b32 v122, {LDS_CNT}")
    else:
        A(f"s_add_u32 s78, s78, {T0}")
    A("s_mov_b64 vcc, 0")
    A("s_mov_b32 s75, 0")
    A(f"s_mov_b32 {sT2}, {f2u(128 ** -0.5)}")
    A(f"s_mov_b32 {sCNT}, 0")
    if align: A(f".p2align {align}")
    A.lab("L_kloop")
    A(f"s_cmp_eq_u32 {sCNT}, 3")
    A("s_cbranch_scc0 L_kbody")
    A(f"s_mov_b32 s{rST}, s{pV}")
    A(f"s_mov_b32 s{rST+1}, s{pV+1}")
    if not rot: A(f"s_mov_b32 {sOFF}, 0")
    A(f"v_mov_b32 v{vOFFC}, v{vOFFV}")
    A.lab("L_kbody")
    for n in range(32):
        t, u = n % 4, (n // 4) % 4
        if "m" not in abl: mfma(vDK, RING + 4 * n, vBQ + 4 * t, first=(t == 0))
        if n < XS:
            l = newlab("xs")
            A(f"s_cmp_eq_u32 {sCNT}, 0")
            A(f"s_cbranch_scc1 {l}")
        pace(D + (1 if (n % 4) < FK else 0))
        issue(n)
        if n < XS: A.lab(l)
        if XS and 20 <= n < 20 + XS:
            l = newlab("xc")
            A(f"s_cmp_lg_u32 {sCNT}, 0")
            A(f"s_cbranch_scc1 {l}")
            for j in range(4): A(f"v_mov_b32 v{RING+4*(n-20)+j}, v{96+4*(n-20)+j}")
            A.lab(l)
        control(n, TK)
        if t == 3:
            A("s_nop 5")
            A(f"v_mov_b32_dpp v8, v{vDK} quad_perm:[0,0,0,0] row_mask:0xf bank_mask:0xf")
            for cidx in range(1, 4):
                A(f"v_add_f32_dpp v8, v{vDK+cidx}, v8 quad_perm:[{cidx},{cidx},{cidx},{cidx}] row_mask:0xf bank_mask:0xf")
            if u == 0:
                A(f"v_mov_b32 v{vSN}, v8")
            else:
                A(f"v_cndmask_b32 v{vSN}, v{vSN}, v8, {mU[u]}")
            if u == 3:
                bf16_round(vSN, vSN)
                A(f"v_mul_f32 v{vSN}, {sT2}, v{vSN}")
                bf16_round(vSN, vSN)
                for k in range(7):
                    A(f"v_mov_b32 v{vS+k}, v{vS+k+1}")
                A(f"v_mov_b32 v{vS+7}, v{vSN}")
                if kvtrim: A(f"v_max_f32 v{vL}, v{vL}, v{vSN}")
    A(f"s_add_u32 {sCNT}, {sCNT}, 1")
    A(f"s_cmp_lt_u32 {sCNT}, 4")
    A("s_cbranch_scc1 L_kloop")
    if not ts: stamp(6)
    if kvtrim:
        dpp_reduce([vL], "v_max_f32")
        A(f"v_readlane_b32 {sM}, v{vL}, 63")
        A(f"s_mov_b32 {sT2}, {LOG2E}")
        A(f"v_mov_b32 v{vL}, 0")
    else:
        A(f"v_max3_f32 v8, v{vS}, v{vS+1}, v{vS+2}")
        A(f"v_max3_f32 v8, v8, v{vS+3}, v{vS+4}")
        A(f"v_max3_f32 v8, v8, v{vS+5}, v{vS+6}")
        A(f"v_max_f32 v8, v8, v{vS+7}")
        dpp_reduce([8], "v_max_f32")
        A(f"v_readlane_b32 {sM}, v8, 63")
        A(f"s_mov_b32 {sT2}, {LOG2E}")
        A(f"v_mov_b32 v{vL}, 0")
        for i in range(4): A(f"v_mov_b32 v{vACC+i}, 0")
    A(f"s_mov_b32 {sCNT}, 0")
    def ptile():
        A(f"v_subrev_f32 v8, {sM}, v{vS}")
        A(f"v_mul_f32 v8, {sT2}, v8")
        A("v_exp_f32 v8, v8")
        for k in range(7):
            A(f"v_mov_b32 v{vS+k}, v{vS+k+1}")
        A(f"v_add_f32 v{vL}, v{vL}, v8")
        A(f"v_cvt_pk_bf16_f32 v{vP}, v8, v8")
        A("s_nop 1")
    NWD = 15 if htail in (1, 3) else 10
    GM, GW, GR = RING + 80, RING, RING + 16
    def vstep(n, last):
        if n % 16 == 0: ptile()
        if last and n == 17:
            dpp_reduce([vL], "v_add_f32")
            A(f"v_mov_b32 v45, v{vL}")
            A("s_mov_b32 exec_lo, 0")
            A("s_mov_b32 exec_hi, 0x80000000")
            A(f"ds_write_b64 v83, v[44:45] offset:{LDS_ML}")
            A("s_mov_b64 exec, -1")
            record_addr_setup()
        L = n % 16; t, u = L % 4, L // 4
        if "m" in abl:
            pace(D); issue(n); control(n, TV)
            return
        a = sel(vP, 4 * t + u)
        if last and n >= 32 - max(D, D2) - 1:
            A(f"s_waitcnt vmcnt({NWD + 31 - n})")
            A("s_nop 0")
        else:
            A("s_nop 1")
        mfma(vACC, a, RING + 4 * n)
        if not last:
            pace(D + (1 if (n % 4) < FV else 0))
            issue(n)
            control(n, TV)
    if align: A(f".p2align {align}")
    A.lab("L_vloop")
    for n in range(32):
        vstep(n, False)
        if endb and n == endstep - 1:
            A(f"s_cmp_eq_u32 {sCNT}, 2")
            A(f"s_cselect_b32 s77, {endb}, 0")
            A("s_sub_u32 s78, s78, s77")
    A(f"s_add_u32 {sCNT}, {sCNT}, 1")
    A(f"s_cmp_lt_u32 {sCNT}, 3")
    A("s_cbranch_scc1 L_vloop")
    stamp(7)
    if clk: A(f"s_memtime s[{SB+20}:{SB+21}]")
    A(f"s_mul_i32 {sOFF}, {sB}, {18*1152}")
    def wd_issue(t):
        r = WDB + 8 * t
        oa, ob = (32, 33) if t < 4 else (34, 35)
        A(f"buffer_load_dwordx4 v[{r}:{r+3}], v{oa}, {srd(rW)}, {sOFF} offen nt")
        A(f"buffer_load_dwordx4 v[{r+4}:{r+7}], v{ob}, {srd(rW)}, {sOFF} offen nt")
        A(f"s_add_u32 {sOFF}, {sOFF}, {4*1152}")
    if wdstep < 0:
        for t in range(5): wd_issue(t)
    HG = 48
    def ld_gu():
        A(f"s_mov_b32 {sT0}, 0")
        for i in range(5):
            A(f"buffer_load_dwordx4 v[{HG+4*i}:{HG+4*i+3}], v{124 if i < 4 else 125}, {srd(rWS)}, {sT0} offen sc1")
            if i < 4: A(f"s_add_u32 {sT0}, {sT0}, {7*GU_ROW}")
    def ck_gu():
        A(f"v_mov_b32 v14, {sTAG}")
        A(f"v_cndmask_b32 v{HG+17}, v14, v{HG+17}, s[66:67]")
        A(f"v_cndmask_b32 v{HG+19}, v14, v{HG+19}, s[66:67]")
        tagcheck([HG + 2 * k + 1 for k in range(10)])
    if htail == 2 and hstep >= 32:
        A(f"v_mov_b32 v8, {LDS_CNT}")
        A("v_mov_b32 v9, 1")
        A("ds_write_b32 v8, v9 offset:4")
    if htail in (1, 3):
        A("s_mov_b32 exec_hi, 0x7fffffff")
        ld_gu()
        A("s_mov_b32 exec_hi, -1")
    A(f"s_lshl_b32 {sT0}, {sWV}, 9")
    A(f"v_lshlrev_b32 v8, 5, v{vN}")
    A(f"v_lshl_add_u32 v8, v{vG}, 4, v8")
    A(f"v_add_u32 v82, {sT0}, v8")
    A(f"s_mul_i32 {sT0}, {sWV}, 576")
    A(f"v_add_u32 v36, {sT0}, v8")
    A(f"s_lshl_b32 {sT0}, {sWV}, 3")
    A(f"v_mov_b32 v83, {sT0}")
    A(f"v_mov_b32 v44, {sM}")
    A(f"v_lshlrev_b32 v37, 2, v{vLANE}")
    A(f"s_and_b32 {sT0}, {sID}, {R - 1}")
    A(f"s_lshl_b32 {sT0}, {sT0}, {8 + mlsh}")
    for k in range(4): A(f"s_add_u32 s{64+k}, {sT0}, {ML_BASE + (k*64 << mlsh)}")
    A(f"s_cmp_eq_u32 {sWV}, 3")
    A(f"s_cselect_b32 {sT0}, 144, 0")
    A(f"s_cmp_lt_u32 {sID}, {sT0}")
    A(f"s_cselect_b32 {sT0}, 0, {OOB}")
    A(f"v_lshl_add_u32 v79, v{vLANE}, {mlsh}, {sT0}")
    def lidx(n):
        L = n % 16
        return 4 * (L % 4) + L // 4
    ptile()
    a = sel(vP, lidx(0))
    for n in range(32):
        if n + 1 == 16: ptile()
        if n + 1 < 32: a_next = sel(vP, lidx(n + 1))
        else: A("s_nop 0")
        nwd = NWD if wdstep < 0 else (NWD - 10) + 2 * max(0, min(5, n - wdstep))
        if n >= 32 - max(D, D2, D3) - 1:
            A(f"s_waitcnt vmcnt({nwd + 31 - n})")
        mfma(vACC, a, RING + 4 * n)
        if wdstep >= 0 and wdstep <= n < wdstep + 5: wd_issue(n - wdstep)
        a = a_next
        if n == 17:
            dpp_reduce([vL], "v_add_f32")
            A(f"v_mov_b32 v45, v{vL}")
            A("s_mov_b32 exec_lo, 0")
            A("s_mov_b32 exec_hi, 0x80000000")
            A(f"ds_write_b64 v83, v[44:45] offset:{LDS_ML}")
            A("s_mov_b64 exec, -1")
            record_addr_setup()
    if wdstep >= 0:
        for t in range(max(0, 32 - wdstep), 5): wd_issue(t)
    A("s_nop 7")
    A("s_mov_b32 exec_hi, 0")
    A(f"ds_write_b128 v82, v[{vACC}:{vACC+3}] offset:{LDS_O}")
    A("s_mov_b32 exec_hi, -1")
    A("s_waitcnt lgkmcnt(0)")
    stamp(2)
    A("s_barrier")
    if ts: stamp(4)
    if htail == 3:
        A(f"s_cmp_lg_u32 {sWV}, 0")
        A("s_cbranch_scc1 L_hothers")
    if htail in (1, 3):
        A("v_cmp_gt_u32 s[66:67], 4, v127")
        A("s_mov_b32 exec_hi, 0x7fffffff")
        A(f"s_mov_b32 {sSPIN}, 0")
        A("s_branch L_hchk")
        A.lab("L_hpoll")
        A(f"s_sleep {hsleep}")
        ld_gu()
        A.lab("L_hchk")
        A("s_waitcnt vmcnt(0)")
        ck_gu()
        A(f"s_add_u32 {sSPIN}, {sSPIN}, 1")
        A("v_cmp_ne_u32 vcc, 0, v9")
        A(f"s_cmp_ge_u32 {sSPIN}, {spin}")
        A("s_cbranch_scc1 L_hdone")
        A("s_and_b64 exec, exec, vcc")
        A("s_cbranch_execnz L_hpoll")
        A.lab("L_hdone")
        A("s_mov_b32 exec_lo, -1")
        A("s_mov_b32 exec_hi, 0x7fffffff")
        for i in range(4):
            A(f"ds_write2_b32 v126, v{HG+4*i}, v{HG+4*i+2} offset0:{i*126} offset1:{i*126+1}" if i * 126 + 1 < 256 else f"ds_write2_b32 v127, v{HG+4*i}, v{HG+4*i+2} offset0:{(i-2)*126} offset1:{(i-2)*126+1}")
            if i == 0: A(f"v_add_u32 v127, {2*504}, v126")
        A(f"v_add_u32 v126, {4*504}, v126")
        A("s_and_b64 exec, exec, s[66:67]")
        A(f"ds_write2_b32 v126, v{HG+16}, v{HG+18} offset0:0 offset1:1")
        A("s_mov_b64 exec, -1")
        A(f"v_lshl_add_u32 v8, v{vN}, 2, v{vG}")
        A("v_cmp_gt_u32 vcc, 18, v8")
        A(f"s_mul_i32 {sT0}, {sWV}, 2304")
        A(f"v_lshl_add_u32 v8, v8, 2, {sT0}")
        A("s_waitcnt lgkmcnt(0)")
        HR = RING
        for r in range(32):
            A(f"ds_read_b32 v{HR+r}, v8 offset:{LDS_G + r*72}")
            if r in (11, 22): A("s_waitcnt lgkmcnt(4)")
        for st in (8, 4, 2, 1):
            for r in range(st): A(f"v_add_f32 v{HR+r}, v{HR+r}, v{HR+r+st}")
        A("s_waitcnt lgkmcnt(0)")
        for st in (8, 4, 2, 1):
            for r in range(st): A(f"v_add_f32 v{HR+16+r}, v{HR+16+r}, v{HR+16+r+st}")
        bf16_round(HR, HR); bf16_round(HR + 16, HR + 16)
        A(f"v_mul_f32 v{vP}, v{HR}, v{HR+16}")
        A(f"v_cvt_pk_bf16_f32 v{vP}, v{vP}, v{vP}")
        A(f"v_cndmask_b32 v{vP}, 0, v{vP}, vcc")
        if htail == 3:
            A(f"ds_write_b32 v37, v{vP} offset:{LDS_H}")
            A("s_waitcnt lgkmcnt(0)")
            A("ds_write_b32 v71, v72 offset:4")
            A("s_branch L_hready")
            A.lab("L_hothers")
            A(f"s_mov_b32 {sSPIN}, 0")
            A.lab("L_hw2")
            A("ds_read_b32 v9, v71 offset:4")
            A(f"ds_read_b32 v{vP}, v37 offset:{LDS_H}")
            A(f"s_add_u32 {sSPIN}, {sSPIN}, 1")
            A("s_waitcnt lgkmcnt(0)")
            A(f"v_readfirstlane_b32 {sT0}, v9")
            A(f"s_cmp_ge_u32 {sSPIN}, {spin}")
            A("s_cbranch_scc1 L_hready")
            A(f"s_cmp_eq_u32 {sT0}, 0")
            A("s_cbranch_scc1 L_hw2")
            A.lab("L_hready")
            if ts: stamp(5)
        A("s_nop 1")
    else:
        A(f"ds_read_b32 v{vP}, v37 offset:{LDS_H}")
        if pre:
            A(f"s_sleep {pre}")
            for k in range(4):
                A(f"buffer_load_dwordx4 v[{GM+4*k}:{GM+4*k+3}], v79, {srd(rWS)}, s{64+k} offen sc1")
        A("s_waitcnt lgkmcnt(0)")
    for t in range(5):
        a = sel(vP, t)
        A(f"s_waitcnt vmcnt({2*(4 - t) + (4 if pre else 0)})")
        A("s_nop 0")
        mfma(vACC, a, WDB + 8 * t, first=(t == 0))
        mfma(vACC + 4, a, WDB + 8 * t + 4, first=(t == 0))
    A("s_nop 7")
    two_group_to_lds(vACC, vACC + 4, 36)
    if not bar4:
        A("s_mov_b64 exec, 1")
        A("s_waitcnt lgkmcnt(0)")
        A("ds_add_u32 v71, v72")
        A("s_mov_b64 exec, -1")
    mk_srd(rO, pOUT, 1152)
    A(f"v_lshrrev_b32 v8, 2, v{vLANE}")
    A(f"v_and_b32 v11, 3, v{vLANE}")
    A("v_lshlrev_b32 v12, 14, v8")
    A("v_lshl_add_u32 v12, v11, 4, v12")
    A(f"s_lshl_b32 {sT0}, s0, 6")
    A(f"v_add_u32 v12, {sT0}, v12")
    if rt:
        A(f"s_lshl_b32 {sT0}, {sID}, 14")
        A(f"s_add_u32 {sT0}, {sT0}, {REC_BASE}")
        A(f"v_add_u32 v12, {sT0}, v69")
    A("v_lshlrev_b32 v13, 2, v8")
    A(f"v_add_u32 v13, {LDS_W}, v13")
    A(f"v_and_b32 v14, 1, v{vLANE}")
    A("v_cmp_eq_u32 vcc, 1, v14")
    A(f"s_lshl_b32 {sT0}, s0, 3")
    A(f"v_lshl_add_u32 v10, v14, 2, {sT0}")
    A(f"v_cndmask_b32 v92, v{vX4}, v{vX4+1}, vcc")
    A("v_and_b32 v93, 0xffff0000, v92")
    A("v_lshlrev_b32 v92, 16, v92")
    A(f"v_mov_b32 v9, {OOB}")
    A(f"v_cmp_gt_u32 vcc, 2, v{vLANE}")
    A(f"s_mov_b32 {sT2}, {LOG2E}")
    A(f"v_lshlrev_b32 v97, {mlsh}, v{vLANE}")
    A("v_cndmask_b32 v96, v9, v10, vcc")
    if ts: stamp(6)
    if early:
        A(f"s_cmp_eq_u32 {sWV}, 3")
        A("s_cbranch_scc1 L_cons")
    if bar4:
        A("s_waitcnt lgkmcnt(0)")
        A("s_barrier")
    else: lds_wait("L_sw", 8)
    record_store()
    stamp(8)
    if early:
        A("s_branch L_fin")
        A.lab("L_cons")
    else:
        A(f"s_cmp_lg_u32 {sWV}, 3")
        A("s_cbranch_scc1 L_fin")
    A(f"s_cmp_ge_u32 {sID}, 144")
    A("s_cbranch_scc1 L_fin")
    A.c("---- wave 3: final reduction for columns 4*id .. 4*id+3")
    mM, mR = "s[44:45]", "s[46:47]"
    if cdelay: A(f"s_sleep {cdelay}")
    for m in (mM, mR): A(f"s_mov_b64 {m}, -1")
    A(f"s_mov_b32 {sSPIN}, 0")
    def ld_ml():
        for k in range(4):
            A(f"buffer_load_dwordx4 v[{GM+4*k}:{GM+4*k+3}], v97, {srd(rWS)}, s{64+k} offen {mlld}")
    def ld_rec(rld=rld):
        A(f"s_mov_b32 {sT0}, 0")
        for i in range(16):
            A(f"buffer_load_dwordx4 v[{GR+4*i}:{GR+4*i+3}], v12, {srd(rWS)}, {sT0} offen {rld}")
            if i < 15: A(f"s_add_u32 {sT0}, {sT0}, {1024 if rt else 16*BLK}")
    if pre:
        A("s_waitcnt vmcnt(1)")
        tagcheck([GM + 2 * k + 1 for k in range(8)])
        A("v_cmp_ne_u32 vcc, 0, v9")
        A("s_and_b64 exec, exec, vcc")
        A("s_cbranch_execnz L_fp_m")
        if pdelay: A(f"s_sleep {pdelay}")
        A("s_branch L_fp_m2")
    if late is not None:
        A(f"s_cmp_lt_i32 s75, {late}")
        A("s_cbranch_scc1 L_fp_m")
        if ldelay: A(f"s_sleep {ldelay}")
    if TX is not None:
        A("s_memrealtime s[76:77]")
        A("s_add_u32 s78, s78, s79")
        A(f"s_add_u32 s78, s78, {TX & 0xffffffff}")
        A("s_waitcnt lgkmcnt(0)")
        A("s_sub_u32 s76, s78, s76")
        A("s_max_i32 s76, s76, 0")
        A("s_min_u32 s76, s76, 400")
        A(f"s_mul_i32 s76, s76, {TF}")
        A("s_lshr_b32 s76, s76, 8")
        A(f"s_max_u32 s76, s76, {TMIN}")
        A.lab("L_bo")
        A("s_sleep 1")
        A("s_sub_u32 s76, s76, 1")
        A("s_cmp_gt_i32 s76, 0")
        A("s_cbranch_scc1 L_bo")
    if fmode == 0 or late is not None or TX is not None:
        ld_ml()
        ld_rec()
        A("s_waitcnt vmcnt(16)")
        tagcheck([GM + 2 * k + 1 for k in range(8)])
        A(f"v_cmp_ne_u32 {mM}, 0, v9")
        A("s_nop 0")
        A(f"s_cmp_eq_u64 {mM}, 0")
        A("s_cbranch_scc1 L_fp_w")
        A("s_waitcnt vmcnt(0)")
        tagcheck([GR + 2 * k + 1 for k in range(32)])
        A(f"v_cmp_ne_u32 {mR}, 0, v9")
        A(f"s_mov_b64 exec, {mM}")
    if mlsleep:
        A("s_branch L_fp_m")
        A.lab("L_fp_ms")
        A(f"s_sleep {mlsleep}")
    A.lab("L_fp_m")
    ld_ml()
    A(f"s_add_u32 {sSPIN}, {sSPIN}, 1")
    A("s_waitcnt vmcnt(0)")
    if tml: A("s_memrealtime s[76:77]")
    tagcheck([GM + 2 * k + 1 for k in range(8)])
    A("v_cmp_ne_u32 vcc, 0, v9")
    A(f"s_cmp_ge_u32 {sSPIN}, {spin}")
    A("s_cbranch_scc1 L_fp_m2")
    A("s_and_b64 exec, exec, vcc")
    A("s_cbranch_execnz L_fp_ms" if mlsleep else "s_cbranch_execnz L_fp_m")
    A.lab("L_fp_m2")
    if tml:
        A("s_mov_b64 exec, -1")
        A("s_waitcnt lgkmcnt(0)")
        for k in range(4):
            A(f"v_sub_u32 v{GM+4*k+1}, s76, v{GM+4*k}")
            A(f"v_and_b32 v{GM+4*k+1}, 0xffff, v{GM+4*k+1}")
            A(f"v_and_b32 v{GM+4*k}, 0xffff0000, v{GM+4*k}")
        A(f"v_min3_u32 v9, v{GM+1}, v{GM+5}, v{GM+9}")
        A(f"v_min_u32 v9, v9, v{GM+13}")
        A(f"v_cmp_gt_u32 vcc, {tml}, v9")
        A("s_cbranch_vccz L_tb2")
        dpp_reduce([9], "v_min_u32")
        A("v_readlane_b32 s76, v9, 63")
        A(f"s_sub_i32 s76, {tml}, s76")
        A(f"s_mul_i32 s76, s76, {TF}")
        A("s_ashr_i32 s76, s76, 8")
        A.lab("L_tb")
        A("s_cmp_gt_i32 s76, 0")
        A("s_cbranch_scc0 L_tb2")
        A("s_sleep 1")
        A("s_sub_u32 s76, s76, 1")
        A("s_branch L_tb")
        A.lab("L_tb2")
    elif rdelay: A(f"s_sleep {rdelay}")
    A(f"s_mov_b64 exec, {mR}")
    A("s_cbranch_execz L_fp_w")
    ld_rec(rld1)
    A.lab("L_fp_w")
    A("s_mov_b64 exec, -1")
    stamp(1)
    grp8 = ("quad_perm:[1,0,3,2]", "quad_perm:[2,3,0,1]", "row_half_mirror")
    for k in range(4): A(f"v_mov_b32 v{GM+4*k+1}, v{GM+4*k}")
    for d in grp8:
        for k in range(4): A(f"v_max_f32_dpp v{GM+4*k+1}, v{GM+4*k+1}, v{GM+4*k+1} {d} row_mask:0xf bank_mask:0xf")
    for k in range(4): A(f"v_sub_f32 v{GM+4*k}, v{GM+4*k}, v{GM+4*k+1}")
    for k in range(4): A(f"v_mul_f32 v{GM+4*k}, {sT2}, v{GM+4*k}")
    for k in range(4): A(f"v_exp_f32 v{GM+4*k}, v{GM+4*k}")
    for k in range(4): A(f"v_mul_f32 v{GM+4*k+2}, v{GM+4*k}, v{GM+4*k+2}")
    for d in grp8:
        for k in range(4): A(f"v_add_f32_dpp v{GM+4*k+2}, v{GM+4*k+2}, v{GM+4*k+2} {d} row_mask:0xf bank_mask:0xf")
    for k in range(4): A(f"v_rcp_f32 v{GM+4*k+2}, v{GM+4*k+2}")
    for k in range(4): A(f"v_mul_f32 v{GM+4*k}, v{GM+4*k}, v{GM+4*k+2}")
    for k in range(4): A(f"ds_write_b32 v37, v{GM+4*k} offset:{LDS_W + k*256}")
    A("s_waitcnt lgkmcnt(0)")
    for i in range(16):
        A(f"ds_read_b32 v{GW+i}, v13 offset:{i*64}")
        if i == 11: A("s_waitcnt lgkmcnt(8)")
    A("s_waitcnt lgkmcnt(0)")
    for i in range(16): A(f"v_cndmask_b32 v{GW+i}, 1.0, v{GW+i}, s[62:63]")
    if fpipe and fmode == 1 and late is None and TX is None:
        for g4 in range(4):
            A(f"s_waitcnt vmcnt({12 - 4*g4})")
            tagcheck([GR + 16 * g4 + 2 * k + 1 for k in range(8)], dst=9 if g4 == 0 else 14)
            if g4: A("v_or_b32 v9, v9, v14")
            for k in range(4):
                i = 4 * g4 + k
                for j in range(2):
                    d = 88 + 2 * (k % 2) + j
                    if i < 2: A(f"v_mul_f32 v{d}, v{GW+i}, v{GR+4*i+2*j}")
                    else: A(f"v_fmac_f32 v{d}, v{GW+i}, v{GR+4*i+2*j}")
        A("v_cmp_ne_u32 vcc, 0, v9")
        A("s_and_b64 exec, exec, vcc")
        A("s_cbranch_execnz L_fp_r")
        A("s_mov_b64 exec, -1")
        stamp(10)
        A("s_branch L_fp_sum")
    else:
        A(f"s_mov_b64 exec, {mR}")
        A("s_cbranch_execz L_fp_done")
        A("s_branch L_fp_c")
    A.lab("L_fp_r")
    if fsleep: A(f"s_sleep {fsleep}")
    ld_rec()
    A.lab("L_fp_c")
    A(f"s_add_u32 {sSPIN}, {sSPIN}, 1")
    A("s_waitcnt vmcnt(0)")
    tagcheck([GR + 2 * k + 1 for k in range(32)])
    A("v_cmp_ne_u32 vcc, 0, v9")
    A(f"s_cmp_ge_u32 {sSPIN}, {spin}")
    A("s_cbranch_scc1 L_fp_done")
    A("s_and_b64 exec, exec, vcc")
    A("s_cbranch_execnz L_fp_r")
    A.lab("L_fp_done")
    A("s_mov_b64 exec, -1")
    stamp(10)
    for i in range(16):
        for j in range(2):
            d = 88 + 2 * (i % 2) + j
            if i < 2: A(f"v_mul_f32 v{d}, v{GW+i}, v{GR+4*i+2*j}")
            else: A(f"v_fmac_f32 v{d}, v{GW+i}, v{GR+4*i+2*j}")
    A.lab("L_fp_sum")
    A("v_add_f32 v88, v88, v90")
    A("v_add_f32 v89, v89, v91")
    A("s_nop 0")
    for d in ("row_ror:4", "row_ror:8"):
        A(f"v_add_f32_dpp v88, v88, v88 {d} row_mask:0xf bank_mask:0xf")
        A(f"v_add_f32_dpp v89, v89, v89 {d} row_mask:0xf bank_mask:0xf")
        A("s_nop 0")
    for op in ("v_permlane16_swap_b32", "v_permlane32_swap_b32"):
        A("v_mov_b32 v14, v88")
        A("v_mov_b32 v15, v89")
        A("s_nop 1")
        A(f"{op} v14, v88")
        A(f"{op} v15, v89")
        A("v_add_f32 v88, v88, v14")
        A("v_add_f32 v89, v89, v15")
    for i in range(2): A(f"v_cvt_pk_bf16_f32 v{88+i}, v{88+i}, v{88+i}")
    for i in range(2): A(f"v_lshlrev_b32 v{88+i}, 16, v{88+i}")
    for i in range(2): A(f"v_add_f32 v{90+i}, v{92+i}, v{88+i}")
    for i in range(2): A(f"v_cvt_pk_bf16_f32 v{90+i}, v{90+i}, v{90+i}")
    for i in range(2): A(f"v_lshlrev_b32 v{90+i}, 16, v{90+i}")
    for i in range(2): A(f"v_add_f32_dpp v{90+i}, v{88+i}, v{90+i} quad_perm:[2,3,2,3] row_mask:0xf bank_mask:0xf")
    A("v_cvt_pk_bf16_f32 v12, v90, v91")
    A(f"buffer_store_dword v12, v96, {srd(rO)}, 0 offen {ost}")
    stamp(3)
    stampval(9, sSPIN)
    A(f"s_cmp_lg_u32 {sID}, 0")
    A("s_cbranch_scc1 L_fin")
    A(f"v_mov_b32 v10, {sTAG}")
    A(f"v_mov_b32 v11, {EPOCH_OFF}")
    A("s_mov_b64 exec, 1")
    A(f"buffer_store_dword v10, v11, {srd(rWS)}, 0 offen {ost}")
    if pad_to:
        A.lab("L_pad")
        A("s_memrealtime s[96:97]")
        A("s_waitcnt lgkmcnt(0)")
        A("s_sub_u32 s96, s96, s98")
        A(f"s_cmp_lt_u32 s96, {pad_to}")
        A("s_cbranch_scc1 L_pad")
    if stamps: A("s_branch L_fin")
    else: A("s_endpgm")

    mark_helper = len(A.L)
    A.lab("L_helper")
    A.c("---- helper waves 4..7")
    A(f"s_sub_u32 {sHW}, {sWV}, 4")
    A(f"v_lshlrev_b32 v8, 2, v{vLANE}")
    A(f"v_lshl_add_u32 v9, v{vN}, 2, v{vG}")
    A("v_and_b32 v9, -2, v9")
    A("v_lshlrev_b32 v9, 1, v9")
    A(f"s_mul_i32 {sT0}, {sS}, 144")
    A(f"s_and_b32 {sT1}, {sS}, 3")
    A(f"s_lshl_b32 {sT1}, {sT1}, 2")
    A(f"s_add_u32 s74, {sT1}, {sHW}")
    A(f"s_mul_i32 {sT1}, s74, 72")
    A(f"s_mov_b32 {sT2}, {EPOCH_OFF}")
    A("s_waitcnt lgkmcnt(0)")
    A(f"s_load_dword {sTAG}, s[{pWS}:{pWS+1}], {sT2}")
    if cal and not rot: A("s_memrealtime s[78:79]")
    mk_srd(rX, pX, 1152)
    for k in range(5):
        A(f"buffer_load_dword v{vXA+k}, v8, {srd(rX)}, 0 offen offset:{k*256} {xld}")
    for T in range(2):
        A(f"buffer_load_dword v{vXC+T}, v9, {srd(rX)}, {sT0} offen offset:{T*128} {xld}")
    A(f"buffer_load_dword v{vXC+2}, v9, {srd(rX)}, {sT1} offen {xld}")
    GUB = WBUF + 72
    A(f"s_cmp_lg_u32 {sHW}, 0")
    A("s_cbranch_scc1 L_x13")
    mk_srd(rW, pWQ, 0 if "w" in abl else 576 * 4096 * 2)
    A(f"s_mul_i32 {sT0}, {sS}, {72*8192}")
    A(f"s_lshl_b32 {sT1}, {sH}, 8")
    A(f"s_add_u32 {sOFF}, {sT0}, {sT1}")
    A(f"v_lshlrev_b32 v8, 13, v{vG}")
    A(f"v_lshl_add_u32 v10, v{vN}, 4, v8")
    for t in range(0 if "W" in abl else 18):
        r = WBUF + 4 * t
        A(f"buffer_load_dwordx4 v[{r}:{r+3}], v10, {srd(rW)}, {sOFF} offen nt")
        A(f"s_add_u32 {sOFF}, {sOFF}, 32768")
    A.lab("L_x13")
    if bar0: A("s_barrier")
    if codepf:
        A(f"s_cmp_lg_u32 {sHW}, 3")
        A("s_cbranch_scc1 L_nopf")
        A(f"s_cmp_ge_u32 {sID}, {codepf}")
        A("s_cbranch_scc1 L_nopf")
        A("s_getpc_b64 s[76:77]")
        A.lab("L_pfbase")
        A(f"s_sub_u32 s76, s76, L_pfbase-{KNAME}")
        A("s_subb_u32 s77, s77, 0")
        A(f"v_lshlrev_b32 v8, 7, v{vLANE}")
        A(f"global_load_dword v12, v8, s[76:77] {pfld}")
        for k in (1, 2):
            A("v_add_u32 v8, 0x2000, v8")
            A(f"v_cmp_gt_i32 vcc, (L_codeend-{KNAME}-{k*8192})/128, v{vLANE}")
            A("s_and_saveexec_b64 s[72:73], vcc")
            A("s_cbranch_execz L_pf2")
            A(f"global_load_dword v{12+k}, v8, s[76:77] {pfld}")
        A.lab("L_pf2")
        A("s_mov_b64 exec, -1")
        A("s_waitcnt vmcnt(0)")
        A.lab("L_nopf")
    A(f"s_cmp_lt_u32 {sID}, 128")
    A(f"s_cselect_b32 s{rO}, s{pWG}, s{pWU}")
    A(f"s_cselect_b32 s{rO+1}, s{pWG+1}, s{pWU+1}")
    A(f"s_mov_b32 s{rO+2}, {0 if 'g' in abl else 576*4608*2}")
    A(f"s_mov_b32 s{rO+3}, 0x20000")
    two_group_offsets(9216, "0", vOA, vOB)
    A(f"s_mul_i32 {sOFF}, s74, {36*9216}")
    A(f"s_mul_i32 {sT0}, {sH}, 288")
    A(f"s_add_u32 {sOFF}, {sOFF}, {sT0}")
    def gu_issue(t):
        if "u" in abl: return
        r = GUB + 8 * t
        A(f"buffer_load_dwordx4 v[{r}:{r+3}], v{vOA}, {srd(rO)}, {sOFF} offen nt")
        A(f"buffer_load_dwordx4 v[{r+4}:{r+7}], v{vOB}, {srd(rO)}, {sOFF} offen nt")
        A(f"s_add_u32 {sOFF}, {sOFF}, {4*9216}")
    GE = guearly
    for t in range(GE): gu_issue(t)
    stamp_init()
    mk_srd(rWS, pWS, WS_SIZE)
    masks()
    A(f"s_cmp_lg_u32 {sHW}, 0")
    A("s_cbranch_scc1 L_x13b")
    A(f"s_waitcnt vmcnt({18 + 2*GE})")
    A("s_branch L_ln")
    A.lab("L_x13b")
    A(f"s_waitcnt vmcnt({2*GE})")
    A.lab("L_ln")
    GE0 = GE
    GE = max(GE, gumid)
    for t in range(GE0, GE): gu_issue(t)
    stamp(8)
    XF = 68
    for k in range(5):
        A(f"v_lshlrev_b32 v{XF+2*k}, 16, v{vXA+k}")
        A(f"v_and_b32 v{XF+2*k+1}, 0xffff0000, v{vXA+k}")
    A(f"v_add_f32 v8, v{XF}, v{XF+1}")
    for k in range(2, 10): A(f"v_add_f32 v8, v8, v{XF+k}")
    dpp_reduce([8], "v_add_f32")
    A(f"v_mul_f32 v8, {f2u(1.0/576)}, v8")
    A(f"v_cmp_gt_u32 vcc, 32, v{vLANE}")
    A(f"v_readlane_b32 {sT0}, v8, 63")
    A("s_nop 1")
    for k in range(10): A(f"v_subrev_f32 v{XF+k}, {sT0}, v{XF+k}")
    A(f"v_cndmask_b32 v{XF+8}, 0, v{XF+8}, vcc")
    A(f"v_cndmask_b32 v{XF+9}, 0, v{XF+9}, vcc")
    A(f"v_mul_f32 v9, v{XF}, v{XF}")
    for k in range(1, 10): A(f"v_fmac_f32 v9, v{XF+k}, v{XF+k}")
    dpp_reduce([9], "v_add_f32")
    A(f"v_mul_f32 v9, {f2u(1.0/576)}, v9")
    bf16_round(9, 9)
    A(f"v_add_f32 v9, {f2u(1e-5)}, v9")
    bf16_round(9, 9)
    A("v_sqrt_f32 v9, v9")
    A("s_nop 0")
    bf16_round(9, 9)
    A("v_rcp_f32 v9, v9")
    bf16_round(8, 8)
    A("s_nop 0")
    A(f"v_readlane_b32 {sT0}, v8, 63")
    A(f"v_readlane_b32 {sT1}, v9, 63")
    A(f"v_and_b32 v10, 1, v{vG}")
    A("v_lshlrev_b32 v10, 4, v10")
    for k in range(3):
        r = vXC + k
        A(f"v_lshrrev_b32 v{r}, v10, v{r}")
        A(f"v_lshlrev_b32 v{r}, 16, v{r}")
        A(f"v_subrev_f32 v{r}, {sT0}, v{r}")
        bf16_round(r, r)
        A(f"v_mul_f32 v{r}, {sT1}, v{r}")
        A(f"v_cvt_pk_bf16_f32 v{r}, v{r}, v{r}")
    A("s_waitcnt lgkmcnt(0)")
    A(f"s_add_u32 {sTAG}, {sTAG}, {TAG_STEP}")
    A(f"s_getreg_b32 {sTAGX}, hwreg(HW_REG_XCC_ID)")
    A(f"s_and_b32 {sTAGX}, {sTAGX}, 7")
    A(f"s_and_b32 s46, {sID}, 7")
    A(f"s_xor_b32 s46, s46, {sTAGX}")
    A(f"s_xor_b32 {sTAGX}, {sTAGX}, {sTAG}")
    stamp(1)
    A(f"s_cmp_lg_u32 {sHW}, 0")
    A("s_cbranch_scc1 L_noq")
    for t in range(18):
        a = sel(vXC + t // 16, t % 16)
        A(f"s_waitcnt vmcnt({17 - t + 2*GE})")
        A("s_nop 0")
        mfma(vACC, a, WBUF + 4 * t, first=(t == 0))
    A(f"v_lshlrev_b32 v8, 4, v{vLANE}")
    A(f"s_lshl_b32 {sT0}, {sB}, 14")
    A(f"s_add_u32 {sT0}, {sT0}, {OFF_Q}")
    A(f"s_lshl_b32 {sT1}, {sH}, 17")
    A(f"s_add_u32 {sT1}, {sT1}, {OFF_Q}")
    for k in range(8):
        A(f"s_add_u32 s{60+k}, {sT1}, {k*BLK}")
    A(f"v_mov_b32 v29, {sTAGX}")
    A(f"v_mov_b32 v31, {sTAGX}")
    A(f"v_mov_b32 v28, v{vACC}")
    A(f"v_mov_b32 v30, v{vACC+1}")
    A("s_nop 1")
    A(f"v_permlane32_swap_b32 v28, v{vACC+2}")
    A(f"v_permlane32_swap_b32 v30, v{vACC+3}")
    QG = WBUF
    def ld_q(fl):
        for k in range(8):
            A(f"buffer_load_dwordx4 v[{QG+4*k}:{QG+4*k+3}], v8, {srd(rWS)}, s{60+k} offen {fl}")
    qtags = [QG + 2 * k + 1 for k in range(16)]
    def exchange(name, store, load, tags, check, first_delay, slp, limit, preloaded=False):
        A("s_mov_b64 s[44:45], 0")
        if not preloaded:
            A("s_cmp_lg_u32 s46, 0")
            A(f"s_cbranch_scc1 {name}_wt")
            store("")
            stamp(9)
            if first_delay: A(f"s_sleep {first_delay}")
            if qprobe:
                A("s_mov_b32 exec_lo, 0")
                A("s_mov_b32 exec_hi, 0xff000000")
                poll(f"{name}_p0", lambda: load(qpfl), tags, qprobe, check=check, limit=limit, die=True)
            load(qld)
        A("s_waitcnt vmcnt(0)")
        verdict(tags, check, True)
        A("s_and_b64 exec, exec, vcc")
        A(f"s_cbranch_execz {name}_chk")
        A("s_cmp_lg_u64 s[44:45], 0")
        A(f"s_cbranch_scc1 {name}_wt")
        poll(f"{name}_p1", lambda: load(qrt), tags, slp, check=check, limit=limit, keep=True, die=True, bail=f"{name}_wt")
        A.lab(f"{name}_chk")
        A("s_or_b64 s[44:45], s[44:45], exec")
        A(f"s_cbranch_scc0 {name}_ok")
        A.lab(f"{name}_wt")
        A("s_mov_b64 s[44:45], exec")
        store("sc1")
        A("s_mov_b64 exec, s[44:45]")
        A(f"s_cbranch_execz {name}_ok")
        poll(f"{name}_p2", lambda: load("sc1"), tags, slp, check=check, die=True)
        A.lab(f"{name}_ok")
        A("s_mov_b64 exec, -1")
    def q_store(fl):
        A("s_mov_b64 exec, -1")
        A(f"buffer_store_dwordx4 v[28:31], v8, {srd(rWS)}, {sT0} offen {fl}")
    if "q" not in abl:
        exchange("L_q", q_store, ld_q, qtags, None, qdelay, qsleep, qfall)
    for i in range(2):
        for k in range(4):
            A(f"v_add_f32 v{QG+8*k+2*i}, v{QG+8*k+2*i}, v{QG+8*k+4+2*i}")
        A(f"v_add_f32 v{QG+2*i}, v{QG+2*i}, v{QG+8+2*i}")
        A(f"v_add_f32 v{QG+16+2*i}, v{QG+16+2*i}, v{QG+24+2*i}")
        A(f"v_add_f32 v{28+i}, v{QG+2*i}, v{QG+16+2*i}")
    A(f"v_lshlrev_b32 v8, 5, v{vN}")
    A(f"v_and_b32 v9, 1, v{vG}")
    A("v_lshl_add_u32 v8, v9, 4, v8")
    A(f"v_lshrrev_b32 v9, 1, v{vG}")
    A("v_lshl_add_u32 v8, v9, 3, v8")
    A(f"ds_write_b64 v8, v[28:29] offset:{LDS_Q}")
    if tbase:
        A(f"v_subrev_u32 v12, s78, v{QG+32}")
        for d in ("quad_perm:[1,0,3,2]", "quad_perm:[2,3,0,1]", "row_half_mirror"):
            A("s_nop 1")
            A(f"v_min_i32_dpp v12, v12, v12 {d} row_mask:0xf bank_mask:0xf")
        A("v_add_u32 v12, s78, v12")
    A(f"v_mov_b32 v9, {LDS_CNT}")
    A("v_mov_b32 v10, 0")
    A("ds_write_b32 v9, v10")
    A("ds_write_b32 v9, v10 offset:4")
    A("ds_write_b32 v9, v10 offset:12")
    if tbase: A("ds_write_b32 v9, v12 offset:8")
    if cal:
        A("s_add_u32 s79, s78, 0x40000000")
        A("v_mov_b32 v11, s79")
        A("ds_write_b32 v9, v11 offset:8")
        A("ds_write_b32 v9, v10 offset:20")
    if prew:
        A("v_mov_b32 v11, -1.0")
        for w in range(4): A(f"ds_write_b32 v10, v11 offset:{LDS_ML + 8*w + 4}")
    stampval(10, sSPIN)
    A("s_waitcnt lgkmcnt(0)")
    stamp(2)
    A("s_barrier")
    A.lab("L_noq")
    for t in range(GE, min(max(GE, DG), 9)): gu_issue(t)
    DGE = min(max(GE, DG), 9)
    A(f"v_lshlrev_b32 v8, 5, v{vN}")
    A(f"v_lshl_add_u32 v8, v{vG}, 4, v8")
    A(f"s_mul_i32 {sT0}, {sHW}, 576")
    A(f"v_add_u32 v66, {sT0}, v8")
    A(f"s_mul_i32 {sT0}, {sHW}, 2304")
    A(f"v_add_u32 v67, {sT0}, v8")
    for t in range(9):
        a = sel(vXC + 2, t)
        A(f"s_waitcnt vmcnt({2*(min(DGE + t, 9) - (t + 1))})")
        A("s_nop 0")
        mfma(vACC, a, GUB + 8 * t, first=(t == 0))
        mfma(vACC + 4, a, GUB + 8 * t + 4, first=(t == 0))
        if DGE + t < 9: gu_issue(DGE + t)
    A(f"s_mul_i32 {sT0}, {sS}, {GU_ROW}")
    A(f"s_mul_i32 {sT1}, {sH}, 1152")
    A(f"s_add_u32 {sT0}, {sT0}, {sT1}")
    A(f"s_add_u32 s68, {sT0}, {GU_BASE}")
    A("s_nop 3")
    two_group_to_lds(vACC, vACC + 4, 66)
    def gu_publish():
        A(f"v_lshlrev_b32 v8, 3, v{vLANE}")
        for w in range(4):
            A(f"ds_read_b64 v[{24+2*w}:{25+2*w}], v8 offset:{LDS_B + w*576}")
            A(f"ds_read_b64 v[{32+2*w}:{33+2*w}], v8 offset:{LDS_B + w*576 + 512}")
        for r in (49, 51, 53, 55): A(f"v_mov_b32 v{r}, {sTAGX}")
        A("s_waitcnt lgkmcnt(0)")
        for b0, d in ((24, 48), (32, 52)):
            for i in range(2):
                A(f"v_add_f32 v{b0+i}, v{b0+i}, v{b0+2+i}")
                A(f"v_add_f32 v{b0+4+i}, v{b0+4+i}, v{b0+6+i}")
                A(f"v_add_f32 v{d+2*i}, v{b0+i}, v{b0+4+i}")
        A("s_cmp_lg_u32 s46, 0")
        A("s_cbranch_scc1 L_gu_wt")
        gu_store("")
        A("s_branch L_gu_pub")
        A.lab("L_gu_wt")
        gu_store("sc1")
        A.lab("L_gu_pub")
    def gu_store(fl):
        A("s_mov_b64 exec, -1")
        A(f"buffer_store_dwordx4 v[48:51], v69, {srd(rWS)}, s68 offen {fl}")
        A("s_mov_b64 exec, 0xff")
        A(f"buffer_store_dwordx4 v[52:55], v69, {srd(rWS)}, s68 offen offset:1024 {fl}")
        A("s_mov_b64 exec, -1")
    stamp(3)
    A(f"s_cmp_eq_u32 {sHW}, 0")
    A("s_cbranch_scc1 L_b1done")
    A("s_barrier")
    A.lab("L_b1done")
    A(f"v_mov_b32 v8, {LDS_CNT}")
    A("v_mov_b32 v9, 1")
    A("s_mov_b64 exec, 1")
    A("s_waitcnt lgkmcnt(0)")
    A("ds_add_u32 v8, v9 offset:12")
    A("s_mov_b64 exec, -1")
    mk_srd(rW, pWO, 0 if "O" in abl else 4096 * 576 * 2)
    A(f"v_mul_u32_u24 v8, 1152, v{vG}")
    A(f"v_lshl_add_u32 v{vOA}, v{vN}, 4, v8")
    A(f"v_mov_b32 v9, {OOB}")
    A(f"v_cmp_gt_u32 vcc, 8, v{vN}")
    A(f"s_lshl_b32 {sT0}, {sH}, 2")
    A(f"s_add_u32 {sT0}, {sT0}, {sHW}")
    if pack36:
        A(f"v_add_u32 v9, {4*1152 - 128}, v{vOA}")
    A(f"v_cndmask_b32 v{vOB}, v9, v{vOA}, vcc")
    A(f"s_mul_i32 {sOFF}, {sT0}, {32*1152}")
    for t in range(0 if "o" in abl else 8):
        for cg in range(5):
            if pack36 and cg == 4 and t % 2: continue
            A(f"s_waitcnt vmcnt({DW-1})")
            r = WBUF + 20 * t + 4 * cg
            A(f"buffer_load_dwordx4 v[{r}:{r+3}], v{vOA if cg < 4 else vOB}, {srd(rW)}, {sOFF} offen offset:{cg*256} {wold}")
        A(f"s_add_u32 {sOFF}, {sOFF}, {4*1152}")
    A(f"v_and_b32 v8, 7, v{vN}")
    A(f"v_lshl_add_u32 v8, v8, 2, v{vG}")
    A(f"s_lshl_b32 {sT0}, {sHW}, 7")
    A(f"v_lshl_add_u32 v66, v8, 2, {sT0}")
    record_addr_setup()
    A("v_mov_b32 v70, 0")
    A(f"v_lshlrev_b32 v65, {8 + mlsh}, v{vLANE}")
    for r in (81, 83): A(f"v_mov_b32 v{r}, {sTAG}")
    A(f"s_lshl_b32 {sCNT}, {sB}, {mlsh}")
    A(f"s_add_u32 {sCNT}, {sCNT}, {ML_BASE}")
    A(f"s_mov_b32 {sT2}, {LOG2E}")
    A(f"s_cmp_lg_u32 {sHW}, 3")
    A("s_cbranch_scc1 L_nocal")
    if pubmask:
        span = NS * (pubmask + 1)
        A(f"s_and_b32 s64, {sID}, {(256 - span) & 0xff}")
        A("s_lshl_b32 s64, s64, 7")
        A(f"v_lshrrev_b32 v8, 3, v{vLANE}")
        A(f"v_mul_u32_u24 v8, {8 * (pubmask + 1)}, v8")
        A(f"v_and_b32 v9, 7, v{vLANE}")
        A(f"v_add3_u32 v8, v8, v9, {8 * pubsel}" if 8 * pubsel <= 64 else "ERR")
        A("v_lshlrev_b32 v44, 7, v8")
    else:
        A(f"s_and_b32 s64, {sID}, {256 - NS}")
        A("s_lshl_b32 s64, s64, 7")
        A(f"v_lshlrev_b32 v44, 7, v{vLANE}")
    A(f"v_mov_b32 v93, {sTAG}")
    A(f"v_mov_b32 v95, {sTAG}")
    HG = 24
    A(f"v_mul_u32_u24 v8, 57, v{vLANE}")
    A("v_lshrrev_b32 v8, 9, v8")
    A("v_mul_u32_u24 v9, 9, v8")
    A(f"v_sub_u32 v9, v{vLANE}, v9")
    A(f"v_mul_u32_u24 v11, {GU_ROW}, v8")
    A("v_lshl_add_u32 v11, v9, 4, v11")
    A(f"s_mul_i32 {sT0}, {sB}, 144")
    A(f"s_add_u32 {sT0}, {sT0}, {GU_BASE}")
    A(f"v_add_u32 v11, {sT0}, v11")
    A("v_mul_u32_u24 v12, 72, v8")
    A("v_lshl_add_u32 v12, v9, 3, v12")
    A(f"v_add_u32 v12, {LDS_G}, v12")
    A(f"v_mov_b32 v13, {OOB}")
    A("v_cmp_gt_u32 s[70:71], 1, v8")
    A(f"v_lshl_add_u32 v75, v{vN}, 2, v{vG}")
    A("v_cmp_gt_u32 s[72:73], 18, v75")
    A("v_lshlrev_b32 v75, 2, v75")
    A("v_cndmask_b32 v13, v13, v11, s[70:71]")
    A(f"v_lshlrev_b32 v76, 2, v{vLANE}")
    def wait_seq(seq, tile=False):
        l = newlab("cw")
        A(f"s_mov_b32 {sSPIN}, 0")
        A.lab(l)
        A("s_sleep 4")
        A("ds_read_b64 v[8:9], v71 offset:16")
        if tile: A("ds_read_b32 v10, v71 offset:12")
        A(f"s_add_u32 {sSPIN}, {sSPIN}, 1")
        A("s_waitcnt lgkmcnt(0)")
        A("v_readfirstlane_b32 s67, v9")
        if tile: A("v_readfirstlane_b32 s66, v10")
        A(f"s_cmp_ge_u32 {sSPIN}, {spin}")
        A(f"s_cbranch_scc1 {l}x")
        A(f"s_cmp_lt_u32 s67, {seq}")
        A(f"s_cbranch_scc1 {l}")
        if tile:
            A("s_cmp_lt_u32 s66, 4")
            A(f"s_cbranch_scc1 {l}")
        A.lab(l + "x")
    for k, c in enumerate(CP):
        nominal = sum(2 * (TK if i < 4 else TV) for i in range(c))
        wait_seq(c + 1, tile=(k == gck))
        l2 = newlab("cs")
        if pubmask:
            A(f"s_and_b32 {sT0}, {sID}, {pubmask << 3}")
            A(f"s_cmp_lg_u32 {sT0}, {pubsel << 3}")
            A(f"s_cbranch_scc1 {l2}")
        A(f"ds_read_b32 v92, v71 offset:{32 + 4*c}")
        A("s_waitcnt lgkmcnt(0)")
        A("v_mov_b32 v94, v92")
        A(f"s_lshl_b32 {sT0}, {sID}, 7")
        A(f"s_add_u32 {sT0}, {sT0}, {TS_BASE + k*32768}")
        A("s_mov_b64 exec, 0xff")
        A(f"buffer_store_dwordx4 v[92:95], v69, {srd(rWS)}, {sT0} offen {tst}")
        A("s_mov_b64 exec, -1")
        A.lab(l2)
        if k == gck and "G" not in abl: gu_publish()
        wait_seq(c + 2)
        A(f"s_add_u32 {sT0}, s64, {TS_BASE + k*32768}")
        A("v_mov_b32 v79, 0")
        A("v_mov_b32 v78, 0")
        if NS == 32: A("s_mov_b32 exec_hi, 0")
        elif NS < 32: A(f"s_mov_b64 exec, {(1 << NS) - 1}")
        A(f"buffer_load_dwordx2 v[78:79], v44, {srd(rWS)}, {sT0} offen {tld}")
        hh = (k == gck and "G" not in abl and "h" not in abl)
        def ld_gu2(fl=hld):
            A(f"s_mov_b32 {sT0}, {7*GU_ROW}")
            A(f"buffer_load_dwordx4 v[24:27], v11, {srd(rWS)}, 0 offen {fl}")
            A(f"buffer_load_dwordx4 v[28:31], v13, {srd(rWS)}, {sT0} offen {fl}")
        def ck_gu2():
            A(f"v_mov_b32 v14, {sTAGX}")
            A("v_cndmask_b32 v29, v14, v29, s[70:71]")
            A("v_cndmask_b32 v31, v14, v31, s[70:71]")
            tagcheck([25, 27, 29, 31], sTAG=sTAGX)
        if hh:
            A("s_mov_b32 exec_lo, -1")
            A("s_mov_b32 exec_hi, 0x7fffffff")
            ld_gu2()
        A("s_mov_b64 exec, -1")
        A(f"s_waitcnt vmcnt({2 if hh else 0})")
        A(f"v_cmp_eq_u32 vcc, {sTAG}, v79")
        A("v_sub_u32 v78, v78, v8")
        A("v_cvt_f32_i32 v78, v78")
        A("s_bcnt1_i32_b64 s65, vcc")
        A("v_cndmask_b32 v78, 0, v78, vcc")
        dpp_reduce([78], "v_add_f32")
        l3 = newlab("cf")
        A(f"s_cmp_lt_u32 s65, {NS // 2}")
        A(f"s_cbranch_scc1 {l3}")
        A("v_cvt_f32_u32 v9, s65")
        A("v_rcp_f32 v9, v9")
        A("s_nop 0")
        A("v_mul_f32 v78, v78, v9")
        A("v_cvt_i32_f32 v78, v78")
        A("v_add_u32 v78, v78, v8")
        A(f"v_subrev_u32 v78, {(nominal - MG) & 0xffffffff}, v78")
        A("s_mov_b32 exec_lo, 0")
        A("s_mov_b32 exec_hi, 0x80000000")
        A("ds_write_b32 v71, v78 offset:8")
        A("s_mov_b64 exec, -1")
        A.lab(l3)
        if hh:
            A("s_mov_b32 exec_hi, 0x7fffffff")
            exchange("L_h", gu_store, ld_gu2, None, ck_gu2, 0, hsleep, 4, preloaded=True)
            A("s_mov_b32 exec_lo, -1")
            A("s_mov_b32 exec_hi, 0x7fffffff")
            A("ds_write2_b32 v12, v24, v26 offset0:0 offset1:1")
            A("s_mov_b64 exec, s[70:71]")
            A("ds_write2_b32 v12, v28, v30 offset0:126 offset1:127")
            A("s_mov_b64 exec, -1")
            A("s_waitcnt lgkmcnt(0)")
            for r in range(8):
                A(f"ds_read_b32 v{24+r}, v75 offset:{LDS_G + r*72}")
            A("s_waitcnt lgkmcnt(0)")
            for m in range(2):
                A(f"v_add_f32 v{24+4*m}, v{24+4*m}, v{25+4*m}")
                A(f"v_add_f32 v{26+4*m}, v{26+4*m}, v{27+4*m}")
                A(f"v_add_f32 v{88+m}, v{24+4*m}, v{26+4*m}")
            bf16_round(88, 88); bf16_round(89, 89)
            A(f"v_mul_f32 v{vCO}, v88, v89")
            A(f"v_cvt_pk_bf16_f32 v{vCO}, v{vCO}, v{vCO}")
            A(f"v_cndmask_b32 v{vCO}, 0, v{vCO}, s[72:73]")
            A(f"ds_write_b32 v76, v{vCO} offset:{LDS_H}")
            stamp(4)
    A.lab("L_nocal")
    A("s_waitcnt vmcnt(0) lgkmcnt(0)")
    stamp(5)
    def weights():
        A("v_max3_f32 v80, v48, v50, v52")
        A("v_max_f32 v80, v80, v54")
        for w in range(4): A(f"v_sub_f32 v{48+2*w}, v{48+2*w}, v80")
        for w in range(4): A(f"v_mul_f32 v{48+2*w}, {sT2}, v{48+2*w}")
        for w in range(4): A(f"v_exp_f32 v{48+2*w}, v{48+2*w}")
        A("s_nop 0")
        A("v_mul_f32 v82, v48, v49")
        for w in range(1, 4): A(f"v_fmac_f32 v82, v{48+2*w}, v{49+2*w}")
    if prew:
        A(f"s_mov_b32 {sSPIN}, 0")
        A.lab("L_mlw")
        A(f"s_sleep {wsleep}")
        A(f"ds_read_b128 v[48:51], v70 offset:{LDS_ML}")
        A(f"ds_read_b128 v[52:55], v70 offset:{LDS_ML+16}")
        A(f"s_add_u32 {sSPIN}, {sSPIN}, 1")
        A("s_waitcnt lgkmcnt(0)")
        A("v_or3_b32 v9, v49, v51, v53")
        A("v_or_b32 v9, v9, v55")
        A("s_nop 0")
        A(f"v_readfirstlane_b32 {sT0}, v9")
        A(f"s_cmp_ge_u32 {sSPIN}, {spin*4}")
        A("s_cbranch_scc1 L_mlw2")
        A(f"s_cmp_lt_i32 {sT0}, 0")
        A("s_cbranch_scc1 L_mlw")
        A.lab("L_mlw2")
        weights()
        if prew == 2:
            A(f"s_cmp_lg_u32 {sHW}, 2")
            A("s_cbranch_scc1 L_noml0")
            if tml:
                A("s_memrealtime s[76:77]")
                A("s_waitcnt lgkmcnt(0)")
                A("s_and_b32 s76, s76, 0xffff")
                A("v_or_b32 v80, s76, v80")
            A(f"s_mov_b64 exec, {(1 << R) - 1}")
            A(f"buffer_store_dwordx4 v[80:83], v65, {srd(rWS)}, {sCNT} offen {mlst}")
            A("s_mov_b64 exec, -1")
            A.lab("L_noml0")
    if hprio: A(f"s_setprio {hprio}")
    A("s_barrier")
    if ts: stamp(1)
    if not prew:
        A(f"ds_read_b128 v[48:51], v70 offset:{LDS_ML}")
        A(f"ds_read_b128 v[52:55], v70 offset:{LDS_ML+16}")
    for w in range(4):
        A(f"ds_read_b32 v{56+w}, v66 offset:{LDS_O + w*512}")
    if not prew:
        A("s_waitcnt lgkmcnt(4)")
        weights()
    A("s_waitcnt lgkmcnt(0)")
    A("v_mul_f32 v10, v48, v56")
    for w in range(1, 4):
        A(f"v_fmac_f32 v10, v{48+2*w}, v{56+w}")
    A(f"v_cvt_pk_bf16_f32 v{vCO}, v10, v10")
    A(f"s_cmp_lg_u32 {sHW}, {99 if prew == 2 else 2}")
    A("s_cbranch_scc1 L_noml")
    if tml:
        A("s_memrealtime s[76:77]")
        A("s_waitcnt lgkmcnt(0)")
        A("s_and_b32 s76, s76, 0xffff")
        A("v_or_b32 v80, s76, v80")
    A(f"s_mov_b64 exec, {(1 << R) - 1}")
    A(f"buffer_store_dwordx4 v[80:83], v65, {srd(rWS)}, {sCNT} offen {mlst}")
    A("s_mov_b64 exec, -1")
    A.lab("L_noml")
    if ts: stamp(2)
    if pack36:
        for i in range(4):
            A(f"v_mov_b32_dpp v{12+i}, v{vMK[i]} row_shr:8 row_mask:0xf bank_mask:0xc")
    a = sel(vCO, 0)
    A("s_nop 1")
    for t in range(8):
        an = vAop[aop_flip[0]]; aop_flip[0] ^= 1
        for cg in range(4 if pack36 else 5):
            mfma(vACC + 4 * cg if cg < 4 else 84, a, WBUF + 20 * t + 4 * cg, first=(t == 0))
            if t < 7 and cg < 2:
                for i in (2 * cg, 2 * cg + 1):
                    A(f"v_and_b32_dpp v{an+i}, v{vCO}, v{vMK[i]} row_newbcast:{t+1} row_mask:0xf bank_mask:0xf")
            if pack36 and t % 2 == 0 and cg >= 2:
                for i in (2 * (cg - 2), 2 * (cg - 2) + 1):
                    A(f"v_mov_b32 v{44+i}, v{a+i}")
        if pack36 and t % 2 == 0:
            for i in range(4):
                A(f"v_and_b32_dpp v{44+i}, v{vCO}, v{12+i} row_newbcast:{t+1} row_mask:0xf bank_mask:0xc")
            A("s_nop 1")
            mfma(84, 44, WBUF + 20 * t + 16, first=(t == 0))
        a = an
    A("s_nop 3")
    A("s_mov_b32 exec_hi, 0")
    for cg in range(4):
        A(f"ds_write_b128 v67, v[{vACC+4*cg}:{vACC+4*cg+3}] offset:{LDS_A + cg*512}")
    if pack36:
        A("s_mov_b64 exec, -1")
        A("s_nop 4")
        for i in range(4): A(f"v_mov_b32 v{44+i}, v{84+i}")
        A("s_nop 1")
        for i in range(4): A(f"v_permlane32_swap_b32 v{44+i}, v{84+i}")
        A("s_nop 1")
        for i in range(4): A(f"v_add_f32_dpp v{44+i}, v{84+i}, v{44+i} row_shl:8 row_mask:0xf bank_mask:0x3")
        A("s_mov_b32 exec_hi, 0")
        A("s_mov_b32 exec_lo, 0x00ff00ff")
        A(f"ds_write_b128 v67, v[44:47] offset:{LDS_A + 2048}")
    else:
        A("s_mov_b32 exec_lo, 0x00ff00ff")
        A(f"ds_write_b128 v67, v[84:87] offset:{LDS_A + 2048}")
    if bar4:
        A("s_mov_b64 exec, -1")
        A("s_waitcnt lgkmcnt(0)")
        if ts: stamp(4)
        A("s_barrier")
    else:
        A("s_mov_b64 exec, 1")
        A("s_waitcnt lgkmcnt(0)")
        A("ds_add_u32 v71, v72")
        A("s_mov_b64 exec, -1")
        if ts: stamp(4)
        lds_wait("L_hw", 8)
    if ts: stamp(7)
    record_store()
    A(f"s_cmp_lg_u32 {sHW}, 3")
    A("s_cbranch_scc1 L_nox")
    A("s_nop 1")
    record_store(extra=1)
    A.lab("L_nox")
    if early:
        A(f"s_cmp_lg_u32 {sHW}, 2")
        A("s_cbranch_scc1 L_nox2")
        record_store(back=3)
        A.lab("L_nox2")
    stamp(6)
    if relayout:
        A("s_branch L_fin" if stamps else "s_endpgm")
        hl = A.L[mark_helper:]
        del A.L[mark_helper:]
        i = A.L.index("@@HELPER@@")
        A.L[i:i+1] = hl
    A.lab("L_fin")
    stamp_flush()
    A.lab("L_end")
    A("s_endpgm")
    A.lab("L_codeend")

    out = HEADER + DOC
    out += f"; @launch grid=(256,1,1) block=(512,1,1) lds={LDS_BYTES}\n"
    out += '.amdgcn_target "amdgcn-amd-amdhsa--gfx950"\n.text\n'
    out += f".globl {KNAME}\n.p2align 8\n.type {KNAME},@function\n"
    out += "\n".join(A.L) + "\n"
    out += '.section .rodata,"a"\n.p2align 6\n'
    out += f""".amdhsa_kernel {KNAME}
  .amdhsa_next_free_vgpr 256
  .amdhsa_next_free_sgpr 102
  .amdhsa_accum_offset 256
  .amdhsa_group_segment_fixed_size 0
  .amdhsa_kernarg_size 96
  .amdhsa_user_sgpr_count 2
  .amdhsa_user_sgpr_kernarg_segment_ptr 1
  .amdhsa_system_sgpr_workgroup_id_x 1
.end_amdhsa_kernel
"""
    return out

if __name__ == "__main__":
    import json
    kw = json.loads(sys.argv[1]) if len(sys.argv) > 1 else {}
    sys.stdout.write(gen(**kw))
```
